```python
import torch

def _softmax(x, axis=-1):
    return torch.softmax(x, dim=axis)

def _gelu(x):
    return torch.nn.functional.gelu(x, approximate='tanh')

def _silu(x):
    return torch.nn.functional.silu(x)

def _sigmoid(x):
    return torch.sigmoid(x)

def _layernorm(x, axis=-1, eps=1e-05):
    m = x.mean(dim=axis, keepdim=True)
    v = x.var(dim=axis, keepdim=True, unbiased=False)
    return (x - m) / torch.sqrt(v + eps)

def _scatter_add(tgt, idx, src, axis=0):
    return tgt.clone().index_add_(axis, idx, src)

def _segment_sum(src, seg, n):
    out = torch.zeros((n,) + src.shape[1:], dtype=src.dtype)
    return out.index_add_(0, seg, src)

def _pad(x, pw):
    flat = tuple((v for pair in reversed(pw) for v in pair))
    return torch.nn.functional.pad(x, flat)
kernel_name = 'adaLN_cond__compressed_kv_cla__swiglu_ffn__prompt'

def setup_inputs():

    _w = lambda a: (lambda t: t.to(torch.bfloat16) if t.is_floating_point() else t)(torch.as_tensor(a))

    def _A_setup():
        B, H, Sq, Sk, D, M = (1, 32, 2048, 2048, 128, 512)
        Dc = 4 * D
        return {'x': _w((lambda *s: torch.randn(*s, dtype=torch.bfloat16) * 0.05)(B, Sq, M)), 'c_kv': _w((lambda *s: torch.randn(*s, dtype=torch.bfloat16) * 1.6)(B, Sk, Dc)), 'w_q': _w((lambda *s: torch.randn(*s, dtype=torch.bfloat16) * 0.8)(M, H, D) * M ** (-0.5)), 'w_uk': _w((lambda *s: torch.randn(*s, dtype=torch.bfloat16) * 0.8)(Dc, H, D) * Dc ** (-0.5)), 'w_uv': _w((lambda *s: torch.randn(*s, dtype=torch.bfloat16) * 1.6)(Dc, H, D) * Dc ** (-0.5)), 'w_o': _w((lambda *s: torch.randn(*s, dtype=torch.bfloat16) * 1.6)(H, D, M) * (H * D) ** (-0.5))}
    _A_in = _A_setup()

    def _B_setup():
        B, S, D, F = (1, 2048, 512, 1792)
        return {'x': _w((lambda *s: torch.randn(*s, dtype=torch.bfloat16) * 0.05)(B, S, D)), 'w_gate': _w((lambda *s: torch.randn(*s, dtype=torch.bfloat16) * 0.05)(D, F)), 'w_up': _w((lambda *s: torch.randn(*s, dtype=torch.bfloat16) * 0.05)(D, F)), 'w_down': _w((lambda *s: torch.randn(*s, dtype=torch.bfloat16) * 0.05)(F, D))}
    _B_in = _B_setup()
    return {'A_x': _A_in['x'], 'A_c_kv': _A_in['c_kv'], 'A_w_q': _A_in['w_q'], 'A_w_uk': _A_in['w_uk'], 'A_w_uv': _A_in['w_uv'], 'A_w_o': _A_in['w_o'], 'B_x': _B_in['x'], 'B_w_gate': _B_in['w_gate'], 'B_w_up': _B_in['w_up'], 'B_w_down': _B_in['w_down'], 'c': _w((lambda *s: torch.randn(*s, dtype=torch.bfloat16) * 0.1)(1, 512) * 8.0), 'w_mod': _w((lambda *s: torch.randn(*s, dtype=torch.bfloat16) * 0.1)(512, 6 * 512) * 512 ** (-0.5) * 8.0)}

def reference(A_x, A_c_kv, A_w_q, A_w_uk, A_w_uv, A_w_o, B_x, B_w_gate, B_w_up, B_w_down, c, w_mod):

    def _A_ref(x, c_kv, w_q, w_uk, w_uv, w_o):
        B, Sq, M = (x.shape[0], x.shape[1], x.shape[2])
        Sk = c_kv.shape[1]
        H, D = (w_q.shape[1], w_q.shape[2])
        q = torch.einsum('bqm,mhd->bhqd', x, w_q)
        k = torch.einsum('bkc,chd->bhkd', c_kv, w_uk)
        v = torch.einsum('bkc,chd->bhkd', c_kv, w_uv)
        scores = torch.einsum('bhqd,bhkd->bhqk', q, k) * D ** (-0.5)
        off = Sk - Sq
        qi = torch.arange(Sq)[:, None]
        kj = torch.arange(Sk)[None, :]
        cmask = kj <= qi + off
        scores = torch.where(cmask[None, None], scores, -1000000000.0)
        p = _softmax(scores, axis=-1)
        ctx = torch.einsum('bhqk,bhkd->bhqd', p, v)
        return torch.einsum('bhqd,hdm->bqm', ctx, w_o)

    def _B_ref(x, w_gate, w_up, w_down):
        g = _silu(x @ w_gate)
        u = x @ w_up
        return g * u @ w_down
    x = A_x
    mod = (_silu(c) @ w_mod).reshape(c.shape[0], 6, 1, -1)
    sa, ca, ga, sb, cb, gb = (mod[:, 0].clone(), mod[:, 1].clone(), mod[:, 2].clone(), mod[:, 3].clone(), mod[:, 4].clone(), mod[:, 5].clone())
    h = _layernorm(x, axis=-1) * (1 + ca) + sa
    x = x + ga * _A_ref(h, A_c_kv, A_w_q, A_w_uk, A_w_uv, A_w_o)
    h = _layernorm(x, axis=-1) * (1 + cb) + sb
    x = x + gb * _B_ref(h, B_w_gate, B_w_up, B_w_down)
    return x
```

```python
class Gen:
    def __init__(self):
        self.L = []
        self.vm = []
        self.uid = 0
    def __call__(self, *ss):
        for s in ss:
            if isinstance(s, (list, tuple)):
                self(*s)
            elif s:
                self.L.append(s)
    def label(self, name):
        self.L.append(name + ":")
    def newlabel(self, base):
        self.uid += 1
        return f"L_{base}_{self.uid}"
    def vmem(self, instr, tag=None):
        self.L.append(instr); self.vm.append(tag)
    def vm_note(self, tag):
        self.vm.append(tag)
    def vm_count_after(self, tag):
        idx = max(i for i, t in enumerate(self.vm) if t == tag)
        return len(self.vm) - 1 - idx
    def wait_vm(self, tag, extra=""):
        n = self.vm_count_after(tag)
        assert n <= 63, f"vmcnt {n} too large for tag {tag}"
        self.L.append(f"s_waitcnt vmcnt({n}){extra}")
    STAMP = False
    def stamp(self, name="", cyc=False):
        if not Gen.STAMP: return
        if not hasattr(self, 'stamps'): self.stamps = []
        r = 60 + 2 * len(self.stamps)
        assert r <= 98
        self.stamps.append(name)
        self.L.append(f"s_memtime s[{r}:{r+1}]" if cyc else f"s_memrealtime s[{r}:{r+1}]")
    def dump_stamps(self, wave_sreg, slot):
        if not Gen.STAMP: return
        n = len(self.stamps)
        self(f"s_load_dwordx2 s[56:57], s[0:1], {KA['ws']}", "s_waitcnt lgkmcnt(0)", "s_mov_b32 s58, 0x10000000", "s_mov_b32 s59, 0x20000")
        self(f"s_lshl_b32 s54, s2, 3", f"s_add_u32 s54, s54, s{wave_sreg}", "s_lshl_b32 s54, s54, 7", f"s_add_u32 s54, s54, {hex(WS_T + slot * 0x40000)}")
        for i in range(n):
            self(f"v_mov_b32 v14, s{60+2*i}", f"v_mov_b32 v15, {i*4}", "s_nop 0", "buffer_store_dword v14, v15, s[56:59], s54 offen")
        self("s_waitcnt vmcnt(0)")
        print("stamps slot", slot, self.stamps)
    def text(self):
        return "\n".join(self.L) + "\n"

def vr(b, n=1, k="v"):
    return f"{k}{b}" if n == 1 else f"{k}[{b}:{b+n-1}]"
def ar(b, n=1):
    return vr(b, n, "a")
def sr(b, n=1):
    return vr(b, n, "s")

KA = dict(x=0, ckv=8, wq=16, wuk=24, wuv=32, wo=40, bx=48, wg=56, wu=64, wd=72, c=80, wmod=88, out=96, dbg=104, ws=112)
SZ = dict(x=2048*512*2, ckv=2048*512*2, wq=512*4096*2, wuk=512*4096*2, wuv=512*4096*2, wo=4096*512*2,
          wg=512*1792*2, wu=512*1792*2, wd=1792*512*2, c=512*2, wmod=512*3072*2, out=2048*512*2, dbg=256, ws=0x10000000)
WS_MOD  = 0x0000000
WS_STAT = 0x0010000
WS_T    = 0x8000000
WS_H    = 0x0100000
WS_X1   = 0x0400000
WS_H2   = 0x0800000
WS_ACT  = 0x0A00000
WS_KF   = 0x2000000
WS_VF   = 0x3000000
WS_CTX  = 0x4000000

def load_srd(g, s, name, tmp=None):
    g(f"s_load_dwordx2 {sr(s,2)}, s[0:1], {KA[name]}")
def finish_srd(g, s, name):
    g(f"s_mov_b32 s{s+2}, {hex(SZ[name])}", f"s_mov_b32 s{s+3}, 0x20000")

def kernel_header(name):
    return f""".globl {name}
.p2align 8
.type {name},@function
{name}:
"""
def kernel_desc(name, nv=256, ao=128, ns=102):
    return f""".p2align 6
.amdhsa_kernel {name}
  .amdhsa_next_free_vgpr {nv}
  .amdhsa_next_free_sgpr {ns}
  .amdhsa_accum_offset {ao}
  .amdhsa_group_segment_fixed_size 0
  .amdhsa_kernarg_size 120
  .amdhsa_user_sgpr_count 2
  .amdhsa_user_sgpr_kernarg_segment_ptr 1
  .amdhsa_system_sgpr_workgroup_id_x 1
.end_amdhsa_kernel
"""

def wave_sum64(g, v, t):
    for r in (8, 4, 2, 1):
        g("s_nop 1", f"v_add_f32_dpp v{v}, v{v}, v{v} row_ror:{r} row_mask:0xf bank_mask:0xf")
    g(f"v_mov_b32 v{t}, v{v}", "s_nop 1", f"v_permlane16_swap_b32 v{v}, v{t}", f"v_add_f32 v{v}, v{v}, v{t}")
    g(f"v_mov_b32 v{t}, v{v}", "s_nop 1", f"v_permlane32_swap_b32 v{v}, v{t}", f"v_add_f32 v{v}, v{v}, v{t}")
```

```python
from core import *
import p_kv
from p_kv import emit, V_W0, V_W1, V_L16, V_TR, V_FR, V_ACC, setup_dma128, setup_tr128, gemm_res_loop

V_CUR, V_NXT, V_L0, V_L1 = 1, 2, 3, 4
V_NEG = 8
V_S = 16
V_P = 48
V_O = 64
A_Q = 0
A_F = 32
S_WQ, S_WS = 4, 8
sWAVE, sHEAD, sI, sISA, sSUB, sT16, sNB2, sNA2, sT, sCNT = 20, 21, 22, 23, 24, 25, 26, 27, 28, 29
sKF, sVF, sNAo, sNBo, sA4, sKO, sVO, sM0K, sT1, sT2, sT3, sSLOT, sRESTART = 30, 31, 32, 33, 34, 35, 36, 37, 38, 39, 40, 41, 42
sMASK = 44
sWB, sM0B = 52, 53
LDS_FLAG = 0x20000
OPT = {}

def fr(i, n=8): return f"a[{A_F+4*(i%n)}:{A_F+4*(i%n)+3}]"
def Sreg(buf, qs, kb): return V_S + buf*16 + (qs*2+kb)*4
def v4(b): return f"v[{b}:{b+3}]"

def reads_for(gi):
    a = V_CUR if gi < 16 else V_NXT
    gg = gi % 16
    it, t = gg >> 3, gg & 7
    return (f"ds_read_b128 {fr(2*gi)}, v{a} offset:{it*8192 + t*1024}",
            f"ds_read_b128 {fr(2*gi+1)}, v{a} offset:{16384 + it*8192 + t*1024}")

def gen_iter(g, it, qk, sm, pv, prev_sm, czero=False, dmas=None, lookahead=True):
    dmas = dmas or {}
    Sc = V_S + (1-it)*16
    Sp = V_S + it*16
    Pn = V_P + (1-it)*8; Pp = V_P + it*8
    for t in range(8):
        gi = it*8 + t
        kb, s = t >> 2, t & 3
        kf, vf = fr(2*gi), fr(2*gi+1)
        M = [None]*4
        if qk:
            for qs in range(2):
                d = Sreg(it, qs, kb)
                c = ("0" if czero else v4(V_NEG+4*qs)) if s == 0 else v4(d)
                M[qs] = f"v_mfma_f32_16x16x32_bf16 {v4(d)}, {kf}, a[{A_Q+(qs*4+s)*4}:{A_Q+(qs*4+s)*4+3}], {c}"
        if pv:
            for qs in range(2):
                d = V_O + (qs*8+t)*4
                M[2+qs] = f"v_mfma_f32_16x16x32_bf16 {v4(d)}, {vf}, {v4(Pp+4*qs)}, {v4(d)}"
        E0 = E1 = C = A0 = A1 = None
        if sm:
            E0, E1 = f"v_exp_f32 v{Sc+2*t}, v{Sc+2*t}", f"v_exp_f32 v{Sc+2*t+1}, v{Sc+2*t+1}"
        if t > 0 and sm:
            p0 = Sc + 2*(t-1); lq = V_L0 + ((t-1) >> 2); dst = Pn + t-1
        elif t == 0 and prev_sm:
            p0 = Sp + 14; lq = V_L1; dst = Pp + 7
        else:
            p0 = None
        if p0 is not None:
            C = f"v_cvt_pk_bf16_f32 v{dst}, v{p0}, v{p0+1}"
            A0, A1 = f"v_add_f32 v{lq}, v{lq}, v{p0}", f"v_add_f32 v{lq}, v{lq}, v{p0+1}"
        R0 = R1 = None
        if lookahead or gi + 2 < 16:
            R0, R1 = reads_for(gi + 2)
        D = dmas.get(gi, [])
        W = "s_waitcnt lgkmcnt(2)" if (R0 is not None) else "s_waitcnt lgkmcnt(0)"
        seq = [M[0], R0, E0, M[1], R1, C, M[2]]
        g([x for x in seq if x])
        emit(g, D)
        if t == 0 and prev_sm and E1 is None and not D: g("s_nop 1")
        g([x for x in [E1, M[3]] if x])
        g(W)
        g([x for x in [A0, A1] if x])
        if not pv and t == 0 and prev_sm: pass

def unit_addr(g):
    g(f"s_add_u32 s{sT1}, s{sT}, 3", f"s_lshl_b32 s{sKO}, s{sT1}, 14", f"s_sub_u32 s{sVO}, s{sKO}, 16384",
      f"s_sub_u32 s{sT2}, s{sT1}, s{sNB2}", f"s_sub_u32 s{sT2}, s{sT2}, 1",
      f"s_bitcmp1_b32 s{sT2}, 0", f"s_cselect_b32 s{sT3}, s{sNAo}, s{sNBo}",
      f"s_and_b32 s{sT2}, s{sT2}, 2", f"s_lshl_b32 s{sT2}, s{sT2}, 13", f"s_add_u32 s{sT3}, s{sT3}, s{sT2}",
      f"s_cmp_le_u32 s{sT1}, s{sNB2}", f"s_cselect_b32 s{sKO}, s{sKO}, s{sT3}", f"s_cselect_b32 s{sVO}, s{sVO}, s{sT3}",
      f"s_add_u32 s{sKO}, s{sKO}, s{sKF}", f"s_add_u32 s{sVO}, s{sVO}, s{sVF}",
      f"s_and_b32 s{sT1}, s{sT1}, 3", f"s_lshl_b32 s{sT1}, s{sT1}, 15", f"s_add_u32 s{sM0K}, s{sT1}, s{sA4}")

def unit_dma_list():
    d = {}
    for k in range(4):
        d[k] = ([f"s_mov_b32 m0, s{sM0K}", "s_nop 0"] if k == 0 else []) + [(f"buffer_load_dwordx4 v{V_L16}, s[{S_WS}:{S_WS+3}], s{sKO} offen offset:{k*1024} lds", 'U')]
        d[4+k] = ([f"s_add_u32 m0, s{sM0K}, 16384", "s_nop 0"] if k == 0 else []) + [(f"buffer_load_dwordx4 v{V_L16}, s[{S_WS}:{S_WS+3}], s{sVO} offen offset:{k*1024} lds", 'U')]
    return d

def step_begin(g, isA):
    if isA: g("s_waitcnt vmcnt(8)")
    g("s_barrier")
    if isA: unit_addr(g)

def step_addr_advance(g):
    g(f"v_mov_b32 v{V_CUR}, v{V_NXT}", f"s_add_u32 s{sSLOT}, s{sSLOT}, 32768", f"s_and_b32 s{sSLOT}, s{sSLOT}, 0x1ffff",
      f"v_add_u32 v{V_NXT}, s{sSLOT}, v{V_L16}")

def uniform_unit(u):
    kblk, vblk = 2*u, max(2*u-2, 0)
    items = [f"s_add_u32 s{sKO}, s{sKF}, {kblk*8192}", f"s_add_u32 s{sVO}, s{sVF}, {vblk*8192}",
             f"s_cmp_eq_u32 s{sISA}, 0", f"s_cselect_b32 s{sKO}, s{sKO}, s{sVO}",
             f"s_lshl_b32 s{sT1}, s{sISA}, 14", f"s_add_u32 s{sT1}, s{sT1}, s{sA4}", f"s_add_u32 m0, s{sT1}, {u*32768}", "s_nop 0"]
    for k in range(4):
        items.append((f"buffer_load_dwordx4 v{V_L16}, s[{S_WS}:{S_WS+3}], s{sKO} offen offset:{k*1024} lds", ('U', u)))
    return items

def cross_g(g, v, t, op):
    g(f"v_mov_b32 v{t}, v{v}", "s_nop 1", f"v_permlane16_swap_b32 v{v}, v{t}", f"{op} v{v}, v{v}, v{t}")
    g(f"v_mov_b32 v{t}, v{v}", "s_nop 1", f"v_permlane32_swap_b32 v{v}, v{t}", f"{op} v{v}, v{v}, v{t}")

def diag_block(g, masked, maxonly=False, addr=V_CUR, noV=False):
    for t in range(8):
        g(f"ds_read_b128 {fr(t,16)}, v{addr} offset:{t*1024}")
    if not maxonly:
        for t in range(7):
            g(f"ds_read_b128 {fr(8+t,16)}, v{addr} offset:{16384+t*1024}")
        g("s_waitcnt lgkmcnt(7)")
    else:
        g("s_waitcnt lgkmcnt(0)")
    for t in range(8):
        kb, s = t >> 2, t & 3
        for qs in range(2):
            if masked and qs == 0 and kb == 1: continue
            d = Sreg(0, qs, kb)
            c = ("0" if maxonly else v4(V_NEG+4*qs)) if s == 0 else v4(d)
            g(f"v_mfma_f32_16x16x32_bf16 {v4(d)}, {fr(t,16)}, a[{A_Q+(qs*4+s)*4}:{A_Q+(qs*4+s)*4+3}], {c}")
    if not maxonly: g(f"ds_read_b128 {fr(15,16)}, v{addr} offset:{16384+7*1024}")
    g("s_nop 7")
    regs = [(qs, kb, r) for qs in range(2) for kb in range(2) for r in range(4)]
    if maxonly:
        for qs, kb, r in regs:
            if masked and qs == 0 and kb == 1: continue
            x = Sreg(0, qs, kb) + r
            if masked and qs == kb:
                g(f"v_cndmask_b32 v{x}, v{V_L0}, v{x}, s[{sMASK+2*r}:{sMASK+2*r+1}]")
            g(f"v_max_f32 v{6+qs}, v{6+qs}, v{x}")
        return
    for qs, kb, r in regs:
        x = Sreg(0, qs, kb) + r
        if masked and qs == 0 and kb == 1: continue
        g(f"v_exp_f32 v{x}, v{x}")
    g("s_nop 0")
    for qs, kb, r in regs:
        x = Sreg(0, qs, kb) + r
        if masked and qs == 0 and kb == 1: continue
        if masked and qs == kb:
            g(f"v_cndmask_b32 v{x}, 0, v{x}, s[{sMASK+2*r}:{sMASK+2*r+1}]")
        g(f"v_add_f32 v{V_L0+qs}, v{V_L0+qs}, v{x}")
    for x in range(8):
        if masked and x in (2, 3): g(f"v_mov_b32 v{V_P+x}, 0")
        else: g(f"v_cvt_pk_bf16_f32 v{V_P+x}, v{V_S+2*x}, v{V_S+2*x+1}")
    g("s_waitcnt lgkmcnt(0)", "s_nop 0")
    for t in range(8):
        for qs in range(2):
            d = V_O + (qs*8+t)*4
            g(f"v_mfma_f32_16x16x32_bf16 {v4(d)}, {fr(8+t,16)}, {v4(V_P+4*qs)}, {v4(d)}")

def phase_att(g):
    g(f"s_load_dwordx2 s[4:5], s[0:1], {KA['wq']}", f"s_load_dwordx2 s[8:9], s[0:1], {KA['ws']}")
    g("v_lshrrev_b32 v14, 6, v0", "v_and_b32 v0, 63, v0", "s_nop 0", f"v_readfirstlane_b32 s{sWAVE}, v14")
    g(f"s_and_b32 s{sHEAD}, s2, 7", f"s_lshl_b32 s{sHEAD}, s{sHEAD}, 2", f"s_bfe_u32 s{sT1}, s2, 0x20003", f"s_add_u32 s{sHEAD}, s{sHEAD}, s{sT1}")
    g(f"s_lshr_b32 s{sI}, s2, 5", f"s_lshr_b32 s{sISA}, s{sWAVE}, 2")
    g(f"s_sub_u32 s{sT1}, 7, s{sWAVE}", f"s_sub_u32 s{sT2}, 15, s{sI}", f"s_cmp_eq_u32 s{sISA}, 0",
      f"s_cselect_b32 s{sSUB}, s{sWAVE}, s{sT1}", f"s_cselect_b32 s{sT3}, s{sT2}, s{sI}")
    g(f"s_lshl_b32 s{sT16}, s{sT3}, 3", f"s_lshl_b32 s{sT1}, s{sSUB}, 1", f"s_add_u32 s{sT16}, s{sT16}, s{sT1}")
    g(f"s_lshl_b32 s{sNB2}, s{sT2}, 1", f"s_lshl_b32 s{sNA2}, s{sI}, 1",
      f"s_lshl_b32 s{sNBo}, s{sT2}, 15", f"s_lshl_b32 s{sNAo}, s{sI}, 15")
    g(f"s_and_b32 s{sA4}, s{sWAVE}, 3", f"s_lshl_b32 s{sA4}, s{sA4}, 12")
    g(f"s_lshl_b32 s{sT1}, s{sHEAD}, 19", f"s_add_u32 s{sT1}, s{sT1}, s{sA4}",
      f"s_add_u32 s{sKF}, s{sT1}, {hex(WS_KF)}", f"s_add_u32 s{sVF}, s{sT1}, {hex(WS_VF)}")
    setup_dma128(g, 8192); setup_tr128(g)
    g(f"v_lshlrev_b32 v{V_L16}, 4, v0")
    g(f"s_lshl_b32 s{sWB}, s{sWAVE}, 17", f"s_lshl_b32 s{sT1}, s{sHEAD}, 8", f"s_add_u32 s{sWB}, s{sWB}, s{sT1}", f"s_lshl_b32 s{sM0B}, s{sWAVE}, 11")
    g("v_lshrrev_b32 v14, 4, v0", "v_lshlrev_b32 v14, 2, v14", "v_and_b32 v15, 15, v0")
    for r in range(4):
        g(f"v_cmp_le_u32 s[{sMASK+2*r}:{sMASK+2*r+1}], v14, v15")
        if r < 3: g("v_add_u32 v14, 1, v14")
    g(f"s_mov_b32 s{sRESTART}, 0")
    g("s_waitcnt lgkmcnt(0)")
    p_kv.finish_srd(g, S_WQ, 'wq'); p_kv.finish_srd(g, S_WS, 'ws')
    g(f"v_mov_b32 v14, {hex(LDS_FLAG)}", "v_mov_b32 v15, 0", "ds_write_b32 v14, v15")
    def dma(c):
        j, q = c >> 2, c & 3
        return [f"s_add_u32 s{sT1}, s{sWB}, {hex(q*0x100000 + j*128)}", f"s_add_u32 m0, s{sM0B}, {hex(c*16384)}",
                (f"buffer_load_dwordx4 v{V_W0}, s[{S_WQ}:{S_WQ+3}], s{sT1} offen lds", ('W', c)),
                (f"buffer_load_dwordx4 v{V_W1}, s[{S_WQ}:{S_WQ+3}], s{sT1} offen offset:1024 lds", ('W', c))]
    def hload(s4):
        out = []
        for t in range(2):
            out.append(f"s_lshl_b32 s{sT1}, s{sT16}, 14")
            out.append(f"s_add_u32 s{sT1}, s{sT1}, {hex(WS_H + t*16384 + s4*4096)}")
            for k in range(4):
                s = s4*4 + k
                out.append((f"buffer_load_dwordx4 a[{(s*2+t)*4}:{(s*2+t)*4+3}], v{V_L16}, s[{S_WS}:{S_WS+3}], s{sT1} offen offset:{k*1024}", ('H', s4)))
        return out
    g.stamp("att_entry")
    emit(g, dma(0)); emit(g, hload(0)); emit(g, dma(1)); emit(g, hload(1)); emit(g, dma(2)); emit(g, hload(2)); emit(g, hload(3))
    for c in range(3, 8): emit(g, dma(c))
    g.wait_vm(('W', 0)); g("s_waitcnt lgkmcnt(0)", "s_barrier")
    g.stamp("q_w0")
    def hook(ks, where):
        if where == 'pre' and ks < 16 and ks % 4 == 0: g.wait_vm(('H', ks // 4))
        if where == 'barrier':
            if ks == 10: emit(g, uniform_unit(0))
            if ks == 18: emit(g, uniform_unit(1))
            if ks == 26: emit(g, uniform_unit(2))
        return False
    gemm_res_loop(g, 2, list(range(8)), {}, dma, lambda j: True, None, hook)
    g.stamp("q_done")
    g("s_nop 7")
    for qs in range(2):
        for s in range(4):
            j, u = s >> 1, s & 1
            a = V_ACC + j*32 + (qs*4 + 2*u)*4; b = a + 4
            for k, (x, y) in enumerate(((a, a+1), (a+2, a+3), (b, b+1), (b+2, b+3))):
                g(f"v_cvt_pk_bf16_f32 v{16+k}, v{x}, v{y}")
            for k in range(4):
                g(f"v_accvgpr_write_b32 a{A_Q+(qs*4+s)*4+k}, v{16+k}")
    def dbg_dump(regs, kind='v'):
        g(f"s_lshl_b32 s{sT1}, s2, 3", f"s_add_u32 s{sT1}, s{sT1}, s{sWAVE}", f"s_lshl_b32 s{sT1}, s{sT1}, 14", f"s_add_u32 s{sT1}, s{sT1}, {hex(WS_T + 0x400000)}")
        g("v_lshlrev_b32 v7, 2, v0", "s_nop 7", "s_nop 7")
        for i, r in enumerate(regs):
            if r[0] == 'a': g(f"v_accvgpr_read_b32 v6, {r}", f"buffer_store_dword v6, v7, s[{S_WS}:{S_WS+3}], s{sT1} offen offset:{(i%16)*256}")
            else: g(f"buffer_store_dword {r}, v7, s[{S_WS}:{S_WS+3}], s{sT1} offen offset:{(i%16)*256}")
            g("s_waitcnt vmcnt(0)")
            if i % 16 == 15: g(f"s_add_u32 s{sT1}, s{sT1}, 4096")
        g("s_endpgm")
    if OPT.get('dbg') == 1: dbg_dump([f"a{i}" for i in range(32)])
    L_START = g.newlabel("att_start")
    g.label(L_START)
    g.vm = [('U', 0)]*4 + [('U', 1)]*4 + [('U', 2)]*4
    for r in range(64): g(f"v_mov_b32 v{V_O+r}, 0")
    g(f"v_mov_b32 v{V_L0}, 0", f"v_mov_b32 v{V_L1}, 0")
    g(f"v_mov_b32 v{V_CUR}, v{V_L16}", f"v_add_u32 v{V_NXT}, 0x8000, v{V_L16}", f"s_mov_b32 s{sSLOT}, 0x8000", f"s_mov_b32 s{sT}, 0")
    g.wait_vm(('U', 1)); g("s_barrier")
    g.stamp("step0"); g.stamp("step0_c", True)
    LA, LB = g.newlabel("pathA"), g.newlabel("pathB")
    LDIAG = g.newlabel("diag")
    def first_part(isA):
        dm = None
        if isA:
            unit_addr(g); dm = unit_dma_list()
        r0, r1 = reads_for(0), reads_for(1)
        g(r0[0], r0[1], r1[0], r1[1], "s_waitcnt lgkmcnt(2)")
        if OPT.get('dbg') == 3:
            g("s_waitcnt lgkmcnt(0)", "v_mfma_f32_16x16x32_bf16 v[16:19], a[32:35], a[0:3], 0", "s_nop 7", "s_nop 7")
            dbg_dump([f"a{i}" for i in range(32, 48)] + [f"a{i}" for i in range(0, 4)] + [f"v{i}" for i in range(16, 20)] + ["v1", "v5"])
        gen_iter(g, 0, True, False, False, False, czero=True, dmas=dm)
        g("s_nop 7")
        skip = g.newlabel("nomax")
        g(f"s_cmp_lg_u32 s{sRESTART}, 0", f"s_cbranch_scc1 {skip}")
        for qs in range(2):
            b = V_S + qs*8
            g(f"v_max3_f32 v6, v{b}, v{b+1}, v{b+2}", f"v_max3_f32 v6, v6, v{b+3}, v{b+4}", f"v_max3_f32 v6, v6, v{b+5}, v{b+6}", f"v_max_f32 v6, v6, v{b+7}")
            cross_g(g, 6, 7, "v_max_f32")
            for k in range(4): g(f"v_sub_f32 v{V_NEG+4*qs+k}, 0, v6")
        g.label(skip)
        if OPT.get('dbg') == 2: dbg_dump([f"v{i}" for i in range(8, 32)] + [f"a{i}" for i in range(32, 64)])
        for qs in range(2):
            for k in range(8): g(f"v_add_f32 v{V_S+qs*8+k}, v{V_S+qs*8+k}, v{V_NEG+4*qs}")
        g("s_nop 1")
    g(f"s_cmp_lg_u32 s{sISA}, 0", f"s_cbranch_scc1 {LA}")
    first_part(False)
    gen_iter(g, 1, True, True, False, False)
    g("s_waitcnt vmcnt(0)")
    g(f"s_sub_u32 s{sCNT}, s{sNB2}, 1")
    lb = g.newlabel("Bloop"); g.label(lb)
    step_begin(g, False); step_addr_advance(g)
    gen_iter(g, 0, True, True, True, True); gen_iter(g, 1, True, True, True, True)
    g(f"s_sub_u32 s{sCNT}, s{sCNT}, 1", f"s_cmp_lg_u32 s{sCNT}, 0", f"s_cbranch_scc1 {lb}")
    step_begin(g, False); step_addr_advance(g)
    gen_iter(g, 0, False, True, True, True); gen_iter(g, 1, False, False, True, True, lookahead=False)
    g.stamp("B_main_done"); g.stamp("Bdone_c", True)
    g(f"s_branch {LDIAG}")
    g.label(LA)
    first_part(True)
    lidle = g.newlabel("Aidle"); lidle_chk = g.newlabel("Aidlechk")
    g(f"s_cmp_eq_u32 s{sNA2}, 0", f"s_cbranch_scc1 {lidle_chk}")
    gen_iter(g, 1, True, True, False, False)
    g(f"s_sub_u32 s{sCNT}, s{sNA2}, 1")
    la = g.newlabel("Aloop"); g.label(la)
    g(f"s_add_u32 s{sT}, s{sT}, 1")
    step_begin(g, True); step_addr_advance(g)
    gen_iter(g, 0, True, True, True, True, dmas=unit_dma_list()); gen_iter(g, 1, True, True, True, True)
    g(f"s_sub_u32 s{sCNT}, s{sCNT}, 1", f"s_cmp_lg_u32 s{sCNT}, 0", f"s_cbranch_scc1 {la}")
    g(f"s_add_u32 s{sT}, s{sT}, 1")
    step_begin(g, True); step_addr_advance(g)
    gen_iter(g, 0, False, True, True, True, dmas=unit_dma_list()); gen_iter(g, 1, False, False, True, True, lookahead=False)
    g.label(lidle_chk)
    g("s_waitcnt lgkmcnt(0)")
    g(f"s_cmp_ge_u32 s{sT}, s{sNB2}", f"s_cbranch_scc1 {LDIAG}")
    g.label(lidle)
    g(f"s_add_u32 s{sT}, s{sT}, 1")
    step_begin(g, True)
    for k, items in sorted(unit_dma_list().items()): emit(g, items)
    g(f"s_cmp_lt_u32 s{sT}, s{sNB2}", f"s_cbranch_scc1 {lidle}")
    g.label(LDIAG)
    LD_B = g.newlabel("d0B"); LD_go = g.newlabel("d0go")
    g(f"s_cmp_eq_u32 s{sISA}, 0", f"s_cbranch_scc1 {LD_B}")
    g(f"s_add_u32 s{sT}, s{sT}, 1")
    step_begin(g, True)
    for k, items in sorted(unit_dma_list().items()): emit(g, items)
    g(f"s_branch {LD_go}")
    g.label(LD_B); g("s_barrier")
    g.label(LD_go)
    g.stamp("diag_start")
    g(f"s_add_u32 s{sT1}, s{sNB2}, s{sISA}", f"s_add_u32 s{sT2}, s{sT1}, 1", f"s_and_b32 s{sT2}, s{sT2}, 3", f"s_lshl_b32 s{sT2}, s{sT2}, 15",
      f"s_add_u32 s{sT3}, s{sT1}, 3", f"s_and_b32 s{sT3}, s{sT3}, 3", f"s_lshl_b32 s{sT3}, s{sT3}, 15",
      f"v_add_u32 v{V_CUR}, s{sT2}, v{V_L16}", f"v_add_u32 v{V_NXT}, s{sT3}, v{V_L16}")
    Lm0, Lb1, Lfin = g.newlabel("m0"), g.newlabel("b1"), g.newlabel("fin")
    g(f"s_cmp_eq_u32 s{sSUB}, 0", f"s_cbranch_scc1 {Lm0}")
    diag_block(g, False); g(f"s_branch {Lb1}")
    g.label(Lm0); diag_block(g, True)
    g.label(Lb1)
    g("s_waitcnt vmcnt(0)", "s_barrier")
    g(f"s_cmp_eq_u32 s{sSUB}, 0", f"s_cbranch_scc1 {Lfin}")
    g(f"s_mov_b32 s{sCNT}, 1", f"v_add_u32 v{V_CUR}, 8192, v{V_CUR}")
    Ll, Llast = g.newlabel("dl"), g.newlabel("dlast")
    g.label(Ll)
    g(f"s_cmp_eq_u32 s{sCNT}, s{sSUB}", f"s_cbranch_scc1 {Llast}")
    diag_block(g, False)
    g(f"s_add_u32 s{sCNT}, s{sCNT}, 1", f"v_mov_b32 v{V_CUR}, v{V_NXT}", f"v_add_u32 v{V_NXT}, 8192, v{V_NXT}", f"s_branch {Ll}")
    g.label(Llast); diag_block(g, True)
    g.label(Lfin)
    g.stamp("diag_done")
    cross_g(g, V_L0, 6, "v_add_f32"); cross_g(g, V_L1, 6, "v_add_f32")
    LFB, LOK = g.newlabel("fallback"), g.newlabel("ok")
    g(f"s_cmp_lg_u32 s{sRESTART}, 0", f"s_cbranch_scc1 {LOK}")
    if OPT.get('nocheck'): g(f"s_branch {LOK}")
    g(f"s_mov_b32 s{sT1}, 0x21800000", f"s_mov_b32 s{sT2}, 0x5d800000",
      f"v_cmp_le_f32 vcc, s{sT1}, v{V_L0}", f"v_cmp_le_f32 s[56:57], s{sT1}, v{V_L1}", "s_nop 1", "s_and_b64 s[56:57], s[56:57], vcc",
      f"v_cmp_ge_f32 vcc, s{sT2}, v{V_L0}", "s_nop 1", "s_and_b64 s[56:57], s[56:57], vcc",
      f"v_cmp_ge_f32 vcc, s{sT2}, v{V_L1}", "s_nop 1", "s_and_b64 s[56:57], s[56:57], vcc")
    Lpass = g.newlabel("pass")
    g("s_cmp_eq_u64 s[56:57], exec", f"s_cbranch_scc1 {Lpass}", f"v_mov_b32 v6, {hex(LDS_FLAG)}", "v_mov_b32 v7, 1", "ds_write_b32 v6, v7")
    g.label(Lpass)
    g("s_waitcnt lgkmcnt(0)", "s_barrier", f"v_mov_b32 v6, {hex(LDS_FLAG)}", "ds_read_b32 v7, v6", "s_waitcnt lgkmcnt(0)", "s_nop 0",
      f"v_readfirstlane_b32 s{sT1}, v7", "s_nop 3", f"s_cmp_lg_u32 s{sT1}, 0", f"s_cbranch_scc1 {LFB}")
    g.label(LOK)
    g(f"v_rcp_f32 v{V_L0}, v{V_L0}", f"v_rcp_f32 v{V_L1}, v{V_L1}", "s_nop 7")
    g(f"s_lshl_b32 s{sT1}, s{sT16}, 17", f"s_lshl_b32 s{sT2}, s{sHEAD}, 12", f"s_add_u32 s{sT1}, s{sT1}, s{sT2}", f"s_add_u32 s{sT1}, s{sT1}, {hex(WS_CTX)}")
    for qs in range(2):
        for s in range(4):
            a = V_O + (qs*8 + 2*s)*4
            for k in range(8): g(f"v_mul_f32 v{a+k}, v{a+k}, v{V_L0+qs}")
            for k in range(4): g(f"v_cvt_pk_bf16_f32 v{a+k}, v{a+2*k}, v{a+2*k+1}")
            g(f"buffer_store_dwordx4 v[{a}:{a+3}], v{V_L16}, s[{S_WS}:{S_WS+3}], s{sT1} offen offset:{s*1024}")
        if qs == 0: g(f"s_add_u32 s{sT1}, s{sT1}, 0x20000")
    g.stamp("ctx_stored")
    if Gen.STAMP:
        g("s_waitcnt vmcnt(0)"); g.stamp("att_end"); g.dump_stamps(sWAVE, 2)
    LEND = g.newlabel("attend")
    g(f"s_branch {LEND}")
    g.label(LFB)
    g(f"s_mov_b32 s{sRESTART}, 1", "v_mov_b32 v6, 0xff800000", "v_mov_b32 v7, 0xff800000", f"v_mov_b32 v{V_L0}, 0xff800000")
    g(f"s_cmp_eq_u32 s{sISA}, 0", f"s_cselect_b32 s{sT3}, s{sNB2}, s{sNA2}", f"s_lshl_b32 s{sT3}, s{sT3}, 1", f"s_add_u32 s{sCNT}, s{sT3}, s{sSUB}")
    g(f"s_mov_b32 s{sT}, 0")
    Lf, Lf2 = g.newlabel("fb"), g.newlabel("fbn")
    g.label(Lf)
    g("s_barrier")
    Lnod = g.newlabel("fbnod")
    g(f"s_cmp_eq_u32 s{sISA}, 0", f"s_cbranch_scc1 {Lnod}")
    g(f"s_lshl_b32 s{sKO}, s{sT}, 14", f"s_add_u32 s{sKO}, s{sKO}, s{sKF}", f"s_mov_b32 m0, s{sA4}", "s_nop 0")
    for k in range(4): g(f"buffer_load_dwordx4 v{V_L16}, s[{S_WS}:{S_WS+3}], s{sKO} offen offset:{k*1024} lds")
    g("s_waitcnt vmcnt(0)")
    g.label(Lnod)
    g("s_barrier")
    for jj in range(2):
        Lskip, Lmask, Lnext = g.newlabel("fs"), g.newlabel("fm"), g.newlabel("fx")
        g(f"s_lshl_b32 s{sT1}, s{sT}, 1", f"s_add_u32 s{sT1}, s{sT1}, {jj}", f"v_add_u32 v{V_CUR}, {jj*8192}, v{V_L16}")
        g(f"s_cmp_gt_u32 s{sT1}, s{sCNT}", f"s_cbranch_scc1 {Lnext}", f"s_cmp_eq_u32 s{sT1}, s{sCNT}", f"s_cbranch_scc1 {Lmask}")
        diag_block(g, False, maxonly=True); g(f"s_branch {Lnext}")
        g.label(Lmask); diag_block(g, True, maxonly=True)
        g.label(Lnext)
    g(f"s_add_u32 s{sT}, s{sT}, 1", f"s_add_u32 s{sT1}, s{sNB2}, 2", f"s_cmp_lt_u32 s{sT}, s{sT1}", f"s_cbranch_scc1 {Lf}")
    for qs in range(2):
        cross_g(g, 6+qs, V_L1, "v_max_f32")
        for k in range(4): g(f"v_sub_f32 v{V_NEG+4*qs+k}, 0, v{6+qs}")
    g("s_barrier")
    sv = g.vm; g.vm = []
    for u in range(3): emit(g, uniform_unit(u))
    g.vm = sv
    g(f"s_branch {L_START}")
    g.label(LEND)
```

```python
from core import *

V_C0, V_C1 = 1, 2
V_W0, V_W1, V_L16 = 3, 4, 5
V_TR = 6
V_SR = 10
V_FR = 16
V_ACC = 64
NSLOT = 10
KV_SLOT = [0,1,2,3, 0,1, 2,4,5,6,7,8,9, 3, 0, 1]
KV_ISSUE = {1:[4], 2:[5], 3:[6,7,8,9,10,11,12], 4:[13], 5:[14], 6:[15]}

def setup_tr128(g, nat=True, lane="v0"):
    g(f"v_lshrrev_b32 v14, 4, {lane}", f"v_bfe_u32 v15, {lane}, 2, 2")
    if nat:
        g("v_lshl_add_u32 v6, v14, 3, v15", "v_lshlrev_b32 v6, 7, v6",
          "v_and_b32 v14, 1, v14", "v_lshlrev_b32 v14, 1, v14", "v_lshrrev_b32 v15, 1, v15", "v_or_b32 v14, v14, v15")
    else:
        g("v_lshl_add_u32 v15, v14, 2, v15", "v_lshlrev_b32 v6, 7, v15", "v_bfe_u32 v14, v15, 1, 2")
    g("v_lshl_add_u32 v6, v14, 5, v6", f"v_and_b32 v15, 3, {lane}", "v_lshl_add_u32 v6, v15, 3, v6")
    for cb in range(1, 4):
        g(f"v_xor_b32 v{V_TR+cb}, {cb<<5}, v6")

def setup_dma128(g, stride, nat=True, lane="v0", v0=V_W0, v1=V_W1):
    g(f"v_lshrrev_b32 v14, 3, {lane}", f"s_mov_b32 s55, {stride}", f"v_mul_lo_u32 v{v0}, v14, s55")
    if nat: g("v_bfe_u32 v14, v14, 1, 1")
    else:   g("v_bfe_u32 v14, v14, 1, 2")
    g(f"v_bfe_u32 v15, {lane}, 1, 2", "v_xor_b32 v14, v14, v15",
      f"v_and_b32 v15, 1, {lane}", "v_lshlrev_b32 v15, 4, v15", f"v_add_u32 v{v0}, v{v0}, v15")
    if nat:
        g(f"v_xor_b32 v15, 2, v14", f"v_lshl_add_u32 v{v1}, v15, 5, v{v0}")
    else:
        g(f"v_lshl_add_u32 v{v1}, v14, 5, v{v0}")
    g(f"v_lshl_add_u32 v{v0}, v14, 5, v{v0}", f"v_add_u32 v{v1}, {8*stride - 1024}, v{v1}")

def tr_reads(ks, kk, second, fbase=V_FR):
    fb = ks % 3
    out = []
    for cb in range(4):
        r = fbase + fb * 16 + cb * 4
        out.append(f"ds_read_b64_tr_b16 v[{r}:{r+1}], v{V_TR+cb} offset:{kk*4096}")
        out.append(f"ds_read_b64_tr_b16 v[{r+2}:{r+3}], v{V_TR+cb} offset:{kk*4096+second}")
    return out

def emit(g, items):
    for it in items:
        if isinstance(it, tuple): g.vmem(it[0], it[1])
        else: g(it)


def gemm_res_loop(g, nsub, slot_of, issue_at, dma, w_first, epilogue, hook=None, second=512, epi_from=1):
    NKS = nsub * 16
    nch = nsub * 4
    g(tr_reads(0, 0, second)); r1 = tr_reads(1, 1, second)
    g(r1[:7]); g("s_waitcnt lgkmcnt(7)"); g(r1[7])
    pend_epi = []
    for ks in range(NKS):
        c, kk = ks >> 2, ks & 3
        j = c >> 2
        s = ks % 16
        if kk == 2 and c + 1 < nch:
            g.wait_vm(('W', c + 1)); g("s_barrier")
            for cc in issue_at.get(c, []): emit(g, dma(cc))
            if hook: hook(ks, 'barrier')
            d = (slot_of[c + 1] - slot_of[c]) * 16384
            for cb in range(4):
                g(f"v_add_u32 v{V_TR+cb}, {hex(d & 0xffffffff)}, v{V_TR+cb}")
        extra_lds = hook(ks, 'pre') if hook else False
        nxt = ks + 2
        reads = tr_reads(nxt, nxt & 3, second) if nxt < NKS else []
        buf = V_ACC + (j & 1) * 32
        epi = pend_epi.pop(0) if (pend_epi and s >= epi_from) else []
        fb = ks % 3
        for m in range(8):
            cb, t = m >> 1, m & 1
            d = buf + (t * 4 + cb) * 4
            wf = f"v[{V_FR + fb*16 + cb*4}:{V_FR + fb*16 + cb*4 + 3}]"
            cf = f"a[{(s*2+t)*4}:{(s*2+t)*4+3}]"
            cin = "0" if s == 0 else f"v[{d}:{d+3}]"
            if w_first(j): g(f"v_mfma_f32_16x16x32_bf16 v[{d}:{d+3}], {wf}, {cf}, {cin}")
            else:          g(f"v_mfma_f32_16x16x32_bf16 v[{d}:{d+3}], {cf}, {wf}, {cin}")
            if m == 3 and extra_lds: g("s_waitcnt lgkmcnt(3)")
            if m == 7 and reads: g("s_waitcnt lgkmcnt(7)")
            if reads: g(reads[m])
            elif m == 7 and ks + 1 < NKS: g("s_waitcnt lgkmcnt(0)")
            if epi and m >= 1 and m <= len(epi[0]): g(epi[0][m-1])
            if epi and m == 5: emit(g, epi[1])
        if s == 15:
            pend_epi = epilogue(j) if epilogue else []
            g.stamp(f"sub{j}_done")
        if hook: hook(ks, 'post')
    return pend_epi

def phase_kv(g, tail=None):
    S_C, S_UK, S_UV, S_WS = 4, 8, 12, 16
    g(f"s_load_dwordx2 s[4:5], s[0:1], {KA['ckv']}", f"s_load_dwordx2 s[8:9], s[0:1], {KA['wuk']}",
      f"s_load_dwordx2 s[12:13], s[0:1], {KA['wuv']}", f"s_load_dwordx2 s[16:17], s[0:1], {KA['ws']}")
    g("v_lshrrev_b32 v14, 6, v0", "v_and_b32 v0, 63, v0", "s_nop 0", "v_readfirstlane_b32 s20, v14")
    g("s_and_b32 s21, s2, 7", "s_lshl_b32 s21, s21, 2", "s_bfe_u32 s22, s2, 0x20003", "s_add_u32 s21, s21, s22")
    g("s_lshr_b32 s22, s2, 5")
    g("v_lshrrev_b32 v14, 3, v0", "v_lshlrev_b32 v1, 10, v14", "v_lshrrev_b32 v14, 4, v0", "v_and_b32 v15, 7, v0", "v_xor_b32 v14, v14, v15",
      "v_xor_b32 v15, 4, v14", "v_lshl_add_u32 v2, v15, 4, v1", "v_lshl_add_u32 v1, v14, 4, v1", f"v_add_u32 v2, {8*1024-1024}, v2")
    g("s_mul_i32 s31, s20, 12288", f"s_add_u32 s31, s31, {4*16384}",
      "v_and_b32 v14, 15, v0", "v_lshlrev_b32 v10, 7, v14", "v_lshrrev_b32 v14, 1, v14", "v_lshrrev_b32 v15, 4, v0", "v_xor_b32 v14, v14, v15",
      "v_lshl_add_u32 v10, v14, 4, v10", "v_add_u32 v10, s31, v10", "v_xor_b32 v11, 64, v10")
    setup_dma128(g, 8192); setup_tr128(g)
    g(f"v_lshlrev_b32 v{V_L16}, 4, v0")
    g("s_lshl_b32 s23, s22, 8", "s_lshl_b32 s24, s20, 5", "s_add_u32 s24, s23, s24", "s_lshl_b32 s24, s24, 10")
    g("s_lshl_b32 s25, s20, 17", "s_lshl_b32 s26, s21, 8", "s_add_u32 s25, s25, s26", "s_lshl_b32 s26, s20, 11")
    g("s_lshl_b32 s27, s21, 19", "s_lshl_b32 s28, s22, 3", "s_add_u32 s28, s28, s20", "s_lshl_b32 s28, s28, 13", "s_add_u32 s27, s27, s28")
    g("s_waitcnt lgkmcnt(0)")
    for s, n in ((S_C, 'ckv'), (S_UK, 'wuk'), (S_UV, 'wuv'), (S_WS, 'ws')):
        finish_srd(g, s, n)
    def dma(c):
        j, q = c >> 2, c & 3
        srd = S_UK if j < 2 else S_UV
        return [f"s_add_u32 s29, s25, {hex(q*0x100000 + (j&1)*128)}", f"s_add_u32 m0, s26, {hex(KV_SLOT[c]*16384)}",
                (f"buffer_load_dwordx4 v{V_W0}, s[{srd}:{srd+3}], s29 offen lds", ('W', c)),
                (f"buffer_load_dwordx4 v{V_W1}, s[{srd}:{srd+3}], s29 offen offset:1024 lds", ('W', c))]
    def stage(p):
        out = []
        for hf in range(2):
            out += [f"s_add_u32 s29, s24, {p*128 + hf*16384}", f"s_add_u32 m0, s31, {(p%3)*4096 + hf*2048}",
                    (f"buffer_load_dwordx4 v{V_C0}, s[{S_C}:{S_C+3}], s29 offen lds", ('P', p)),
                    (f"buffer_load_dwordx4 v{V_C1}, s[{S_C}:{S_C+3}], s29 offen offset:1024 lds", ('P', p))]
        return out
    def stage_reads(p):
        out = []
        for ksub in range(2):
            s = 2 * p + ksub
            for t in range(2):
                out.append(f"ds_read_b128 a[{(s*2+t)*4}:{(s*2+t)*4+3}], v{V_SR+ksub} offset:{(p%3)*4096 + t*2048}")
        return out
    g.stamp("kv_start")
    emit(g, dma(0)); emit(g, stage(0)); emit(g, stage(1)); emit(g, dma(1)); emit(g, stage(2))
    for c in range(2, 4): emit(g, dma(c))
    g.wait_vm(('P', 0)); g(stage_reads(0))
    g.wait_vm(('W', 0)); g("s_waitcnt lgkmcnt(0)", "s_barrier")
    g.stamp("w0_landed")
    emit(g, stage(3))
    def epilogue(j):
        buf = V_ACC + (j & 1) * 32
        A = lambda t, cb: buf + (t * 4 + cb) * 4
        groups = []
        for i in range(4):
            if j < 2:
                t, u = i >> 1, i & 1
                a, b = A(t, 2*u), A(t, 2*u+1)
                off = WS_KF + (t * 4 + 2*j + u) * 1024
            else:
                a, b = A(0, i), A(1, i)
                off = WS_VF + (4*(j-2) + i) * 1024
            grp = [f"v_cvt_pk_bf16_f32 v{a}, v{a}, v{a+1}", f"v_cvt_pk_bf16_f32 v{a+1}, v{a+2}, v{a+3}",
                   f"v_cvt_pk_bf16_f32 v{a+2}, v{b}, v{b+1}", f"v_cvt_pk_bf16_f32 v{a+3}, v{b+2}, v{b+3}",
                   ]
            st = [f"s_add_u32 s29, s27, {hex(off)}",
                   (f"buffer_store_dwordx4 v[{a}:{a+3}], v{V_L16}, s[{S_WS}:{S_WS+3}], s29 offen", ('st', j))]
            groups.append((grp, st))
        return groups
    def hook(ks, where):
        if where == 'pre' and ks < 16:
            r = False
            if ks % 2 == 1 and (ks + 1) // 2 <= 7:
                p = (ks + 1) // 2
                g.wait_vm(('P', p)); g(stage_reads(p)); r = True
            if ks % 2 == 0 and ks >= 2 and ks // 2 + 3 <= 7:
                emit(g, stage(ks // 2 + 3))
            return r
        if where == 'post':
            if ks in (3, 7): g.stamp(f"ks{ks}")
            if ks == 61 and tail: tail(g, 'issue')
        return False
    pend_epi = gemm_res_loop(g, 4, KV_SLOT, KV_ISSUE, dma, lambda j: j < 2, epilogue, hook)
    g("s_nop 7")
    for grp in pend_epi: emit(g, grp[0]); emit(g, grp[1])
    g.stamp("stores_issued")
    if tail: tail(g, 'finish')
    if Gen.STAMP:
        g("s_waitcnt vmcnt(0)"); g.stamp("stores_done")
        g.dump_stamps(20, 1)
```

```python
from core import *
LOG2E = 0x3fb8aa3b
import struct
QSCALE = struct.unpack('<I', struct.pack('<f', 128 ** -0.5 * 1.4426950408889634))[0]

def phase_mod(g, nwg=96):
    skip = g.newlabel("modskip")
    g(f"s_cmp_ge_u32 s2, {nwg}", f"s_cbranch_scc1 {skip}")
    g(f"s_load_dwordx2 s[4:5], s[0:1], {KA['wmod']}", f"s_load_dwordx2 s[8:9], s[0:1], {KA['c']}", f"s_load_dwordx2 s[12:13], s[0:1], {KA['ws']}")
    g("v_and_b32 v1, 3, v0", "v_lshrrev_b32 v2, 2, v0")
    g("s_movk_i32 s20, 6144", "v_mul_lo_u32 v3, v2, s20", "v_lshl_add_u32 v3, v1, 4, v3", "s_lshl_b32 s21, s2, 6", "v_add_u32 v3, s21, v3")
    g("v_lshlrev_b32 v4, 1, v2")
    g("s_waitcnt lgkmcnt(0)")
    finish_srd(g, 4, 'wmod'); finish_srd(g, 8, 'c'); finish_srd(g, 12, 'ws')
    for t in range(4):
        g(f"buffer_load_ushort v{8+t}, v4, s[8:11], 0 offen offset:{t*256}")
    for t in range(4):
        g(f"s_mov_b32 s22, {t*128*6144}", f"buffer_load_dwordx4 v[{12+4*t}:{15+4*t}], v3, s[4:7], s22 offen")
    g("s_waitcnt vmcnt(4)", f"s_mov_b32 s23, {hex(LOG2E)}")
    for t in range(4):
        g(f"v_lshlrev_b32 v{8+t}, 16, v{8+t}")
    for t in range(4):
        g(f"v_mul_f32 v{28+t}, s23, v{8+t}")
    for t in range(4):
        g(f"v_exp_f32 v{28+t}, -v{28+t}")
    g("s_nop 0")
    for t in range(4):
        g(f"v_add_f32 v{28+t}, 1.0, v{28+t}")
    for t in range(4):
        g(f"v_rcp_f32 v{28+t}, v{28+t}")
    g("s_nop 0")
    for t in range(4):
        g(f"v_mul_f32 v{8+t}, v{8+t}, v{28+t}")
    g("s_mov_b32 s24, 0xffff0000")
    for t in range(4):
        g(f"s_waitcnt vmcnt({3-t})")
        for d in range(4):
            w = 12 + 4*t + d
            g(f"v_lshlrev_b32 v28, 16, v{w}", f"v_and_b32 v29, s24, v{w}")
            if t == 0:
                g(f"v_mul_f32 v{32+2*d}, v8, v28", f"v_mul_f32 v{33+2*d}, v8, v29")
            else:
                g(f"v_fmac_f32 v{32+2*d}, v{8+t}, v28", f"v_fmac_f32 v{33+2*d}, v{8+t}, v29")
    for r in (8, 4):
        g("s_nop 1")
        for e in range(8):
            g(f"v_add_f32_dpp v{32+e}, v{32+e}, v{32+e} row_ror:{r} row_mask:0xf bank_mask:0xf")
    g("v_lshrrev_b32 v5, 4, v0", "v_lshlrev_b32 v5, 7, v5", "v_lshl_add_u32 v5, v1, 5, v5")
    g("v_and_b32 v6, 15, v0", "v_cmp_gt_u32 vcc, 4, v6", "s_and_saveexec_b64 s[26:27], vcc")
    g("ds_write_b128 v5, v[32:35]", "ds_write_b128 v5, v[36:39] offset:16")
    g("s_mov_b64 exec, s[26:27]", "s_waitcnt lgkmcnt(0)", "s_barrier")
    g("v_cmp_gt_u32 vcc, 32, v0", "s_and_saveexec_b64 s[26:27], vcc")
    done = g.newlabel("moddone")
    g(f"s_cbranch_execz {done}")
    g("v_lshlrev_b32 v5, 2, v0")
    for i in range(32):
        g(f"ds_read_b32 v{8+i}, v5 offset:{i*128}")
        if i == 14: g("s_waitcnt lgkmcnt(8)")
        if i == 22: g("s_waitcnt lgkmcnt(8)")
    g("s_waitcnt lgkmcnt(0)")
    for st in (16, 8, 4, 2, 1):
        for i in range(st):
            g(f"v_add_f32 v{8+i}, v{8+i}, v{8+i+st}")
    g("s_lshl_b32 s21, s2, 7", "v_add_u32 v5, s21, v5", f"s_mov_b32 s22, {hex(WS_MOD)}")
    g("buffer_store_dword v8, v5, s[12:15], s22 offen")
    g("s_waitcnt vmcnt(0)")
    g.label(done)
    g("s_mov_b64 exec, s[26:27]")
    g.label(skip)

def ln1_tail(g, part):
    X, SA, CA = 96, 100, 108
    if part == 'issue':
        g(f"s_load_dwordx2 s[32:33], s[0:1], {KA['x']}")
        g("s_lshl_b32 s34, s2, 3", "s_add_u32 s34, s34, s20")
        g("s_lshl_b32 s35, s34, 10", f"v_lshlrev_b32 v14, 5, v0")
        g("s_waitcnt lgkmcnt(0)")
        g(f"s_mov_b32 s36, s35")
        g("s_mov_b32 s40, s32", "s_mov_b32 s41, s33", f"s_mov_b32 s42, {hex(SZ['x'])}", "s_mov_b32 s43, 0x20000")
        g.vmem("buffer_load_dwordx4 v[64:67], v5, s[40:43], s36 offen", 'lnx')
        g(f"s_mov_b32 s37, {hex(WS_MOD)}")
        g.vmem("buffer_load_dwordx4 v[72:75], v14, s[16:19], s37 offen", 'lnm')
        g.vmem("buffer_load_dwordx4 v[76:79], v14, s[16:19], s37 offen offset:16", 'lnm')
        g.vmem("buffer_load_dwordx4 v[80:83], v14, s[16:19], s37 offen offset:2048", 'lnm')
        g.vmem("buffer_load_dwordx4 v[84:87], v14, s[16:19], s37 offen offset:2064", 'lnm')
        return
    g.wait_vm('lnx')
    g("s_mov_b32 s38, 0xffff0000")
    for d in range(4):
        g(f"v_lshlrev_b32 v{16+2*d}, 16, v{64+d}", f"v_and_b32 v{17+2*d}, s38, v{64+d}")
    g("v_add_f32 v24, v16, v17", "v_add_f32 v25, v18, v19", "v_add_f32 v26, v20, v21", "v_add_f32 v27, v22, v23")
    g("v_add_f32 v24, v24, v25", "v_add_f32 v26, v26, v27", "v_add_f32 v24, v24, v26")
    wave_sum64(g, 24, 25)
    g("v_mul_f32 v24, 0x3b000000, v24")
    for e in range(8):
        g(f"v_sub_f32 v{16+e}, v{16+e}, v24")
    g("v_mul_f32 v25, v16, v16")
    for e in range(1, 8):
        g(f"v_fmac_f32 v25, v{16+e}, v{16+e}")
    wave_sum64(g, 25, 26)
    g("v_mov_b32 v26, 0x3727c5ac", "v_fmac_f32 v26, 0x3b000000, v25", "v_rsq_f32 v26, v26")
    g.wait_vm('lnm')
    for e in range(8):
        g(f"v_mul_f32 v{16+e}, v{16+e}, v26")
    for e in range(8):
        g(f"v_add_f32 v{80+e}, 1.0, v{80+e}")
    for e in range(8):
        g(f"v_fma_f32 v{16+e}, v{16+e}, v{80+e}, v{72+e}")
    for e in range(8):
        g(f"v_mul_f32 v{16+e}, {hex(QSCALE)}, v{16+e}")
    for d in range(4):
        g(f"v_cvt_pk_bf16_f32 v{28+d}, v{16+2*d}, v{17+2*d}")
    g("s_lshr_b32 s35, s34, 4", "s_lshl_b32 s35, s35, 14", "s_and_b32 s36, s34, 15", "s_lshl_b32 s36, s36, 4", "s_add_u32 s35, s35, s36",
      f"s_add_u32 s35, s35, {hex(WS_H)}")
    g("v_lshrrev_b32 v14, 2, v0", "v_lshlrev_b32 v14, 10, v14", "v_and_b32 v15, 3, v0", "v_lshl_add_u32 v14, v15, 8, v14")
    g.vmem("buffer_store_dwordx4 v[28:31], v14, s[16:19], s35 offen", 'lnst')
```

```python
from core import *
import p_kv
from p_kv import emit, V_W0, V_W1, V_L16, V_TR, V_FR, V_ACC, setup_dma128, setup_tr128, gemm_res_loop
from p_mod import LOG2E

S_W, S_WS, S_X = 4, 8, 12
sWAVE, sHH, sQ, sWR, sWC, sRB, sCB, sT1, sT2, sAO, sWO, sM0A, sM0W = 20, 21, 22, 23, 24, 25, 26, 27, 28, 29, 30, 31, 32
NS = 5
V_AA = 10
V_ACC2 = 64
V_F = 16

OPT = {}
def gemm_shared(g, nst, a_ws_off, a_nks, wname, tag):
    half_ks = nst * 2
    g(f"s_load_dwordx2 s[4:5], s[0:1], {KA[wname]}", f"s_load_dwordx2 s[8:9], s[0:1], {KA['ws']}", f"s_load_dwordx2 s[12:13], s[0:1], {KA['x']}")
    g("v_lshrrev_b32 v14, 6, v0", "v_and_b32 v0, 63, v0", "s_nop 0", f"v_readfirstlane_b32 s{sWAVE}, v14")
    g(f"s_and_b32 s{sRB}, s2, 7", f"s_lshl_b32 s{sRB}, s{sRB}, 2", f"s_bfe_u32 s{sT1}, s2, 0x20003", f"s_add_u32 s{sRB}, s{sRB}, s{sT1}", f"s_lshr_b32 s{sCB}, s2, 5")
    g(f"s_lshr_b32 s{sHH}, s{sWAVE}, 2", f"s_and_b32 s{sQ}, s{sWAVE}, 3", f"s_lshr_b32 s{sWR}, s{sQ}, 1", f"s_and_b32 s{sWC}, s{sQ}, 1")
    setup_dma128(g, 1024, nat=False); setup_tr128(g, nat=False)
    g(f"v_lshlrev_b32 v{V_L16}, 4, v0")
    g(f"s_lshl_b32 s{sT1}, s{sWC}, 6", f"v_xor_b32 v6, s{sT1}, v6", "v_xor_b32 v7, 32, v6")
    g(f"s_lshl_b32 s{sT1}, s{sHH}, 14", f"s_add_u32 s{sT2}, s{sT1}, 8192", f"v_add_u32 v6, s{sT2}, v6", f"v_add_u32 v7, s{sT2}, v7")
    g(f"s_lshl_b32 s{sT2}, s{sWR}, 12", f"s_add_u32 s{sT2}, s{sT2}, s{sT1}", f"v_add_u32 v{V_AA}, s{sT2}, v{V_L16}")
    g(f"s_lshl_b32 s{sAO}, s{sRB}, 2", f"s_add_u32 s{sAO}, s{sAO}, s{sQ}", f"s_mul_i32 s{sAO}, s{sAO}, {a_nks*1024}",
      f"s_mul_i32 s{sT2}, s{sHH}, {half_ks*1024}", f"s_add_u32 s{sAO}, s{sAO}, s{sT2}", f"s_add_u32 s{sAO}, s{sAO}, {hex(a_ws_off)}")
    if OPT.get('kmajor_test'):
        g(f"s_lshl_b32 s{sAO}, s{sRB}, 3", f"s_lshl_b32 s{sT2}, s{sQ}, 1", f"s_add_u32 s{sAO}, s{sAO}, s{sT2}", f"s_lshl_b32 s{sAO}, s{sAO}, 10",
          f"s_mul_i32 s{sT2}, s{sHH}, {nst*262144}", f"s_add_u32 s{sAO}, s{sAO}, s{sT2}", f"s_add_u32 s{sAO}, s{sAO}, {hex(a_ws_off)}")
    g(f"s_mul_i32 s{sWO}, s{sHH}, {half_ks*32*1024}", f"s_lshl_b32 s{sT2}, s{sQ}, 14", f"s_add_u32 s{sWO}, s{sWO}, s{sT2}",
      f"s_lshl_b32 s{sT2}, s{sCB}, 7", f"s_add_u32 s{sWO}, s{sWO}, s{sT2}")
    g(f"s_lshl_b32 s{sT2}, s{sQ}, 11", f"s_add_u32 s{sM0A}, s{sT1}, s{sT2}", f"s_add_u32 s{sM0W}, s{sM0A}, 8192")
    g("s_waitcnt lgkmcnt(0)")
    finish_srd(g, S_W, wname); finish_srd(g, S_WS, 'ws'); finish_srd(g, S_X, 'x')
    def dma(st):
        slot = (st % NS) * 32768
        return [f"s_add_u32 m0, s{sM0A}, {slot}", f"s_add_u32 s{sT1}, s{sAO}, {st*(262144 if OPT.get('kmajor_test') else 2048)}",
                (f"buffer_load_dwordx4 v{V_L16}, s[{S_WS}:{S_WS+3}], s{sT1} offen lds", ('S', st)),
                (f"buffer_load_dwordx4 v{V_L16}, s[{S_WS}:{S_WS+3}], s{sT1} offen offset:1024 lds", ('S', st)),
                f"s_add_u32 m0, s{sM0W}, {slot}", f"s_add_u32 s{sT1}, s{sWO}, {st*64*1024}",
                (f"buffer_load_dwordx4 v{V_W0}, s[{S_W}:{S_W+3}], s{sT1} offen lds", ('S', st)),
                (f"buffer_load_dwordx4 v{V_W1}, s[{S_W}:{S_W+3}], s{sT1} offen offset:1024 lds", ('S', st))]
    def reads(ks):
        kk = ks & 1; fb = V_F + (ks % 3) * 16
        out = []
        for c in range(2):
            out.append(f"ds_read_b64_tr_b16 v[{fb+4*c}:{fb+4*c+1}], v{6+c} offset:{kk*4096}")
            out.append(f"ds_read_b64_tr_b16 v[{fb+4*c+2}:{fb+4*c+3}], v{6+c} offset:{kk*4096+2048}")
        for r in range(2):
            out.append(f"ds_read_b128 v[{fb+8+4*r}:{fb+8+4*r+3}], v{V_AA} offset:{r*2048+kk*1024}")
        return out
    g.stamp(tag + "_entry")
    for st in range(min(NS - 1, nst)): emit(g, dma(st))
    g.wait_vm(('S', 0)); g("s_barrier")
    g.stamp(tag + "_first")
    g(reads(0))
    NKS = nst * 2
    for ks in range(NKS):
        st, kk = ks >> 1, ks & 1
        if kk == 1 and st + 1 < nst:
            g.wait_vm(('S', st + 1)); g("s_barrier")
            if st + NS - 1 < nst: emit(g, dma(st + NS - 1))
            d = (((st + 1) % NS) - (st % NS)) * 32768
            for v in (6, 7, V_AA): g(f"v_add_u32 v{v}, {hex(d & 0xffffffff)}, v{v}")
        rd = reads(ks + 1) if ks + 1 < NKS else []
        g("s_waitcnt lgkmcnt(0)")
        fb = V_F + (ks % 3) * 16
        for m in range(4):
            c, r = m >> 1, m & 1
            d = V_ACC2 + (c*2 + r) * 4
            cin = "0" if ks == 0 else f"v[{d}:{d+3}]"
            g(f"v_mfma_f32_16x16x32_bf16 v[{d}:{d+3}], v[{fb+4*c}:{fb+4*c+3}], v[{fb+8+4*r}:{fb+8+4*r+3}], {cin}")
            if rd:
                g(rd.pop(0))
                if m >= 2 and rd: g(rd.pop(0))
    g.stamp(tag + "_loop_done")
    g("s_nop 7", "s_barrier")
    g(f"s_lshl_b32 s{sT1}, s{sWAVE}, 11", f"v_add_u32 v11, s{sT1}, v{V_L16}", f"s_xor_b32 s{sT1}, s{sT1}, 0x2000", f"v_add_u32 v12, s{sT1}, v{V_L16}")
    La, Lb = g.newlabel("x0"), g.newlabel("x1")
    g(f"s_cmp_eq_u32 s{sHH}, 0", f"s_cbranch_scc0 {La}")
    g(f"ds_write_b128 v11, v[{V_ACC2+4}:{V_ACC2+7}]", f"ds_write_b128 v11, v[{V_ACC2+12}:{V_ACC2+15}] offset:1024", "s_waitcnt lgkmcnt(0)")
    g(f"v_mov_b32 v{V_ACC2+4}, v{V_ACC2+8}", f"v_mov_b32 v{V_ACC2+5}, v{V_ACC2+9}", f"v_mov_b32 v{V_ACC2+6}, v{V_ACC2+10}", f"v_mov_b32 v{V_ACC2+7}, v{V_ACC2+11}")
    g(f"s_branch {Lb}")
    g.label(La)
    g(f"ds_write_b128 v11, v[{V_ACC2}:{V_ACC2+3}]", f"ds_write_b128 v11, v[{V_ACC2+8}:{V_ACC2+11}] offset:1024", "s_waitcnt lgkmcnt(0)")
    for k in range(4): g(f"v_mov_b32 v{V_ACC2+k}, v{V_ACC2+4+k}")
    for k in range(4): g(f"v_mov_b32 v{V_ACC2+4+k}, v{V_ACC2+12+k}")
    g.label(Lb)
    g("s_waitcnt lgkmcnt(0)", "s_barrier")
    g(f"ds_read_b128 v[{V_ACC2+8}:{V_ACC2+11}], v12", f"ds_read_b128 v[{V_ACC2+12}:{V_ACC2+15}], v12 offset:1024", "s_waitcnt lgkmcnt(0)")
    for k in range(8): g(f"v_add_f32 v{V_ACC2+k}, v{V_ACC2+k}, v{V_ACC2+8+k}")
    g(f"s_lshl_b32 s{sT1}, s{sRB}, 6", f"s_lshl_b32 s{sT2}, s{sWR}, 5", f"s_add_u32 s{sT1}, s{sT1}, s{sT2}", f"s_lshl_b32 s{sT2}, s{sHH}, 4", f"s_add_u32 s{sT1}, s{sT1}, s{sT2}",
      "v_and_b32 v14, 15, v0", f"v_add_u32 v14, s{sT1}, v14")
    g(f"s_lshl_b32 s{sT1}, s{sCB}, 6", f"s_lshl_b32 s{sT2}, s{sWC}, 5", f"s_add_u32 s{sT1}, s{sT1}, s{sT2}",
      "v_lshrrev_b32 v15, 4, v0", "v_lshlrev_b32 v15, 2, v15", f"v_add_u32 v15, s{sT1}, v15")

def k3(g):
    gemm_shared(g, 32, WS_CTX, 128, 'wo', "k3")
    g("v_lshlrev_b32 v12, 10, v14", "v_lshl_add_u32 v12, v15, 1, v12")
    g("v_lshlrev_b32 v13, 2, v15", f"s_mov_b32 s{sT1}, {hex(WS_MOD + 1024*4)}")
    g(f"buffer_load_dwordx2 v[16:17], v12, s[{S_X}:{S_X+3}], 0 offen", f"buffer_load_dwordx2 v[18:19], v12, s[{S_X}:{S_X+3}], 0 offen offset:32")
    g(f"buffer_load_dwordx4 v[20:23], v13, s[{S_WS}:{S_WS+3}], s{sT1} offen", f"buffer_load_dwordx4 v[24:27], v13, s[{S_WS}:{S_WS+3}], s{sT1} offen offset:64")
    g("v_lshlrev_b32 v12, 11, v14", "v_lshl_add_u32 v12, v15, 2, v12", f"s_mov_b32 s{sT2}, 0xffff0000", "s_waitcnt vmcnt(0)")
    for c in range(2):
        g(f"v_lshlrev_b32 v28, 16, v{16+2*c}", f"v_and_b32 v29, s{sT2}, v{16+2*c}", f"v_lshlrev_b32 v30, 16, v{17+2*c}", f"v_and_b32 v31, s{sT2}, v{17+2*c}")
        for k in range(4): g(f"v_fma_f32 v{V_ACC2+4*c+k}, v{V_ACC2+4*c+k}, v{20+4*c+k}, v{28+k}")
    g(f"s_mov_b32 s{sT1}, {hex(WS_X1)}")
    g(f"buffer_store_dwordx4 v[{V_ACC2}:{V_ACC2+3}], v12, s[{S_WS}:{S_WS+3}], s{sT1} offen")
    g(f"buffer_store_dwordx4 v[{V_ACC2+4}:{V_ACC2+7}], v12, s[{S_WS}:{S_WS+3}], s{sT1} offen offset:64")
    if Gen.STAMP:
        g("s_waitcnt vmcnt(0)"); g.stamp("k3_end"); g.dump_stamps(sWAVE, 3)

def k5(g):
    gemm_shared(g, 14, WS_ACT, 56, 'wd', "k5")
    g(f"s_load_dwordx2 s[12:13], s[0:1], {KA['out']}")
    g("v_lshlrev_b32 v12, 11, v14", "v_lshl_add_u32 v12, v15, 2, v12", f"s_mov_b32 s{sT1}, {hex(WS_X1)}")
    g(f"buffer_load_dwordx4 v[16:19], v12, s[{S_WS}:{S_WS+3}], s{sT1} offen", f"buffer_load_dwordx4 v[28:31], v12, s[{S_WS}:{S_WS+3}], s{sT1} offen offset:64")
    g("v_lshlrev_b32 v13, 2, v15", f"s_mov_b32 s{sT1}, {hex(WS_MOD + 2560*4)}")
    g(f"buffer_load_dwordx4 v[20:23], v13, s[{S_WS}:{S_WS+3}], s{sT1} offen", f"buffer_load_dwordx4 v[24:27], v13, s[{S_WS}:{S_WS+3}], s{sT1} offen offset:64")
    g("v_lshlrev_b32 v12, 10, v14", "v_lshl_add_u32 v12, v15, 1, v12", "s_waitcnt vmcnt(0) lgkmcnt(0)")
    finish_srd(g, S_X, 'out')
    for k in range(4): g(f"v_fma_f32 v{V_ACC2+k}, v{V_ACC2+k}, v{20+k}, v{16+k}")
    for k in range(4): g(f"v_fma_f32 v{V_ACC2+4+k}, v{V_ACC2+4+k}, v{24+k}, v{28+k}")
    g(f"v_cvt_pk_bf16_f32 v16, v{V_ACC2}, v{V_ACC2+1}", f"v_cvt_pk_bf16_f32 v17, v{V_ACC2+2}, v{V_ACC2+3}",
      f"v_cvt_pk_bf16_f32 v18, v{V_ACC2+4}, v{V_ACC2+5}", f"v_cvt_pk_bf16_f32 v19, v{V_ACC2+6}, v{V_ACC2+7}")
    g(f"buffer_store_dwordx2 v[16:17], v12, s[{S_X}:{S_X+3}], 0 offen", f"buffer_store_dwordx2 v[18:19], v12, s[{S_X}:{S_X+3}], 0 offen offset:32")
    if Gen.STAMP:
        g("s_waitcnt vmcnt(0)"); g.stamp("k5_end"); g.dump_stamps(sWAVE, 5)

def ln2(g):
    g(f"s_load_dwordx2 s[12:13], s[0:1], {KA['ws']}")
    g("v_and_b32 v1, 63, v0", "v_lshrrev_b32 v2, 6, v0", "s_lshl_b32 s20, s2, 3", "v_add_u32 v2, s20, v2")
    g("v_lshlrev_b32 v3, 11, v2", "v_lshl_add_u32 v3, v1, 5, v3", "v_lshlrev_b32 v4, 5, v1")
    g("s_waitcnt lgkmcnt(0)")
    finish_srd(g, 12, 'ws')
    g(f"s_mov_b32 s21, {hex(WS_X1)}", "buffer_load_dwordx4 v[12:15], v3, s[12:15], s21 offen", "buffer_load_dwordx4 v[16:19], v3, s[12:15], s21 offen offset:16")
    g(f"s_mov_b32 s21, {hex(WS_MOD + 1536*4)}")
    g("buffer_load_dwordx4 v[24:27], v4, s[12:15], s21 offen", "buffer_load_dwordx4 v[28:31], v4, s[12:15], s21 offen offset:16")
    g("buffer_load_dwordx4 v[32:35], v4, s[12:15], s21 offen offset:2048", "buffer_load_dwordx4 v[36:39], v4, s[12:15], s21 offen offset:2064")
    g("s_waitcnt vmcnt(4)")
    g("v_add_f32 v20, v12, v13", "v_add_f32 v21, v14, v15", "v_add_f32 v22, v16, v17", "v_add_f32 v23, v18, v19")
    g("v_add_f32 v20, v20, v21", "v_add_f32 v22, v22, v23", "v_add_f32 v20, v20, v22")
    wave_sum64(g, 20, 21)
    g("v_mul_f32 v20, 0x3b000000, v20")
    for e in range(8): g(f"v_sub_f32 v{12+e}, v{12+e}, v20")
    g("v_mul_f32 v21, v12, v12")
    for e in range(1, 8): g(f"v_fmac_f32 v21, v{12+e}, v{12+e}")
    wave_sum64(g, 21, 22)
    g("v_mov_b32 v22, 0x3727c5ac", "v_fmac_f32 v22, 0x3b000000, v21", "v_rsq_f32 v22, v22", "s_waitcnt vmcnt(0)")
    for e in range(8): g(f"v_mul_f32 v{12+e}, v{12+e}, v22")
    for e in range(8): g(f"v_add_f32 v{32+e}, 1.0, v{32+e}")
    for e in range(8): g(f"v_fma_f32 v{12+e}, v{12+e}, v{32+e}, v{24+e}")
    for d in range(4): g(f"v_cvt_pk_bf16_f32 v{8+d}, v{12+2*d}, v{13+2*d}")
    g("v_lshrrev_b32 v5, 4, v2", "v_lshlrev_b32 v5, 14, v5", "v_lshrrev_b32 v6, 2, v1", "v_lshl_add_u32 v5, v6, 10, v5")
    g("v_and_b32 v6, 3, v1", "v_lshlrev_b32 v6, 4, v6", "v_and_b32 v7, 15, v2", "v_add_u32 v6, v6, v7", "v_lshl_add_u32 v5, v6, 4, v5")
    g(f"s_mov_b32 s21, {hex(WS_H2)}", "buffer_store_dwordx4 v[8:11], v5, s[12:15], s21 offen")

def k4(g):
    S_G, S_U, S_WS4 = 4, 8, 12
    sRB4, sCB4, sT16, sWB, sM0B = 21, 22, 25, 52, 53
    g(f"s_load_dwordx2 s[4:5], s[0:1], {KA['wg']}", f"s_load_dwordx2 s[8:9], s[0:1], {KA['wu']}", f"s_load_dwordx2 s[12:13], s[0:1], {KA['ws']}")
    g("v_lshrrev_b32 v14, 6, v0", "v_and_b32 v0, 63, v0", "s_nop 0", f"v_readfirstlane_b32 s{sWAVE}, v14")
    g(f"s_and_b32 s{sRB4}, s2, 1", f"s_lshl_b32 s{sRB4}, s{sRB4}, 2", f"s_bfe_u32 s{sT1}, s2, 0x20003", f"s_add_u32 s{sRB4}, s{sRB4}, s{sT1}",
      f"s_bfe_u32 s{sCB4}, s2, 0x20001", f"s_mul_i32 s{sCB4}, s{sCB4}, 7", f"s_lshr_b32 s{sT1}, s2, 5", f"s_add_u32 s{sCB4}, s{sCB4}, s{sT1}")
    g(f"s_lshl_b32 s{sT16}, s{sRB4}, 4", f"s_lshl_b32 s{sT1}, s{sWAVE}, 1", f"s_add_u32 s{sT16}, s{sT16}, s{sT1}")
    setup_dma128(g, 3584); setup_tr128(g)
    g(f"v_lshlrev_b32 v{V_L16}, 4, v0")
    g(f"s_mul_i32 s{sWB}, s{sWAVE}, {16*3584}", f"s_lshl_b32 s{sT1}, s{sCB4}, 7", f"s_add_u32 s{sWB}, s{sWB}, s{sT1}", f"s_lshl_b32 s{sM0B}, s{sWAVE}, 11")
    g("s_waitcnt lgkmcnt(0)")
    finish_srd(g, S_G, 'wg'); finish_srd(g, S_U, 'wu'); finish_srd(g, S_WS4, 'ws')
    def dma(c):
        j, q = c >> 2, c & 3
        srd = S_G if j == 0 else S_U
        return [f"s_add_u32 s{sT1}, s{sWB}, {hex(q*128*3584)}", f"s_add_u32 m0, s{sM0B}, {hex(c*16384)}",
                (f"buffer_load_dwordx4 v{V_W0}, s[{srd}:{srd+3}], s{sT1} offen lds", ('W', c)),
                (f"buffer_load_dwordx4 v{V_W1}, s[{srd}:{srd+3}], s{sT1} offen offset:1024 lds", ('W', c))]
    def hload(s4):
        out = []
        for t in range(2):
            out.append(f"s_lshl_b32 s{sT1}, s{sT16}, 14")
            out.append(f"s_add_u32 s{sT1}, s{sT1}, {hex(WS_H2 + t*16384 + s4*4096)}")
            for k in range(4):
                s = s4*4 + k
                out.append((f"buffer_load_dwordx4 a[{(s*2+t)*4}:{(s*2+t)*4+3}], v{V_L16}, s[{S_WS4}:{S_WS4+3}], s{sT1} offen offset:{k*1024}", ('H', s4)))
        return out
    g.stamp("k4_entry")
    emit(g, dma(0)); emit(g, hload(0)); emit(g, dma(1)); emit(g, hload(1)); emit(g, dma(2)); emit(g, hload(2)); emit(g, hload(3))
    for c in range(3, 8): emit(g, dma(c))
    g.wait_vm(('W', 0)); g("s_barrier")
    g.stamp("k4_first")
    def hook(ks, where):
        if where == 'pre' and ks < 16 and ks % 4 == 0: g.wait_vm(('H', ks // 4))
        return False
    gemm_res_loop(g, 2, list(range(8)), {}, dma, lambda j: True, None, hook)
    g("s_nop 7", f"s_mov_b32 s{sT2}, {hex(LOG2E)}")
    for i in range(32):
        g(f"v_mul_f32 v{16+(i%16)}, s{sT2}, v{64+i}")
        if i % 16 == 15:
            b = i - 15
            for k in range(16): g(f"v_exp_f32 v{16+k}, -v{16+k}")
            for k in range(16): g(f"v_add_f32 v{16+k}, 1.0, v{16+k}")
            for k in range(16): g(f"v_rcp_f32 v{16+k}, v{16+k}")
            for k in range(16): g(f"v_mul_f32 v{64+b+k}, v{64+b+k}, v{96+b+k}")
            for k in range(16): g(f"v_mul_f32 v{64+b+k}, v{64+b+k}, v{16+k}")
    g(f"s_mul_i32 s{sT1}, s{sT16}, {56*1024}", f"s_lshl_b32 s{sT2}, s{sCB4}, 11", f"s_add_u32 s{sT1}, s{sT1}, s{sT2}", f"s_add_u32 s{sT1}, s{sT1}, {hex(WS_ACT)}")
    for t in range(2):
        for u in range(2):
            a = 64 + (t*4 + 2*u)*4
            for k in range(4): g(f"v_cvt_pk_bf16_f32 v{a+k}, v{a+2*k}, v{a+2*k+1}")
            g(f"buffer_store_dwordx4 v[{a}:{a+3}], v{V_L16}, s[{S_WS4}:{S_WS4+3}], s{sT1} offen offset:{u*1024}")
        if t == 0: g(f"s_add_u32 s{sT1}, s{sT1}, {56*1024}")
    if Gen.STAMP:
        g("s_waitcnt vmcnt(0)"); g.stamp("k4_end"); g.dump_stamps(sWAVE, 4)
```

```python
import sys
from core import *
import p_mod, p_kv, p_att, p_tail

HEADER = open('adaLN_cond__compressed_kv_cla__swiglu_ffn__prompt.s.ref').read().split('; Override launch')[0]

def build(kernels):
    out = HEADER
    for name, grid, block, lds, fn, nv, ao in kernels:
        out += f"; @launch kernel={name} grid=({grid},1,1) block=({block},1,1) lds={lds}\n"
    out += '.amdgcn_target "amdgcn-amd-amdhsa--gfx950"\n.text\n'
    seen = set()
    for name, grid, block, lds, fn, nv, ao in kernels:
        if name in seen: continue
        seen.add(name)
        g = Gen(); g.uid = len(seen) * 1000
        end = f"L_end_{name}"
        g(f"s_cmp_ge_u32 s2, {grid}", f"s_cbranch_scc1 {end}")
        fn(g)
        g.label(end); g("s_endpgm")
        out += kernel_header(name) + g.text()
    out += '.section .rodata,"a"\n'
    seen = set()
    for name, grid, block, lds, fn, nv, ao in kernels:
        if name in seen: continue
        seen.add(name)
        out += kernel_desc(name, nv, ao)
    return out

def k_mod(g): p_mod.phase_mod(g)
def k_kv(g):
    g.stamp("entry")
    p_kv.phase_kv(g, p_mod.ln1_tail)

def k_att(g): p_att.phase_att(g)
KERNELS = {
  'k3': ('k3_kernel', 256, 512, 163840, p_tail.k3, 128, 128),
  'ln2': ('ln2_kernel', 256, 512, 0, p_tail.ln2, 64, 64),
  'k4': ('k4_kernel', 224, 512, 131072, p_tail.k4, 256, 128),
  'k5': ('k5_kernel', 256, 512, 163840, p_tail.k5, 128, 128),
  'att': ('att_kernel', 256, 512, 163840, k_att, 256, 128),
  'mod': ("mod_kernel", 96, 512, 4096, k_mod, 64, 64),
  'kv':  ("kv_kernel", 256, 512, 163840, k_kv, 256, 128),
}
if __name__ == "__main__":
    names = [a for a in sys.argv[2:] if a != 'STAMP' and '=' not in a]
    for a in sys.argv[2:]:
        if '=' in a:
            k, v = a.split('='); p_att.OPT[k] = int(v); p_tail.OPT[k] = int(v)
    Gen.STAMP = 'STAMP' in sys.argv
    open(sys.argv[1], 'w').write(build([KERNELS[n] for n in names]))
```

```python
class Gen:
    def __init__(self):
        self.L = []
        self.vm = []
        self.uid = 0
    def __call__(self, *ss):
        for s in ss:
            if isinstance(s, (list, tuple)):
                self(*s)
            elif s:
                self.L.append(s)
    def label(self, name):
        self.L.append(name + ":")
    def newlabel(self, base):
        self.uid += 1
        return f"L_{base}_{self.uid}"
    def vmem(self, instr, tag=None):
        self.L.append(instr); self.vm.append(tag)
    def vm_note(self, tag):
        self.vm.append(tag)
    def vm_count_after(self, tag):
        idx = max(i for i, t in enumerate(self.vm) if t == tag)
        return len(self.vm) - 1 - idx
    def wait_vm(self, tag, extra=""):
        n = self.vm_count_after(tag)
        assert n <= 63, f"vmcnt {n} too large for tag {tag}"
        self.L.append(f"s_waitcnt vmcnt({n}){extra}")
    STAMP = False
    STAMP_SKIP = set(__import__('os').environ.get('SKIP', 'mod_part,sub1_done,sub2_done,diag_start,ctx_stored').split(','))
    def stamp(self, name="", cyc=False):
        if not Gen.STAMP: return
        keep = __import__('os').environ.get('KEEP')
        if keep:
            if name not in keep.split(','): return
        elif name in Gen.STAMP_SKIP or name.startswith('b_'): return
        if not hasattr(self, 'stamps'): self.stamps = []
        r = 60 + 2 * len(self.stamps)
        assert r <= 84, 'too many stamps'
        self.stamps.append(name)
        self.L.append(f"s_memtime s[{r}:{r+1}]" if cyc else f"s_memrealtime s[{r}:{r+1}]")
    def dump_stamps(self, wave_sreg, slot):
        if not Gen.STAMP or not hasattr(self, 'stamps'): return
        n = len(self.stamps)
        self(f"s_load_dwordx2 s[56:57], s[0:1], {KA['ws']}", "s_waitcnt lgkmcnt(0)", "s_mov_b32 s58, 0x10000000", "s_mov_b32 s59, 0x20000")
        self(f"s_lshl_b32 s54, s2, 3", f"s_add_u32 s54, s54, s{wave_sreg}", "s_lshl_b32 s54, s54, 7", f"s_add_u32 s54, s54, {hex(WS_T + slot * 0x40000)}")
        for i in range(n):
            self(f"v_mov_b32 v14, s{60+2*i}", f"v_mov_b32 v15, {i*4}", "s_nop 0", "buffer_store_dword v14, v15, s[56:59], s54 offen")
        self("s_waitcnt vmcnt(0)")
        print("stamps slot", slot, self.stamps)
    def text(self):
        return "\n".join(self.L) + "\n"

def vr(b, n=1, k="v"):
    return f"{k}{b}" if n == 1 else f"{k}[{b}:{b+n-1}]"
def ar(b, n=1):
    return vr(b, n, "a")
def sr(b, n=1):
    return vr(b, n, "s")

KA = dict(x=0, ckv=8, wq=16, wuk=24, wuv=32, wo=40, bx=48, wg=56, wu=64, wd=72, c=80, wmod=88, out=96, dbg=104, ws=112)
SZ = dict(x=2048*512*2, ckv=2048*512*2, wq=512*4096*2, wuk=512*4096*2, wuv=512*4096*2, wo=4096*512*2,
          wg=512*1792*2, wu=512*1792*2, wd=1792*512*2, c=512*2, wmod=512*3072*2, out=2048*512*2, dbg=256, ws=0x10000000)
WS_MOD  = 0x0000000
WS_STAT = 0x0010000
WS_CNT  = 0x0020000
WS_T    = 0x8000000
WS_H    = 0x0100000
WS_X1   = 0x0400000
WS_H2   = 0x0800000
WS_ACT  = 0x0A00000
WS_KF   = 0x2000000
WS_VF   = 0x3000000
WS_CTX  = 0x4000000

def load_srd(g, s, name, tmp=None):
    g(f"s_load_dwordx2 {sr(s,2)}, s[0:1], {KA[name]}")
def finish_srd(g, s, name):
    import re
    for line in reversed(g.L):
        m = re.match(r"s_load_dwordx2 s\[(\d+):(\d+)\], s\[0:1\], (\d+)", line)
        if m and int(m.group(1)) == s:
            assert int(m.group(3)) == KA[name], f"SRD s{s}: pointer at kernarg {m.group(3)} but sized as {name}"
            break
    else:
        raise AssertionError(f"SRD s{s} ({name}): no kernarg load found")
    g(f"s_mov_b32 s{s+2}, {hex(SZ[name])}", f"s_mov_b32 s{s+3}, 0x20000")

def kernel_header(name):
    return f""".globl {name}
.p2align 8
.type {name},@function
{name}:
"""
def kernel_desc(name, nv=256, ao=128, ns=102):
    return f""".p2align 6
.amdhsa_kernel {name}
  .amdhsa_next_free_vgpr {nv}
  .amdhsa_next_free_sgpr {ns}
  .amdhsa_accum_offset {ao}
  .amdhsa_group_segment_fixed_size 0
  .amdhsa_kernarg_size 120
  .amdhsa_user_sgpr_count 2
  .amdhsa_user_sgpr_kernarg_segment_ptr 1
  .amdhsa_system_sgpr_workgroup_id_x 1
.end_amdhsa_kernel
"""

def wave_sum64(g, v, t):
    for r in (8, 4, 2, 1):
        g("s_nop 1", f"v_add_f32_dpp v{v}, v{v}, v{v} row_ror:{r} row_mask:0xf bank_mask:0xf")
    g(f"v_mov_b32 v{t}, v{v}", "s_nop 1", f"v_permlane16_swap_b32 v{v}, v{t}", f"v_add_f32 v{v}, v{v}, v{t}")
    g(f"v_mov_b32 v{t}, v{v}", "s_nop 1", f"v_permlane32_swap_b32 v{v}, v{t}", f"v_add_f32 v{v}, v{v}, v{t}")


def prefetch_lines(g, ptr_s, name, gw_s, start, vtmp, vdst, lane128, stmp, srd=96):
    g(f"s_mov_b32 s{srd}, s{ptr_s}", f"s_mov_b32 s{srd+1}, s{ptr_s+1}", f"s_mov_b32 s{srd+2}, {hex(SZ[name])}", f"s_mov_b32 s{srd+3}, 0x20000")
    g(f"s_sub_u32 s{stmp}, s{gw_s}, {start}", f"s_lshl_b32 s{stmp}, s{stmp}, 13", f"v_add_u32 v{vtmp}, s{stmp}, v{lane128}")
    return f"buffer_load_dword v{vdst}, v{vtmp}, s[{srd}:{srd+3}], 0 offen"
```

```python
from core import *
import p_kv, p_att, p_mod
from p_kv import emit, V_W0, V_W1, V_L16, V_TR, V_FR, V_ACC, V_C0, V_C1, V_SR, setup_dma128, setup_tr128, tr_reads
from p_att import *
from p_mod import LOG2E, QSCALE

S_WS, S_DBG, S_A, S_B, S_C2 = 4, 8, 12, 16, 56
p_att.S_WS = S_WS
sCROW, sSTB, sSTG = 43, 54, 55
sHKV, sKB, sWBKV = 84, 87, 85
OOB = 0x7ff00000
sOOB = 86
C_START = 0
C_H, C_KV, C_CTX, C_H2, C_ACT = 0, 8, 40, 48, 56

SLOT = [0,1,2,3, 0,1, 2,4,5,6,7,8,9, 3, 0, 1,   2,4,5,3,6,7,8,9]
HSCHED = {52:[0,1], 53:[2], 54:[3,4], 55:[5], 56:[6,7], 57:[8], 58:[9], 59:[10,11], 60:[12], 61:[13], 62:[14], 63:[15]}
ISSUE = {0:[3], 1:[4], 2:[5], 3:[6,7,8,9,10,11,12], 4:[13], 5:[14], 6:[15], 7:[16], 8:[17], 9:[18], 10:[20], 11:[21], 12:[22], 13:[23], 14:[19]}

def poll_issue(g, vdst, srd, soff, tag, st):
    g(f"s_cmp_eq_u32 s{sWAVE}, 0", f"s_cselect_b32 s{st}, s{soff}, s{sOOB}")
    g.vmem(f"buffer_load_dword v{vdst}, off, s[{srd}:{srd+3}], s{st} sc1", tag)
def poll_check(g, vdst, srd, tag, soff, target, t1, t2):
    ok, loop = g.newlabel("pok"), g.newlabel("ploop")
    g.wait_vm(tag)
    g(f"s_cmp_lg_u32 s{sWAVE}, 0", f"s_cbranch_scc1 {ok}")
    g(f"v_readfirstlane_b32 s{t1}, v{vdst}", "s_nop 3", f"s_cmp_ge_u32 s{t1}, {target}")
    g(f"s_cbranch_scc1 {ok}", f"s_mov_b32 s{t2}, 0x40000")
    g.label(loop)
    g("s_sleep 8", f"buffer_load_dword v{vdst}, off, s[{srd}:{srd+3}], s{soff} sc1", "s_waitcnt vmcnt(0)")
    g(f"v_readfirstlane_b32 s{t1}, v{vdst}", "s_nop 3", f"s_cmp_ge_u32 s{t1}, {target}")
    g(f"s_cbranch_scc1 {ok}", f"s_sub_u32 s{t2}, s{t2}, 1", f"s_cmp_lg_u32 s{t2}, 0", f"s_cbranch_scc1 {loop}")
    g.label(ok)
def signal(g, srd, soff, vt, st):
    g(f"s_cmp_eq_u32 s{sWAVE}, 0", f"s_cselect_b32 s{st}, {('s%d' % soff[1]) if isinstance(soff, tuple) else soff}, s{sOOB}")
    g(f"v_mov_b32 v{vt}, 1", "s_mov_b64 exec, 1")
    g.vmem(f"buffer_atomic_add v{vt}, off, s[{srd}:{srd+3}], s{st} sc1", 'sig')
    g("s_mov_b64 exec, -1")
def cnt_off(g, dst, base, idx_s):
    g(f"s_lshl_b32 s{dst}, s{idx_s}, 7", f"s_add_u32 s{dst}, s{dst}, {hex(WS_CNT + base*128)}")

def front(g):
    g(f"s_load_dwordx2 s[4:5], s[0:1], {KA['ws']}", f"s_load_dwordx2 s[8:9], s[0:1], {KA['dbg']}",
      f"s_load_dwordx2 s[12:13], s[0:1], {KA['ckv']}", f"s_load_dwordx2 s[16:17], s[0:1], {KA['wuk']}",
      f"s_load_dwordx2 s[56:57], s[0:1], {KA['wuv']}", f"s_load_dwordx2 s[88:89], s[0:1], {KA['x']}",
      f"s_load_dwordx2 s[92:93], s[0:1], {KA['wmod']}", f"s_load_dwordx2 s[96:97], s[0:1], {KA['c']}")
    g.stamp("entry")
    g("v_lshrrev_b32 v14, 6, v0", "v_and_b32 v0, 63, v0", "s_nop 0", f"v_readfirstlane_b32 s{sWAVE}, v14")
    g(f"s_and_b32 s{sHEAD}, s2, 7", f"s_lshl_b32 s{sHEAD}, s{sHEAD}, 2", f"s_bfe_u32 s{sT1}, s2, 0x20003", f"s_add_u32 s{sHEAD}, s{sHEAD}, s{sT1}")
    g(f"s_lshr_b32 s{sI}, s2, 5", f"s_lshr_b32 s{sISA}, s{sWAVE}, 2")
    g(f"s_sub_u32 s{sT1}, 7, s{sWAVE}", f"s_sub_u32 s{sT2}, 15, s{sI}", f"s_cmp_eq_u32 s{sISA}, 0",
      f"s_cselect_b32 s{sSUB}, s{sWAVE}, s{sT1}", f"s_cselect_b32 s{sT3}, s{sT2}, s{sI}")
    g(f"s_lshl_b32 s{sT16}, s{sT3}, 3", f"s_lshl_b32 s{sT1}, s{sSUB}, 1", f"s_add_u32 s{sT16}, s{sT16}, s{sT1}")
    g(f"s_lshl_b32 s{sNB2}, s{sT2}, 1", f"s_lshl_b32 s{sNA2}, s{sI}, 1", f"s_lshl_b32 s{sNBo}, s{sT2}, 15", f"s_lshl_b32 s{sNAo}, s{sI}, 15")
    g(f"s_and_b32 s{sA4}, s{sWAVE}, 3", f"s_lshl_b32 s{sA4}, s{sA4}, 12")
    g(f"s_lshl_b32 s{sT1}, s{sHEAD}, 19", f"s_add_u32 s{sT1}, s{sT1}, s{sA4}",
      f"s_add_u32 s{sKF}, s{sT1}, {hex(WS_KF)}", f"s_add_u32 s{sVF}, s{sT1}, {hex(WS_VF)}")
    g(f"s_and_b32 s{sKB}, s2, 1", f"s_lshl_b32 s{sKB}, s{sKB}, 2", f"s_bfe_u32 s{sT1}, s2, 0x20003", f"s_add_u32 s{sKB}, s{sKB}, s{sT1}")
    g(f"s_bfe_u32 s{sHKV}, s2, 0x20001", f"s_lshl_b32 s{sHKV}, s{sHKV}, 3", f"s_lshr_b32 s{sT1}, s2, 5", f"s_add_u32 s{sHKV}, s{sHKV}, s{sT1}")
    g("v_lshrrev_b32 v14, 3, v0", "v_lshlrev_b32 v1, 10, v14", "v_lshrrev_b32 v14, 4, v0", "v_and_b32 v15, 7, v0", "v_xor_b32 v14, v14, v15",
      "v_xor_b32 v15, 4, v14", "v_lshl_add_u32 v2, v15, 4, v1", "v_lshl_add_u32 v1, v14, 4, v1", f"v_add_u32 v2, {8*1024-1024}, v2")
    setup_dma128(g, 8192); setup_tr128(g)
    g(f"s_mul_i32 s{sSTG}, s{sWAVE}, 12288", f"s_add_u32 s{sSTG}, s{sSTG}, {4*16384}",
      "v_and_b32 v14, 15, v0", "v_lshlrev_b32 v10, 7, v14", "v_lshrrev_b32 v14, 1, v14", "v_lshrrev_b32 v15, 4, v0", "v_xor_b32 v14, v14, v15",
      "v_lshl_add_u32 v10, v14, 4, v10", f"v_add_u32 v10, s{sSTG}, v10", "v_xor_b32 v11, 64, v10")
    g(f"v_lshlrev_b32 v{V_L16}, 4, v0")
    g(f"s_lshl_b32 s{sT1}, s{sKB}, 8", f"s_lshl_b32 s{sCROW}, s{sWAVE}, 5", f"s_add_u32 s{sCROW}, s{sT1}, s{sCROW}", f"s_lshl_b32 s{sCROW}, s{sCROW}, 10")
    g(f"s_lshl_b32 s{sWB}, s{sWAVE}, 17", f"s_lshl_b32 s{sT1}, s{sHEAD}, 8", f"s_add_u32 s{sWB}, s{sWB}, s{sT1}", f"s_lshl_b32 s{sM0B}, s{sWAVE}, 11")
    g(f"s_lshl_b32 s{sWBKV}, s{sWAVE}, 17", f"s_lshl_b32 s{sT1}, s{sHKV}, 8", f"s_add_u32 s{sWBKV}, s{sWBKV}, s{sT1}")
    g(f"s_lshl_b32 s{sSTB}, s{sHKV}, 19", f"s_lshl_b32 s{sT1}, s{sKB}, 3", f"s_add_u32 s{sT1}, s{sT1}, s{sWAVE}", f"s_lshl_b32 s{sT1}, s{sT1}, 13", f"s_add_u32 s{sSTB}, s{sSTB}, s{sT1}")
    g("v_lshrrev_b32 v14, 4, v0", "v_lshlrev_b32 v14, 2, v14", "v_and_b32 v15, 15, v0")
    for r in range(4):
        g(f"v_cmp_le_u32 s[{sMASK+2*r}:{sMASK+2*r+1}], v14, v15")
        if r < 3: g("v_add_u32 v14, 1, v14")
    g(f"s_mov_b32 s{sRESTART}, 0", f"s_mov_b32 s{sOOB}, {hex(OOB)}")
    g("s_waitcnt lgkmcnt(0)")
    for s, n in ((S_WS, 'ws'), (S_DBG, 'dbg'), (S_A, 'ckv'), (S_B, 'wuk'), (S_C2, 'wuv'), (88, 'x'), (92, 'wmod'), (96, 'c')):
        finish_srd(g, s, n)
    def dma(c):
        if c < 16:
            j, q = c >> 2, c & 3
            srd = S_B if j < 2 else S_C2
            off = q*0x100000 + (j & 1)*128
        else:
            j, q = (c - 16) >> 2, c & 3
            srd = S_B; off = q*0x100000 + j*128
        return [f"s_add_u32 s{sT1}, s{sWBKV if c < 16 else sWB}, {hex(off)}", f"s_add_u32 m0, s{sM0B}, {hex(SLOT[c]*16384)}",
                (f"buffer_load_dwordx4 v{V_W0}, s[{srd}:{srd+3}], s{sT1} offen lds", ('W', c)),
                (f"buffer_load_dwordx4 v{V_W1}, s[{srd}:{srd+3}], s{sT1} offen offset:1024 lds", ('W', c))]
    def stage(p):
        out = []
        for hf in range(2):
            out += [f"s_add_u32 s{sT1}, s{sCROW}, {p*128 + hf*16384}", f"s_add_u32 m0, s{sSTG}, {(p%3)*4096 + hf*2048}",
                    (f"buffer_load_dwordx4 v{V_C0}, s[{S_A}:{S_A+3}], s{sT1} offen lds", ('P', p)),
                    (f"buffer_load_dwordx4 v{V_C1}, s[{S_A}:{S_A+3}], s{sT1} offen offset:1024 lds", ('P', p))]
        return out
    def stage_reads(p):
        return [f"ds_read_b128 a[{(s*2+t)*4}:{(s*2+t)*4+3}], v{V_SR+(s&1)} offset:{(p%3)*4096 + t*2048}" for s in (2*p, 2*p+1) for t in range(2)]
    def mod_loads(lo, hi, R=16):
        g(f"s_cmp_ge_u32 s2, {lo}", f"s_cselect_b32 s{sT2}, 0, s{sOOB}", f"s_cmp_lt_u32 s2, {hi}", f"s_cselect_b32 s{sT2}, s{sT2}, s{sOOB}")
        g(f"v_and_b32 v{R}, 3, v0", f"v_lshrrev_b32 v{R+1}, 2, v0", f"s_lshl_b32 s{sT1}, s{sWAVE}, 4", f"v_add_u32 v{R+1}, s{sT1}, v{R+1}")
        g(f"s_movk_i32 s{sT1}, 6144", f"v_mul_lo_u32 v{R+2}, v{R+1}, s{sT1}", f"v_lshl_add_u32 v{R+2}, v{R}, 4, v{R+2}", f"s_lshl_b32 s{sT1}, s2, 6", f"v_add_u32 v{R+2}, s{sT1}, v{R+2}")
        g(f"v_lshlrev_b32 v{R+3}, 1, v{R+1}")
        for t in range(4):
            g.vmem(f"buffer_load_ushort v{R+8+t}, v{R+3}, s[96:99], s{sT2} offen offset:{t*256}", 'mc')
        for t in range(4):
            g(f"s_add_u32 s{sT1}, s{sT2}, {hex(t*128*6144)}")
            g.vmem(f"buffer_load_dwordx4 v[{R+12+4*t}:{R+15+4*t}], v{R+2}, s[92:95], s{sT1} offen", ('mw', t))
    def mod_partial(lo, hi, lds, R=16):
        skip = g.newlabel("modp")
        g.wait_vm(('mw', 3))
        g(f"s_cmp_ge_u32 s2, {lo}", f"s_cbranch_scc0 {skip}", f"s_cmp_lt_u32 s2, {hi}", f"s_cbranch_scc0 {skip}")
        C0, W0, T0, A0 = R+8, R+12, R+28, R+32
        g(f"s_mov_b32 s{sT1}, {hex(LOG2E)}")
        for t in range(4): g(f"v_lshlrev_b32 v{C0+t}, 16, v{C0+t}")
        for t in range(4): g(f"v_mul_f32 v{T0+t}, s{sT1}, v{C0+t}")
        for t in range(4): g(f"v_exp_f32 v{T0+t}, -v{T0+t}")
        g("s_nop 0")
        for t in range(4): g(f"v_add_f32 v{T0+t}, 1.0, v{T0+t}")
        for t in range(4): g(f"v_rcp_f32 v{T0+t}, v{T0+t}")
        g("s_nop 0")
        for t in range(4): g(f"v_mul_f32 v{C0+t}, v{C0+t}, v{T0+t}")
        g(f"s_mov_b32 s{sT2}, 0xffff0000")
        for t in range(4):
            for d in range(4):
                w = W0 + 4*t + d
                g(f"v_lshlrev_b32 v{T0}, 16, v{w}", f"v_and_b32 v{T0+1}, s{sT2}, v{w}")
                if t == 0: g(f"v_mul_f32 v{A0+2*d}, v{C0}, v{T0}", f"v_mul_f32 v{A0+1+2*d}, v{C0}, v{T0+1}")
                else: g(f"v_fmac_f32 v{A0+2*d}, v{C0+t}, v{T0}", f"v_fmac_f32 v{A0+1+2*d}, v{C0+t}, v{T0+1}")
        for r in (8, 4):
            g("s_nop 1")
            for e in range(8): g(f"v_add_f32_dpp v{A0+e}, v{A0+e}, v{A0+e} row_ror:{r} row_mask:0xf bank_mask:0xf")
        g(f"v_lshrrev_b32 v{R+1}, 4, v0", f"s_lshl_b32 s{sT1}, s{sWAVE}, 2", f"v_add_u32 v{R+1}, s{sT1}, v{R+1}", f"v_lshlrev_b32 v{R+1}, 7, v{R+1}",
          f"v_lshl_add_u32 v{R+1}, v{R}, 5, v{R+1}", f"v_add_u32 v{R+1}, {lds}, v{R+1}")
        g(f"v_and_b32 v{R}, 15, v0", f"v_cmp_gt_u32 vcc, 4, v{R}", "s_nop 1", "s_mov_b64 exec, vcc")
        g(f"ds_write_b128 v{R+1}, v[{A0}:{A0+3}]", f"ds_write_b128 v{R+1}, v[{A0+4}:{A0+7}] offset:16")
        g("s_mov_b64 exec, -1", "s_waitcnt lgkmcnt(0)")
        g.label(skip)
    def mod_final(lo, hi, lds, R=16):
        lskip = g.newlabel("modfin")
        g(f"s_cmp_ge_u32 s2, {lo}", f"s_cselect_b32 s{sT2}, 0, s{sOOB}", f"s_cmp_lt_u32 s2, {hi}", f"s_cselect_b32 s{sT2}, s{sT2}, s{sOOB}",
          f"s_cmp_eq_u32 s{sWAVE}, 0", f"s_cselect_b32 s{sT2}, s{sT2}, s{sOOB}")
        g(f"s_cmp_lg_u32 s{sT2}, 0", f"s_cbranch_scc1 {lskip}")
        g(f"v_and_b32 v{R}, 31, v0", f"v_lshlrev_b32 v{R}, 2, v{R}", f"v_lshrrev_b32 v{R+1}, 5, v0", f"v_lshl_add_u32 v{R}, v{R+1}, 11, v{R}", f"v_add_u32 v{R}, {lds}, v{R}")
        for r in range(16):
            if r == 15: g("s_waitcnt lgkmcnt(7)")
            g(f"ds_read_b32 v{R+8+r}, v{R} offset:{r*128}")
        g("s_waitcnt lgkmcnt(0)")
        for st in (8, 4, 2, 1):
            for k in range(st): g(f"v_add_f32 v{R+8+k}, v{R+8+k}, v{R+8+k+st}")
        g(f"v_mov_b32 v{R+9}, v{R+8}", "s_nop 1", f"v_permlane32_swap_b32 v{R+8}, v{R+9}", f"v_add_f32 v{R+8}, v{R+8}, v{R+9}")
        g.label(lskip)
        g(f"v_lshlrev_b32 v{R}, 2, v0", "v_cmp_gt_u32 vcc, 32, v0", f"v_mov_b32 v{R+1}, {hex(OOB)}", "s_nop 0", f"v_cndmask_b32 v{R}, v{R+1}, v{R}, vcc")
        g(f"s_lshl_b32 s{sT1}, s2, 7", f"s_add_u32 s{sT1}, s{sT1}, {hex(WS_MOD)}", f"s_add_u32 s{sT1}, s{sT1}, s{sT2}")
        g.vmem(f"buffer_store_dword v{R+8}, v{R}, s[{S_WS}:{S_WS+3}], s{sT1} offen sc1", 'modst')
    emit(g, dma(0)); emit(g, stage(0)); emit(g, stage(1))
    mod_loads(0, 96)
    emit(g, dma(1)); emit(g, stage(2)); emit(g, dma(2))
    g(f"s_lshr_b32 s{sT1}, s2, 5", f"s_mul_i32 s{sT1}, s{sT1}, 160", f"s_lshl_b32 s{sT2}, s{sWAVE}, 6", f"s_add_u32 s{sT1}, s{sT1}, s{sT2}", f"v_add_u32 v56, s{sT1}, v0")
    g(f"s_mul_i32 s{sT2}, s{sWAVE}, 64", f"v_add_u32 v57, s{sT2}, v0", "v_mov_b32 v58, 0xcccd", "v_mul_u32_u24 v58, v56, v58", "v_lshrrev_b32 v58, 18, v58")
    g("v_mul_u32_u24 v59, 5, v58", "v_sub_u32 v59, v56, v59", "v_add_u32 v59, 3, v59", "v_lshlrev_b32 v59, 7, v59", "v_lshl_add_u32 v59, v58, 10, v59")
    g(f"s_lshl_b32 s{sT1}, s{sKB}, 18", f"v_add_u32 v59, s{sT1}, v59", "v_cmp_gt_u32 vcc, 160, v57", f"v_mov_b32 v58, {hex(OOB)}", "s_nop 0", "v_cndmask_b32 v59, v58, v59, vcc")
    g.vmem(f"buffer_load_dword v97, v59, s[{S_A}:{S_A+3}], 0 offen", 'tc')
    g(f"s_and_b32 s{sT1}, s{sKB}, 3", f"s_lshl_b32 s{sT1}, s{sT1}, 9", f"s_lshl_b32 s{sT2}, s{sWAVE}, 6", f"s_add_u32 s{sT1}, s{sT1}, s{sT2}", f"v_add_u32 v57, s{sT1}, v0")
    g("v_bfe_u32 v58, v57, 1, 9", "v_lshlrev_b32 v58, 13, v58", "v_and_b32 v59, 1, v57", "v_lshl_add_u32 v58, v59, 7, v58", f"s_lshl_b32 s{sT2}, s{sHKV}, 8", f"v_add_u32 v58, s{sT2}, v58")
    g(f"s_bitcmp1_b32 s{sKB}, 1", f"s_cselect_b32 s{sT2}, s{sOOB}, 0")
    g.vmem(f"buffer_load_dword v98, v58, s[{S_B}:{S_B+3}], s{sT2} offen", 'tc')
    g(f"s_cselect_b32 s{sT2}, 0, s{sOOB}")
    g.vmem(f"buffer_load_dword v99, v58, s[{S_C2}:{S_C2+3}], s{sT2} offen", 'tc')
    g(f"s_lshl_b32 s{sT1}, s{sHEAD}, 3", f"s_add_u32 s{sT1}, s{sT1}, s{sWAVE}", f"s_lshl_b32 s{sT2}, s{sI}, 7", f"s_add_u32 s{sT2}, s{sT2}, s{sT1}",
      f"s_sub_u32 s{sT3}, 14, s{sI}", f"s_lshl_b32 s{sT3}, s{sT3}, 7", f"s_add_u32 s{sT3}, s{sT3}, s{sT1}",
      f"s_cmp_lt_u32 s{sT1}, 128", f"s_cselect_b32 s{sCNT}, s{sT2}, s{sT3}")
    mod_partial(0, 96, 3*16384)
    g.stamp("mod_part")
    g.wait_vm(('P', 0)); g(stage_reads(0))
    g.wait_vm(('W', 0)); g("s_waitcnt lgkmcnt(0)", "s_barrier")
    g.stamp("w0_landed")
    emit(g, stage(3))
    mod_final(0, 96, 3*16384)
    g(f"s_lshl_b32 s{sT1}, s2, 7", f"s_add_u32 s{sT1}, s{sT1}, {hex(WS_CNT)}", "s_cmp_lt_u32 s2, 128", f"s_cselect_b32 s{sT1}, s{sT1}, s{sOOB}",
      f"s_cmp_eq_u32 s{sWAVE}, 0", f"s_cselect_b32 s{sT1}, s{sT1}, s{sOOB}", "v_mov_b32 v17, 0", "s_mov_b64 exec, 1")
    g.vmem(f"buffer_store_dword v17, off, s[{S_WS}:{S_WS+3}], s{sT1} sc1", 'modst')
    g("s_mov_b64 exec, -1")
    g("s_nop 1")
    second = 512
    g(tr_reads(0, 0, second)); r1 = tr_reads(1, 1, second)
    g(r1[:7]); g("s_waitcnt lgkmcnt(7)"); g(r1[7])
    NKS, NCH = 96, 24
    def epilogue(j):
        buf = V_ACC + (j & 1) * 32
        A = lambda t, cb: buf + (t * 4 + cb) * 4
        groups = []
        for i in range(4):
            if j < 2:
                t, u = i >> 1, i & 1
                a, b = A(t, 2*u), A(t, 2*u+1); off = WS_KF + (t * 4 + 2*j + u) * 1024
            else:
                a, b = A(0, i), A(1, i); off = WS_VF + (4*(j-2) + i) * 1024
            grp = [f"v_cvt_pk_bf16_f32 v{a}, v{a}, v{a+1}", f"v_cvt_pk_bf16_f32 v{a+1}, v{a+2}, v{a+3}",
                   f"v_cvt_pk_bf16_f32 v{a+2}, v{b}, v{b+1}", f"v_cvt_pk_bf16_f32 v{a+3}, v{b+2}, v{b+3}"]
            st = [f"s_add_u32 s{sT1}, s{sSTB}, {hex(off)}", (f"buffer_store_dwordx4 v[{a}:{a+3}], v{V_L16}, s[{S_WS}:{S_WS+3}], s{sT1} offen{'' if OPT.get('kvplain') else ' sc1'}", ('st', j))]
            groups.append((grp, st))
        return groups
    def hload(s):
        out = []
        for t in range(2):
            out += [f"s_lshl_b32 s{sT1}, s{sT16}, 14", f"s_add_u32 s{sT1}, s{sT1}, {hex(WS_H + t*16384 + s*1024)}",
                    (f"buffer_load_dwordx4 a[{(s*2+t)*4}:{(s*2+t)*4+3}], v{V_L16}, s[{S_WS}:{S_WS+3}], s{sT1} offen sc1", ('H', s))]
        return out
    def ln1_loads():
        g(f"v_lshlrev_b32 v1, 5, v0", f"s_mov_b32 s{sT1}, {hex(WS_MOD)}")
        for k, off in enumerate((0, 16, 2048, 2064)):
            g.vmem(f"buffer_load_dwordx4 v[{72+4*k}:{75+4*k}], v1, s[{S_WS}:{S_WS+3}], s{sT1} offen offset:{off} sc1", 'lnm')
    def ln1_compute():
        g.wait_vm('lnx'); g(f"s_mov_b32 s{sT2}, 0xffff0000")
        for d in range(4): g(f"v_lshlrev_b32 v{64+2*d}, 16, v{12+d}", f"v_and_b32 v{65+2*d}, s{sT2}, v{12+d}")
        g("v_add_f32 v88, v64, v65", "v_add_f32 v89, v66, v67", "v_add_f32 v90, v68, v69", "v_add_f32 v91, v70, v71")
        g("v_add_f32 v88, v88, v89", "v_add_f32 v90, v90, v91", "v_add_f32 v88, v88, v90")
        wave_sum64(g, 88, 89)
        g("v_mul_f32 v88, 0x3b000000, v88")
        for e in range(8): g(f"v_sub_f32 v{64+e}, v{64+e}, v88")
        g("v_mul_f32 v89, v64, v64")
        for e in range(1, 8): g(f"v_fmac_f32 v89, v{64+e}, v{64+e}")
        wave_sum64(g, 89, 90)
        g("v_mov_b32 v90, 0x3727c5ac", "v_fmac_f32 v90, 0x3b000000, v89", "v_rsq_f32 v90, v90")
        g.wait_vm('lnm')
        g(f"v_mul_f32 v90, {hex(QSCALE)}, v90")
        for e in range(8): g(f"v_mul_f32 v{64+e}, v{64+e}, v90")
        for e in range(8): g(f"v_add_f32 v{80+e}, 1.0, v{80+e}")
        for e in range(8): g(f"v_mul_f32 v{72+e}, {hex(QSCALE)}, v{72+e}")
        for e in range(8): g(f"v_fma_f32 v{64+e}, v{64+e}, v{80+e}, v{72+e}")
        for d in range(4): g(f"v_cvt_pk_bf16_f32 v{88+d}, v{64+2*d}, v{65+2*d}")
        g(f"s_lshr_b32 s{sT1}, s{sCNT}, 4", f"s_lshl_b32 s{sT1}, s{sT1}, 14", f"s_and_b32 s{sT2}, s{sCNT}, 15", f"s_lshl_b32 s{sT2}, s{sT2}, 4",
          f"s_add_u32 s{sT1}, s{sT1}, s{sT2}", f"s_add_u32 s{sT1}, s{sT1}, {hex(WS_H)}")
        g("v_lshrrev_b32 v1, 2, v0", "v_lshlrev_b32 v1, 10, v1", "v_and_b32 v2, 3, v0", "v_lshl_add_u32 v1, v2, 8, v1")
        g.vmem(f"buffer_store_dwordx4 v[88:91], v1, s[{S_WS}:{S_WS+3}], s{sT1} offen{'' if OPT.get('hplain') else ' sc1'}", 'hst')
    pend = []
    for ks in range(NKS):
        c, kk = ks >> 2, ks & 3
        j = c >> 2; s = ks % 16
        if kk == 2 and c + 1 < NCH:
            if c == 1: g.wait_vm('modst')
            if c == 5: poll_check(g, 2, S_DBG, 'pl0', sKO, 256, sT1, sT2)
            if c == 8: g.wait_vm('hst')
            if c == 12: g.stamp("h_pre"); poll_check(g, 2, S_WS, 'plh', sKO, 32, sT1, sT2); g.stamp("h_chk")
            if c == 17: g.wait_vm(('st', 3))
            if c == 20: g.stamp("kv_pre"); poll_check(g, 2, S_WS, 'plk', sM0K, 8, sT1, sT2); g.stamp("kv_chk")
            g.stamp(f"b_{c}a"); g.wait_vm(('W', c + 1)); g("s_barrier"); g.stamp(f"b_{c}")
            if c == 6:
                g(f"s_load_dwordx2 s[16:17], s[0:1], {KA['wq']}", "s_waitcnt lgkmcnt(0)"); finish_srd(g, S_B, 'wq')
            for cc in ISSUE.get(c, []): emit(g, dma(cc))
            if c == 1: signal(g, S_DBG, C_START*4, 96, sT1)
            if c == 2:
                g(f"s_lshl_b32 s{sT1}, s{sCNT}, 10")
                g.vmem(f"buffer_load_dwordx4 v[12:15], v{V_L16}, s[88:91], s{sT1} offen", 'lnx')
            if c == 4:
                g(f"s_mov_b32 s{sKO}, {C_START*4}"); poll_issue(g, 2, S_DBG, sKO, 'pl0', sT1)
            if c == 5: ln1_loads()
            if c == 6: ln1_compute()
            if c == 8:
                cnt_off(g, sT3, C_H, sI); signal(g, S_WS, ('s', sT3), 1, sT1)
            if c == 11:
                cnt_off(g, sKO, C_H, sI); poll_issue(g, 2, S_WS, sKO, 'plh', sT1)
            if c == 17:
                cnt_off(g, sT3, C_KV, sHKV); signal(g, S_WS, ('s', sT3), 1, sT1)
            if c == 19:
                cnt_off(g, sM0K, C_KV, sHEAD); poll_issue(g, 2, S_WS, sM0K, 'plk', sT1)
            if c == 20:
                emit(g, unit_sc1(0)); emit(g, unit_sc1(1))
            if c == 21: emit(g, unit_sc1(2))
            d = (SLOT[c + 1] - SLOT[c]) * 16384
            for cb in range(4): g(f"v_add_u32 v{V_TR+cb}, {hex(d & 0xffffffff)}, v{V_TR+cb}")
        extra = False
        if ks < 16:
            if ks % 2 == 1 and (ks + 1) // 2 <= 7:
                p = (ks + 1) // 2
                g.wait_vm(('P', p)); g(stage_reads(p)); extra = True
            if ks % 2 == 0 and ks >= 2 and ks // 2 + 3 <= 7: emit(g, stage(ks // 2 + 3))
        if 64 <= ks < 80: g.wait_vm(('H', s))
        nxt = ks + 2
        reads = tr_reads(nxt, nxt & 3, second) if nxt < NKS else []
        buf = V_ACC + (j & 1) * 32
        epi = pend.pop(0) if (pend and s >= 1) else None
        fb = ks % 3
        wfirst = j < 2 or j >= 4
        for m in range(8):
            cb, t = m >> 1, m & 1
            d = buf + (t * 4 + cb) * 4
            wf = f"v[{V_FR + fb*16 + cb*4}:{V_FR + fb*16 + cb*4 + 3}]"
            cf = f"a[{(s*2+t)*4}:{(s*2+t)*4+3}]"
            cin = "0" if s == 0 else f"v[{d}:{d+3}]"
            g(f"v_mfma_f32_16x16x32_bf16 v[{d}:{d+3}], {wf}, {cf}, {cin}" if wfirst else f"v_mfma_f32_16x16x32_bf16 v[{d}:{d+3}], {cf}, {wf}, {cin}")
            if m == 3 and extra: g("s_waitcnt lgkmcnt(3)")
            if m == 7 and reads: g("s_waitcnt lgkmcnt(7)")
            if reads: g(reads[m])
            elif m == 7 and ks + 1 < NKS: g("s_waitcnt lgkmcnt(0)")
            if epi and 1 <= m <= 4: g(epi[0][m-1])
            if epi and m == 5: emit(g, epi[1])
        for sh in HSCHED.get(ks, []): emit(g, hload(sh))
        if s == 15:
            if j < 4: pend = epilogue(j)
            g.stamp(f"sub{j}_done")
    g("s_nop 7")
    for qs in range(2):
        for s in range(4):
            j, u = s >> 1, s & 1
            a = V_ACC + j*32 + (qs*4 + 2*u)*4; b = a + 4
            for k, (x, y) in enumerate(((a, a+1), (a+2, a+3), (b, b+1), (b+2, b+3))): g(f"v_cvt_pk_bf16_f32 v{16+k}, v{x}, v{y}")
            for k in range(4): g(f"v_accvgpr_write_b32 a{A_Q+(qs*4+s)*4+k}, v{16+k}")
    p_att.attention_body(g, unit_sc1, sc1=True)

def unit_sc1(u):
    its = uniform_unit(u)
    return [((x[0].replace(" lds", " sc1 lds"), x[1]) if isinstance(x, tuple) else x) for x in its]
```

```python
from core import *
import p_kv
from p_kv import emit, V_W0, V_W1, V_L16, V_TR, V_FR, V_ACC, setup_dma128, setup_tr128, gemm_res_loop

V_CUR, V_NXT, V_L0, V_L1 = 1, 2, 3, 4
V_NEG = 8
V_S = 16
V_P = 48
V_O = 64
A_Q = 0
A_F = 32
S_WQ, S_WS = 4, 8
sWAVE, sHEAD, sI, sISA, sSUB, sT16, sNB2, sNA2, sT, sCNT = 20, 21, 22, 23, 24, 25, 26, 27, 28, 29
sKF, sVF, sNAo, sNBo, sA4, sKO, sVO, sM0K, sT1, sT2, sT3, sSLOT, sRESTART = 30, 31, 32, 33, 34, 35, 36, 37, 38, 39, 40, 41, 42
sMASK = 44
sWB, sM0B = 52, 53
LDS_FLAG = 0x20000
OPT = {}
SC1 = ''

def fr(i, n=8): return f"a[{A_F+4*(i%n)}:{A_F+4*(i%n)+3}]"
def Sreg(buf, qs, kb): return V_S + buf*16 + (qs*2+kb)*4
def v4(b): return f"v[{b}:{b+3}]"

def reads_for(gi):
    a = V_CUR if gi < 16 else V_NXT
    gg = gi % 16
    it, t = gg >> 3, gg & 7
    return (f"ds_read_b128 {fr(2*gi)}, v{a} offset:{it*8192 + t*1024}",
            f"ds_read_b128 {fr(2*gi+1)}, v{a} offset:{16384 + it*8192 + t*1024}")

def gen_iter(g, it, qk, sm, pv, prev_sm, czero=False, dmas=None, lookahead=True):
    dmas = dmas or {}
    Sc = V_S + (1-it)*16
    Sp = V_S + it*16
    Pn = V_P + (1-it)*8; Pp = V_P + it*8
    for t in range(8):
        gi = it*8 + t
        kb, s = t >> 2, t & 3
        kf, vf = fr(2*gi), fr(2*gi+1)
        M = [None]*4
        if qk:
            for qs in range(2):
                d = Sreg(it, qs, kb)
                c = ("0" if czero else v4(V_NEG+4*qs)) if s == 0 else v4(d)
                M[qs] = f"v_mfma_f32_16x16x32_bf16 {v4(d)}, {kf}, a[{A_Q+(qs*4+s)*4}:{A_Q+(qs*4+s)*4+3}], {c}"
        if pv:
            for qs in range(2):
                d = V_O + (qs*8+t)*4
                M[2+qs] = f"v_mfma_f32_16x16x32_bf16 {v4(d)}, {vf}, {v4(Pp+4*qs)}, {v4(d)}"
        E0 = E1 = C = A0 = A1 = None
        if sm:
            E0, E1 = f"v_exp_f32 v{Sc+2*t}, v{Sc+2*t}", f"v_exp_f32 v{Sc+2*t+1}, v{Sc+2*t+1}"
        if t > 0 and sm:
            p0 = Sc + 2*(t-1); lq = V_L0 + ((t-1) >> 2); dst = Pn + t-1
        elif t == 0 and prev_sm:
            p0 = Sp + 14; lq = V_L1; dst = Pp + 7
        else:
            p0 = None
        if p0 is not None:
            C = f"v_cvt_pk_bf16_f32 v{dst}, v{p0}, v{p0+1}"
            A0, A1 = f"v_add_f32 v{lq}, v{lq}, v{p0}", f"v_add_f32 v{lq}, v{lq}, v{p0+1}"
        R0 = R1 = None
        if lookahead or gi + 2 < 16:
            R0, R1 = reads_for(gi + 2)
        D = dmas.get(gi, [])
        W = "s_waitcnt lgkmcnt(2)" if (R0 is not None) else "s_waitcnt lgkmcnt(0)"
        seq = [M[0], R0, E0, M[1], R1, C, M[2]]
        g([x for x in seq if x])
        emit(g, D)
        if t == 0 and prev_sm and E1 is None and not D: g("s_nop 1")
        g([x for x in [E1, M[3]] if x])
        g(W)
        g([x for x in [A0, A1] if x])
        if not pv and t == 0 and prev_sm: pass

def unit_addr(g):
    g(f"s_add_u32 s{sT1}, s{sT}, 3", f"s_lshl_b32 s{sKO}, s{sT1}, 14", f"s_sub_u32 s{sVO}, s{sKO}, 16384",
      f"s_sub_u32 s{sT2}, s{sT1}, s{sNB2}", f"s_sub_u32 s{sT2}, s{sT2}, 1",
      f"s_bitcmp1_b32 s{sT2}, 0", f"s_cselect_b32 s{sT3}, s{sNAo}, s{sNBo}",
      f"s_and_b32 s{sT2}, s{sT2}, 2", f"s_lshl_b32 s{sT2}, s{sT2}, 13", f"s_add_u32 s{sT3}, s{sT3}, s{sT2}",
      f"s_cmp_le_u32 s{sT1}, s{sNB2}", f"s_cselect_b32 s{sKO}, s{sKO}, s{sT3}", f"s_cselect_b32 s{sVO}, s{sVO}, s{sT3}",
      f"s_add_u32 s{sKO}, s{sKO}, s{sKF}", f"s_add_u32 s{sVO}, s{sVO}, s{sVF}",
      f"s_and_b32 s{sT1}, s{sT1}, 3", f"s_lshl_b32 s{sT1}, s{sT1}, 15", f"s_add_u32 s{sM0K}, s{sT1}, s{sA4}")

def unit_dma_list():
    d = {}
    for k in range(4):
        d[k] = ([f"s_mov_b32 m0, s{sM0K}", "s_nop 0"] if k == 0 else []) + [(f"buffer_load_dwordx4 v{V_L16}, s[{S_WS}:{S_WS+3}], s{sKO} offen offset:{k*1024}{SC1} lds", 'U')]
        d[4+k] = ([f"s_add_u32 m0, s{sM0K}, 16384", "s_nop 0"] if k == 0 else []) + [(f"buffer_load_dwordx4 v{V_L16}, s[{S_WS}:{S_WS+3}], s{sVO} offen offset:{k*1024}{SC1} lds", 'U')]
    return d

def step_begin(g, isA):
    if isA: g("s_waitcnt vmcnt(8)")
    g("s_barrier")
    if isA: unit_addr(g)

def step_addr_advance(g):
    g(f"v_mov_b32 v{V_CUR}, v{V_NXT}", f"s_add_u32 s{sSLOT}, s{sSLOT}, 32768", f"s_and_b32 s{sSLOT}, s{sSLOT}, 0x1ffff",
      f"v_add_u32 v{V_NXT}, s{sSLOT}, v{V_L16}")

def uniform_unit(u):
    kblk, vblk = 2*u, max(2*u-2, 0)
    items = [f"s_add_u32 s{sKO}, s{sKF}, {kblk*8192}", f"s_add_u32 s{sVO}, s{sVF}, {vblk*8192}",
             f"s_cmp_eq_u32 s{sISA}, 0", f"s_cselect_b32 s{sKO}, s{sKO}, s{sVO}",
             f"s_lshl_b32 s{sT1}, s{sISA}, 14", f"s_add_u32 s{sT1}, s{sT1}, s{sA4}", f"s_add_u32 m0, s{sT1}, {u*32768}", "s_nop 0"]
    for k in range(4):
        items.append((f"buffer_load_dwordx4 v{V_L16}, s[{S_WS}:{S_WS+3}], s{sKO} offen offset:{k*1024} lds", ('U', u)))
    return items

def cross_g(g, v, t, op):
    g(f"v_mov_b32 v{t}, v{v}", "s_nop 1", f"v_permlane16_swap_b32 v{v}, v{t}", f"{op} v{v}, v{v}, v{t}")
    g(f"v_mov_b32 v{t}, v{v}", "s_nop 1", f"v_permlane32_swap_b32 v{v}, v{t}", f"{op} v{v}, v{v}, v{t}")

def diag_block(g, masked, maxonly=False, addr=V_CUR, noV=False):
    for t in range(8):
        g(f"ds_read_b128 {fr(t,16)}, v{addr} offset:{t*1024}")
    if not maxonly:
        for t in range(7):
            g(f"ds_read_b128 {fr(8+t,16)}, v{addr} offset:{16384+t*1024}")
        g("s_waitcnt lgkmcnt(7)")
    else:
        g("s_waitcnt lgkmcnt(0)")
    for t in range(8):
        kb, s = t >> 2, t & 3
        for qs in range(2):
            if masked and qs == 0 and kb == 1: continue
            d = Sreg(0, qs, kb)
            c = ("0" if maxonly else v4(V_NEG+4*qs)) if s == 0 else v4(d)
            g(f"v_mfma_f32_16x16x32_bf16 {v4(d)}, {fr(t,16)}, a[{A_Q+(qs*4+s)*4}:{A_Q+(qs*4+s)*4+3}], {c}")
    if not maxonly: g(f"ds_read_b128 {fr(15,16)}, v{addr} offset:{16384+7*1024}")
    g("s_nop 7")
    regs = [(qs, kb, r) for qs in range(2) for kb in range(2) for r in range(4)]
    if maxonly:
        for qs, kb, r in regs:
            if masked and qs == 0 and kb == 1: continue
            x = Sreg(0, qs, kb) + r
            if masked and qs == kb:
                g(f"v_cndmask_b32 v{x}, v{V_L0}, v{x}, s[{sMASK+2*r}:{sMASK+2*r+1}]")
            g(f"v_max_f32 v{6+qs}, v{6+qs}, v{x}")
        return
    for qs, kb, r in regs:
        x = Sreg(0, qs, kb) + r
        if masked and qs == 0 and kb == 1: continue
        g(f"v_exp_f32 v{x}, v{x}")
    g("s_nop 0")
    for qs, kb, r in regs:
        x = Sreg(0, qs, kb) + r
        if masked and qs == 0 and kb == 1: continue
        if masked and qs == kb:
            g(f"v_cndmask_b32 v{x}, 0, v{x}, s[{sMASK+2*r}:{sMASK+2*r+1}]")
        g(f"v_add_f32 v{V_L0+qs}, v{V_L0+qs}, v{x}")
    for x in range(8):
        if masked and x in (2, 3): g(f"v_mov_b32 v{V_P+x}, 0")
        else: g(f"v_cvt_pk_bf16_f32 v{V_P+x}, v{V_S+2*x}, v{V_S+2*x+1}")
    g("s_waitcnt lgkmcnt(0)", "s_nop 0")
    for t in range(8):
        for qs in range(2):
            d = V_O + (qs*8+t)*4
            g(f"v_mfma_f32_16x16x32_bf16 {v4(d)}, {fr(8+t,16)}, {v4(V_P+4*qs)}, {v4(d)}")

def phase_att(g):
    g(f"s_load_dwordx2 s[4:5], s[0:1], {KA['wq']}", f"s_load_dwordx2 s[8:9], s[0:1], {KA['ws']}")
    g("v_lshrrev_b32 v14, 6, v0", "v_and_b32 v0, 63, v0", "s_nop 0", f"v_readfirstlane_b32 s{sWAVE}, v14")
    g(f"s_and_b32 s{sHEAD}, s2, 7", f"s_lshl_b32 s{sHEAD}, s{sHEAD}, 2", f"s_bfe_u32 s{sT1}, s2, 0x20003", f"s_add_u32 s{sHEAD}, s{sHEAD}, s{sT1}")
    g(f"s_lshr_b32 s{sI}, s2, 5", f"s_lshr_b32 s{sISA}, s{sWAVE}, 2")
    g(f"s_sub_u32 s{sT1}, 7, s{sWAVE}", f"s_sub_u32 s{sT2}, 15, s{sI}", f"s_cmp_eq_u32 s{sISA}, 0",
      f"s_cselect_b32 s{sSUB}, s{sWAVE}, s{sT1}", f"s_cselect_b32 s{sT3}, s{sT2}, s{sI}")
    g(f"s_lshl_b32 s{sT16}, s{sT3}, 3", f"s_lshl_b32 s{sT1}, s{sSUB}, 1", f"s_add_u32 s{sT16}, s{sT16}, s{sT1}")
    g(f"s_lshl_b32 s{sNB2}, s{sT2}, 1", f"s_lshl_b32 s{sNA2}, s{sI}, 1",
      f"s_lshl_b32 s{sNBo}, s{sT2}, 15", f"s_lshl_b32 s{sNAo}, s{sI}, 15")
    g(f"s_and_b32 s{sA4}, s{sWAVE}, 3", f"s_lshl_b32 s{sA4}, s{sA4}, 12")
    g(f"s_lshl_b32 s{sT1}, s{sHEAD}, 19", f"s_add_u32 s{sT1}, s{sT1}, s{sA4}",
      f"s_add_u32 s{sKF}, s{sT1}, {hex(WS_KF)}", f"s_add_u32 s{sVF}, s{sT1}, {hex(WS_VF)}")
    setup_dma128(g, 8192); setup_tr128(g)
    g(f"v_lshlrev_b32 v{V_L16}, 4, v0")
    g(f"s_lshl_b32 s{sWB}, s{sWAVE}, 17", f"s_lshl_b32 s{sT1}, s{sHEAD}, 8", f"s_add_u32 s{sWB}, s{sWB}, s{sT1}", f"s_lshl_b32 s{sM0B}, s{sWAVE}, 11")
    g("v_lshrrev_b32 v14, 4, v0", "v_lshlrev_b32 v14, 2, v14", "v_and_b32 v15, 15, v0")
    for r in range(4):
        g(f"v_cmp_le_u32 s[{sMASK+2*r}:{sMASK+2*r+1}], v14, v15")
        if r < 3: g("v_add_u32 v14, 1, v14")
    g(f"s_mov_b32 s{sRESTART}, 0")
    g("s_waitcnt lgkmcnt(0)")
    p_kv.finish_srd(g, S_WQ, 'wq'); p_kv.finish_srd(g, S_WS, 'ws')
    def dma(c):
        j, q = c >> 2, c & 3
        return [f"s_add_u32 s{sT1}, s{sWB}, {hex(q*0x100000 + j*128)}", f"s_add_u32 m0, s{sM0B}, {hex(c*16384)}",
                (f"buffer_load_dwordx4 v{V_W0}, s[{S_WQ}:{S_WQ+3}], s{sT1} offen lds", ('W', c)),
                (f"buffer_load_dwordx4 v{V_W1}, s[{S_WQ}:{S_WQ+3}], s{sT1} offen offset:1024 lds", ('W', c))]
    def hload(s4):
        out = []
        for t in range(2):
            out.append(f"s_lshl_b32 s{sT1}, s{sT16}, 14")
            out.append(f"s_add_u32 s{sT1}, s{sT1}, {hex(WS_H + t*16384 + s4*4096)}")
            for k in range(4):
                s = s4*4 + k
                out.append((f"buffer_load_dwordx4 a[{(s*2+t)*4}:{(s*2+t)*4+3}], v{V_L16}, s[{S_WS}:{S_WS+3}], s{sT1} offen offset:{k*1024}", ('H', s4)))
        return out
    g.stamp("att_entry")
    emit(g, dma(0)); emit(g, hload(0)); emit(g, dma(1)); emit(g, hload(1)); emit(g, dma(2)); emit(g, hload(2)); emit(g, hload(3))
    for c in range(3, 8): emit(g, dma(c))
    g.wait_vm(('W', 0)); g("s_waitcnt lgkmcnt(0)", "s_barrier")
    g.stamp("q_w0")
    def hook(ks, where):
        if where == 'pre' and ks < 16 and ks % 4 == 0: g.wait_vm(('H', ks // 4))
        if where == 'barrier':
            if ks == 10: emit(g, uniform_unit(0))
            if ks == 18: emit(g, uniform_unit(1))
            if ks == 26: emit(g, uniform_unit(2))
        return False
    gemm_res_loop(g, 2, list(range(8)), {}, dma, lambda j: True, None, hook)
    g.stamp("q_done")
    g("s_nop 7")
    for qs in range(2):
        for s in range(4):
            j, u = s >> 1, s & 1
            a = V_ACC + j*32 + (qs*4 + 2*u)*4; b = a + 4
            for k, (x, y) in enumerate(((a, a+1), (a+2, a+3), (b, b+1), (b+2, b+3))):
                g(f"v_cvt_pk_bf16_f32 v{16+k}, v{x}, v{y}")
            for k in range(4):
                g(f"v_accvgpr_write_b32 a{A_Q+(qs*4+s)*4+k}, v{16+k}")
    attention_body(g, uniform_unit)

def attention_body(g, unit_fn, sc1=False):
    global SC1
    SC1 = ' sc1' if sc1 else ''
    L_START = g.newlabel("att_start")
    g.label(L_START)
    g.vm = [('U', 0)]*4 + [('U', 1)]*4 + [('U', 2)]*4
    if not OPT.get('nopf'):
        for k, n in enumerate(('wo', 'wg', 'wu', 'wd')): g(f"s_load_dwordx2 s[{88+2*k}:{89+2*k}], s[0:1], {KA[n]}")
    for r in range(64): g(f"v_mov_b32 v{V_O+r}, 0")
    g(f"v_mov_b32 v{V_L0}, 0", f"v_mov_b32 v{V_L1}, 0")
    g(f"v_mov_b32 v{V_CUR}, v{V_L16}", f"v_add_u32 v{V_NXT}, 0x8000, v{V_L16}", f"s_mov_b32 s{sSLOT}, 0x8000", f"s_mov_b32 s{sT}, 0")
    g.wait_vm(('U', 1)); g("s_waitcnt lgkmcnt(0)", "s_barrier")
    g(f"v_mov_b32 v6, {hex(LDS_FLAG)}", "v_mov_b32 v7, 0", "ds_write_b32 v6, v7", "s_waitcnt lgkmcnt(0)")
    g.stamp("step0"); g.stamp("step0_c", True)
    LA, LB = g.newlabel("pathA"), g.newlabel("pathB")
    LDIAG = g.newlabel("diag")
    def first_part(isA):
        dm = None
        if isA:
            unit_addr(g); dm = unit_dma_list()
        r0, r1 = reads_for(0), reads_for(1)
        g(r0[0], r0[1], r1[0], r1[1], "s_waitcnt lgkmcnt(2)")
        gen_iter(g, 0, True, False, False, False, czero=True, dmas=dm)
        g("s_nop 7")
        skip = g.newlabel("nomax")
        g(f"s_cmp_lg_u32 s{sRESTART}, 0", f"s_cbranch_scc1 {skip}")
        for qs in range(2):
            b = V_S + qs*8
            g(f"v_max3_f32 v6, v{b}, v{b+1}, v{b+2}", f"v_max3_f32 v6, v6, v{b+3}, v{b+4}", f"v_max3_f32 v6, v6, v{b+5}, v{b+6}", f"v_max_f32 v6, v6, v{b+7}")
            cross_g(g, 6, 7, "v_max_f32")
            for k in range(4): g(f"v_sub_f32 v{V_NEG+4*qs+k}, 0, v6")
        g.label(skip)
        for qs in range(2):
            for k in range(8): g(f"v_add_f32 v{V_S+qs*8+k}, v{V_S+qs*8+k}, v{V_NEG+4*qs}")
        g("s_nop 1")
    g(f"s_cmp_lg_u32 s{sISA}, 0", f"s_cbranch_scc1 {LA}")
    first_part(False)
    gen_iter(g, 1, True, True, False, False)
    g("s_waitcnt vmcnt(0)")
    if not OPT.get('nopf'):
        skip_pf = g.newlabel("nopf")
        g(f"s_cmp_lg_u32 s{sRESTART}, 0", f"s_cbranch_scc1 {skip_pf}")
        g(f"s_lshl_b32 s{sT1}, s2, 2", f"s_add_u32 s{sT1}, s{sT1}, s{sWAVE}", f"v_lshlrev_b32 v6, 3, v{V_L16}")
        for k, (n, st) in enumerate((('wo', 0), ('wg', 512), ('wu', 736), ('wd', 288))):
            ins = prefetch_lines(g, 88+2*k, n, sT1, st, 7, 0, 6, sT2)
            g(ins)
        g.label(skip_pf)
    g(f"s_sub_u32 s{sCNT}, s{sNB2}, 1")
    lb = g.newlabel("Bloop"); g.label(lb)
    step_begin(g, False); step_addr_advance(g)
    gen_iter(g, 0, True, True, True, True); gen_iter(g, 1, True, True, True, True)
    g(f"s_sub_u32 s{sCNT}, s{sCNT}, 1", f"s_cmp_lg_u32 s{sCNT}, 0", f"s_cbranch_scc1 {lb}")
    step_begin(g, False); step_addr_advance(g)
    gen_iter(g, 0, False, True, True, True); gen_iter(g, 1, False, False, True, True, lookahead=False)
    g.stamp("B_main_done"); g.stamp("Bdone_c", True)
    g(f"s_branch {LDIAG}")
    g.label(LA)
    first_part(True)
    lidle = g.newlabel("Aidle"); lidle_chk = g.newlabel("Aidlechk")
    g(f"s_cmp_eq_u32 s{sNA2}, 0", f"s_cbranch_scc1 {lidle_chk}")
    gen_iter(g, 1, True, True, False, False)
    g(f"s_sub_u32 s{sCNT}, s{sNA2}, 1")
    la = g.newlabel("Aloop"); g.label(la)
    g(f"s_add_u32 s{sT}, s{sT}, 1")
    step_begin(g, True); step_addr_advance(g)
    gen_iter(g, 0, True, True, True, True, dmas=unit_dma_list()); gen_iter(g, 1, True, True, True, True)
    g(f"s_sub_u32 s{sCNT}, s{sCNT}, 1", f"s_cmp_lg_u32 s{sCNT}, 0", f"s_cbranch_scc1 {la}")
    g(f"s_add_u32 s{sT}, s{sT}, 1")
    step_begin(g, True); step_addr_advance(g)
    gen_iter(g, 0, False, True, True, True, dmas=unit_dma_list()); gen_iter(g, 1, False, False, True, True, lookahead=False)
    g.label(lidle_chk)
    g("s_waitcnt lgkmcnt(0)")
    g(f"s_cmp_ge_u32 s{sT}, s{sNB2}", f"s_cbranch_scc1 {LDIAG}")
    g.label(lidle)
    g(f"s_add_u32 s{sT}, s{sT}, 1")
    step_begin(g, True)
    for k, items in sorted(unit_dma_list().items()): emit(g, items)
    g(f"s_cmp_lt_u32 s{sT}, s{sNB2}", f"s_cbranch_scc1 {lidle}")
    g.label(LDIAG)
    LD_B = g.newlabel("d0B"); LD_go = g.newlabel("d0go")
    g(f"s_cmp_eq_u32 s{sISA}, 0", f"s_cbranch_scc1 {LD_B}")
    g(f"s_add_u32 s{sT}, s{sT}, 1")
    step_begin(g, True)
    for k, items in sorted(unit_dma_list().items()): emit(g, items)
    g(f"s_branch {LD_go}")
    g.label(LD_B); g("s_barrier")
    g.label(LD_go)
    g.stamp("diag_start")
    g(f"s_add_u32 s{sT1}, s{sNB2}, s{sISA}", f"s_add_u32 s{sT2}, s{sT1}, 1", f"s_and_b32 s{sT2}, s{sT2}, 3", f"s_lshl_b32 s{sT2}, s{sT2}, 15",
      f"s_add_u32 s{sT3}, s{sT1}, 3", f"s_and_b32 s{sT3}, s{sT3}, 3", f"s_lshl_b32 s{sT3}, s{sT3}, 15",
      f"v_add_u32 v{V_CUR}, s{sT2}, v{V_L16}", f"v_add_u32 v{V_NXT}, s{sT3}, v{V_L16}")
    Lm0, Lb1, Lfin = g.newlabel("m0"), g.newlabel("b1"), g.newlabel("fin")
    g(f"s_cmp_eq_u32 s{sSUB}, 0", f"s_cbranch_scc1 {Lm0}")
    diag_block(g, False); g(f"s_branch {Lb1}")
    g.label(Lm0); diag_block(g, True)
    g.label(Lb1)
    g("s_waitcnt vmcnt(0)", "s_barrier")
    g(f"s_cmp_eq_u32 s{sSUB}, 0", f"s_cbranch_scc1 {Lfin}")
    g(f"s_mov_b32 s{sCNT}, 1", f"v_add_u32 v{V_CUR}, 8192, v{V_CUR}")
    Ll, Llast = g.newlabel("dl"), g.newlabel("dlast")
    g.label(Ll)
    g(f"s_cmp_eq_u32 s{sCNT}, s{sSUB}", f"s_cbranch_scc1 {Llast}")
    diag_block(g, False)
    g(f"s_add_u32 s{sCNT}, s{sCNT}, 1", f"v_mov_b32 v{V_CUR}, v{V_NXT}", f"v_add_u32 v{V_NXT}, 8192, v{V_NXT}", f"s_branch {Ll}")
    g.label(Llast); diag_block(g, True)
    g.label(Lfin)
    g.stamp("diag_done")
    cross_g(g, V_L0, 6, "v_add_f32"); cross_g(g, V_L1, 6, "v_add_f32")
    LFB, LOK = g.newlabel("fallback"), g.newlabel("ok")
    g(f"s_cmp_lg_u32 s{sRESTART}, 0", f"s_cbranch_scc1 {LOK}")
    if OPT.get('nocheck'): g(f"s_branch {LOK}")
    g(f"s_mov_b32 s{sT1}, 0x21800000", f"s_mov_b32 s{sT2}, 0x5d800000",
      f"v_cmp_le_f32 vcc, s{sT1}, v{V_L0}", f"v_cmp_le_f32 s[56:57], s{sT1}, v{V_L1}", "s_nop 1", "s_and_b64 s[56:57], s[56:57], vcc",
      f"v_cmp_ge_f32 vcc, s{sT2}, v{V_L0}", "s_nop 1", "s_and_b64 s[56:57], s[56:57], vcc",
      f"v_cmp_ge_f32 vcc, s{sT2}, v{V_L1}", "s_nop 1", "s_and_b64 s[56:57], s[56:57], vcc")
    Lpass = g.newlabel("pass")
    g("s_cmp_eq_u64 s[56:57], exec", f"s_cbranch_scc1 {Lpass}", f"v_mov_b32 v6, {hex(LDS_FLAG)}", "v_mov_b32 v7, 1", "ds_write_b32 v6, v7")
    g.label(Lpass)
    g("s_waitcnt lgkmcnt(0)", "s_barrier", f"v_mov_b32 v6, {hex(LDS_FLAG)}", "ds_read_b32 v7, v6", "s_waitcnt lgkmcnt(0)", "s_nop 0",
      f"v_readfirstlane_b32 s{sT1}, v7", "s_nop 3", f"s_cmp_lg_u32 s{sT1}, 0", f"s_cbranch_scc1 {LFB}")
    g.label(LOK)
    g(f"v_rcp_f32 v{V_L0}, v{V_L0}", f"v_rcp_f32 v{V_L1}, v{V_L1}", "s_nop 7")
    g(f"s_lshl_b32 s{sT1}, s{sT16}, 17", f"s_lshl_b32 s{sT2}, s{sHEAD}, 12", f"s_add_u32 s{sT1}, s{sT1}, s{sT2}", f"s_add_u32 s{sT1}, s{sT1}, {hex(WS_CTX)}")
    for qs in range(2):
        for s in range(4):
            a = V_O + (qs*8 + 2*s)*4
            for k in range(8): g(f"v_mul_f32 v{a+k}, v{a+k}, v{V_L0+qs}")
            for k in range(4): g(f"v_cvt_pk_bf16_f32 v{a+k}, v{a+2*k}, v{a+2*k+1}")
            g(f"buffer_store_dwordx4 v[{a}:{a+3}], v{V_L16}, s[{S_WS}:{S_WS+3}], s{sT1} offen offset:{s*1024}")
        if qs == 0: g(f"s_add_u32 s{sT1}, s{sT1}, 0x20000")
    g.stamp("ctx_stored")
    if Gen.STAMP:
        g("s_waitcnt vmcnt(0)"); g.stamp("att_end"); g.dump_stamps(sWAVE, 2)
    LEND = g.newlabel("attend")
    g(f"s_branch {LEND}")
    g.label(LFB)
    g(f"s_mov_b32 s{sRESTART}, 1", "v_mov_b32 v6, 0xff800000", "v_mov_b32 v7, 0xff800000", f"v_mov_b32 v{V_L0}, 0xff800000")
    g(f"s_cmp_eq_u32 s{sISA}, 0", f"s_cselect_b32 s{sT3}, s{sNB2}, s{sNA2}", f"s_lshl_b32 s{sT3}, s{sT3}, 1", f"s_add_u32 s{sCNT}, s{sT3}, s{sSUB}")
    g(f"s_mov_b32 s{sT}, 0")
    Lf, Lf2 = g.newlabel("fb"), g.newlabel("fbn")
    g.label(Lf)
    g("s_barrier")
    Lnod = g.newlabel("fbnod")
    g(f"s_cmp_eq_u32 s{sISA}, 0", f"s_cbranch_scc1 {Lnod}")
    g(f"s_lshl_b32 s{sKO}, s{sT}, 14", f"s_add_u32 s{sKO}, s{sKO}, s{sKF}", f"s_mov_b32 m0, s{sA4}", "s_nop 0")
    for k in range(4): g(f"buffer_load_dwordx4 v{V_L16}, s[{S_WS}:{S_WS+3}], s{sKO} offen offset:{k*1024}{SC1} lds")
    g("s_waitcnt vmcnt(0)")
    g.label(Lnod)
    g("s_barrier")
    for jj in range(2):
        Lskip, Lmask, Lnext = g.newlabel("fs"), g.newlabel("fm"), g.newlabel("fx")
        g(f"s_lshl_b32 s{sT1}, s{sT}, 1", f"s_add_u32 s{sT1}, s{sT1}, {jj}", f"v_add_u32 v{V_CUR}, {jj*8192}, v{V_L16}")
        g(f"s_cmp_gt_u32 s{sT1}, s{sCNT}", f"s_cbranch_scc1 {Lnext}", f"s_cmp_eq_u32 s{sT1}, s{sCNT}", f"s_cbranch_scc1 {Lmask}")
        diag_block(g, False, maxonly=True); g(f"s_branch {Lnext}")
        g.label(Lmask); diag_block(g, True, maxonly=True)
        g.label(Lnext)
    g(f"s_add_u32 s{sT}, s{sT}, 1", f"s_add_u32 s{sT1}, s{sNB2}, 2", f"s_cmp_lt_u32 s{sT}, s{sT1}", f"s_cbranch_scc1 {Lf}")
    for qs in range(2):
        cross_g(g, 6+qs, V_L1, "v_max_f32")
        for k in range(4): g(f"v_sub_f32 v{V_NEG+4*qs+k}, 0, v{6+qs}")
    g("s_barrier")
    sv = g.vm; g.vm = []
    for u in range(3): emit(g, unit_fn(u))
    g.vm = sv
    g(f"s_branch {L_START}")
    g.label(LEND)
```

```python
from core import *

V_C0, V_C1 = 1, 2
V_W0, V_W1, V_L16 = 3, 4, 5
V_TR = 6
V_SR = 10
V_FR = 16
V_ACC = 64
NSLOT = 10
KV_SLOT = [0,1,2,3, 0,1, 2,4,5,6,7,8,9, 3, 0, 1]
KV_ISSUE = {1:[4], 2:[5], 3:[6,7,8,9,10,11,12], 4:[13], 5:[14], 6:[15]}

def setup_tr128(g, nat=True, lane="v0"):
    g(f"v_lshrrev_b32 v14, 4, {lane}", f"v_bfe_u32 v15, {lane}, 2, 2")
    if nat:
        g("v_lshl_add_u32 v6, v14, 3, v15", "v_lshlrev_b32 v6, 7, v6",
          "v_and_b32 v14, 1, v14", "v_lshlrev_b32 v14, 1, v14", "v_lshrrev_b32 v15, 1, v15", "v_or_b32 v14, v14, v15")
    else:
        g("v_lshl_add_u32 v15, v14, 2, v15", "v_lshlrev_b32 v6, 7, v15", "v_bfe_u32 v14, v15, 1, 2")
    g("v_lshl_add_u32 v6, v14, 5, v6", f"v_and_b32 v15, 3, {lane}", "v_lshl_add_u32 v6, v15, 3, v6")
    for cb in range(1, 4):
        g(f"v_xor_b32 v{V_TR+cb}, {cb<<5}, v6")

def setup_dma128(g, stride, nat=True, lane="v0", v0=V_W0, v1=V_W1):
    g(f"v_lshrrev_b32 v14, 3, {lane}", f"s_mov_b32 s55, {stride}", f"v_mul_lo_u32 v{v0}, v14, s55")
    if nat: g("v_bfe_u32 v14, v14, 1, 1")
    else:   g("v_bfe_u32 v14, v14, 1, 2")
    g(f"v_bfe_u32 v15, {lane}, 1, 2", "v_xor_b32 v14, v14, v15",
      f"v_and_b32 v15, 1, {lane}", "v_lshlrev_b32 v15, 4, v15", f"v_add_u32 v{v0}, v{v0}, v15")
    if nat:
        g(f"v_xor_b32 v15, 2, v14", f"v_lshl_add_u32 v{v1}, v15, 5, v{v0}")
    else:
        g(f"v_lshl_add_u32 v{v1}, v14, 5, v{v0}")
    g(f"v_lshl_add_u32 v{v0}, v14, 5, v{v0}", f"v_add_u32 v{v1}, {8*stride - 1024}, v{v1}")

def tr_reads(ks, kk, second, fbase=V_FR):
    fb = ks % 3
    out = []
    for cb in range(4):
        r = fbase + fb * 16 + cb * 4
        out.append(f"ds_read_b64_tr_b16 v[{r}:{r+1}], v{V_TR+cb} offset:{kk*4096}")
        out.append(f"ds_read_b64_tr_b16 v[{r+2}:{r+3}], v{V_TR+cb} offset:{kk*4096+second}")
    return out

def emit(g, items):
    for it in items:
        if isinstance(it, tuple): g.vmem(it[0], it[1])
        else: g(it)


def gemm_res_loop(g, nsub, slot_of, issue_at, dma, w_first, epilogue, hook=None, second=512, epi_from=1):
    NKS = nsub * 16
    nch = nsub * 4
    g(tr_reads(0, 0, second)); r1 = tr_reads(1, 1, second)
    g(r1[:7]); g("s_waitcnt lgkmcnt(7)"); g(r1[7])
    pend_epi = []
    for ks in range(NKS):
        c, kk = ks >> 2, ks & 3
        j = c >> 2
        s = ks % 16
        if kk == 2 and c + 1 < nch:
            g.wait_vm(('W', c + 1)); g("s_barrier")
            for cc in issue_at.get(c, []): emit(g, dma(cc))
            if hook: hook(ks, 'barrier')
            d = (slot_of[c + 1] - slot_of[c]) * 16384
            for cb in range(4):
                g(f"v_add_u32 v{V_TR+cb}, {hex(d & 0xffffffff)}, v{V_TR+cb}")
        extra_lds = hook(ks, 'pre') if hook else False
        nxt = ks + 2
        reads = tr_reads(nxt, nxt & 3, second) if nxt < NKS else []
        buf = V_ACC + (j & 1) * 32
        epi = pend_epi.pop(0) if (pend_epi and s >= epi_from) else []
        fb = ks % 3
        for m in range(8):
            cb, t = m >> 1, m & 1
            d = buf + (t * 4 + cb) * 4
            wf = f"v[{V_FR + fb*16 + cb*4}:{V_FR + fb*16 + cb*4 + 3}]"
            cf = f"a[{(s*2+t)*4}:{(s*2+t)*4+3}]"
            cin = "0" if s == 0 else f"v[{d}:{d+3}]"
            if w_first(j): g(f"v_mfma_f32_16x16x32_bf16 v[{d}:{d+3}], {wf}, {cf}, {cin}")
            else:          g(f"v_mfma_f32_16x16x32_bf16 v[{d}:{d+3}], {cf}, {wf}, {cin}")
            if m == 3 and extra_lds: g("s_waitcnt lgkmcnt(3)")
            if m == 7 and reads: g("s_waitcnt lgkmcnt(7)")
            if reads: g(reads[m])
            elif m == 7 and ks + 1 < NKS: g("s_waitcnt lgkmcnt(0)")
            if epi and m >= 1 and m <= len(epi[0]): g(epi[0][m-1])
            if epi and m == 5: emit(g, epi[1])
        if s == 15:
            pend_epi = epilogue(j) if epilogue else []
            g.stamp(f"sub{j}_done")
        if hook: hook(ks, 'post')
    return pend_epi

def phase_kv(g, tail=None):
    S_C, S_UK, S_UV, S_WS = 4, 8, 12, 16
    g(f"s_load_dwordx2 s[4:5], s[0:1], {KA['ckv']}", f"s_load_dwordx2 s[8:9], s[0:1], {KA['wuk']}",
      f"s_load_dwordx2 s[12:13], s[0:1], {KA['wuv']}", f"s_load_dwordx2 s[16:17], s[0:1], {KA['ws']}")
    g(f"s_load_dwordx2 s[88:89], s[0:1], {KA['wq']}")
    g("v_lshrrev_b32 v14, 6, v0", "v_and_b32 v0, 63, v0", "s_nop 0", "v_readfirstlane_b32 s20, v14")
    g("s_and_b32 s21, s2, 7", "s_lshl_b32 s21, s21, 2", "s_bfe_u32 s22, s2, 0x20003", "s_add_u32 s21, s21, s22")
    g("s_lshr_b32 s22, s2, 5")
    g("v_lshrrev_b32 v14, 3, v0", "v_lshlrev_b32 v1, 10, v14", "v_lshrrev_b32 v14, 4, v0", "v_and_b32 v15, 7, v0", "v_xor_b32 v14, v14, v15",
      "v_xor_b32 v15, 4, v14", "v_lshl_add_u32 v2, v15, 4, v1", "v_lshl_add_u32 v1, v14, 4, v1", f"v_add_u32 v2, {8*1024-1024}, v2")
    g("s_mul_i32 s31, s20, 12288", f"s_add_u32 s31, s31, {4*16384}",
      "v_and_b32 v14, 15, v0", "v_lshlrev_b32 v10, 7, v14", "v_lshrrev_b32 v14, 1, v14", "v_lshrrev_b32 v15, 4, v0", "v_xor_b32 v14, v14, v15",
      "v_lshl_add_u32 v10, v14, 4, v10", "v_add_u32 v10, s31, v10", "v_xor_b32 v11, 64, v10")
    setup_dma128(g, 8192); setup_tr128(g)
    g(f"v_lshlrev_b32 v{V_L16}, 4, v0")
    g("s_lshl_b32 s23, s22, 8", "s_lshl_b32 s24, s20, 5", "s_add_u32 s24, s23, s24", "s_lshl_b32 s24, s24, 10")
    g("s_lshl_b32 s25, s20, 17", "s_lshl_b32 s26, s21, 8", "s_add_u32 s25, s25, s26", "s_lshl_b32 s26, s20, 11")
    g("s_lshl_b32 s27, s21, 19", "s_lshl_b32 s28, s22, 3", "s_add_u32 s28, s28, s20", "s_lshl_b32 s28, s28, 13", "s_add_u32 s27, s27, s28")
    g("s_waitcnt lgkmcnt(0)")
    for s, n in ((S_C, 'ckv'), (S_UK, 'wuk'), (S_UV, 'wuv'), (S_WS, 'ws')):
        finish_srd(g, s, n)
    def dma(c):
        j, q = c >> 2, c & 3
        srd = S_UK if j < 2 else S_UV
        return [f"s_add_u32 s29, s25, {hex(q*0x100000 + (j&1)*128)}", f"s_add_u32 m0, s26, {hex(KV_SLOT[c]*16384)}",
                (f"buffer_load_dwordx4 v{V_W0}, s[{srd}:{srd+3}], s29 offen lds", ('W', c)),
                (f"buffer_load_dwordx4 v{V_W1}, s[{srd}:{srd+3}], s29 offen offset:1024 lds", ('W', c))]
    def stage(p):
        out = []
        for hf in range(2):
            out += [f"s_add_u32 s29, s24, {p*128 + hf*16384}", f"s_add_u32 m0, s31, {(p%3)*4096 + hf*2048}",
                    (f"buffer_load_dwordx4 v{V_C0}, s[{S_C}:{S_C+3}], s29 offen lds", ('P', p)),
                    (f"buffer_load_dwordx4 v{V_C1}, s[{S_C}:{S_C+3}], s29 offen offset:1024 lds", ('P', p))]
        return out
    def stage_reads(p):
        out = []
        for ksub in range(2):
            s = 2 * p + ksub
            for t in range(2):
                out.append(f"ds_read_b128 a[{(s*2+t)*4}:{(s*2+t)*4+3}], v{V_SR+ksub} offset:{(p%3)*4096 + t*2048}")
        return out
    g.stamp("kv_start")
    emit(g, dma(0)); emit(g, stage(0)); emit(g, stage(1)); emit(g, dma(1)); emit(g, stage(2))
    for c in range(2, 4): emit(g, dma(c))
    g.wait_vm(('P', 0)); g(stage_reads(0))
    g.wait_vm(('W', 0)); g("s_waitcnt lgkmcnt(0)", "s_barrier")
    g.stamp("w0_landed")
    emit(g, stage(3))
    def epilogue(j):
        buf = V_ACC + (j & 1) * 32
        A = lambda t, cb: buf + (t * 4 + cb) * 4
        groups = []
        for i in range(4):
            if j < 2:
                t, u = i >> 1, i & 1
                a, b = A(t, 2*u), A(t, 2*u+1)
                off = WS_KF + (t * 4 + 2*j + u) * 1024
            else:
                a, b = A(0, i), A(1, i)
                off = WS_VF + (4*(j-2) + i) * 1024
            grp = [f"v_cvt_pk_bf16_f32 v{a}, v{a}, v{a+1}", f"v_cvt_pk_bf16_f32 v{a+1}, v{a+2}, v{a+3}",
                   f"v_cvt_pk_bf16_f32 v{a+2}, v{b}, v{b+1}", f"v_cvt_pk_bf16_f32 v{a+3}, v{b+2}, v{b+3}",
                   ]
            st = [f"s_add_u32 s29, s27, {hex(off)}",
                   (f"buffer_store_dwordx4 v[{a}:{a+3}], v{V_L16}, s[{S_WS}:{S_WS+3}], s29 offen", ('st', j))]
            groups.append((grp, st))
        return groups
    def hook(ks, where):
        if where == 'pre' and ks < 16:
            r = False
            if ks % 2 == 1 and (ks + 1) // 2 <= 7:
                p = (ks + 1) // 2
                g.wait_vm(('P', p)); g(stage_reads(p)); r = True
            if ks % 2 == 0 and ks >= 2 and ks // 2 + 3 <= 7:
                emit(g, stage(ks // 2 + 3))
            return r
        if where == 'barrier' and ks == 30:
            g("s_lshl_b32 s33, s2, 1", "s_add_u32 s33, s33, s20", "s_cmp_lt_u32 s20, 2", "s_cselect_b32 s33, s33, 0x40000", "v_lshlrev_b32 v12, 7, v0")
            g.vmem(prefetch_lines(g, 88, 'wq', 33, 0, 13, 12, 12, 34), 'pf')
        if where == 'post':
            if ks in (3, 7): g.stamp(f"ks{ks}")
            if ks == 61 and tail: tail(g, 'issue')
        return False
    pend_epi = gemm_res_loop(g, 4, KV_SLOT, KV_ISSUE, dma, lambda j: j < 2, epilogue, hook)
    g("s_nop 7")
    for grp in pend_epi: emit(g, grp[0]); emit(g, grp[1])
    g.stamp("stores_issued")
    if tail: tail(g, 'finish')
    if Gen.STAMP:
        g("s_waitcnt vmcnt(0)"); g.stamp("stores_done")
        g.dump_stamps(20, 1)
```

```python
from core import *
import p_kv
from p_kv import emit, V_W0, V_W1, V_L16, V_TR, V_FR, V_ACC, setup_dma128, setup_tr128, gemm_res_loop
from p_mod import LOG2E

S_W, S_WS, S_X = 4, 8, 12
sWAVE, sHH, sQ, sWR, sWC, sRB, sCB, sT1, sT2, sAO, sWO, sM0A, sM0W = 20, 21, 22, 23, 24, 25, 26, 27, 28, 29, 30, 31, 32
NS = 5
V_AA = 10
V_ACC2 = 64
V_F = 16

OPT = {}
def gemm_shared(g, nst, a_ws_off, a_nks, wname, tag):
    half_ks = nst * 2
    g(f"s_load_dwordx2 s[4:5], s[0:1], {KA[wname]}", f"s_load_dwordx2 s[8:9], s[0:1], {KA['ws']}", f"s_load_dwordx2 s[12:13], s[0:1], {KA['x']}")
    g("v_lshrrev_b32 v14, 6, v0", "v_and_b32 v0, 63, v0", "s_nop 0", f"v_readfirstlane_b32 s{sWAVE}, v14")
    g(f"s_and_b32 s{sRB}, s2, 7", f"s_lshl_b32 s{sRB}, s{sRB}, 2", f"s_bfe_u32 s{sT1}, s2, 0x20003", f"s_add_u32 s{sRB}, s{sRB}, s{sT1}", f"s_lshr_b32 s{sCB}, s2, 5")
    g(f"s_lshr_b32 s{sHH}, s{sWAVE}, 2", f"s_and_b32 s{sQ}, s{sWAVE}, 3", f"s_lshr_b32 s{sWR}, s{sQ}, 1", f"s_and_b32 s{sWC}, s{sQ}, 1")
    setup_dma128(g, 1024, nat=False); setup_tr128(g, nat=False)
    g(f"v_lshlrev_b32 v{V_L16}, 4, v0")
    g(f"s_lshl_b32 s{sT1}, s{sWC}, 6", f"v_xor_b32 v6, s{sT1}, v6", "v_xor_b32 v7, 32, v6")
    g(f"s_lshl_b32 s{sT1}, s{sHH}, 14", f"s_add_u32 s{sT2}, s{sT1}, 8192", f"v_add_u32 v6, s{sT2}, v6", f"v_add_u32 v7, s{sT2}, v7")
    g(f"s_lshl_b32 s{sT2}, s{sWR}, 12", f"s_add_u32 s{sT2}, s{sT2}, s{sT1}", f"v_add_u32 v{V_AA}, s{sT2}, v{V_L16}")
    g(f"s_lshl_b32 s{sAO}, s{sRB}, 2", f"s_add_u32 s{sAO}, s{sAO}, s{sQ}", f"s_mul_i32 s{sAO}, s{sAO}, {a_nks*1024}",
      f"s_mul_i32 s{sT2}, s{sHH}, {half_ks*1024}", f"s_add_u32 s{sAO}, s{sAO}, s{sT2}", f"s_add_u32 s{sAO}, s{sAO}, {hex(a_ws_off)}")
    if OPT.get('kmajor_test'):
        g(f"s_lshl_b32 s{sAO}, s{sRB}, 3", f"s_lshl_b32 s{sT2}, s{sQ}, 1", f"s_add_u32 s{sAO}, s{sAO}, s{sT2}", f"s_lshl_b32 s{sAO}, s{sAO}, 10",
          f"s_mul_i32 s{sT2}, s{sHH}, {nst*262144}", f"s_add_u32 s{sAO}, s{sAO}, s{sT2}", f"s_add_u32 s{sAO}, s{sAO}, {hex(a_ws_off)}")
    g(f"s_mul_i32 s{sWO}, s{sHH}, {half_ks*32*1024}", f"s_lshl_b32 s{sT2}, s{sQ}, 14", f"s_add_u32 s{sWO}, s{sWO}, s{sT2}",
      f"s_lshl_b32 s{sT2}, s{sCB}, 7", f"s_add_u32 s{sWO}, s{sWO}, s{sT2}")
    g(f"s_lshl_b32 s{sT2}, s{sQ}, 11", f"s_add_u32 s{sM0A}, s{sT1}, s{sT2}", f"s_add_u32 s{sM0W}, s{sM0A}, 8192")
    g("s_waitcnt lgkmcnt(0)")
    finish_srd(g, S_W, wname); finish_srd(g, S_WS, 'ws'); finish_srd(g, S_X, 'x')
    def dma(st):
        slot = (st % NS) * 32768
        return [f"s_add_u32 m0, s{sM0A}, {slot}", f"s_add_u32 s{sT1}, s{sAO}, {st*(262144 if OPT.get('kmajor_test') else 2048)}",
                (f"buffer_load_dwordx4 v{V_L16}, s[{S_WS}:{S_WS+3}], s{sT1} offen lds", ('S', st)),
                (f"buffer_load_dwordx4 v{V_L16}, s[{S_WS}:{S_WS+3}], s{sT1} offen offset:1024 lds", ('S', st)),
                f"s_add_u32 m0, s{sM0W}, {slot}", f"s_add_u32 s{sT1}, s{sWO}, {st*64*1024}",
                (f"buffer_load_dwordx4 v{V_W0}, s[{S_W}:{S_W+3}], s{sT1} offen lds", ('S', st)),
                (f"buffer_load_dwordx4 v{V_W1}, s[{S_W}:{S_W+3}], s{sT1} offen offset:1024 lds", ('S', st))]
    def reads(ks):
        kk = ks & 1; fb = V_F + (ks % 3) * 16
        out = []
        for c in range(2):
            out.append(f"ds_read_b64_tr_b16 v[{fb+4*c}:{fb+4*c+1}], v{6+c} offset:{kk*4096}")
            out.append(f"ds_read_b64_tr_b16 v[{fb+4*c+2}:{fb+4*c+3}], v{6+c} offset:{kk*4096+2048}")
        for r in range(2):
            out.append(f"ds_read_b128 v[{fb+8+4*r}:{fb+8+4*r+3}], v{V_AA} offset:{r*2048+kk*1024}")
        return out
    g.stamp(tag + "_entry")
    for st in range(min(NS - 1, nst)): emit(g, dma(st))
    g.wait_vm(('S', 0)); g("s_barrier")
    g.stamp(tag + "_first")
    g(reads(0))
    NKS = nst * 2
    for ks in range(NKS):
        st, kk = ks >> 1, ks & 1
        if kk == 1 and st + 1 < nst:
            g.wait_vm(('S', st + 1)); g("s_barrier")
            if st + NS - 1 < nst: emit(g, dma(st + NS - 1))
            d = (((st + 1) % NS) - (st % NS)) * 32768
            for v in (6, 7, V_AA): g(f"v_add_u32 v{v}, {hex(d & 0xffffffff)}, v{v}")
        rd = reads(ks + 1) if ks + 1 < NKS else []
        g("s_waitcnt lgkmcnt(0)")
        fb = V_F + (ks % 3) * 16
        for m in range(4):
            c, r = m >> 1, m & 1
            d = V_ACC2 + (c*2 + r) * 4
            cin = "0" if ks == 0 else f"v[{d}:{d+3}]"
            g(f"v_mfma_f32_16x16x32_bf16 v[{d}:{d+3}], v[{fb+4*c}:{fb+4*c+3}], v[{fb+8+4*r}:{fb+8+4*r+3}], {cin}")
            if rd:
                g(rd.pop(0))
                if m >= 2 and rd: g(rd.pop(0))
    g.stamp(tag + "_loop_done")
    g("s_nop 7", "s_barrier")
    g(f"s_lshl_b32 s{sT1}, s{sWAVE}, 11", f"v_add_u32 v11, s{sT1}, v{V_L16}", f"s_xor_b32 s{sT1}, s{sT1}, 0x2000", f"v_add_u32 v12, s{sT1}, v{V_L16}")
    La, Lb = g.newlabel("x0"), g.newlabel("x1")
    g(f"s_cmp_eq_u32 s{sHH}, 0", f"s_cbranch_scc0 {La}")
    g(f"ds_write_b128 v11, v[{V_ACC2+4}:{V_ACC2+7}]", f"ds_write_b128 v11, v[{V_ACC2+12}:{V_ACC2+15}] offset:1024", "s_waitcnt lgkmcnt(0)")
    g(f"v_mov_b32 v{V_ACC2+4}, v{V_ACC2+8}", f"v_mov_b32 v{V_ACC2+5}, v{V_ACC2+9}", f"v_mov_b32 v{V_ACC2+6}, v{V_ACC2+10}", f"v_mov_b32 v{V_ACC2+7}, v{V_ACC2+11}")
    g(f"s_branch {Lb}")
    g.label(La)
    g(f"ds_write_b128 v11, v[{V_ACC2}:{V_ACC2+3}]", f"ds_write_b128 v11, v[{V_ACC2+8}:{V_ACC2+11}] offset:1024", "s_waitcnt lgkmcnt(0)")
    for k in range(4): g(f"v_mov_b32 v{V_ACC2+k}, v{V_ACC2+4+k}")
    for k in range(4): g(f"v_mov_b32 v{V_ACC2+4+k}, v{V_ACC2+12+k}")
    g.label(Lb)
    g("s_waitcnt lgkmcnt(0)", "s_barrier")
    g(f"ds_read_b128 v[{V_ACC2+8}:{V_ACC2+11}], v12", f"ds_read_b128 v[{V_ACC2+12}:{V_ACC2+15}], v12 offset:1024", "s_waitcnt lgkmcnt(0)")
    for k in range(8): g(f"v_add_f32 v{V_ACC2+k}, v{V_ACC2+k}, v{V_ACC2+8+k}")
    g(f"s_lshl_b32 s{sT1}, s{sRB}, 6", f"s_lshl_b32 s{sT2}, s{sWR}, 5", f"s_add_u32 s{sT1}, s{sT1}, s{sT2}", f"s_lshl_b32 s{sT2}, s{sHH}, 4", f"s_add_u32 s{sT1}, s{sT1}, s{sT2}",
      "v_and_b32 v14, 15, v0", f"v_add_u32 v14, s{sT1}, v14")
    g(f"s_lshl_b32 s{sT1}, s{sCB}, 6", f"s_lshl_b32 s{sT2}, s{sWC}, 5", f"s_add_u32 s{sT1}, s{sT1}, s{sT2}",
      "v_lshrrev_b32 v15, 4, v0", "v_lshlrev_b32 v15, 2, v15", f"v_add_u32 v15, s{sT1}, v15")


A_ACC = 0
A_AF = 64
V_WF = 16
V_WV = 48
RING = 5
DEPTH = 4
def gemm_wsplit(g, nks, a_ws_off, a_nks, wname, tag, pre_issue=None):
    g(f"s_load_dwordx2 s[4:5], s[0:1], {KA[wname]}", f"s_load_dwordx2 s[8:9], s[0:1], {KA['ws']}", f"s_load_dwordx2 s[12:13], s[0:1], {KA['x']}")
    g("v_lshrrev_b32 v14, 6, v0", "v_and_b32 v0, 63, v0", "s_nop 0", f"v_readfirstlane_b32 s{sWAVE}, v14")
    g(f"s_and_b32 s{sRB}, s2, 7", f"s_lshl_b32 s{sRB}, s{sRB}, 2", f"s_bfe_u32 s{sT1}, s2, 0x20003", f"s_add_u32 s{sRB}, s{sRB}, s{sT1}", f"s_lshr_b32 s{sCB}, s2, 5")
    setup_dma128(g, 1024, nat=False, v0=V_WV, v1=V_WV+1); setup_tr128(g, nat=False)
    for p in range(1, 4): g(f"v_add_u32 v{V_WV+p}, {p*7168}, v{V_WV}")
    g(f"v_lshlrev_b32 v{V_L16}, 4, v0")
    g(f"s_mul_i32 s{sM0W}, s{sWAVE}, {RING*4096}")
    for c in range(4): g(f"v_add_u32 v{V_TR+c}, s{sM0W}, v{V_TR+c}")
    g(f"s_mul_i32 s{sAO}, s{sRB}, {4*a_nks*1024}", f"s_mul_i32 s{sT2}, s{sWAVE}, {nks*1024}", f"s_add_u32 s{sAO}, s{sAO}, s{sT2}", f"s_add_u32 s{sAO}, s{sAO}, {hex(a_ws_off)}")
    g(f"s_mul_i32 s{sWO}, s{sWAVE}, {nks*32*1024}", f"s_lshl_b32 s{sT2}, s{sCB}, 7", f"s_add_u32 s{sWO}, s{sWO}, s{sT2}")
    g("s_waitcnt lgkmcnt(0)")
    finish_srd(g, S_W, wname); finish_srd(g, S_WS, 'ws'); finish_srd(g, S_X, 'x')
    def wdma(j):
        out = [f"s_add_u32 m0, s{sM0W}, {(j % RING)*4096}", f"s_add_u32 s{sT1}, s{sWO}, {j*32*1024}"]
        for p in range(4):
            out.append((f"buffer_load_dwordx4 v{V_WV+p}, s[{S_W}:{S_W+3}], s{sT1} offen offset:{p*1024} lds", ('W', j)))
        return out
    def aload(j):
        out = []
        for r in range(4):
            b = A_AF + (j % DEPTH)*16 + r*4
            out += [f"s_add_u32 s{sT2}, s{sAO}, {(r*a_nks + j)*1024}",
                    (f"buffer_load_dwordx4 a[{b}:{b+3}], v{V_L16}, s[{S_WS}:{S_WS+3}], s{sT2} offen", ('A', j))]
        return out
    def reads(j):
        fb = V_WF + (j & 1)*16
        out = []
        for c in range(4):
            out.append(f"ds_read_b64_tr_b16 v[{fb+4*c}:{fb+4*c+1}], v{V_TR+c} offset:{(j % RING)*4096}")
            out.append(f"ds_read_b64_tr_b16 v[{fb+4*c+2}:{fb+4*c+3}], v{V_TR+c} offset:{(j % RING)*4096+2048}")
        return out
    g.stamp(tag + "_entry")
    for j in range(min(DEPTH, nks)): emit(g, wdma(j))
    if pre_issue: pre_issue(g)
    for j in range(min(DEPTH, nks)): emit(g, aload(j))
    g.wait_vm(('W', 0)); g(reads(0))
    g.stamp(tag + "_first")
    for j in range(nks):
        rd = []
        if j + 1 < nks:
            g.wait_vm(('W', j + 1)); rd = reads(j + 1)
            g("s_waitcnt lgkmcnt(0)")
        else:
            g("s_waitcnt lgkmcnt(0)")
        g.wait_vm(('A', j))
        fb = V_WF + (j & 1)*16
        for m in range(16):
            c, r = m >> 2, m & 3
            d = A_ACC + (c*4 + r)*4
            b = A_AF + (j % DEPTH)*16 + r*4
            cin = "0" if j == 0 else f"a[{d}:{d+3}]"
            g(f"v_mfma_f32_16x16x32_bf16 a[{d}:{d+3}], v[{fb+4*c}:{fb+4*c+3}], a[{b}:{b+3}], {cin}")
            if rd and m < 8: g(rd[m])
            if m == 8 and j + DEPTH < nks: emit(g, wdma(j + DEPTH))
        if j + DEPTH < nks: emit(g, aload(j + DEPTH))
    g.stamp(tag + "_loop_done")
    g("s_nop 7", "s_barrier")
    g(f"s_lshl_b32 s{sT1}, s{sWAVE}, 14", f"v_add_u32 v10, s{sT1}, v{V_L16}")
    for q in range(16): g(f"ds_write_b128 v10, a[{A_ACC+4*q}:{A_ACC+4*q+3}] offset:{q*1024}")
    g(f"s_lshl_b32 s{sT1}, s{sWAVE}, 11", f"v_add_u32 v10, s{sT1}, v{V_L16}", "v_add_u32 v11, 0x10000, v10", "s_waitcnt lgkmcnt(0)", "s_barrier")
    for p in range(8):
        a = 10 if p < 4 else 11
        for q in range(2):
            if p == 7 and q == 1: g("s_waitcnt lgkmcnt(8)")
            g(f"ds_read_b128 v[{64+(p*2+q)*4}:{64+(p*2+q)*4+3}], v{a} offset:{(p%4)*16384 + q*1024}")
    g("s_waitcnt lgkmcnt(0)")
    for st in (32, 16, 8):
        for k in range(st): g(f"v_add_f32 v{64+k}, v{64+k}, v{64+k+st}")
    g.stamp(tag + "_reduced")
    g(f"s_lshl_b32 s{sT1}, s{sRB}, 6", f"s_and_b32 s{sT2}, s{sWAVE}, 1", f"s_lshl_b32 s{sT2}, s{sT2}, 5", f"s_add_u32 s{sT1}, s{sT1}, s{sT2}",
      "v_and_b32 v14, 15, v0", f"v_add_u32 v14, s{sT1}, v14")
    g(f"s_lshl_b32 s{sT1}, s{sCB}, 6", f"s_lshr_b32 s{sT2}, s{sWAVE}, 1", f"s_lshl_b32 s{sT2}, s{sT2}, 4", f"s_add_u32 s{sT1}, s{sT1}, s{sT2}",
      "v_lshrrev_b32 v15, 4, v0", "v_lshlrev_b32 v15, 2, v15", f"v_add_u32 v15, s{sT1}, v15")

def k3(g):
    gemm_wsplit(g, 16, WS_CTX, 128, 'wo', "k3")
    g("v_lshlrev_b32 v12, 10, v14", "v_lshl_add_u32 v12, v15, 1, v12")
    g("v_lshlrev_b32 v13, 2, v15", f"s_mov_b32 s{sT1}, {hex(WS_MOD + 1024*4)}", f"s_mov_b32 s{sT2}, 16384")
    g(f"buffer_load_dwordx2 v[16:17], v12, s[{S_X}:{S_X+3}], 0 offen", f"buffer_load_dwordx2 v[18:19], v12, s[{S_X}:{S_X+3}], s{sT2} offen")
    g(f"buffer_load_dwordx4 v[20:23], v13, s[{S_WS}:{S_WS+3}], s{sT1} offen")
    g("v_lshlrev_b32 v12, 11, v14", "v_lshl_add_u32 v12, v15, 2, v12", f"s_mov_b32 s{sT2}, 0xffff0000", "s_waitcnt vmcnt(0)")
    for c in range(2):
        g(f"v_lshlrev_b32 v28, 16, v{16+2*c}", f"v_and_b32 v29, s{sT2}, v{16+2*c}", f"v_lshlrev_b32 v30, 16, v{17+2*c}", f"v_and_b32 v31, s{sT2}, v{17+2*c}")
        for k in range(4): g(f"v_fma_f32 v{64+4*c+k}, v{64+4*c+k}, v{20+k}, v{28+k}")
    g(f"s_mov_b32 s{sT1}, {hex(WS_X1)}", f"s_mov_b32 s{sT2}, {hex(WS_X1 + 16*2048)}")
    g(f"buffer_store_dwordx4 v[64:67], v12, s[{S_WS}:{S_WS+3}], s{sT1} offen")
    g(f"buffer_store_dwordx4 v[68:71], v12, s[{S_WS}:{S_WS+3}], s{sT2} offen")
    if Gen.STAMP:
        g("s_waitcnt vmcnt(0)"); g.stamp("k3_end"); g.dump_stamps(sWAVE, 3)

def k5(g):
    gemm_wsplit(g, 7, WS_ACT, 56, 'wd', "k5")
    g(f"s_load_dwordx2 s[12:13], s[0:1], {KA['out']}")
    g("v_lshlrev_b32 v12, 11, v14", "v_lshl_add_u32 v12, v15, 2, v12", f"s_mov_b32 s{sT1}, {hex(WS_X1)}", f"s_mov_b32 s{sT2}, {hex(WS_X1 + 16*2048)}")
    g(f"buffer_load_dwordx4 v[16:19], v12, s[{S_WS}:{S_WS+3}], s{sT1} offen", f"buffer_load_dwordx4 v[28:31], v12, s[{S_WS}:{S_WS+3}], s{sT2} offen")
    g("v_lshlrev_b32 v13, 2, v15", f"s_mov_b32 s{sT1}, {hex(WS_MOD + 2560*4)}")
    g(f"buffer_load_dwordx4 v[20:23], v13, s[{S_WS}:{S_WS+3}], s{sT1} offen")
    g("v_lshlrev_b32 v12, 10, v14", "v_lshl_add_u32 v12, v15, 1, v12", "s_waitcnt vmcnt(0) lgkmcnt(0)")
    finish_srd(g, S_X, 'out')
    for k in range(4): g(f"v_fma_f32 v{64+k}, v{64+k}, v{20+k}, v{16+k}")
    for k in range(4): g(f"v_fma_f32 v{68+k}, v{68+k}, v{20+k}, v{28+k}")
    g("v_cvt_pk_bf16_f32 v16, v64, v65", "v_cvt_pk_bf16_f32 v17, v66, v67", "v_cvt_pk_bf16_f32 v18, v68, v69", "v_cvt_pk_bf16_f32 v19, v70, v71")
    g(f"s_mov_b32 s{sT2}, 16384")
    g(f"buffer_store_dwordx2 v[16:17], v12, s[{S_X}:{S_X+3}], 0 offen", f"buffer_store_dwordx2 v[18:19], v12, s[{S_X}:{S_X+3}], s{sT2} offen")
    if Gen.STAMP:
        g("s_waitcnt vmcnt(0)"); g.stamp("k5_end"); g.dump_stamps(sWAVE, 5)

def ln2(g):
    g(f"s_load_dwordx2 s[12:13], s[0:1], {KA['ws']}")
    g("v_and_b32 v1, 63, v0", "v_lshrrev_b32 v2, 6, v0", "s_lshl_b32 s20, s2, 3", "v_add_u32 v2, s20, v2")
    g("v_lshlrev_b32 v3, 11, v2", "v_lshl_add_u32 v3, v1, 5, v3", "v_lshlrev_b32 v4, 5, v1")
    g("s_waitcnt lgkmcnt(0)")
    finish_srd(g, 12, 'ws')
    g(f"s_mov_b32 s21, {hex(WS_X1)}", "buffer_load_dwordx4 v[12:15], v3, s[12:15], s21 offen", "buffer_load_dwordx4 v[16:19], v3, s[12:15], s21 offen offset:16")
    g(f"s_mov_b32 s21, {hex(WS_MOD + 1536*4)}")
    g("buffer_load_dwordx4 v[24:27], v4, s[12:15], s21 offen", "buffer_load_dwordx4 v[28:31], v4, s[12:15], s21 offen offset:16")
    g("buffer_load_dwordx4 v[32:35], v4, s[12:15], s21 offen offset:2048", "buffer_load_dwordx4 v[36:39], v4, s[12:15], s21 offen offset:2064")
    g("s_waitcnt vmcnt(4)")
    g("v_add_f32 v20, v12, v13", "v_add_f32 v21, v14, v15", "v_add_f32 v22, v16, v17", "v_add_f32 v23, v18, v19")
    g("v_add_f32 v20, v20, v21", "v_add_f32 v22, v22, v23", "v_add_f32 v20, v20, v22")
    wave_sum64(g, 20, 21)
    g("v_mul_f32 v20, 0x3b000000, v20")
    for e in range(8): g(f"v_sub_f32 v{12+e}, v{12+e}, v20")
    g("v_mul_f32 v21, v12, v12")
    for e in range(1, 8): g(f"v_fmac_f32 v21, v{12+e}, v{12+e}")
    wave_sum64(g, 21, 22)
    g("v_mov_b32 v22, 0x3727c5ac", "v_fmac_f32 v22, 0x3b000000, v21", "v_rsq_f32 v22, v22", "s_waitcnt vmcnt(0)")
    for e in range(8): g(f"v_mul_f32 v{12+e}, v{12+e}, v22")
    for e in range(8): g(f"v_add_f32 v{32+e}, 1.0, v{32+e}")
    for e in range(8): g(f"v_fma_f32 v{12+e}, v{12+e}, v{32+e}, v{24+e}")
    for d in range(4): g(f"v_cvt_pk_bf16_f32 v{8+d}, v{12+2*d}, v{13+2*d}")
    g("v_lshrrev_b32 v5, 4, v2", "v_lshlrev_b32 v5, 14, v5", "v_lshrrev_b32 v6, 2, v1", "v_lshl_add_u32 v5, v6, 10, v5")
    g("v_and_b32 v6, 3, v1", "v_lshlrev_b32 v6, 4, v6", "v_and_b32 v7, 15, v2", "v_add_u32 v6, v6, v7", "v_lshl_add_u32 v5, v6, 4, v5")
    g(f"s_mov_b32 s21, {hex(WS_H2)}", "buffer_store_dwordx4 v[8:11], v5, s[12:15], s21 offen")

def k4(g):
    S_G, S_U, S_WS4 = 4, 8, 12
    sRB4, sCB4, sT16, sWB, sM0B = 21, 22, 25, 52, 53
    g(f"s_load_dwordx2 s[4:5], s[0:1], {KA['wg']}", f"s_load_dwordx2 s[8:9], s[0:1], {KA['wu']}", f"s_load_dwordx2 s[12:13], s[0:1], {KA['ws']}")
    g("v_lshrrev_b32 v14, 6, v0", "v_and_b32 v0, 63, v0", "s_nop 0", f"v_readfirstlane_b32 s{sWAVE}, v14")
    g(f"s_and_b32 s{sRB4}, s2, 1", f"s_lshl_b32 s{sRB4}, s{sRB4}, 2", f"s_bfe_u32 s{sT1}, s2, 0x20003", f"s_add_u32 s{sRB4}, s{sRB4}, s{sT1}",
      f"s_bfe_u32 s{sCB4}, s2, 0x20001", f"s_mul_i32 s{sCB4}, s{sCB4}, 7", f"s_lshr_b32 s{sT1}, s2, 5", f"s_add_u32 s{sCB4}, s{sCB4}, s{sT1}")
    g(f"s_lshl_b32 s{sT16}, s{sRB4}, 4", f"s_lshl_b32 s{sT1}, s{sWAVE}, 1", f"s_add_u32 s{sT16}, s{sT16}, s{sT1}")
    setup_dma128(g, 3584); setup_tr128(g)
    g(f"v_lshlrev_b32 v{V_L16}, 4, v0")
    g(f"s_mul_i32 s{sWB}, s{sWAVE}, {16*3584}", f"s_lshl_b32 s{sT1}, s{sCB4}, 7", f"s_add_u32 s{sWB}, s{sWB}, s{sT1}", f"s_lshl_b32 s{sM0B}, s{sWAVE}, 11")
    g("s_waitcnt lgkmcnt(0)")
    finish_srd(g, S_G, 'wg'); finish_srd(g, S_U, 'wu'); finish_srd(g, S_WS4, 'ws')
    def dma(c):
        j, q = c >> 2, c & 3
        srd = S_G if j == 0 else S_U
        return [f"s_add_u32 s{sT1}, s{sWB}, {hex(q*128*3584)}", f"s_add_u32 m0, s{sM0B}, {hex(c*16384)}",
                (f"buffer_load_dwordx4 v{V_W0}, s[{srd}:{srd+3}], s{sT1} offen lds", ('W', c)),
                (f"buffer_load_dwordx4 v{V_W1}, s[{srd}:{srd+3}], s{sT1} offen offset:1024 lds", ('W', c))]
    def hload(s4):
        out = []
        for t in range(2):
            out.append(f"s_lshl_b32 s{sT1}, s{sT16}, 14")
            out.append(f"s_add_u32 s{sT1}, s{sT1}, {hex(WS_H2 + t*16384 + s4*4096)}")
            for k in range(4):
                s = s4*4 + k
                out.append((f"buffer_load_dwordx4 a[{(s*2+t)*4}:{(s*2+t)*4+3}], v{V_L16}, s[{S_WS4}:{S_WS4+3}], s{sT1} offen offset:{k*1024}", ('H', s4)))
        return out
    g.stamp("k4_entry")
    emit(g, dma(0)); emit(g, hload(0)); emit(g, dma(1)); emit(g, hload(1)); emit(g, dma(2)); emit(g, hload(2)); emit(g, hload(3))
    for c in range(3, 8): emit(g, dma(c))
    g.wait_vm(('W', 0)); g("s_barrier")
    g.stamp("k4_first")
    def hook(ks, where):
        if where == 'pre' and ks < 16 and ks % 4 == 0: g.wait_vm(('H', ks // 4))
        return False
    gemm_res_loop(g, 2, list(range(8)), {}, dma, lambda j: True, None, hook)
    g("s_nop 7", f"s_mov_b32 s{sT2}, {hex(LOG2E)}")
    for i in range(32):
        g(f"v_mul_f32 v{16+(i%16)}, s{sT2}, v{64+i}")
        if i % 16 == 15:
            b = i - 15
            for k in range(16): g(f"v_exp_f32 v{16+k}, -v{16+k}")
            for k in range(16): g(f"v_add_f32 v{16+k}, 1.0, v{16+k}")
            for k in range(16): g(f"v_rcp_f32 v{16+k}, v{16+k}")
            for k in range(16): g(f"v_mul_f32 v{64+b+k}, v{64+b+k}, v{96+b+k}")
            for k in range(16): g(f"v_mul_f32 v{64+b+k}, v{64+b+k}, v{16+k}")
    g(f"s_mul_i32 s{sT1}, s{sT16}, {56*1024}", f"s_lshl_b32 s{sT2}, s{sCB4}, 11", f"s_add_u32 s{sT1}, s{sT1}, s{sT2}", f"s_add_u32 s{sT1}, s{sT1}, {hex(WS_ACT)}")
    for t in range(2):
        for u in range(2):
            a = 64 + (t*4 + 2*u)*4
            for k in range(4): g(f"v_cvt_pk_bf16_f32 v{a+k}, v{a+2*k}, v{a+2*k+1}")
            g(f"buffer_store_dwordx4 v[{a}:{a+3}], v{V_L16}, s[{S_WS4}:{S_WS4+3}], s{sT1} offen offset:{u*1024}")
        if t == 0: g(f"s_add_u32 s{sT1}, s{sT1}, {56*1024}")
    if Gen.STAMP:
        g("s_waitcnt vmcnt(0)"); g.stamp("k4_end"); g.dump_stamps(sWAVE, 4)
```

```python
import sys
from core import *
import p_mod, p_kv, p_att, p_tail, mega

HEADER = open('adaLN_cond__compressed_kv_cla__swiglu_ffn__prompt.s.ref').read().split('; Override launch')[0]

def build(kernels):
    out = HEADER
    for name, grid, block, lds, fn, nv, ao in kernels:
        out += f"; @launch kernel={name} grid=({grid},1,1) block=({block},1,1) lds={lds}\n"
    out += '.amdgcn_target "amdgcn-amd-amdhsa--gfx950"\n.text\n'
    seen = set()
    for name, grid, block, lds, fn, nv, ao in kernels:
        if name in seen: continue
        seen.add(name)
        g = Gen(); g.uid = len(seen) * 1000
        end = f"L_end_{name}"
        g(f"s_cmp_ge_u32 s2, {grid}", f"s_cbranch_scc1 {end}")
        fn(g)
        g.label(end); g("s_endpgm")
        out += kernel_header(name) + g.text()
    out += '.section .rodata,"a"\n'
    seen = set()
    for name, grid, block, lds, fn, nv, ao in kernels:
        if name in seen: continue
        seen.add(name)
        out += kernel_desc(name, nv, ao)
    return out

def k_mod(g): p_mod.phase_mod(g)
def k_kv(g):
    g.stamp("entry")
    p_kv.phase_kv(g, p_mod.ln1_tail)

def k_att(g): p_att.phase_att(g)
KERNELS = {
  'mega': ('mega_kernel', 256, 512, 163840, mega.mega, 256, 128),
  'front': ('front_kernel', 256, 512, 163840, mega.front, 256, 128),
  'k3': ('k3_kernel', 256, 512, 163840, p_tail.k3, 256, 128),
  'ln2': ('ln2_kernel', 256, 512, 0, p_tail.ln2, 64, 64),
  'k4': ('k4_kernel', 224, 512, 131072, p_tail.k4, 256, 128),
  'k5': ('k5_kernel', 256, 512, 163840, p_tail.k5, 256, 128),
}
if __name__ == "__main__":
    names = [a for a in sys.argv[2:] if a != 'STAMP' and '=' not in a]
    for a in sys.argv[2:]:
        if '=' in a:
            k, v = a.split('='); p_att.OPT[k] = int(v); p_tail.OPT[k] = int(v)
    Gen.STAMP = 'STAMP' in sys.argv
    open(sys.argv[1], 'w').write(build([KERNELS[n] for n in names]))
```

```python
class Gen:
    def __init__(self):
        self.L = []
        self._vm = []
        self._done = -1
        self.uid = 0
    def __call__(self, *ss):
        for s in ss:
            if isinstance(s, (list, tuple)):
                self(*s)
            elif s:
                self.L.append(s)
    def label(self, name):
        self.L.append(name + ":")
    def newlabel(self, base):
        self.uid += 1
        return f"L_{base}_{self.uid}"
    @property
    def vm(self): return self._vm
    @vm.setter
    def vm(self, v): self._vm = v; self._done = -1
    def vmem(self, instr, tag=None):
        self.L.append(instr); self.vm.append(tag)
    def vm_note(self, tag):
        self.vm.append(tag)
    def vm_count_after(self, tag):
        idx = max(i for i, t in enumerate(self.vm) if t == tag)
        return len(self.vm) - 1 - idx
    def wait_vm(self, tag, extra=""):
        n = self.vm_count_after(tag)
        idx = len(self._vm) - 1 - n
        if idx <= self._done and not extra: return
        assert n <= 63, f"vmcnt {n} too large for tag {tag}"
        self._done = max(self._done, idx)
        self.L.append(f"s_waitcnt vmcnt({n}){extra}")
    STAMP = False
    STAMP_SKIP = set(__import__('os').environ.get('SKIP', 'mod_part,sub1_done,sub2_done,diag_start,ctx_stored').split(','))
    def stamp(self, name="", cyc=False):
        if not Gen.STAMP: return
        keep = __import__('os').environ.get('KEEP')
        if keep:
            if name not in keep.split(','): return
        elif name in Gen.STAMP_SKIP or name.startswith('b_') or name[:2] in ('st', 'dm', 'ke') or name in ('pre_karg', 'karg', 'iss0', 'iss1', 'iss2', 'p0'): return
        if not hasattr(self, 'stamps'): self.stamps = []
        r = 60 + 2 * len(self.stamps)
        assert r <= 82, 'too many stamps'
        self.stamps.append(name)
        self.L.append(f"s_memtime s[{r}:{r+1}]" if cyc else f"s_memrealtime s[{r}:{r+1}]")
        both = __import__('os').environ.get('BOTH')
        if both and not cyc and name in both.split(','):
            r = 60 + 2 * len(self.stamps)
            assert r <= 82, 'too many stamps'
            self.stamps.append(name + '_c')
            self.L.append(f"s_memtime s[{r}:{r+1}]")
    def dump_stamps(self, wave_sreg, slot):
        if not Gen.STAMP or not hasattr(self, 'stamps'): return
        n = len(self.stamps)
        self(f"s_load_dwordx2 s[56:57], s[0:1], {KA['ws']}", "s_waitcnt lgkmcnt(0)", "s_mov_b32 s58, 0x10000000", "s_mov_b32 s59, 0x20000")
        self(f"s_lshl_b32 s54, s2, 3", f"s_add_u32 s54, s54, s{wave_sreg}", "s_lshl_b32 s54, s54, 7", f"s_add_u32 s54, s54, {hex(WS_T + slot * 0x40000)}")
        for i in range(n):
            self(f"v_mov_b32 v14, s{60+2*i}", f"v_mov_b32 v15, {i*4}", "s_nop 0", "buffer_store_dword v14, v15, s[56:59], s54 offen")
        self("s_waitcnt vmcnt(0)")
        print("stamps slot", slot, self.stamps)
    def text(self):
        return "\n".join(self.L) + "\n"

def vr(b, n=1, k="v"):
    return f"{k}{b}" if n == 1 else f"{k}[{b}:{b+n-1}]"
def ar(b, n=1):
    return vr(b, n, "a")
def sr(b, n=1):
    return vr(b, n, "s")

KA = dict(x=0, ckv=8, wq=16, wuk=24, wuv=32, wo=40, bx=48, wg=56, wu=64, wd=72, c=80, wmod=88, out=96, dbg=104, ws=112)
SZ = dict(x=2048*512*2, ckv=2048*512*2, wq=512*4096*2, wuk=512*4096*2, wuv=512*4096*2, wo=4096*512*2,
          wg=512*1792*2, wu=512*1792*2, wd=1792*512*2, c=512*2, wmod=512*3072*2, out=2048*512*2, dbg=256, ws=0x10000000)
WS_MOD  = 0x0000000
WS_STAT = 0x0010000
WS_CNT  = 0x0020000
WS_T    = 0x8000000
WS_H    = 0x0100000
WS_X1   = 0x0400000
WS_H2   = 0x0800000
WS_ACT  = 0x0A00000
WS_KF   = 0x2000000
WS_VF   = 0x3000000
WS_CTX  = 0x4000000

def load_srd(g, s, name, tmp=None):
    g(f"s_load_dwordx2 {sr(s,2)}, s[0:1], {KA[name]}")
def finish_srd(g, s, name):
    import re
    for line in reversed(g.L):
        m = re.match(r"s_load_dwordx2 s\[(\d+):(\d+)\], s\[0:1\], (\d+)", line)
        if m and int(m.group(1)) == s:
            assert int(m.group(3)) == KA[name], f"SRD s{s}: pointer at kernarg {m.group(3)} but sized as {name}"
            break
    else:
        raise AssertionError(f"SRD s{s} ({name}): no kernarg load found")
    g(f"s_mov_b32 s{s+2}, {hex(SZ[name])}", f"s_mov_b32 s{s+3}, 0x20000")

def kernel_header(name):
    return f""".globl {name}
.p2align 8
.type {name},@function
{name}:
"""
def kernel_desc(name, nv=256, ao=128, ns=102):
    return f""".p2align 6
.amdhsa_kernel {name}
  .amdhsa_next_free_vgpr {nv}
  .amdhsa_next_free_sgpr {ns}
  .amdhsa_accum_offset {ao}
  .amdhsa_group_segment_fixed_size 0
  .amdhsa_kernarg_size 120
  .amdhsa_user_sgpr_count 2
  .amdhsa_user_sgpr_kernarg_segment_ptr 1
  .amdhsa_system_sgpr_workgroup_id_x 1
.end_amdhsa_kernel
"""

def wave_sum64(g, v, t):
    for r in (8, 4, 2, 1):
        g("s_nop 1", f"v_add_f32_dpp v{v}, v{v}, v{v} row_ror:{r} row_mask:0xf bank_mask:0xf")
    g(f"v_mov_b32 v{t}, v{v}", "s_nop 1", f"v_permlane16_swap_b32 v{v}, v{t}", f"v_add_f32 v{v}, v{v}, v{t}")
    g(f"v_mov_b32 v{t}, v{v}", "s_nop 1", f"v_permlane32_swap_b32 v{v}, v{t}", f"v_add_f32 v{v}, v{v}, v{t}")


def prefetch_lines(g, ptr_s, name, gw_s, start, vtmp, vdst, lane128, stmp, srd=96):
    g(f"s_mov_b32 s{srd}, s{ptr_s}", f"s_mov_b32 s{srd+1}, s{ptr_s+1}", f"s_mov_b32 s{srd+2}, {hex(SZ[name])}", f"s_mov_b32 s{srd+3}, 0x20000")
    g(f"s_sub_u32 s{stmp}, s{gw_s}, {start}", f"s_lshl_b32 s{stmp}, s{stmp}, 13", f"v_add_u32 v{vtmp}, s{stmp}, v{lane128}")
    return f"buffer_load_dword v{vdst}, v{vtmp}, s[{srd}:{srd+3}], 0 offen"
```

```python
from core import *
import p_kv, p_att, p_mod
from p_kv import emit, V_W0, V_W1, V_L16, V_TR, V_FR, V_ACC, V_C0, V_C1, V_SR, setup_dma128, setup_tr128, tr_reads
from p_att import *
from p_mod import LOG2E, QSCALE

S_WS, S_DBG, S_A, S_B, S_C2 = 4, 8, 12, 16, 56
p_att.S_WS = S_WS
sCROW, sSTB, sSTG = 43, 54, 55
sHKV, sKB, sWBKV = 84, 87, 85
OOB = 0x7ff00000
sOOB = 86
C_START, C_MOD2 = 0, 32
C_H, C_KV, C_CTX, C_H2, C_ACT = 0, 8, 40, 48, 56

SLOT = [0,1,2,3, 0,1, 2,4,5,6,7,8,9, 3, 0, 1,   2,4,5,3,6,7,8,9]
HSCHED = {52 + k: [k] for k in range(16)}
ISSUE = {1:[3, 4], 2:[5], 3:[6, 7], 4:[8, 9], 5:[10, 11], 6:[12, 13], 7:[14, 15], 8:[16], 9:[17], 10:[18], 11:[20], 12:[21], 13:[22], 14:[19], 15:[23]}

def poll_issue(g, vdst, srd, soff, tag, st):
    g(f"s_cmp_eq_u32 s{sWAVE}, 0", f"s_cselect_b32 s{st}, s{soff}, s{sOOB}")
    g.vmem(f"buffer_load_dword v{vdst}, off, s[{srd}:{srd+3}], s{st} sc1", tag)
def poll_check(g, vdst, srd, tag, soff, target, t1, t2):
    ok, loop = g.newlabel("pok"), g.newlabel("ploop")
    g.wait_vm(tag)
    g(f"s_cmp_lg_u32 s{sWAVE}, 0", f"s_cbranch_scc1 {ok}")
    g(f"v_readfirstlane_b32 s{t1}, v{vdst}", "s_nop 3", f"s_cmp_ge_u32 s{t1}, {target}")
    g(f"s_cbranch_scc1 {ok}", f"s_mov_b32 s{t2}, 0x40000")
    g.label(loop)
    g("s_sleep 8", f"buffer_load_dword v{vdst}, off, s[{srd}:{srd+3}], s{soff} sc1", "s_waitcnt vmcnt(0)")
    g(f"v_readfirstlane_b32 s{t1}, v{vdst}", "s_nop 3", f"s_cmp_ge_u32 s{t1}, {target}")
    g(f"s_cbranch_scc1 {ok}", f"s_sub_u32 s{t2}, s{t2}, 1", f"s_cmp_lg_u32 s{t2}, 0", f"s_cbranch_scc1 {loop}")
    g.label(ok)
def signal(g, srd, soff, vt, st, lo=None, hi=None):
    g(f"s_cmp_eq_u32 s{sWAVE}, 0", f"s_cselect_b32 s{st}, {('s%d' % soff[1]) if isinstance(soff, tuple) else soff}, s{sOOB}")
    if lo is not None:
        g(f"s_cmp_ge_u32 s2, {lo}", f"s_cselect_b32 s{st}, s{st}, s{sOOB}", f"s_cmp_lt_u32 s2, {hi}", f"s_cselect_b32 s{st}, s{st}, s{sOOB}")
    g(f"v_mov_b32 v{vt}, 1", "s_mov_b64 exec, 1")
    g.vmem(f"buffer_atomic_add v{vt}, off, s[{srd}:{srd+3}], s{st} sc1", 'sig')
    g("s_mov_b64 exec, -1")
def cnt_off(g, dst, base, idx_s):
    g(f"s_lshl_b32 s{dst}, s{idx_s}, 7", f"s_add_u32 s{dst}, s{dst}, {hex(WS_CNT + base*128)}")

def code_touch(g, kname, seg_s, nseg_bits, first_seg, vt, vdst, st):
    lab = g.newlabel("pc")
    g(f"s_getpc_b64 s[{st}:{st+1}]")
    g.label(lab)
    g(f"s_sub_u32 s{st}, s{st}, {lab}-{kname}", f"s_subb_u32 s{st+1}, s{st+1}, 0")
    g(f"s_and_b32 s{st+2}, s{seg_s}, {(1 << nseg_bits) - 1}", f"s_add_u32 s{st+2}, s{st+2}, {first_seg}", f"s_lshl_b32 s{st+2}, s{st+2}, 13")
    g(f"v_lshlrev_b32 v{vt}, 7, v0", f"v_add_u32 v{vt}, s{st+2}, v{vt}", f"v_min_u32 v{vt}, L_end_{kname}-{kname}, v{vt}")
    g(f"v_mov_b32 v{vt+1}, s{st+1}", f"v_add_co_u32 v{vt}, vcc, s{st}, v{vt}", "s_nop 1", f"v_addc_co_u32 v{vt+1}, vcc, 0, v{vt+1}, vcc")
    g(f"global_load_dword v{vdst}, v[{vt}:{vt+1}], off")

def front(g, fused=False):
    g(f"s_load_dwordx2 s[4:5], s[0:1], {KA['ws']}", f"s_load_dwordx2 s[8:9], s[0:1], {KA['dbg']}",
      f"s_load_dwordx2 s[12:13], s[0:1], {KA['ckv']}", f"s_load_dwordx2 s[16:17], s[0:1], {KA['wuk']}",
      f"s_load_dwordx2 s[56:57], s[0:1], {KA['wuv']}", f"s_load_dwordx2 s[88:89], s[0:1], {KA['x']}",
      f"s_load_dwordx2 s[92:93], s[0:1], {KA['wmod']}", f"s_load_dwordx2 s[96:97], s[0:1], {KA['c']}")
    g.stamp("entry")
    g("v_lshrrev_b32 v14, 6, v0", "v_and_b32 v0, 63, v0", "s_nop 0", f"v_readfirstlane_b32 s{sWAVE}, v14")
    g(f"s_and_b32 s{sHEAD}, s2, 7", f"s_lshl_b32 s{sHEAD}, s{sHEAD}, 2", f"s_bfe_u32 s{sT1}, s2, 0x20003", f"s_add_u32 s{sHEAD}, s{sHEAD}, s{sT1}")
    g(f"s_lshr_b32 s{sI}, s2, 5", f"s_lshr_b32 s{sISA}, s{sWAVE}, 2")
    g(f"s_sub_u32 s{sT1}, 7, s{sWAVE}", f"s_sub_u32 s{sT2}, 15, s{sI}", f"s_cmp_eq_u32 s{sISA}, 0",
      f"s_cselect_b32 s{sSUB}, s{sWAVE}, s{sT1}", f"s_cselect_b32 s{sT3}, s{sT2}, s{sI}")
    g(f"s_lshl_b32 s{sT16}, s{sT3}, 3", f"s_lshl_b32 s{sT1}, s{sSUB}, 1", f"s_add_u32 s{sT16}, s{sT16}, s{sT1}")
    g(f"s_lshl_b32 s{sNB2}, s{sT2}, 1", f"s_lshl_b32 s{sNA2}, s{sI}, 1", f"s_lshl_b32 s{sNBo}, s{sT2}, 15", f"s_lshl_b32 s{sNAo}, s{sI}, 15")
    g(f"s_and_b32 s{sA4}, s{sWAVE}, 3", f"s_lshl_b32 s{sA4}, s{sA4}, 12")
    g(f"s_lshl_b32 s{sT1}, s{sHEAD}, 19", f"s_add_u32 s{sT1}, s{sT1}, s{sA4}",
      f"s_add_u32 s{sKF}, s{sT1}, {hex(WS_KF)}", f"s_add_u32 s{sVF}, s{sT1}, {hex(WS_VF)}")
    g(f"s_and_b32 s{sKB}, s2, 1", f"s_lshl_b32 s{sKB}, s{sKB}, 2", f"s_bfe_u32 s{sT1}, s2, 0x20003", f"s_add_u32 s{sKB}, s{sKB}, s{sT1}")
    g(f"s_bfe_u32 s{sHKV}, s2, 0x20001", f"s_lshl_b32 s{sHKV}, s{sHKV}, 3", f"s_lshr_b32 s{sT1}, s2, 5", f"s_add_u32 s{sHKV}, s{sHKV}, s{sT1}")
    g("v_lshrrev_b32 v14, 3, v0", "v_lshlrev_b32 v1, 10, v14", "v_lshrrev_b32 v14, 4, v0", "v_and_b32 v15, 7, v0", "v_xor_b32 v14, v14, v15",
      "v_xor_b32 v15, 4, v14", "v_lshl_add_u32 v2, v15, 4, v1", "v_lshl_add_u32 v1, v14, 4, v1", f"v_add_u32 v2, {8*1024-1024}, v2")
    setup_dma128(g, 8192); setup_tr128(g)
    g(f"s_mul_i32 s{sSTG}, s{sWAVE}, 12288", f"s_add_u32 s{sSTG}, s{sSTG}, {4*16384}",
      "v_and_b32 v14, 15, v0", "v_lshlrev_b32 v10, 7, v14", "v_lshrrev_b32 v14, 1, v14", "v_lshrrev_b32 v15, 4, v0", "v_xor_b32 v14, v14, v15",
      "v_lshl_add_u32 v10, v14, 4, v10", f"v_add_u32 v10, s{sSTG}, v10", "v_xor_b32 v11, 64, v10")
    g(f"v_lshlrev_b32 v{V_L16}, 4, v0")
    g(f"s_lshl_b32 s{sT1}, s{sKB}, 8", f"s_lshl_b32 s{sCROW}, s{sWAVE}, 5", f"s_add_u32 s{sCROW}, s{sT1}, s{sCROW}", f"s_lshl_b32 s{sCROW}, s{sCROW}, 10")
    g(f"s_lshl_b32 s{sWB}, s{sWAVE}, 17", f"s_lshl_b32 s{sT1}, s{sHEAD}, 8", f"s_add_u32 s{sWB}, s{sWB}, s{sT1}", f"s_lshl_b32 s{sM0B}, s{sWAVE}, 11")
    g(f"s_lshl_b32 s{sWBKV}, s{sWAVE}, 17", f"s_lshl_b32 s{sT1}, s{sHKV}, 8", f"s_add_u32 s{sWBKV}, s{sWBKV}, s{sT1}")
    g(f"s_lshl_b32 s{sSTB}, s{sHKV}, 19", f"s_lshl_b32 s{sT1}, s{sKB}, 3", f"s_add_u32 s{sT1}, s{sT1}, s{sWAVE}", f"s_lshl_b32 s{sT1}, s{sT1}, 13", f"s_add_u32 s{sSTB}, s{sSTB}, s{sT1}")
    g("v_lshrrev_b32 v14, 4, v0", "v_lshlrev_b32 v14, 2, v14", "v_and_b32 v15, 15, v0")
    for r in range(4):
        g(f"v_cmp_le_u32 s[{sMASK+2*r}:{sMASK+2*r+1}], v14, v15")
        if r < 3: g("v_add_u32 v14, 1, v14")
    g(f"s_mov_b32 s{sRESTART}, 0", f"s_mov_b32 s{sOOB}, {hex(OOB)}")
    g.stamp("pre_karg")
    g("s_waitcnt lgkmcnt(0)")
    g.stamp("karg")
    for s, n in ((S_WS, 'ws'), (S_DBG, 'dbg'), (S_A, 'ckv'), (S_B, 'wuk'), (S_C2, 'wuv'), (88, 'x'), (92, 'wmod'), (96, 'c')):
        finish_srd(g, s, n)
    def dma(c):
        if c < 16:
            j, q = c >> 2, c & 3
            srd = S_B if j < 2 else S_C2
            off = q*0x100000 + (j & 1)*128
        else:
            j, q = (c - 16) >> 2, c & 3
            srd = S_B; off = q*0x100000 + j*128
        return [f"s_add_u32 s{sT1}, s{sWBKV if c < 16 else sWB}, {hex(off)}", f"s_add_u32 m0, s{sM0B}, {hex(SLOT[c]*16384)}",
                (f"buffer_load_dwordx4 v{V_W0}, s[{srd}:{srd+3}], s{sT1} offen lds", ('W', c)),
                (f"buffer_load_dwordx4 v{V_W1}, s[{srd}:{srd+3}], s{sT1} offen offset:1024 lds", ('W', c))]
    def stage(p):
        out = []
        for hf in range(2):
            out += [f"s_add_u32 s{sT1}, s{sCROW}, {p*128 + hf*16384}", f"s_add_u32 m0, s{sSTG}, {(p%3)*4096 + hf*2048}",
                    (f"buffer_load_dwordx4 v{V_C0}, s[{S_A}:{S_A+3}], s{sT1} offen lds", ('P', p)),
                    (f"buffer_load_dwordx4 v{V_C1}, s[{S_A}:{S_A+3}], s{sT1} offen offset:1024 lds", ('P', p))]
        return out
    def stage_reads(p):
        return [f"ds_read_b128 a[{(s*2+t)*4}:{(s*2+t)*4+3}], v{V_SR+(s&1)} offset:{(p%3)*4096 + t*2048}" for s in (2*p, 2*p+1) for t in range(2)]
    MC, MW, MT, MA = 96, 100, 116, 120
    def mod_loads(lo, hi):
        g(f"s_cmp_ge_u32 s2, {lo}", f"s_cselect_b32 s{sT2}, 0, s{sOOB}", f"s_cmp_lt_u32 s2, {hi}", f"s_cselect_b32 s{sT2}, s{sT2}, s{sOOB}")
        g(f"v_and_b32 v{MT}, 3, v0", f"v_lshrrev_b32 v{MT+1}, 2, v0", f"s_lshl_b32 s{sT1}, s{sWAVE}, 4", f"v_add_u32 v{MT+1}, s{sT1}, v{MT+1}")
        g(f"s_movk_i32 s{sT1}, 6144", f"v_mul_lo_u32 v{MT+2}, v{MT+1}, s{sT1}", f"v_lshl_add_u32 v{MT+2}, v{MT}, 4, v{MT+2}", f"s_lshl_b32 s{sT1}, s2, 6", f"v_add_u32 v{MT+2}, s{sT1}, v{MT+2}")
        g(f"v_lshlrev_b32 v{MT+3}, 1, v{MT+1}")
        for t in range(4):
            g.vmem(f"buffer_load_ushort v{MC+t}, v{MT+3}, s[96:99], s{sT2} offen offset:{t*256}", 'mc')
        for t in range(4):
            g(f"s_add_u32 s{sT1}, s{sT2}, {hex(t*128*6144)}")
            g.vmem(f"buffer_load_dwordx4 v[{MW+4*t}:{MW+3+4*t}], v{MT+2}, s[92:95], s{sT1} offen", ('mw', t))
    def mod_partial(lo, hi, lds):
        skip = g.newlabel("modp")
        g.wait_vm(('mw', 3))
        g(f"s_cmp_ge_u32 s2, {lo}", f"s_cbranch_scc0 {skip}", f"s_cmp_lt_u32 s2, {hi}", f"s_cbranch_scc0 {skip}")
        g(f"s_mov_b32 s{sT1}, {hex(LOG2E)}")
        for t in range(4): g(f"v_lshlrev_b32 v{MC+t}, 16, v{MC+t}")
        for t in range(4): g(f"v_mul_f32 v{MT+t}, s{sT1}, v{MC+t}")
        for t in range(4): g(f"v_exp_f32 v{MT+t}, -v{MT+t}")
        g("s_nop 0")
        for t in range(4): g(f"v_add_f32 v{MT+t}, 1.0, v{MT+t}")
        for t in range(4): g(f"v_rcp_f32 v{MT+t}, v{MT+t}")
        g("s_nop 0")
        for t in range(4): g(f"v_mul_f32 v{MC+t}, v{MC+t}, v{MT+t}")
        g(f"s_mov_b32 s{sT2}, 0xffff0000")
        for t in range(4):
            for d in range(4):
                w = MW + 4*t + d
                g(f"v_lshlrev_b32 v{MT}, 16, v{w}", f"v_and_b32 v{MT+1}, s{sT2}, v{w}")
                if t == 0: g(f"v_mul_f32 v{MA+2*d}, v{MC}, v{MT}", f"v_mul_f32 v{MA+1+2*d}, v{MC}, v{MT+1}")
                else: g(f"v_fmac_f32 v{MA+2*d}, v{MC+t}, v{MT}", f"v_fmac_f32 v{MA+1+2*d}, v{MC+t}, v{MT+1}")
        for r in (8, 4):
            g("s_nop 1")
            for e in range(8): g(f"v_add_f32_dpp v{MA+e}, v{MA+e}, v{MA+e} row_ror:{r} row_mask:0xf bank_mask:0xf")
        g(f"v_lshrrev_b32 v{MT+1}, 4, v0", f"s_lshl_b32 s{sT1}, s{sWAVE}, 2", f"v_add_u32 v{MT+1}, s{sT1}, v{MT+1}", f"v_lshlrev_b32 v{MT+1}, 7, v{MT+1}",
          f"v_and_b32 v{MT}, 3, v0", f"v_lshl_add_u32 v{MT+1}, v{MT}, 5, v{MT+1}", f"v_add_u32 v{MT+1}, {lds}, v{MT+1}")
        g(f"v_and_b32 v{MT}, 15, v0", f"v_cmp_gt_u32 vcc, 4, v{MT}", "s_nop 1", "s_mov_b64 exec, vcc")
        g(f"ds_write_b128 v{MT+1}, v[{MA}:{MA+3}]", f"ds_write_b128 v{MT+1}, v[{MA+4}:{MA+7}] offset:16")
        g("s_mov_b64 exec, -1", "s_waitcnt lgkmcnt(0)")
        g.label(skip)
    def mod_final(lo, hi, lds):
        lskip = g.newlabel("modfin")
        g(f"s_cmp_ge_u32 s2, {lo}", f"s_cselect_b32 s{sT2}, 0, s{sOOB}", f"s_cmp_lt_u32 s2, {hi}", f"s_cselect_b32 s{sT2}, s{sT2}, s{sOOB}",
          f"s_cmp_eq_u32 s{sWAVE}, 0", f"s_cselect_b32 s{sT2}, s{sT2}, s{sOOB}")
        g(f"s_cmp_lg_u32 s{sT2}, 0", f"s_cbranch_scc1 {lskip}")
        g(f"v_and_b32 v{MT}, 31, v0", f"v_lshlrev_b32 v{MT}, 2, v{MT}", f"v_lshrrev_b32 v{MT+1}, 5, v0", f"v_lshl_add_u32 v{MT}, v{MT+1}, 11, v{MT}", f"v_add_u32 v{MT}, {lds}, v{MT}")
        g("s_waitcnt lgkmcnt(0)")
        for r in range(16):
            if r == 15: g("s_waitcnt lgkmcnt(7)")
            g(f"ds_read_b32 v{MW+r}, v{MT} offset:{r*128}")
        g("s_waitcnt lgkmcnt(0)")
        for st in (8, 4, 2, 1):
            for k in range(st): g(f"v_add_f32 v{MW+k}, v{MW+k}, v{MW+k+st}")
        g(f"v_mov_b32 v{MW+1}, v{MW}", "s_nop 1", f"v_permlane32_swap_b32 v{MW}, v{MW+1}", f"v_add_f32 v{MW}, v{MW}, v{MW+1}")
        g.label(lskip)
        g(f"v_lshlrev_b32 v{MT}, 2, v0", "v_cmp_gt_u32 vcc, 32, v0", f"v_mov_b32 v{MT+1}, {hex(OOB)}", "s_nop 0", f"v_cndmask_b32 v{MT}, v{MT+1}, v{MT}, vcc")
        g(f"s_lshl_b32 s{sT1}, s2, 7", f"s_add_u32 s{sT1}, s{sT1}, {hex(WS_MOD)}", f"s_add_u32 s{sT1}, s{sT1}, s{sT2}")
        g.vmem(f"buffer_store_dword v{MW}, v{MT}, s[{S_WS}:{S_WS+3}], s{sT1} offen sc1", 'modst')
        g(f"s_lshl_b32 s{sT1}, s2, 7", f"s_add_u32 s{sT1}, s{sT1}, {hex(WS_CNT)}", "s_cmp_lt_u32 s2, 32", f"s_cselect_b32 s{sT1}, s{sT1}, s{sOOB}",
          f"s_cmp_eq_u32 s{sWAVE}, 0", f"s_cselect_b32 s{sT1}, s{sT1}, s{sOOB}", f"v_mov_b32 v{MT+2}, 0", f"v_lshlrev_b32 v{MT+3}, 12, v0", "s_mov_b64 exec, 15")
        g.vmem(f"buffer_store_dword v{MT+2}, v{MT+3}, s[{S_WS}:{S_WS+3}], s{sT1} offen sc1", 'modst')
        g("s_mov_b64 exec, -1")
    def c_touch():
        g(f"s_lshr_b32 s{sT1}, s2, 5", f"s_mul_i32 s{sT1}, s{sT1}, 160", f"s_lshl_b32 s{sT2}, s{sWAVE}, 6", f"s_add_u32 s{sT1}, s{sT1}, s{sT2}", f"v_add_u32 v56, s{sT1}, v0")
        g(f"v_add_u32 v57, s{sT2}, v0", "v_mov_b32 v58, 0xcccd", "v_mul_u32_u24 v58, v56, v58", "v_lshrrev_b32 v58, 18, v58")
        g("v_mul_u32_u24 v59, 5, v58", "v_sub_u32 v59, v56, v59", "v_add_u32 v59, 3, v59", "v_lshlrev_b32 v59, 7, v59", "v_lshl_add_u32 v59, v58, 10, v59")
        g(f"s_lshl_b32 s{sT1}, s{sKB}, 18", f"v_add_u32 v59, s{sT1}, v59", "v_cmp_gt_u32 vcc, 160, v57", f"v_mov_b32 v58, {hex(OOB)}", "s_nop 0", "v_cndmask_b32 v59, v58, v59, vcc")
        g.vmem(f"buffer_load_dword v12, v59, s[{S_A}:{S_A+3}], 0 offen", 'tc')
    def w_touch_lin():
        g(f"s_lshl_b32 s{sT1}, s2, 2", f"s_and_b32 s{sT2}, s{sWAVE}, 3", f"s_add_u32 s{sT1}, s{sT1}, s{sT2}")
        g(f"s_and_b32 s{sT2}, s{sT1}, 511", f"s_lshl_b32 s{sT2}, s{sT2}, 13", f"s_cmp_lt_u32 s{sWAVE}, 4", f"s_cselect_b32 s{sT2}, s{sT2}, s{sOOB}")
        g("v_lshlrev_b32 v15, 7, v0", f"s_cmp_lt_u32 s{sT1}, 512", f"s_cselect_b32 s{sT3}, s{sT2}, s{sOOB}")
        g.vmem(f"buffer_load_dword v13, v15, s[{S_B}:{S_B+3}], s{sT3} offen", 'tw')
        g(f"s_cmp_lt_u32 s{sT1}, 512", f"s_cselect_b32 s{sT3}, s{sOOB}, s{sT2}")
        g.vmem(f"buffer_load_dword v14, v15, s[{S_C2}:{S_C2+3}], s{sT3} offen", 'tw')
    def w_touch():
        g(f"s_and_b32 s{sT1}, s{sKB}, 3", f"s_lshl_b32 s{sT1}, s{sT1}, 9", f"s_lshl_b32 s{sT2}, s{sWAVE}, 6", f"s_add_u32 s{sT1}, s{sT1}, s{sT2}", f"v_add_u32 v14, s{sT1}, v0")
        g("v_bfe_u32 v15, v14, 1, 9", "v_lshlrev_b32 v15, 13, v15", "v_and_b32 v14, 1, v14", "v_lshl_add_u32 v15, v14, 7, v15", f"s_lshl_b32 s{sT2}, s{sHKV}, 8", f"v_add_u32 v15, s{sT2}, v15")
        g(f"s_bitcmp1_b32 s{sKB}, 1", f"s_cselect_b32 s{sT2}, s{sOOB}, 0")
        g.vmem(f"buffer_load_dword v13, v15, s[{S_B}:{S_B+3}], s{sT2} offen", 'tw')
        g(f"s_cselect_b32 s{sT2}, 0, s{sOOB}")
        g.vmem(f"buffer_load_dword v14, v15, s[{S_C2}:{S_C2+3}], s{sT2} offen", 'tw')
    if OPT.get('ctouch'):
        lsk = g.newlabel("noct")
        g(f"s_cmp_lg_u32 s{sWAVE}, 7", f"s_cbranch_scc1 {lsk}", f"s_lshr_b32 s{sT1}, s2, 3")
        code_touch(g, 'mega_kernel', sT1, 3, 0, 16, 18, 60 if not Gen.STAMP else 96)
        g.label(lsk)
    pv = OPT.get('pro', 0)
    bar = (lambda: g("s_barrier")) if pv != 4 else (lambda: None)
    emit(g, dma(0)); emit(g, stage(0)); g.stamp("iss0"); bar()
    if pv == 3:
        emit(g, stage(1)); emit(g, dma(1)); bar(); emit(g, stage(2)); c_touch(); emit(g, dma(2)); mod_loads(0, 96)
    elif pv == 5:
        emit(g, stage(1)); emit(g, dma(1)); emit(g, stage(2)); bar(); emit(g, dma(2)); mod_loads(0, 96)
    else:
        if pv != 2: c_touch()
        emit(g, stage(1)); mod_loads(0, 96); g.stamp("iss1"); bar()
        emit(g, dma(1)); emit(g, stage(2)); emit(g, dma(2)); g.stamp("iss2")
    g(f"s_lshl_b32 s{sT1}, s{sHEAD}, 3", f"s_add_u32 s{sT1}, s{sT1}, s{sWAVE}", f"s_lshl_b32 s{sT2}, s{sI}, 7", f"s_add_u32 s{sT2}, s{sT2}, s{sT1}",
      f"s_sub_u32 s{sT3}, 14, s{sI}", f"s_lshl_b32 s{sT3}, s{sT3}, 7", f"s_add_u32 s{sT3}, s{sT3}, s{sT1}",
      f"s_cmp_lt_u32 s{sT1}, 128", f"s_cselect_b32 s{sCNT}, s{sT2}, s{sT3}")
    g.wait_vm(('P', 0)); g.stamp("p0"); g(stage_reads(0))
    g.wait_vm(('W', 0)); g("s_waitcnt lgkmcnt(0)", "s_barrier")
    g.stamp("w0_landed")
    emit(g, stage(3))
    second = 512
    g(tr_reads(0, 0, second)); r1 = tr_reads(1, 1, second)
    g(r1[:7]); g("s_waitcnt lgkmcnt(7)"); g(r1[7])
    NKS, NCH = 96, 24
    def epilogue(j):
        buf = V_ACC + (j & 1) * 32
        A = lambda t, cb: buf + (t * 4 + cb) * 4
        groups = []
        for i in range(4):
            if j < 2:
                t, u = i >> 1, i & 1
                a, b = A(t, 2*u), A(t, 2*u+1); off = WS_KF + (t * 4 + 2*j + u) * 1024
            else:
                a, b = A(0, i), A(1, i); off = WS_VF + (4*(j-2) + i) * 1024
            grp = [f"v_cvt_pk_bf16_f32 v{a}, v{a}, v{a+1}", f"v_cvt_pk_bf16_f32 v{a+1}, v{a+2}, v{a+3}",
                   f"v_cvt_pk_bf16_f32 v{a+2}, v{b}, v{b+1}", f"v_cvt_pk_bf16_f32 v{a+3}, v{b+2}, v{b+3}"]
            st = [f"s_add_u32 s{sT1}, s{sSTB}, {hex(off)}", (f"buffer_store_dwordx4 v[{a}:{a+3}], v{V_L16}, s[{S_WS}:{S_WS+3}], s{sT1} offen{'' if OPT.get('kvplain') else ' sc1'}", ('st', j))]
            groups.append((grp, st))
        return groups
    def hload(s):
        out = []
        for t in range(2):
            out += [f"s_lshl_b32 s{sT1}, s{sT16}, 14", f"s_add_u32 s{sT1}, s{sT1}, {hex(WS_H + t*16384 + s*1024)}",
                    (f"buffer_load_dwordx4 a[{(s*2+t)*4}:{(s*2+t)*4+3}], v{V_L16}, s[{S_WS}:{S_WS+3}], s{sT1} offen sc1", ('H', s))]
        return out
    def ln1_loads():
        g(f"v_lshlrev_b32 v1, 5, v0", f"s_mov_b32 s{sT1}, {hex(WS_MOD)}")
        for k, off in enumerate((0, 16, 2048, 2064)):
            g.vmem(f"buffer_load_dwordx4 v[{72+4*k}:{75+4*k}], v1, s[{S_WS}:{S_WS+3}], s{sT1} offen offset:{off} sc1", 'lnm')
    def wsum_items(v, t):
        out = []
        for r in (8, 4, 2, 1): out += ["s_nop 1", f"v_add_f32_dpp v{v}, v{v}, v{v} row_ror:{r} row_mask:0xf bank_mask:0xf"]
        out += [f"v_mov_b32 v{t}, v{v}", "s_nop 1", f"v_permlane16_swap_b32 v{v}, v{t}", f"v_add_f32 v{v}, v{v}, v{t}"]
        out += [f"v_mov_b32 v{t}, v{v}", "s_nop 1", f"v_permlane32_swap_b32 v{v}, v{t}", f"v_add_f32 v{v}, v{v}, v{t}"]
        return out
    def ln1_stats_items():
        it = []
        for d in range(4): it += [f"v_lshlrev_b32 v{64+2*d}, 16, v{12+d}", f"v_and_b32 v{65+2*d}, 0xffff0000, v{12+d}"]
        it += ["v_add_f32 v10, v64, v65", "v_add_f32 v11, v66, v67", "v_add_f32 v10, v10, v11", "v_add_f32 v11, v68, v69", "v_add_f32 v10, v10, v11", "v_add_f32 v11, v70, v71", "v_add_f32 v10, v10, v11"]
        it += wsum_items(10, 11) + ["v_mul_f32 v10, 0x3b000000, v10"]
        it += [f"v_sub_f32 v{64+e}, v{64+e}, v10" for e in range(8)]
        it += ["v_mul_f32 v11, v64, v64"] + [f"v_fmac_f32 v11, v{64+e}, v{64+e}" for e in range(1, 8)]
        it += wsum_items(11, 10)
        it += ["v_mov_b32 v10, 0x3727c5ac", "v_fmac_f32 v10, 0x3b000000, v11", "v_rsq_f32 v10, v10", "s_nop 0", f"v_mul_f32 v10, {hex(QSCALE)}, v10"]
        it += [f"v_mul_f32 v{64+e}, v{64+e}, v10" for e in range(8)]
        return it
    def ln1_mod_items():
        it = [f"v_add_f32 v{80+e}, 1.0, v{80+e}" for e in range(8)] + [f"v_mul_f32 v{72+e}, {hex(QSCALE)}, v{72+e}" for e in range(8)]
        it += [f"v_fma_f32 v{64+e}, v{64+e}, v{80+e}, v{72+e}" for e in range(8)]
        it += [f"v_cvt_pk_bf16_f32 v{88+d}, v{64+2*d}, v{65+2*d}" for d in range(4)]
        it += ["v_lshrrev_b32 v1, 2, v0", "v_lshlrev_b32 v1, 10, v1", "v_and_b32 v2, 3, v0", "v_lshl_add_u32 v1, v2, 8, v1"]
        return it
    def ln1_store():
        g(f"s_lshr_b32 s{sT1}, s{sCNT}, 4", f"s_lshl_b32 s{sT1}, s{sT1}, 14", f"s_and_b32 s{sT2}, s{sCNT}, 15", f"s_lshl_b32 s{sT2}, s{sT2}, 4",
          f"s_add_u32 s{sT1}, s{sT1}, s{sT2}", f"s_add_u32 s{sT1}, s{sT1}, {hex(WS_H)}")
        g.vmem(f"buffer_store_dwordx4 v[88:91], v1, s[{S_WS}:{S_WS+3}], s{sT1} offen{'' if OPT.get('hplain') else ' sc1'}", 'hst')
    fq = []
    pend = []
    KVSIG, KVCHK = (17, 20) if OPT.get('nospread') or OPT.get('q_nospread') else (20, 22)
    dq = []
    for ks in range(NKS):
        c, kk = ks >> 2, ks & 3
        j = c >> 2; s = ks % 16
        if kk == 2 and c + 1 < NCH:
            if c == 0: mod_partial(0, 96, 3*16384)
            if c == 1: g.wait_vm('modst')
            if c == 5 and not OPT.get('noln'): g.stamp("b_5p"); poll_check(g, 2, S_DBG, 'pl0', sKO, 32, sT1, sT2)
            if c == 9 and not OPT.get('noln'): g.stamp("hst_pre"); g.wait_vm('hst'); g.stamp("hst_post")
            if c == 12 and not OPT.get('noln'): g.stamp("h_pre"); poll_check(g, 2, S_WS, 'plh', sKO, 32, sT1, sT2); g.stamp("h_chk")
            if c == KVSIG and not OPT.get('nost'): g.wait_vm(('st', 3))
            if c == KVCHK: g.stamp("kv_pre"); poll_check(g, 2, S_WS, 'plk', sM0K, 8, sT1, sT2); g.stamp("kv_chk")
            g.stamp(f"b_{c}a"); g.wait_vm(('W', c + 1)); g("s_barrier"); g.stamp(f"b_{c}")
            if c == 6:
                g(f"s_load_dwordx2 s[16:17], s[0:1], {KA['wq']}", "s_waitcnt lgkmcnt(0)"); finish_srd(g, S_B, 'wq')
            for cc in ISSUE.get(c, []): dq.append(dma(cc))
            g.stamp(f"b_{c}i")
            if c == 0:
                mod_final(0, 96, 3*16384)
                if OPT.get("wtouch"): w_touch()
            if c == 1:
                signal(g, S_DBG, C_START*4, 96, sT1, 0, 32); signal(g, S_DBG, 32*4, 96, sT1)
            if c == 2:
                g(f"s_lshl_b32 s{sT1}, s{sCNT}, 10")
                g.vmem(f"buffer_load_dwordx4 v[12:15], v{V_L16}, s[88:91], s{sT1} offen", 'lnx')
            if c == 4 and not OPT.get('noln'):
                g(f"s_mov_b32 s{sKO}, {C_START*4}"); poll_issue(g, 2, S_DBG, sKO, 'pl0', sT1)
            if c == 5 and not OPT.get('noln'): ln1_loads()
            if c == 9 and not OPT.get('noln'):
                cnt_off(g, sT3, C_H, sI); signal(g, S_WS, ('s', sT3), 1, sT1)
            if c == 11 and not OPT.get('noln'):
                cnt_off(g, sKO, C_H, sI); poll_issue(g, 2, S_WS, sKO, 'plh', sT1)
            if c == 12 and not OPT.get('noln') and OPT.get('th'):
                g(f"s_lshl_b32 s{sT1}, s{sT16}, 14", f"s_and_b32 s{sT2}, s{sHEAD}, 3", f"s_lshl_b32 s{sT2}, s{sT2}, 13", f"s_add_u32 s{sT1}, s{sT1}, s{sT2}",
                  f"s_add_u32 s{sT1}, s{sT1}, {hex(WS_H)}", "v_lshlrev_b32 v1, 7, v0")
                g.vmem(f"buffer_load_dword v2, v1, s[{S_WS}:{S_WS+3}], s{sT1} offen sc1", 'th')
            if c == KVSIG:
                cnt_off(g, sT3, C_KV, sHKV); signal(g, S_WS, ('s', sT3), 1, sT1)
            if c == KVCHK - 1:
                cnt_off(g, sM0K, C_KV, sHEAD); poll_issue(g, 2, S_WS, sM0K, 'plk', sT1)
            if c == KVCHK:
                emit(g, unit_sc1(0)); emit(g, unit_sc1(1))
                if KVCHK == 22: emit(g, unit_sc1(2))
            if c == KVCHK + 1 and KVCHK < 22: emit(g, unit_sc1(2))
            d = (SLOT[c + 1] - SLOT[c]) * 16384
            for cb in range(4): g(f"v_add_u32 v{V_TR+cb}, {hex(d & 0xffffffff)}, v{V_TR+cb}")
        extra = False
        if ks < 16:
            if ks % 2 == 1 and (ks + 1) // 2 <= 7:
                p = (ks + 1) // 2
                g.wait_vm(('P', p)); g(stage_reads(p)); extra = True
            if ks % 2 == 0 and ks >= 2 and ks // 2 + 3 <= 7: emit(g, stage(ks // 2 + 3))
        if 64 <= ks < 80 and not OPT.get('nohl'): g.wait_vm(('H', s))
        nxt = ks + 2
        reads = tr_reads(nxt, nxt & 3, second) if nxt < NKS else []
        buf = V_ACC + (j & 1) * 32
        if not OPT.get('noln'):
            if ks == 18: g.wait_vm('lnx'); fq += ln1_stats_items()
            if ks == 28: assert not fq; g.wait_vm('lnm'); fq += ln1_mod_items()
            if ks == 31: assert not fq; ln1_store()
        if j == 1: take = s in (1, 3, 5, 7)
        elif j == 4 and KVCHK == 20: take = s >= 1
        else: take = s % 4 == 1
        if OPT.get('nospread'): take = s >= 1 if j != 1 else take
        epi = pend.pop(0) if (pend and take) else None
        fb = ks % 3
        wfirst = j < 2 or j >= 4
        for m in range(8):
            cb, t = m >> 1, m & 1
            d = buf + (t * 4 + cb) * 4
            wf = f"v[{V_FR + fb*16 + cb*4}:{V_FR + fb*16 + cb*4 + 3}]"
            cf = f"a[{(s*2+t)*4}:{(s*2+t)*4+3}]"
            cin = "0" if s == 0 else f"v[{d}:{d+3}]"
            g(f"v_mfma_f32_16x16x32_bf16 v[{d}:{d+3}], {wf}, {cf}, {cin}" if wfirst else f"v_mfma_f32_16x16x32_bf16 v[{d}:{d+3}], {cf}, {wf}, {cin}")
            if m == 3 and extra: g("s_waitcnt lgkmcnt(3)")
            if m == 7 and reads: g("s_waitcnt lgkmcnt(7)")
            if reads: g(reads[m])
            elif m == 7 and ks + 1 < NKS: g("s_waitcnt lgkmcnt(0)")
            if epi and 1 <= m <= 4: g(epi[0][m-1])
            if epi and m == 5 and not OPT.get('nost'):
                g.stamp(f"st{ks}a"); emit(g, epi[1]); g.stamp(f"st{ks}b")
            if m == 2 and dq:
                g.stamp(f"dm{ks}a"); emit(g, dq.pop(0)); g.stamp(f"dm{ks}b")
            for _ in range(2 if not epi else 1):
                if fq: g(fq.pop(0))
        g.stamp(f"ke{ks}")
        for sh in HSCHED.get(ks, []):
            if not OPT.get('nohl'): emit(g, hload(sh))
        if s == 15:
            if j < 4: pend = epilogue(j)
            g.stamp(f"sub{j}_done")
    g("s_nop 7")
    for qs in range(2):
        for s in range(4):
            j, u = s >> 1, s & 1
            a = V_ACC + j*32 + (qs*4 + 2*u)*4; b = a + 4
            for k, (x, y) in enumerate(((a, a+1), (a+2, a+3), (b, b+1), (b+2, b+3))): g(f"v_cvt_pk_bf16_f32 v{16+k}, v{x}, v{y}")
            for k in range(4): g(f"v_accvgpr_write_b32 a{A_Q+(qs*4+s)*4+k}, v{16+k}")
    p_att.attention_body(g, unit_sc1, sc1=True, fused=fused)

def unit_sc1(u):
    its = uniform_unit(u)
    return [((x[0].replace(" lds", " sc1 lds"), x[1]) if isinstance(x, tuple) else x) for x in its]

tRB, tCB, tAO, tWO, tM0W, tR, tU, tX, tY, tZ, tRB4, tCB4, tT16 = 23, 24, 25, 26, 27, 28, 29, 30, 31, 32, 33, 34, 35
WS_ST = WS_STAT + 0x100000 * 0 + 0x40000
TAG = 0x3f800000
A_ACC, A_AF, V_WF, V_WV, RING, DEPTH = 0, 64, 16, 48, 5, 4
C_ALL = 32
C_PART = 64
WS_PART = 0x1200000

def stat_slot(g, dst, t):
    g(f"s_and_b32 s{dst}, s2, 7", f"s_lshl_b32 s{dst}, s{dst}, 2", f"s_bfe_u32 s{t}, s2, 0x20003", f"s_add_u32 s{dst}, s{dst}, s{t}",
      f"s_lshl_b32 s{dst}, s{dst}, 2", f"s_and_b32 s{t}, s{sWAVE}, 3", f"s_add_u32 s{dst}, s{dst}, s{t}", f"s_lshl_b32 s{dst}, s{dst}, 4",
      f"s_lshr_b32 s{t}, s2, 5", f"s_lshl_b32 s{t}, s{t}, 1", f"s_add_u32 s{dst}, s{dst}, s{t}",
      f"s_lshr_b32 s{t}, s{sWAVE}, 2", f"s_add_u32 s{dst}, s{dst}, s{t}", f"s_lshl_b32 s{dst}, s{dst}, 8", f"s_add_u32 s{dst}, s{dst}, {hex(WS_ST)}")

def spin(g, vdst, srd, soff, target, t1, t2, sleep=None):
    ok, loop = g.newlabel("sok"), g.newlabel("sloop")
    sleep = OPT.get('sleep', 4) if sleep is None else min(sleep, OPT.get('sleep', 4))
    g(f"s_cmp_lg_u32 s{sWAVE}, 0", f"s_cbranch_scc1 {ok}", f"s_mov_b32 s{t2}, 0x40000")
    g.label(loop)
    g(f"buffer_load_dword v{vdst}, off, s[{srd}:{srd+3}], s{soff} sc1", "s_waitcnt vmcnt(0)")
    g(f"v_readfirstlane_b32 s{t1}, v{vdst}", "s_nop 3", f"s_cmp_ge_u32 s{t1}, {target}", f"s_cbranch_scc1 {ok}")
    g(f"s_sleep {sleep}", f"s_sub_u32 s{t2}, s{t2}, 1", f"s_cmp_lg_u32 s{t2}, 0", f"s_cbranch_scc1 {loop}")
    g.label(ok)

def wsplit_setup(g, nks, a_off, a_nks, wname):
    g(f"s_load_dwordx2 s[{S_A}:{S_A+1}], s[0:1], {KA[wname]}")
    setup_dma128(g, 1024, nat=False, v0=V_WV, v1=V_WV+1); setup_tr128(g, nat=False)
    for p in range(1, 4): g(f"v_add_u32 v{V_WV+p}, {p*7168}, v{V_WV}")
    g(f"s_mul_i32 s{tM0W}, s{sWAVE}, {RING*4096}")
    for c in range(4): g(f"v_add_u32 v{V_TR+c}, s{tM0W}, v{V_TR+c}")
    g(f"s_mul_i32 s{tAO}, s{tRB}, {4*a_nks*1024}", f"s_mul_i32 s{tX}, s{sWAVE}, {nks*1024}", f"s_add_u32 s{tAO}, s{tAO}, s{tX}", f"s_add_u32 s{tAO}, s{tAO}, {hex(a_off)}")
    g(f"s_mul_i32 s{tWO}, s{sWAVE}, {nks*32*1024}", f"s_lshl_b32 s{tX}, s{tCB}, 7", f"s_add_u32 s{tWO}, s{tWO}, s{tX}")
    g("s_waitcnt lgkmcnt(0)"); finish_srd(g, S_A, wname)
def ws_wdma(j):
    out = [f"s_add_u32 m0, s{tM0W}, {(j % RING)*4096}", f"s_add_u32 s{tX}, s{tWO}, {j*32*1024}"]
    for p in range(4): out.append((f"buffer_load_dwordx4 v{V_WV+p}, s[{S_A}:{S_A+3}], s{tX} offen offset:{p*1024} lds", ('tW', j)))
    return out
def ws_aload(j, a_nks):
    out = []
    for r in range(4):
        b = A_AF + (j % DEPTH)*16 + r*4
        out += [f"s_add_u32 s{tY}, s{tAO}, {(r*a_nks + j)*1024}", (f"buffer_load_dwordx4 a[{b}:{b+3}], v{V_L16}, s[{S_WS}:{S_WS+3}], s{tY} offen sc1", ('tA', j))]
    return out
def ws_reads(j):
    fb = V_WF + (j & 1)*16
    out = []
    for c in range(4):
        out.append(f"ds_read_b64_tr_b16 v[{fb+4*c}:{fb+4*c+1}], v{V_TR+c} offset:{(j % RING)*4096}")
        out.append(f"ds_read_b64_tr_b16 v[{fb+4*c+2}:{fb+4*c+3}], v{V_TR+c} offset:{(j % RING)*4096+2048}")
    return out
def wsplit_main(g, nks, a_nks, tag, a_off=None):
    for j in range(min(DEPTH, nks)): emit(g, ws_aload(j, a_nks))
    if OPT.get('tact'):
        per = 2 if nks == 16 else 1
        if per == 2:
            g("v_lshrrev_b32 v1, 4, v0", f"v_mul_u32_u24 v1, {a_nks*1024}, v1", "v_bfe_u32 v10, v0, 3, 1", "v_lshl_add_u32 v1, v10, 10, v1", "v_and_b32 v10, 7, v0", "v_lshl_add_u32 v1, v10, 7, v1")
            g(f"s_lshl_b32 s{tX}, s{tCB}, 11", f"s_add_u32 s{tX}, s{tX}, s{tAO}")
        else:
            g("v_lshrrev_b32 v1, 3, v0", f"v_mul_u32_u24 v1, {a_nks*1024}, v1", "v_and_b32 v10, 7, v0", "v_lshl_add_u32 v1, v10, 7, v1",
              f"v_mov_b32 v10, {hex(OOB)}", "v_cmp_gt_u32 vcc, 32, v0", "s_nop 1", "v_cndmask_b32 v1, v10, v1, vcc")
            g(f"s_lshl_b32 s{tX}, s{tCB}, 10", f"s_add_u32 s{tX}, s{tX}, s{tAO}", f"s_cmp_lt_u32 s{tCB}, 7", f"s_cselect_b32 s{tX}, s{tX}, s{sOOB}")
        g.vmem(f"buffer_load_dword v2, v1, s[{S_WS}:{S_WS+3}], s{tX} offen sc1", 'tch')
    g.wait_vm(('tW', 0)); g(ws_reads(0))
    g.stamp(tag + "_first")
    for j in range(nks):
        rd = []
        if j + 1 < nks:
            g.wait_vm(('tW', j + 1)); rd = ws_reads(j + 1)
        g("s_waitcnt lgkmcnt(0)")
        g.wait_vm(('tA', j))
        fb = V_WF + (j & 1)*16
        for m in range(16):
            c, r = m >> 2, m & 3
            d = A_ACC + (c*4 + r)*4; b = A_AF + (j % DEPTH)*16 + r*4
            cin = "0" if j == 0 else f"a[{d}:{d+3}]"
            g(f"v_mfma_f32_16x16x32_bf16 a[{d}:{d+3}], v[{fb+4*c}:{fb+4*c+3}], a[{b}:{b+3}], {cin}")
            if rd and m < 8: g(rd[m])
            if m == 8 and j + DEPTH < nks: emit(g, ws_wdma(j + DEPTH))
        if j + DEPTH < nks: emit(g, ws_aload(j + DEPTH, a_nks))
    g.stamp(tag + "_loop")
    g("s_nop 7", "s_barrier")
    g(f"s_lshl_b32 s{tX}, s{sWAVE}, 14", f"v_add_u32 v10, s{tX}, v{V_L16}")
    for q in range(16): g(f"ds_write_b128 v10, a[{A_ACC+4*q}:{A_ACC+4*q+3}] offset:{q*1024}")
    g(f"s_lshl_b32 s{tX}, s{tU}, 3", f"s_add_u32 s{tX}, s{tX}, s{tR}", f"s_lshl_b32 s{tX}, s{tX}, 10", f"v_add_u32 v10, s{tX}, v{V_L16}", "v_add_u32 v11, 0x10000, v10",
      "s_waitcnt lgkmcnt(0)", "s_barrier")
    for p in range(8):
        a = 10 if p < 4 else 11
        for c in range(2):
            if p == 7 and c == 1: g("s_waitcnt lgkmcnt(8)")
            g(f"ds_read_b128 v[{64+(p*2+c)*4}:{64+(p*2+c)*4+3}], v{a} offset:{(p%4)*16384 + c*4096}")
    g("s_waitcnt lgkmcnt(0)")
    for st in (32, 16, 8):
        for k in range(st): g(f"v_add_f32 v{64+k}, v{64+k}, v{64+k+st}")
    g.stamp(tag + "_red")

def tail(g):
    g("v_mbcnt_lo_u32_b32 v0, -1, 0", "v_mbcnt_hi_u32_b32 v0, -1, v0", f"v_lshlrev_b32 v{V_L16}, 4, v0")
    g(f"s_and_b32 s{tRB}, s2, 7", f"s_lshl_b32 s{tRB}, s{tRB}, 2", f"s_bfe_u32 s{tX}, s2, 0x20003", f"s_add_u32 s{tRB}, s{tRB}, s{tX}", f"s_lshr_b32 s{tCB}, s2, 5")
    g(f"s_and_b32 s{tR}, s{sWAVE}, 3", f"s_lshr_b32 s{tU}, s{sWAVE}, 2")
    kKQ, kRB, kCB, kWR, kWC, kAO, kWO, kM0, kO = 36, 37, 38, 39, 40, 41, 42, 43, 44
    NS3 = 5
    g(f"s_bfe_u32 s{kKQ}, s2, 0x20001", f"s_and_b32 s{kRB}, s2, 1", f"s_lshl_b32 s{kRB}, s{kRB}, 3", f"s_bfe_u32 s{tX}, s2, 0x30003", f"s_add_u32 s{kRB}, s{kRB}, s{tX}", f"s_lshr_b32 s{kCB}, s2, 6")
    g(f"s_and_b32 s{kWR}, s{sWAVE}, 3", f"s_lshr_b32 s{kWC}, s{sWAVE}, 2")
    g(f"s_load_dwordx2 s[{S_A}:{S_A+1}], s[0:1], {KA['wo']}", f"s_load_dwordx2 s[{S_B}:{S_B+1}], s[0:1], {KA['x']}")
    g("v_lshrrev_b32 v14, 4, v0", "v_lshlrev_b32 v3, 10, v14", "v_bfe_u32 v15, v0, 1, 3", "v_xor_b32 v15, v15, v14", "v_and_b32 v10, 1, v0", "v_lshlrev_b32 v10, 4, v10",
      "v_add_u32 v3, v3, v10", "v_xor_b32 v11, 4, v15", "v_lshl_add_u32 v4, v11, 5, v3", "v_lshl_add_u32 v3, v15, 5, v3", f"v_add_u32 v4, {4*1024 - 1024}, v4")
    g("v_lshrrev_b32 v14, 4, v0", "v_bfe_u32 v15, v0, 2, 2", "v_lshl_add_u32 v14, v14, 2, v15", "v_lshlrev_b32 v6, 8, v14", "v_and_b32 v14, 7, v14", "v_lshl_add_u32 v6, v14, 5, v6",
      "v_and_b32 v15, 3, v0", "v_lshl_add_u32 v6, v15, 3, v6", f"s_lshl_b32 s{tX}, s{kWC}, 7", f"v_xor_b32 v6, s{tX}, v6", "v_add_u32 v6, 16384, v6")
    for c in range(1, 4): g(f"v_xor_b32 v{6+c}, {c << 5}, v6")
    g(f"s_lshl_b32 s{tX}, s{kWR}, 12", f"v_add_u32 v10, s{tX}, v{V_L16}")
    g(f"s_lshl_b32 s{kAO}, s{kRB}, 3", f"s_add_u32 s{kAO}, s{kAO}, s{sWAVE}", f"s_lshl_b32 s{kAO}, s{kAO}, 17", f"s_lshl_b32 s{tX}, s{kKQ}, 15", f"s_add_u32 s{kAO}, s{kAO}, s{tX}", f"s_add_u32 s{kAO}, s{kAO}, {hex(WS_CTX)}")
    g(f"s_lshl_b32 s{kWO}, s{kKQ}, 20", f"s_lshl_b32 s{tX}, s{sWAVE}, 13", f"s_add_u32 s{kWO}, s{kWO}, s{tX}", f"s_lshl_b32 s{tX}, s{kCB}, 8", f"s_add_u32 s{kWO}, s{kWO}, s{tX}")
    g(f"s_lshl_b32 s{kM0}, s{sWAVE}, 11")
    g("s_waitcnt lgkmcnt(0)"); finish_srd(g, S_A, 'wo'); finish_srd(g, S_B, 'x')
    def w3(st):
        return [f"s_add_u32 m0, s{kM0}, {(st % NS3)*32768 + 16384}", f"s_add_u32 s{tX}, s{kWO}, {st*64*1024}",
                (f"buffer_load_dwordx4 v3, s[{S_A}:{S_A+3}], s{tX} offen lds", ('3W', st)), (f"buffer_load_dwordx4 v4, s[{S_A}:{S_A+3}], s{tX} offen offset:1024 lds", ('3W', st))]
    def a3(st):
        return [f"s_add_u32 m0, s{kM0}, {(st % NS3)*32768}", f"s_add_u32 s{tX}, s{kAO}, {st*2048}",
                (f"buffer_load_dwordx4 v{V_L16}, s[{S_WS}:{S_WS+3}], s{tX} offen sc1 lds", ('3A', st)), (f"buffer_load_dwordx4 v{V_L16}, s[{S_WS}:{S_WS+3}], s{tX} offen offset:1024 sc1 lds", ('3A', st))]
    g.wait_vm('ctxst'); g("s_barrier")
    cnt_off(g, tX, C_CTX, sI); signal(g, S_WS, ('s', tX), 1, tY)
    for st in range(NS3 - 1): emit(g, w3(st))
    g(f"s_mov_b32 s{tZ}, {C_ALL*4}"); spin(g, 1, S_DBG, tZ, 256, tX, tY)
    g(f"s_sub_u32 s{tY}, 15, s{kRB}", f"s_min_u32 s{tX}, s{kRB}, s{tY}"); cnt_off(g, tZ, C_CTX, tX)
    spin(g, 1, S_WS, tZ, 32, tX, tY)
    g("s_barrier")
    g.stamp("ctx_ok")
    for st in range(NS3 - 1): emit(g, a3(st))
    g(f"s_lshl_b32 s{kO}, s{kCB}, 2", f"s_add_u32 s{kO}, s{kO}, s{kKQ}")
    g("v_and_b32 v12, 7, v0", "v_bfe_u32 v13, v0, 3, 2", "v_lshrrev_b32 v14, 5, v0")
    g(f"s_lshr_b32 s{tX}, s{kO}, 1", f"s_lshl_b32 s{tY}, s{kRB}, 3", f"s_add_u32 s{tT16}, s{tX}, s{tY}", f"s_and_b32 s{tZ}, s{kO}, 1")
    g(f"s_lshl_b32 s{tX}, s{tT16}, 4", f"s_lshl_b32 s{tY}, s{tZ}, 3", f"s_add_u32 s{tX}, s{tX}, s{tY}", f"v_add_u32 v15, s{tX}, v12")
    g(f"s_lshl_b32 s{tX}, s{sWAVE}, 1", f"v_add_u32 v11, s{tX}, v14", "v_lshlrev_b32 v11, 5, v11", "v_lshl_add_u32 v11, v13, 2, v11")
    g("v_lshlrev_b32 v15, 10, v15", "v_lshl_add_u32 v15, v11, 1, v15", "v_lshlrev_b32 v11, 2, v11")
    g(f"s_lshl_b32 s{tY}, s{tZ}, 7", "v_lshlrev_b32 v12, 4, v12", "v_lshl_add_u32 v12, v13, 8, v12", f"v_add_u32 v12, s{tY}, v12")
    g("v_lshl_add_u32 v13, v14, 11, v12", "v_lshl_add_u32 v12, v14, 10, v12")
    g.vmem(f"buffer_load_dwordx2 v[120:121], v15, s[{S_B}:{S_B+3}], 0 offen", 'xr'); g.vmem(f"buffer_load_dwordx2 v[122:123], v15, s[{S_B}:{S_B+3}], 0 offen offset:32", 'xr')
    g(f"s_mov_b32 s{tX}, {hex(WS_MOD + 1024*4)}")
    for k, off in enumerate((0, 64, 2048, 2048+64, 4096, 4096+64)):
        if off >= 4096: g(f"s_mov_b32 s{tX}, {hex(WS_MOD + 2048*4)}"); off -= 4096
        g.vmem(f"buffer_load_dwordx4 v[{96+4*k}:{99+4*k}], v11, s[{S_WS}:{S_WS+3}], s{tX} offen offset:{off} sc1", 'mods')
    def r3(ks):
        kk = ks & 1; fb = 16 + (ks & 1)*24
        out = [f"ds_read_b128 v[{fb+16+4*r}:{fb+16+4*r+3}], v10 offset:{r*2048+kk*1024}" for r in range(2)]
        for c in range(4):
            out.append(f"ds_read_b64_tr_b16 v[{fb+4*c}:{fb+4*c+1}], v{6+c} offset:{kk*8192}")
            out.append(f"ds_read_b64_tr_b16 v[{fb+4*c+2}:{fb+4*c+3}], v{6+c} offset:{kk*8192+4096}")
        return out
    g.wait_vm(('3A', 0)); g("s_barrier")
    g.stamp("k3_first")
    g(r3(0))
    NST = 16
    dq3 = []
    for ks in range(2*NST):
        st, kk = ks >> 1, ks & 1
        if kk == 1 and st + 1 < NST:
            if not OPT.get('k3nodma') or st + 1 < NS3 - 1: g.wait_vm(('3A', st + 1)); g.wait_vm(('3W', st + 1))
            if not OPT.get('k3nobar'): g("s_barrier")
            if st + NS3 - 1 < NST and not OPT.get('k3nodma'): dq3 = [w3(st + NS3 - 1), a3(st + NS3 - 1)]
            d = (((st + 1) % NS3) - (st % NS3)) * 32768
            for v in (6, 7, 8, 9, 10): g(f"v_add_u32 v{v}, {hex(d & 0xffffffff)}, v{v}")
        rd = r3(ks + 1) if ks + 1 < 2*NST else []
        last = not rd
        fb = 16 + (ks & 1)*24
        for m in range(8):
            c, r = m >> 1, m & 1
            if r == 0: g(f"s_waitcnt lgkmcnt({6 if not last else 6 - 2*c - 0 if False else (6 if not last else max(0, 6 - 2*c))})")
            d = 64 + (c*2 + r)*4
            cin = "0" if ks == 0 else f"v[{d}:{d+3}]"
            g(f"v_mfma_f32_16x16x32_bf16 v[{d}:{d+3}], v[{fb+4*c}:{fb+4*c+3}], v[{fb+16+4*r}:{fb+16+4*r+3}], {cin}")
            if rd:
                g(rd.pop(0))
                if m >= 6 and rd: g(rd.pop(0))
            if m in (3, 5) and dq3: emit(g, dq3.pop(0))
    g.stamp("k3_loop")
    g("s_nop 7")
    g(f"s_lshl_b32 s{tX}, s{kKQ}, 7", f"s_lshl_b32 s{tY}, s{kRB}, 3", f"s_add_u32 s{tX}, s{tX}, s{tY}", f"s_lshl_b32 s{tY}, s{kWR}, 1", f"s_add_u32 s{tX}, s{tX}, s{tY}",
      f"s_lshl_b32 s{tX}, s{tX}, 4", f"s_lshl_b32 s{tY}, s{kCB}, 2", f"s_add_u32 s{tX}, s{tX}, s{tY}", f"s_lshl_b32 s{tY}, s{kWC}, 1", f"s_add_u32 s{tX}, s{tX}, s{tY}",
      f"s_lshl_b32 s{tX}, s{tX}, 10", f"s_add_u32 s{tX}, s{tX}, {hex(WS_PART)}")
    for r in range(2):
        for cp in range(2):
            qa, qb = 64 + ((2*cp)*2 + r)*4, 64 + ((2*cp+1)*2 + r)*4
            t = 16 + (r*2 + cp)*4
            g(f"v_cvt_pk_bf16_f32 v{t}, v{qa}, v{qa+1}", f"v_cvt_pk_bf16_f32 v{t+1}, v{qa+2}, v{qa+3}", f"v_cvt_pk_bf16_f32 v{t+2}, v{qb}, v{qb+1}", f"v_cvt_pk_bf16_f32 v{t+3}, v{qb+2}, v{qb+3}")
            g.vmem(f"buffer_store_dwordx4 v[{t}:{t+3}], v{V_L16}, s[{S_WS}:{S_WS+3}], s{tX} offen offset:{cp*1024} sc1", 'pst')
        if r == 0: g(f"s_add_u32 s{tX}, s{tX}, 16384")
    g.wait_vm('pst'); g("s_barrier")
    cnt_off(g, tX, C_PART, kRB); signal(g, S_WS, ('s', tX), 1, tY)
    cnt_off(g, tY, C_PART, kRB); g(f"s_mov_b32 s{kAO}, s{tY}"); spin(g, 1, S_WS, kAO, 16, tX, tY, sleep=2)
    g("s_barrier")
    g.stamp("part_ok")
    g(f"s_lshl_b32 s{tX}, s{tT16}, 14", f"s_lshl_b32 s{tY}, s{sWAVE}, 11", f"s_add_u32 s{tX}, s{tX}, s{tY}", f"s_add_u32 s{tX}, s{tX}, {hex(WS_PART)}")
    for q in range(4):
        g.vmem(f"buffer_load_dwordx4 v[{16+4*q}:{19+4*q}], v12, s[{S_WS}:{S_WS+3}], s{tX} offen sc1", ('pl', q))
        if q < 3: g(f"s_add_u32 s{tX}, s{tX}, {128*16384}")
    for q in range(4):
        g.wait_vm(('pl', q))
        for d in range(4):
            if q == 0: g(f"v_lshlrev_b32 v{64+2*d}, 16, v{16+d}", f"v_and_b32 v{65+2*d}, 0xffff0000, v{16+d}")
            else: g(f"v_lshlrev_b32 v72, 16, v{16+4*q+d}", f"v_and_b32 v73, 0xffff0000, v{16+4*q+d}", f"v_add_f32 v{64+2*d}, v{64+2*d}, v72", f"v_add_f32 v{65+2*d}, v{65+2*d}, v73")
    for c in range(2):
        g(f"v_lshlrev_b32 v72, 16, v{120+2*c}", f"v_and_b32 v73, 0xffff0000, v{120+2*c}", f"v_lshlrev_b32 v74, 16, v{121+2*c}", f"v_and_b32 v75, 0xffff0000, v{121+2*c}")
        for k in range(4): g(f"v_fma_f32 v{64+4*c+k}, v{64+4*c+k}, v{96+4*c+k}, v{72+k}")
    g(f"s_lshl_b32 s{tX}, s{tT16}, 15", f"s_lshl_b32 s{tY}, s{sWAVE}, 12", f"s_add_u32 s{tX}, s{tX}, s{tY}", f"s_add_u32 s{tX}, s{tX}, {hex(WS_X1)}")
    g.vmem(f"buffer_store_dwordx4 v[64:67], v13, s[{S_WS}:{S_WS+3}], s{tX} offen sc1", 'x1st'); g.vmem(f"buffer_store_dwordx4 v[68:71], v13, s[{S_WS}:{S_WS+3}], s{tX} offen offset:1024 sc1", 'x1st')
    def red8(v, t):
        g("s_nop 1", f"v_add_f32_dpp v{v}, v{v}, v{v} row_ror:8 row_mask:0xf bank_mask:0xf")
        cross_g(g, v, t, "v_add_f32")
    g("v_add_f32 v72, v64, v65", "v_add_f32 v73, v66, v67", "v_add_f32 v74, v68, v69", "v_add_f32 v75, v70, v71", "v_add_f32 v72, v72, v73", "v_add_f32 v74, v74, v75", "v_add_f32 v72, v72, v74")
    red8(72, 73)
    g("v_mul_f32 v72, 0x3c800000, v72")
    g("v_sub_f32 v74, v64, v72", "v_mul_f32 v73, v74, v74")
    for k in range(1, 8): g(f"v_sub_f32 v74, v{64+k}, v72", "v_fmac_f32 v73, v74, v74")
    red8(73, 74)
    g("v_and_b32 v74, 7, v0", "v_lshlrev_b32 v74, 6, v74", f"s_lshl_b32 s{tX}, s{sWAVE}, 3", f"v_add_u32 v75, s{tX}, v74", "ds_write_b64 v75, v[72:73]", "s_waitcnt lgkmcnt(0)", "s_barrier")
    for q in range(4): g(f"ds_read_b128 v[{76+4*q}:{79+4*q}], v74 offset:{q*16}")
    g("s_waitcnt lgkmcnt(0)")
    g("v_add_f32 v72, v76, v78", "v_add_f32 v73, v80, v82", "v_add_f32 v72, v72, v73", "v_add_f32 v73, v84, v86", "v_add_f32 v72, v72, v73", "v_add_f32 v73, v88, v90", "v_add_f32 v72, v72, v73")
    g("v_mul_f32 v72, 0.125, v72" if False else "v_mul_f32 v72, 0x3e000000, v72")
    g("v_add_f32 v73, v77, v79")
    for q in range(2, 8): g(f"v_add_f32 v73, v73, v{77+2*q}")
    for q in range(8): g(f"v_sub_f32 v74, v{76+2*q}, v72", "v_mul_f32 v75, v74, v74", "v_fmac_f32 v73, 0x42800000, v75")
    g("v_mov_b32 v74, 0x3727c5ac", "v_fmac_f32 v74, 0x3b000000, v73", "v_rsq_f32 v74, v74", "s_nop 0")
    for k in range(8): g(f"v_sub_f32 v{64+k}, v{64+k}, v72")
    for k in range(8): g(f"v_mul_f32 v{64+k}, v{64+k}, v74")
    for k in range(8): g(f"v_add_f32 v{112+k}, 1.0, v{112+k}")
    for k in range(8): g(f"v_fma_f32 v{64+k}, v{64+k}, v{112+k}, v{104+k}")
    for k in range(4): g(f"v_cvt_pk_bf16_f32 v{72+k}, v{64+2*k}, v{65+2*k}")
    g(f"s_lshl_b32 s{tX}, s{tT16}, 14", f"s_lshl_b32 s{tY}, s{sWAVE}, 11", f"s_add_u32 s{tX}, s{tX}, s{tY}", f"s_add_u32 s{tX}, s{tX}, {hex(WS_H2)}")
    g.vmem(f"buffer_store_dwordx4 v[72:75], v12, s[{S_WS}:{S_WS+3}], s{tX} offen sc1", 'h2st')
    g(f"s_lshr_b32 s{kO}, s{kRB}, 1")
    g.stamp("stats_ok")
    LK5 = g.newlabel("k5")
    g(f"s_load_dwordx2 s[{S_A}:{S_A+1}], s[0:1], {KA['wg']}", f"s_load_dwordx2 s[{S_B}:{S_B+1}], s[0:1], {KA['wu']}")
    g(f"s_and_b32 s{tRB4}, s2, 1", f"s_lshl_b32 s{tRB4}, s{tRB4}, 2", f"s_bfe_u32 s{tX}, s2, 0x20003", f"s_add_u32 s{tRB4}, s{tRB4}, s{tX}",
      f"s_bfe_u32 s{tCB4}, s2, 0x20001", f"s_mul_i32 s{tCB4}, s{tCB4}, 7", f"s_lshr_b32 s{tX}, s2, 5", f"s_add_u32 s{tCB4}, s{tCB4}, s{tX}")
    g(f"s_lshl_b32 s{tT16}, s{tRB4}, 4", f"s_lshl_b32 s{tX}, s{sWAVE}, 1", f"s_add_u32 s{tT16}, s{tT16}, s{tX}")
    setup_dma128(g, 3584, nat=False); setup_tr128(g, nat=False)
    g(f"s_mul_i32 s{sWB}, s{sWAVE}, {16*3584}", f"s_lshl_b32 s{tX}, s{tCB4}, 7", f"s_add_u32 s{sWB}, s{sWB}, s{tX}", f"s_lshl_b32 s{sM0B}, s{sWAVE}, 11")
    g("s_waitcnt lgkmcnt(0)"); finish_srd(g, S_A, 'wg'); finish_srd(g, S_B, 'wu')
    def dma4(c):
        j, q = c >> 2, c & 3
        srd = S_A if j == 0 else S_B
        return [f"s_add_u32 s{tX}, s{sWB}, {hex(q*128*3584)}", f"s_add_u32 m0, s{sM0B}, {hex(c*16384)}",
                (f"buffer_load_dwordx4 v{V_W0}, s[{srd}:{srd+3}], s{tX} offen lds", ('W', c)),
                (f"buffer_load_dwordx4 v{V_W1}, s[{srd}:{srd+3}], s{tX} offen offset:1024 lds", ('W', c))]
    g.wait_vm('h2st'); g("s_barrier")
    cnt_off(g, tX, C_H2, 44); signal(g, S_WS, ('s', tX), 1, tY)
    g("s_cmp_ge_u32 s2, 224", f"s_cbranch_scc1 {LK5}")
    for c in range(4): emit(g, dma4(c))
    cnt_off(g, tZ, C_H2, tRB4); spin(g, 1, S_WS, tZ, 32, tX, tY)
    g("s_barrier")
    g.stamp("h2_ok")
    g.vm = [('W', c) for c in range(4) for _ in range(2)]
    def hload4(s4):
        out = []
        for t in range(2):
            out.append(f"s_lshl_b32 s{tX}, s{tT16}, 14"); out.append(f"s_add_u32 s{tX}, s{tX}, {hex(WS_H2 + t*16384 + s4*4096)}")
            for k in range(4):
                s = s4*4 + k
                out.append((f"buffer_load_dwordx4 a[{(s*2+t)*4}:{(s*2+t)*4+3}], v{V_L16}, s[{S_WS}:{S_WS+3}], s{tX} offen offset:{k*1024} sc1", ('H', s4)))
        return out
    emit(g, hload4(0)); emit(g, hload4(1))
    if OPT.get('th2'):
        g(f"s_lshr_b32 s{tX}, s2, 5", f"s_mul_i32 s{tX}, s{tX}, 20", f"v_add_u32 v1, s{tX}, v0", "v_lshrrev_b32 v11, 6, v1", "v_lshlrev_b32 v11, 14, v11", "v_and_b32 v10, 63, v1",
          "v_lshl_add_u32 v11, v10, 7, v11", "v_cmp_gt_u32 vcc, 20, v0", f"v_mov_b32 v10, {hex(OOB)}", "s_nop 0", "v_cndmask_b32 v11, v10, v11, vcc",
          "v_cmp_gt_u32 vcc, 128, v1", "s_nop 1", "v_cndmask_b32 v11, v10, v11, vcc")
        g(f"s_lshl_b32 s{tX}, s{tT16}, 14", f"s_add_u32 s{tX}, s{tX}, {hex(WS_H2 + 8192)}")
        g.vmem(f"buffer_load_dword v2, v11, s[{S_WS}:{S_WS+3}], s{tX} offen sc1", 'tch')
    g.wait_vm(('W', 0)); g("s_barrier")
    def hook(ks, where):
        if where == 'pre':
            if ks == 0: emit(g, hload4(2))
            if ks == 2: emit(g, hload4(3))
            if ks < 16 and ks % 4 == 0: g.wait_vm(('H', ks // 4))
        return False
    p_kv.gemm_res_loop(g, 2, list(range(8)), {0: [4, 5], 1: [6], 2: [7]}, dma4, lambda j: True, None, hook, second=2048)
    g.stamp("k4_loop")
    g("s_nop 7", f"s_mov_b32 s{tY}, {hex(LOG2E)}")
    for i in range(32):
        g(f"v_mul_f32 v{16+(i%16)}, s{tY}, v{64+i}")
        if i % 16 == 15:
            b = i - 15
            for k in range(16): g(f"v_exp_f32 v{16+k}, -v{16+k}")
            for k in range(16): g(f"v_add_f32 v{16+k}, 1.0, v{16+k}")
            for k in range(16): g(f"v_rcp_f32 v{16+k}, v{16+k}")
            for k in range(16): g(f"v_mul_f32 v{64+b+k}, v{64+b+k}, v{96+b+k}")
            for k in range(16): g(f"v_mul_f32 v{64+b+k}, v{64+b+k}, v{16+k}")
    g(f"s_mul_i32 s{tX}, s{tT16}, {56*1024}", f"s_lshl_b32 s{tY}, s{tCB4}, 11", f"s_add_u32 s{tX}, s{tX}, s{tY}", f"s_add_u32 s{tX}, s{tX}, {hex(WS_ACT)}")
    for t in range(2):
        for u in range(2):
            a = 64 + (t*4 + 2*u)*4
            for k in range(4): g(f"v_cvt_pk_bf16_f32 v{a+k}, v{a+2*k}, v{a+2*k+1}")
            g.vmem(f"buffer_store_dwordx4 v[{a}:{a+3}], v{V_L16}, s[{S_WS}:{S_WS+3}], s{tX} offen offset:{u*1024} sc1", 'actst')
        if t == 0: g(f"s_add_u32 s{tX}, s{tX}, {56*1024}")
    g("s_waitcnt vmcnt(0)", "s_barrier")
    cnt_off(g, tX, C_ACT, tRB4); signal(g, S_WS, ('s', tX), 1, tY)
    g.label(LK5)
    g.vm = []
    g.stamp("k5_entry")
    wsplit_setup(g, 7, WS_ACT, 56, 'wd')
    for j in range(DEPTH): emit(g, ws_wdma(j))
    if OPT.get('twd'):
        g(f"s_and_b32 s{tX}, s{tRB}, 3", f"s_mul_i32 s{tX}, s{tX}, 7", f"s_add_u32 s{tX}, s{tX}, s{sWAVE}", f"s_lshl_b32 s{tX}, s{tX}, 16", f"s_lshl_b32 s{tY}, s{tCB}, 7",
          f"s_add_u32 s{tX}, s{tX}, s{tY}", f"s_cmp_lt_u32 s{sWAVE}, 7", f"s_cselect_b32 s{tX}, s{tX}, s{sOOB}", "v_lshlrev_b32 v1, 10, v0")
        g.vmem(f"buffer_load_dword v2, v1, s[{S_A}:{S_A+3}], s{tX} offen", 'tch')
    X1LOAD = True
    g(f"s_lshl_b32 s{tX}, s{tCB}, 6", f"s_lshl_b32 s{tY}, s{tU}, 5", f"s_add_u32 s{tX}, s{tX}, s{tY}", "v_lshrrev_b32 v15, 4, v0", "v_lshlrev_b32 v15, 2, v15", f"v_add_u32 v15, s{tX}, v15")
    g("v_lshlrev_b32 v13, 2, v15", f"s_mov_b32 s{tX}, {hex(WS_MOD + 2560*4)}")
    g.vmem(f"buffer_load_dwordx4 v[60:63], v13, s[{S_WS}:{S_WS+3}], s{tX} offen sc1", 'gb'); g.vmem(f"buffer_load_dwordx4 v[12:15], v13, s[{S_WS}:{S_WS+3}], s{tX} offen offset:64 sc1", 'gb')
    g(f"s_load_dwordx2 s[{S_B}:{S_B+1}], s[0:1], {KA['out']}")
    g(f"s_lshr_b32 s{tX}, s{tRB}, 2"); cnt_off(g, tZ, C_ACT, tX); spin(g, 1, S_WS, tZ, 28, tX, tY)
    g("s_waitcnt lgkmcnt(0)"); finish_srd(g, S_B, 'out')
    g("s_barrier")
    g.stamp("act_ok")
    g(f"s_lshl_b32 s{tX}, s{tRB}, 2", f"s_add_u32 s{tX}, s{tX}, s{tR}", f"s_lshl_b32 s{tX}, s{tX}, 4", f"s_lshl_b32 s{tY}, s{tCB}, 1", f"s_add_u32 s{tX}, s{tX}, s{tY}",
      f"s_add_u32 s{tX}, s{tX}, s{tU}", f"s_lshl_b32 s{tX}, s{tX}, 11", f"s_add_u32 s{tX}, s{tX}, {hex(WS_X1)}")
    g.vmem(f"buffer_load_dwordx4 v[52:55], v{V_L16}, s[{S_WS}:{S_WS+3}], s{tX} offen sc1", 'x1l'); g.vmem(f"buffer_load_dwordx4 v[56:59], v{V_L16}, s[{S_WS}:{S_WS+3}], s{tX} offen offset:1024 sc1", 'x1l')
    wsplit_main(g, 7, 56, "k5")
    for k in range(4): g(f"v_fma_f32 v{64+k}, v{64+k}, v{60+k}, v{52+k}")
    for k in range(4): g(f"v_fma_f32 v{68+k}, v{68+k}, v{12+k}, v{56+k}")
    for k in range(4): g(f"v_cvt_pk_bf16_f32 v{16+k}, v{64+2*k}, v{65+2*k}")
    g(f"s_lshl_b32 s{tX}, s{tRB}, 6", f"s_lshl_b32 s{tY}, s{tR}, 4", f"s_add_u32 s{tX}, s{tX}, s{tY}", "v_and_b32 v20, 15, v0", f"v_add_u32 v20, s{tX}, v20")
    g(f"s_lshl_b32 s{tX}, s{tCB}, 6", f"s_lshl_b32 s{tY}, s{tU}, 5", f"s_add_u32 s{tX}, s{tX}, s{tY}", "v_lshrrev_b32 v21, 4, v0", "v_lshlrev_b32 v21, 2, v21", f"v_add_u32 v21, s{tX}, v21")
    g("v_lshlrev_b32 v20, 10, v20", "v_lshl_add_u32 v20, v21, 1, v20")
    g(f"buffer_store_dwordx2 v[16:17], v20, s[{S_B}:{S_B+3}], 0 offen", f"buffer_store_dwordx2 v[18:19], v20, s[{S_B}:{S_B+3}], 0 offen offset:32")
    if Gen.STAMP:
        g("s_waitcnt vmcnt(0)"); g.stamp("end"); g.dump_stamps(sWAVE, 2)

def tail_code_touch(g):
    lsk = g.newlabel("noct2")
    g(f"s_cmp_lg_u32 s{sWAVE}, 0", f"s_cbranch_scc1 {lsk}", f"s_lshr_b32 s{sT1}, s2, 3", "v_mbcnt_lo_u32_b32 v0, -1, 0", "v_mbcnt_hi_u32_b32 v0, -1, v0")
    code_touch(g, 'mega_kernel', sT1, 2, 3, 16, 18, 56)
    g.label(lsk)

def mega(g):
    if OPT.get('ctouch2'): OPT['hook_fin'] = tail_code_touch
    front(g, fused=True)
    tail(g)
```

```python
from core import *
import p_kv
from p_kv import emit, V_W0, V_W1, V_L16, V_TR, V_FR, V_ACC, setup_dma128, setup_tr128, gemm_res_loop

V_CUR, V_NXT, V_L0, V_L1 = 1, 2, 3, 4
V_NEG = 8
V_S = 16
V_P = 48
V_O = 64
A_Q = 0
A_F = 32
S_WQ, S_WS = 4, 8
sWAVE, sHEAD, sI, sISA, sSUB, sT16, sNB2, sNA2, sT, sCNT = 20, 21, 22, 23, 24, 25, 26, 27, 28, 29
sKF, sVF, sNAo, sNBo, sA4, sKO, sVO, sM0K, sT1, sT2, sT3, sSLOT, sRESTART = 30, 31, 32, 33, 34, 35, 36, 37, 38, 39, 40, 41, 42
sMASK = 44
sWB, sM0B = 52, 53
LDS_FLAG = 0x20000
OPT = {}
SC1 = ''

def fr(i, n=8): return f"a[{A_F+4*(i%n)}:{A_F+4*(i%n)+3}]"
def Sreg(buf, qs, kb): return V_S + buf*16 + (qs*2+kb)*4
def v4(b): return f"v[{b}:{b+3}]"

def reads_for(gi):
    a = V_CUR if (gi < 16 or OPT.get('oneaddr', 1)) else V_NXT
    gg = gi % 16
    it, t = gg >> 3, gg & 7
    return (f"ds_read_b128 {fr(2*gi)}, v{a} offset:{it*8192 + t*1024}",
            f"ds_read_b128 {fr(2*gi+1)}, v{a} offset:{16384 + it*8192 + t*1024}")

def gen_iter(g, it, qk, sm, pv, prev_sm, czero=False, dmas=None, lookahead=True, loopctl=False):
    dmas = dmas or {}
    Sc = V_S + (1-it)*16
    Sp = V_S + it*16
    Pn = V_P + (1-it)*8; Pp = V_P + it*8
    for t in range(8):
        gi = it*8 + t
        kb, s = t >> 2, t & 3
        kf, vf = fr(2*gi), fr(2*gi+1)
        M = [None]*4
        if qk:
            for qs in range(2):
                d = Sreg(it, qs, kb)
                c = ("0" if czero else v4(V_NEG+4*qs)) if s == 0 else v4(d)
                M[qs] = f"v_mfma_f32_16x16x32_bf16 {v4(d)}, {kf}, a[{A_Q+(qs*4+s)*4}:{A_Q+(qs*4+s)*4+3}], {c}"
        if pv:
            for qs in range(2):
                d = V_O + (qs*8+t)*4
                M[2+qs] = f"v_mfma_f32_16x16x32_bf16 {v4(d)}, {vf}, {v4(Pp+4*qs)}, {v4(d)}"
        E0 = E1 = C = A0 = A1 = None
        if sm:
            E0, E1 = f"v_exp_f32 v{Sc+2*t}, v{Sc+2*t}", f"v_exp_f32 v{Sc+2*t+1}, v{Sc+2*t+1}"
        if t > 0 and sm:
            p0 = Sc + 2*(t-1); lq = V_L0 + ((t-1) >> 2); dst = Pn + t-1
        elif t == 0 and prev_sm:
            p0 = Sp + 14; lq = V_L1; dst = Pp + 7
        else:
            p0 = None
        if p0 is not None:
            C = f"v_cvt_pk_bf16_f32 v{dst}, v{p0}, v{p0+1}"
            A0, A1 = f"v_add_f32 v{lq}, v{lq}, v{p0}", f"v_add_f32 v{lq}, v{lq}, v{p0+1}"
        R0 = R1 = None
        pre = []
        if lookahead or gi + 2 < 16:
            R0, R1 = reads_for(gi + 2)
        if OPT.get('oneaddr', 1) and lookahead:
            if gi == 12: pre = [f"s_add_u32 s{sSLOT}, s{sSLOT}, 32768"]
            if gi == 13: pre = [f"s_and_b32 s{sSLOT}, s{sSLOT}, 0x1ffff"]
        if loopctl and gi == 10: pre = pre + [f"s_sub_u32 s{sCNT}, s{sCNT}, 1"]
        D = dmas.get(gi, [])
        W = "s_waitcnt lgkmcnt(2)" if (R0 is not None) else "s_waitcnt lgkmcnt(0)"
        if OPT.get('oneaddr', 1) and lookahead and gi == 14:
            g(f"v_add_u32 v{V_CUR}, s{sSLOT}, v{V_L16}")
        seq = [M[0], R0, E0, M[1], R1, C, M[2]] + pre
        g([x for x in seq if x])
        emit(g, D)
        if t == 0 and prev_sm and E1 is None and not D: g("s_nop 1")
        g([x for x in [E1, M[3]] if x])
        g(W)
        g([x for x in [A0, A1] if x])
        if not pv and t == 0 and prev_sm: pass

def unit_addr(g):
    g(f"s_add_u32 s{sT1}, s{sT}, 3", f"s_lshl_b32 s{sKO}, s{sT1}, 14", f"s_sub_u32 s{sVO}, s{sKO}, 16384",
      f"s_sub_u32 s{sT2}, s{sT1}, s{sNB2}", f"s_sub_u32 s{sT2}, s{sT2}, 1",
      f"s_bitcmp1_b32 s{sT2}, 0", f"s_cselect_b32 s{sT3}, s{sNAo}, s{sNBo}",
      f"s_and_b32 s{sT2}, s{sT2}, 2", f"s_lshl_b32 s{sT2}, s{sT2}, 13", f"s_add_u32 s{sT3}, s{sT3}, s{sT2}",
      f"s_cmp_le_u32 s{sT1}, s{sNB2}", f"s_cselect_b32 s{sKO}, s{sKO}, s{sT3}", f"s_cselect_b32 s{sVO}, s{sVO}, s{sT3}",
      f"s_add_u32 s{sKO}, s{sKO}, s{sKF}", f"s_add_u32 s{sVO}, s{sVO}, s{sVF}",
      f"s_and_b32 s{sT1}, s{sT1}, 3", f"s_lshl_b32 s{sT1}, s{sT1}, 15", f"s_add_u32 s{sM0K}, s{sT1}, s{sA4}")

def unit_dma_list():
    d = {}
    for k in range(4):
        d[k] = ([f"s_mov_b32 m0, s{sM0K}", "s_nop 0"] if k == 0 else []) + [(f"buffer_load_dwordx4 v{V_L16}, s[{S_WS}:{S_WS+3}], s{sKO} offen offset:{k*1024}{SC1} lds", 'U')]
        d[4+k] = ([f"s_add_u32 m0, s{sM0K}, 16384", "s_nop 0"] if k == 0 else []) + [(f"buffer_load_dwordx4 v{V_L16}, s[{S_WS}:{S_WS+3}], s{sVO} offen offset:{k*1024}{SC1} lds", 'U')]
    return d

def step_begin(g, isA):
    if isA: g("s_waitcnt vmcnt(8)")
    g("s_barrier")
    if isA: unit_addr(g)

def step_addr_advance(g):
    if OPT.get('oneaddr', 1): return
    g(f"v_mov_b32 v{V_CUR}, v{V_NXT}", f"s_add_u32 s{sSLOT}, s{sSLOT}, 32768", f"s_and_b32 s{sSLOT}, s{sSLOT}, 0x1ffff",
      f"v_add_u32 v{V_NXT}, s{sSLOT}, v{V_L16}")

def uniform_unit(u):
    kblk, vblk = 2*u, max(2*u-2, 0)
    items = [f"s_add_u32 s{sKO}, s{sKF}, {kblk*8192}", f"s_add_u32 s{sVO}, s{sVF}, {vblk*8192}",
             f"s_cmp_eq_u32 s{sISA}, 0", f"s_cselect_b32 s{sKO}, s{sKO}, s{sVO}",
             f"s_lshl_b32 s{sT1}, s{sISA}, 14", f"s_add_u32 s{sT1}, s{sT1}, s{sA4}", f"s_add_u32 m0, s{sT1}, {u*32768}", "s_nop 0"]
    for k in range(4):
        items.append((f"buffer_load_dwordx4 v{V_L16}, s[{S_WS}:{S_WS+3}], s{sKO} offen offset:{k*1024} lds", ('U', u)))
    return items

def cross_g(g, v, t, op):
    g(f"v_mov_b32 v{t}, v{v}", "s_nop 1", f"v_permlane16_swap_b32 v{v}, v{t}", f"{op} v{v}, v{v}, v{t}")
    g(f"v_mov_b32 v{t}, v{v}", "s_nop 1", f"v_permlane32_swap_b32 v{v}, v{t}", f"{op} v{v}, v{v}, v{t}")

def diag_block(g, masked, maxonly=False, addr=V_CUR, noV=False):
    for t in range(8):
        g(f"ds_read_b128 {fr(t,16)}, v{addr} offset:{t*1024}")
    if not maxonly:
        for t in range(7):
            g(f"ds_read_b128 {fr(8+t,16)}, v{addr} offset:{16384+t*1024}")
        g("s_waitcnt lgkmcnt(7)")
    else:
        g("s_waitcnt lgkmcnt(0)")
    for t in range(8):
        kb, s = t >> 2, t & 3
        for qs in range(2):
            if masked and qs == 0 and kb == 1: continue
            d = Sreg(0, qs, kb)
            c = ("0" if maxonly else v4(V_NEG+4*qs)) if s == 0 else v4(d)
            g(f"v_mfma_f32_16x16x32_bf16 {v4(d)}, {fr(t,16)}, a[{A_Q+(qs*4+s)*4}:{A_Q+(qs*4+s)*4+3}], {c}")
    if not maxonly: g(f"ds_read_b128 {fr(15,16)}, v{addr} offset:{16384+7*1024}")
    g("s_nop 7")
    regs = [(qs, kb, r) for qs in range(2) for kb in range(2) for r in range(4)]
    if maxonly:
        for qs, kb, r in regs:
            if masked and qs == 0 and kb == 1: continue
            x = Sreg(0, qs, kb) + r
            if masked and qs == kb:
                g(f"v_cndmask_b32 v{x}, v{V_L0}, v{x}, s[{sMASK+2*r}:{sMASK+2*r+1}]")
            g(f"v_max_f32 v{6+qs}, v{6+qs}, v{x}")
        return
    for qs, kb, r in regs:
        x = Sreg(0, qs, kb) + r
        if masked and qs == 0 and kb == 1: continue
        g(f"v_exp_f32 v{x}, v{x}")
    g("s_nop 0")
    for qs, kb, r in regs:
        x = Sreg(0, qs, kb) + r
        if masked and qs == 0 and kb == 1: continue
        if masked and qs == kb:
            g(f"v_cndmask_b32 v{x}, 0, v{x}, s[{sMASK+2*r}:{sMASK+2*r+1}]")
        g(f"v_add_f32 v{V_L0+qs}, v{V_L0+qs}, v{x}")
    for x in range(8):
        if masked and x in (2, 3): g(f"v_mov_b32 v{V_P+x}, 0")
        else: g(f"v_cvt_pk_bf16_f32 v{V_P+x}, v{V_S+2*x}, v{V_S+2*x+1}")
    g("s_waitcnt lgkmcnt(0)", "s_nop 0")
    for t in range(8):
        for qs in range(2):
            d = V_O + (qs*8+t)*4
            g(f"v_mfma_f32_16x16x32_bf16 {v4(d)}, {fr(8+t,16)}, {v4(V_P+4*qs)}, {v4(d)}")

def phase_att(g):
    g(f"s_load_dwordx2 s[4:5], s[0:1], {KA['wq']}", f"s_load_dwordx2 s[8:9], s[0:1], {KA['ws']}")
    g("v_lshrrev_b32 v14, 6, v0", "v_and_b32 v0, 63, v0", "s_nop 0", f"v_readfirstlane_b32 s{sWAVE}, v14")
    g(f"s_and_b32 s{sHEAD}, s2, 7", f"s_lshl_b32 s{sHEAD}, s{sHEAD}, 2", f"s_bfe_u32 s{sT1}, s2, 0x20003", f"s_add_u32 s{sHEAD}, s{sHEAD}, s{sT1}")
    g(f"s_lshr_b32 s{sI}, s2, 5", f"s_lshr_b32 s{sISA}, s{sWAVE}, 2")
    g(f"s_sub_u32 s{sT1}, 7, s{sWAVE}", f"s_sub_u32 s{sT2}, 15, s{sI}", f"s_cmp_eq_u32 s{sISA}, 0",
      f"s_cselect_b32 s{sSUB}, s{sWAVE}, s{sT1}", f"s_cselect_b32 s{sT3}, s{sT2}, s{sI}")
    g(f"s_lshl_b32 s{sT16}, s{sT3}, 3", f"s_lshl_b32 s{sT1}, s{sSUB}, 1", f"s_add_u32 s{sT16}, s{sT16}, s{sT1}")
    g(f"s_lshl_b32 s{sNB2}, s{sT2}, 1", f"s_lshl_b32 s{sNA2}, s{sI}, 1",
      f"s_lshl_b32 s{sNBo}, s{sT2}, 15", f"s_lshl_b32 s{sNAo}, s{sI}, 15")
    g(f"s_and_b32 s{sA4}, s{sWAVE}, 3", f"s_lshl_b32 s{sA4}, s{sA4}, 12")
    g(f"s_lshl_b32 s{sT1}, s{sHEAD}, 19", f"s_add_u32 s{sT1}, s{sT1}, s{sA4}",
      f"s_add_u32 s{sKF}, s{sT1}, {hex(WS_KF)}", f"s_add_u32 s{sVF}, s{sT1}, {hex(WS_VF)}")
    setup_dma128(g, 8192); setup_tr128(g)
    g(f"v_lshlrev_b32 v{V_L16}, 4, v0")
    g(f"s_lshl_b32 s{sWB}, s{sWAVE}, 17", f"s_lshl_b32 s{sT1}, s{sHEAD}, 8", f"s_add_u32 s{sWB}, s{sWB}, s{sT1}", f"s_lshl_b32 s{sM0B}, s{sWAVE}, 11")
    g("v_lshrrev_b32 v14, 4, v0", "v_lshlrev_b32 v14, 2, v14", "v_and_b32 v15, 15, v0")
    for r in range(4):
        g(f"v_cmp_le_u32 s[{sMASK+2*r}:{sMASK+2*r+1}], v14, v15")
        if r < 3: g("v_add_u32 v14, 1, v14")
    g(f"s_mov_b32 s{sRESTART}, 0")
    g("s_waitcnt lgkmcnt(0)")
    p_kv.finish_srd(g, S_WQ, 'wq'); p_kv.finish_srd(g, S_WS, 'ws')
    def dma(c):
        j, q = c >> 2, c & 3
        return [f"s_add_u32 s{sT1}, s{sWB}, {hex(q*0x100000 + j*128)}", f"s_add_u32 m0, s{sM0B}, {hex(c*16384)}",
                (f"buffer_load_dwordx4 v{V_W0}, s[{S_WQ}:{S_WQ+3}], s{sT1} offen lds", ('W', c)),
                (f"buffer_load_dwordx4 v{V_W1}, s[{S_WQ}:{S_WQ+3}], s{sT1} offen offset:1024 lds", ('W', c))]
    def hload(s4):
        out = []
        for t in range(2):
            out.append(f"s_lshl_b32 s{sT1}, s{sT16}, 14")
            out.append(f"s_add_u32 s{sT1}, s{sT1}, {hex(WS_H + t*16384 + s4*4096)}")
            for k in range(4):
                s = s4*4 + k
                out.append((f"buffer_load_dwordx4 a[{(s*2+t)*4}:{(s*2+t)*4+3}], v{V_L16}, s[{S_WS}:{S_WS+3}], s{sT1} offen offset:{k*1024}", ('H', s4)))
        return out
    g.stamp("att_entry")
    emit(g, dma(0)); emit(g, hload(0)); emit(g, dma(1)); emit(g, hload(1)); emit(g, dma(2)); emit(g, hload(2)); emit(g, hload(3))
    for c in range(3, 8): emit(g, dma(c))
    g.wait_vm(('W', 0)); g("s_waitcnt lgkmcnt(0)", "s_barrier")
    g.stamp("q_w0")
    def hook(ks, where):
        if where == 'pre' and ks < 16 and ks % 4 == 0: g.wait_vm(('H', ks // 4))
        if where == 'barrier':
            if ks == 10: emit(g, uniform_unit(0))
            if ks == 18: emit(g, uniform_unit(1))
            if ks == 26: emit(g, uniform_unit(2))
        return False
    gemm_res_loop(g, 2, list(range(8)), {}, dma, lambda j: True, None, hook)
    g.stamp("q_done")
    g("s_nop 7")
    for qs in range(2):
        for s in range(4):
            j, u = s >> 1, s & 1
            a = V_ACC + j*32 + (qs*4 + 2*u)*4; b = a + 4
            for k, (x, y) in enumerate(((a, a+1), (a+2, a+3), (b, b+1), (b+2, b+3))):
                g(f"v_cvt_pk_bf16_f32 v{16+k}, v{x}, v{y}")
            for k in range(4):
                g(f"v_accvgpr_write_b32 a{A_Q+(qs*4+s)*4+k}, v{16+k}")
    attention_body(g, uniform_unit)

def attention_body(g, unit_fn, sc1=False, fused=False):
    global SC1
    SC1 = ' sc1' if (sc1 and not OPT.get('unit_nosc1')) else ''
    L_START = g.newlabel("att_start")
    g.label(L_START)
    g.vm = [('U', 0)]*4 + [('U', 1)]*4 + [('U', 2)]*4
    if not OPT.get('nopf'):
        for k, n in enumerate(('wo', 'wg', 'wu', 'wd')): g(f"s_load_dwordx2 s[{88+2*k}:{89+2*k}], s[0:1], {KA[n]}")
    for r in range(64): g(f"v_mov_b32 v{V_O+r}, 0")
    g(f"v_mov_b32 v{V_L0}, 0", f"v_mov_b32 v{V_L1}, 0")
    if OPT.get('oneaddr', 1): g(f"v_mov_b32 v{V_CUR}, v{V_L16}", f"s_mov_b32 s{sSLOT}, 0", f"s_mov_b32 s{sT}, 0")
    else: g(f"v_mov_b32 v{V_CUR}, v{V_L16}", f"v_add_u32 v{V_NXT}, 0x8000, v{V_L16}", f"s_mov_b32 s{sSLOT}, 0x8000", f"s_mov_b32 s{sT}, 0")
    g.wait_vm(('U', 1)); g("s_waitcnt lgkmcnt(0)", "s_barrier")
    g(f"v_mov_b32 v6, {hex(LDS_FLAG)}", "v_mov_b32 v7, 0", "ds_write_b32 v6, v7", "s_waitcnt lgkmcnt(0)")
    g.stamp("step0"); g.stamp("step0_c", True)
    LA, LB = g.newlabel("pathA"), g.newlabel("pathB")
    LDIAG = g.newlabel("diag")
    def first_part(isA):
        dm = None
        if isA:
            unit_addr(g); dm = unit_dma_list()
        r0, r1 = reads_for(0), reads_for(1)
        g(r0[0], r0[1], r1[0], r1[1], "s_waitcnt lgkmcnt(2)")
        gen_iter(g, 0, True, False, False, False, czero=True, dmas=dm)
        g("s_nop 7")
        skip = g.newlabel("nomax")
        g(f"s_cmp_lg_u32 s{sRESTART}, 0", f"s_cbranch_scc1 {skip}")
        for qs in range(2):
            b = V_S + qs*8
            g(f"v_max3_f32 v6, v{b}, v{b+1}, v{b+2}", f"v_max3_f32 v6, v6, v{b+3}, v{b+4}", f"v_max3_f32 v6, v6, v{b+5}, v{b+6}", f"v_max_f32 v6, v6, v{b+7}")
            cross_g(g, 6, 7, "v_max_f32")
            for k in range(4): g(f"v_sub_f32 v{V_NEG+4*qs+k}, 0, v6")
        g.label(skip)
        for qs in range(2):
            for k in range(8): g(f"v_add_f32 v{V_S+qs*8+k}, v{V_S+qs*8+k}, v{V_NEG+4*qs}")
        g("s_nop 1")
    g(f"s_cmp_lg_u32 s{sISA}, 0", f"s_cbranch_scc1 {LA}")
    if OPT.get('prioB'): g(f"s_setprio {OPT['prioB']}")
    first_part(False)
    gen_iter(g, 1, True, True, False, False)
    g("s_waitcnt vmcnt(0)")
    if not OPT.get('nopf'):
        skip_pf = g.newlabel("nopf")
        g(f"s_cmp_lg_u32 s{sRESTART}, 0", f"s_cbranch_scc1 {skip_pf}")
        g(f"s_lshl_b32 s{sT1}, s2, 2", f"s_add_u32 s{sT1}, s{sT1}, s{sWAVE}", f"v_lshlrev_b32 v6, 3, v{V_L16}")
        for k, (n, st) in enumerate((('wo', 0), ('wg', 512), ('wu', 736), ('wd', 288))):
            ins = prefetch_lines(g, 88+2*k, n, sT1, st, 7, 0, 6, sT2)
            g(ins)
        g.label(skip_pf)
    g(f"s_sub_u32 s{sCNT}, s{sNB2}, 1")
    lb = g.newlabel("Bloop"); g.label(lb)
    step_begin(g, False); step_addr_advance(g)
    gen_iter(g, 0, True, True, True, True); gen_iter(g, 1, True, True, True, True, loopctl=True)
    g(f"s_cmp_lg_u32 s{sCNT}, 0", f"s_cbranch_scc1 {lb}")
    step_begin(g, False); step_addr_advance(g)
    gen_iter(g, 0, False, True, True, True); gen_iter(g, 1, False, False, True, True, lookahead=False)
    g.stamp("B_main_done"); g.stamp("Bdone_c", True)
    g(f"s_branch {LDIAG}")
    g.label(LA)
    if OPT.get('prioA'): g(f"s_setprio {OPT['prioA']}")
    first_part(True)
    lidle = g.newlabel("Aidle"); lidle_chk = g.newlabel("Aidlechk")
    g(f"s_cmp_eq_u32 s{sNA2}, 0", f"s_cbranch_scc1 {lidle_chk}")
    gen_iter(g, 1, True, True, False, False)
    g(f"s_sub_u32 s{sCNT}, s{sNA2}, 1")
    la = g.newlabel("Aloop"); g.label(la)
    g(f"s_add_u32 s{sT}, s{sT}, 1")
    step_begin(g, True); step_addr_advance(g)
    gen_iter(g, 0, True, True, True, True, dmas=unit_dma_list()); gen_iter(g, 1, True, True, True, True, loopctl=True)
    g(f"s_cmp_lg_u32 s{sCNT}, 0", f"s_cbranch_scc1 {la}")
    g(f"s_add_u32 s{sT}, s{sT}, 1")
    step_begin(g, True); step_addr_advance(g)
    gen_iter(g, 0, False, True, True, True, dmas=unit_dma_list()); gen_iter(g, 1, False, False, True, True, lookahead=False)
    g.label(lidle_chk)
    g("s_waitcnt lgkmcnt(0)")
    g(f"s_cmp_ge_u32 s{sT}, s{sNB2}", f"s_cbranch_scc1 {LDIAG}")
    g.label(lidle)
    g(f"s_add_u32 s{sT}, s{sT}, 1")
    step_begin(g, True)
    for k, items in sorted(unit_dma_list().items()): emit(g, items)
    g(f"s_cmp_lt_u32 s{sT}, s{sNB2}", f"s_cbranch_scc1 {lidle}")
    g.label(LDIAG)
    LD_B = g.newlabel("d0B"); LD_go = g.newlabel("d0go")
    g(f"s_cmp_eq_u32 s{sISA}, 0", f"s_cbranch_scc1 {LD_B}")
    g(f"s_add_u32 s{sT}, s{sT}, 1")
    step_begin(g, True)
    for k, items in sorted(unit_dma_list().items()): emit(g, items)
    g(f"s_branch {LD_go}")
    g.label(LD_B); g("s_barrier")
    g.label(LD_go)
    g.stamp("diag_start")
    g(f"s_add_u32 s{sT1}, s{sNB2}, s{sISA}", f"s_add_u32 s{sT2}, s{sT1}, 1", f"s_and_b32 s{sT2}, s{sT2}, 3", f"s_lshl_b32 s{sT2}, s{sT2}, 15",
      f"s_add_u32 s{sT3}, s{sT1}, 3", f"s_and_b32 s{sT3}, s{sT3}, 3", f"s_lshl_b32 s{sT3}, s{sT3}, 15",
      f"v_add_u32 v{V_CUR}, s{sT2}, v{V_L16}", f"v_add_u32 v{V_NXT}, s{sT3}, v{V_L16}")
    Lm0, Lb1, Lfin = g.newlabel("m0"), g.newlabel("b1"), g.newlabel("fin")
    g(f"s_cmp_eq_u32 s{sSUB}, 0", f"s_cbranch_scc1 {Lm0}")
    diag_block(g, False); g(f"s_branch {Lb1}")
    g.label(Lm0); diag_block(g, True)
    g.label(Lb1)
    g("s_waitcnt vmcnt(0)", "s_barrier")
    g(f"s_cmp_eq_u32 s{sSUB}, 0", f"s_cbranch_scc1 {Lfin}")
    g(f"s_mov_b32 s{sCNT}, 1", f"v_add_u32 v{V_CUR}, 8192, v{V_CUR}")
    Ll, Llast = g.newlabel("dl"), g.newlabel("dlast")
    g.label(Ll)
    g(f"s_cmp_eq_u32 s{sCNT}, s{sSUB}", f"s_cbranch_scc1 {Llast}")
    diag_block(g, False)
    g(f"s_add_u32 s{sCNT}, s{sCNT}, 1", f"v_mov_b32 v{V_CUR}, v{V_NXT}", f"v_add_u32 v{V_NXT}, 8192, v{V_NXT}", f"s_branch {Ll}")
    g.label(Llast); diag_block(g, True)
    g.label(Lfin)
    if OPT.get('hook_fin'): OPT['hook_fin'](g)
    g.stamp("diag_done")
    if OPT.get('prioA') or OPT.get('prioB'): g("s_setprio 0")
    cross_g(g, V_L0, 6, "v_add_f32"); cross_g(g, V_L1, 6, "v_add_f32")
    LFB, LOK = g.newlabel("fallback"), g.newlabel("ok")
    Lpass = g.newlabel("pass")
    g(f"s_cmp_lg_u32 s{sRESTART}, 0", f"s_cbranch_scc1 {Lpass}")
    if OPT.get('nocheck'): g(f"s_branch {Lpass}")
    g(f"s_mov_b32 s{sT1}, 0x21800000", f"s_mov_b32 s{sT2}, 0x5d800000",
      f"v_cmp_le_f32 vcc, s{sT1}, v{V_L0}", f"v_cmp_le_f32 s[56:57], s{sT1}, v{V_L1}", "s_nop 1", "s_and_b64 s[56:57], s[56:57], vcc",
      f"v_cmp_ge_f32 vcc, s{sT2}, v{V_L0}", "s_nop 1", "s_and_b64 s[56:57], s[56:57], vcc",
      f"v_cmp_ge_f32 vcc, s{sT2}, v{V_L1}", "s_nop 1", "s_and_b64 s[56:57], s[56:57], vcc")
    g("s_cmp_eq_u64 s[56:57], exec", f"s_cbranch_scc1 {Lpass}", f"v_mov_b32 v6, {hex(LDS_FLAG)}", "v_mov_b32 v7, 1", "ds_write_b32 v6, v7")
    g.label(Lpass)
    g.vm = []
    g(f"v_rcp_f32 v{V_L0}, v{V_L0}", f"v_rcp_f32 v{V_L1}, v{V_L1}", "s_nop 7")
    g(f"s_lshl_b32 s{sT1}, s{sT16}, 17", f"s_lshl_b32 s{sT2}, s{sHEAD}, 12", f"s_add_u32 s{sT1}, s{sT1}, s{sT2}", f"s_add_u32 s{sT1}, s{sT1}, {hex(WS_CTX)}")
    for qs in range(2):
        for s in range(4):
            a = V_O + (qs*8 + 2*s)*4
            for k in range(8): g(f"v_mul_f32 v{a+k}, v{a+k}, v{V_L0+qs}")
            for k in range(4): g(f"v_cvt_pk_bf16_f32 v{a+k}, v{a+2*k}, v{a+2*k+1}")
            g.vmem(f"buffer_store_dwordx4 v[{a}:{a+3}], v{V_L16}, s[{S_WS}:{S_WS+3}], s{sT1} offen offset:{s*1024}{SC1 if fused else ''}", 'ctxst')
        if qs == 0: g(f"s_add_u32 s{sT1}, s{sT1}, 0x20000")
    g("s_waitcnt lgkmcnt(0)", "s_barrier", f"v_mov_b32 v6, {hex(LDS_FLAG)}", "ds_read_b32 v7, v6", "s_waitcnt lgkmcnt(0)", "s_nop 0",
      f"v_readfirstlane_b32 s{sT1}, v7", "s_nop 3", f"s_cmp_lg_u32 s{sRESTART}, 0", f"s_cselect_b32 s{sT1}, 0, s{sT1}", f"s_cmp_lg_u32 s{sT1}, 0", f"s_cbranch_scc1 {LFB}")
    g.stamp("ctx_stored")
    if Gen.STAMP and not fused:
        g("s_waitcnt vmcnt(0)"); g.stamp("att_end"); g.dump_stamps(sWAVE, 2)
    if fused: g.stamp("att_end")
    vm_at_end = list(g.vm)
    LEND = g.newlabel("attend")
    g(f"s_branch {LEND}")
    g.label(LFB)
    g("s_waitcnt vmcnt(0)")
    g(f"s_mov_b32 s{sRESTART}, 1", "v_mov_b32 v6, 0xff800000", "v_mov_b32 v7, 0xff800000", f"v_mov_b32 v{V_L0}, 0xff800000")
    g(f"s_cmp_eq_u32 s{sISA}, 0", f"s_cselect_b32 s{sT3}, s{sNB2}, s{sNA2}", f"s_lshl_b32 s{sT3}, s{sT3}, 1", f"s_add_u32 s{sCNT}, s{sT3}, s{sSUB}")
    g(f"s_mov_b32 s{sT}, 0")
    Lf, Lf2 = g.newlabel("fb"), g.newlabel("fbn")
    g.label(Lf)
    g("s_barrier")
    Lnod = g.newlabel("fbnod")
    g(f"s_cmp_eq_u32 s{sISA}, 0", f"s_cbranch_scc1 {Lnod}")
    g(f"s_lshl_b32 s{sKO}, s{sT}, 14", f"s_add_u32 s{sKO}, s{sKO}, s{sKF}", f"s_mov_b32 m0, s{sA4}", "s_nop 0")
    for k in range(4): g(f"buffer_load_dwordx4 v{V_L16}, s[{S_WS}:{S_WS+3}], s{sKO} offen offset:{k*1024}{SC1} lds")
    g("s_waitcnt vmcnt(0)")
    g.label(Lnod)
    g("s_barrier")
    for jj in range(2):
        Lskip, Lmask, Lnext = g.newlabel("fs"), g.newlabel("fm"), g.newlabel("fx")
        g(f"s_lshl_b32 s{sT1}, s{sT}, 1", f"s_add_u32 s{sT1}, s{sT1}, {jj}", f"v_add_u32 v{V_CUR}, {jj*8192}, v{V_L16}")
        g(f"s_cmp_gt_u32 s{sT1}, s{sCNT}", f"s_cbranch_scc1 {Lnext}", f"s_cmp_eq_u32 s{sT1}, s{sCNT}", f"s_cbranch_scc1 {Lmask}")
        diag_block(g, False, maxonly=True); g(f"s_branch {Lnext}")
        g.label(Lmask); diag_block(g, True, maxonly=True)
        g.label(Lnext)
    g(f"s_add_u32 s{sT}, s{sT}, 1", f"s_add_u32 s{sT1}, s{sNB2}, 2", f"s_cmp_lt_u32 s{sT}, s{sT1}", f"s_cbranch_scc1 {Lf}")
    for qs in range(2):
        cross_g(g, 6+qs, V_L1, "v_max_f32")
        for k in range(4): g(f"v_sub_f32 v{V_NEG+4*qs+k}, 0, v{6+qs}")
    g("s_barrier")
    sv = g.vm; g.vm = []
    for u in range(3): emit(g, unit_fn(u))
    g.vm = sv
    g(f"s_branch {L_START}")
    g.label(LEND)
    g.vm = vm_at_end
```

```python
from core import *
import p_kv, p_att, p_mod
from p_kv import emit, V_W0, V_W1, V_L16, V_TR, V_FR, V_ACC, V_C0, V_C1, V_SR, setup_dma128, setup_tr128, tr_reads
from p_att import *
from p_mod import LOG2E, QSCALE

S_WS, S_DBG, S_A, S_B, S_C2 = 4, 8, 12, 16, 56
p_att.S_WS = S_WS
sCROW, sSTB, sSTG = 43, 54, 55
sHKV, sKB, sWBKV = 84, 87, 85
OOB = 0x7ff00000
sOOB = 86
C_START, C_MOD2 = 0, 32
C_H, C_KV, C_CTX, C_H2, C_ACT = 0, 8, 40, 48, 56

SLOT = [0,1,2,3, 0,1, 2,4,5,6,7,8,9, 3, 0, 1,   2,4,5,3,6,7,8,9]
HSCHED = {52 + k: [k] for k in range(16)}
ISSUE = {1:[3, 4], 2:[5], 3:[6, 7], 4:[8, 9], 5:[10, 11], 6:[12, 13], 7:[14, 15], 8:[16], 9:[17], 10:[18], 11:[20], 12:[21], 13:[22], 14:[19], 15:[23]}

def poll_issue(g, vdst, srd, soff, tag, st):
    g(f"s_cmp_eq_u32 s{sWAVE}, 0", f"s_cselect_b32 s{st}, s{soff}, s{sOOB}")
    g.vmem(f"buffer_load_dword v{vdst}, off, s[{srd}:{srd+3}], s{st} sc1", tag)
def poll_check(g, vdst, srd, tag, soff, target, t1, t2):
    ok, loop = g.newlabel("pok"), g.newlabel("ploop")
    g.wait_vm(tag)
    g(f"s_cmp_lg_u32 s{sWAVE}, 0", f"s_cbranch_scc1 {ok}")
    g(f"v_readfirstlane_b32 s{t1}, v{vdst}", "s_nop 3", f"s_cmp_ge_u32 s{t1}, {target}")
    g(f"s_cbranch_scc1 {ok}", f"s_mov_b32 s{t2}, 0x40000")
    g.label(loop)
    g("s_sleep 8", f"buffer_load_dword v{vdst}, off, s[{srd}:{srd+3}], s{soff} sc1", "s_waitcnt vmcnt(0)")
    g(f"v_readfirstlane_b32 s{t1}, v{vdst}", "s_nop 3", f"s_cmp_ge_u32 s{t1}, {target}")
    g(f"s_cbranch_scc1 {ok}", f"s_sub_u32 s{t2}, s{t2}, 1", f"s_cmp_lg_u32 s{t2}, 0", f"s_cbranch_scc1 {loop}")
    g.label(ok)
def signal(g, srd, soff, vt, st, lo=None, hi=None):
    g(f"s_cmp_eq_u32 s{sWAVE}, 0", f"s_cselect_b32 s{st}, {('s%d' % soff[1]) if isinstance(soff, tuple) else soff}, s{sOOB}")
    if lo is not None:
        g(f"s_cmp_ge_u32 s2, {lo}", f"s_cselect_b32 s{st}, s{st}, s{sOOB}", f"s_cmp_lt_u32 s2, {hi}", f"s_cselect_b32 s{st}, s{st}, s{sOOB}")
    g(f"v_mov_b32 v{vt}, 1", "s_mov_b64 exec, 1")
    g.vmem(f"buffer_atomic_add v{vt}, off, s[{srd}:{srd+3}], s{st} sc1", 'sig')
    g("s_mov_b64 exec, -1")
def cnt_off(g, dst, base, idx_s):
    g(f"s_lshl_b32 s{dst}, s{idx_s}, 7", f"s_add_u32 s{dst}, s{dst}, {hex(WS_CNT + base*128)}")

def code_touch(g, kname, seg_s, nseg_bits, first_seg, vt, vdst, st):
    lab = g.newlabel("pc")
    g(f"s_getpc_b64 s[{st}:{st+1}]")
    g.label(lab)
    g(f"s_sub_u32 s{st}, s{st}, {lab}-{kname}", f"s_subb_u32 s{st+1}, s{st+1}, 0")
    g(f"s_and_b32 s{st+2}, s{seg_s}, {(1 << nseg_bits) - 1}", f"s_add_u32 s{st+2}, s{st+2}, {first_seg}", f"s_lshl_b32 s{st+2}, s{st+2}, 13")
    g(f"v_lshlrev_b32 v{vt}, 7, v0", f"v_add_u32 v{vt}, s{st+2}, v{vt}", f"v_min_u32 v{vt}, L_end_{kname}-{kname}, v{vt}")
    g(f"v_mov_b32 v{vt+1}, s{st+1}", f"v_add_co_u32 v{vt}, vcc, s{st}, v{vt}", "s_nop 1", f"v_addc_co_u32 v{vt+1}, vcc, 0, v{vt+1}, vcc")
    g(f"global_load_dword v{vdst}, v[{vt}:{vt+1}], off")

def front(g, fused=False):
    g(f"s_load_dwordx2 s[4:5], s[0:1], {KA['ws']}", f"s_load_dwordx2 s[8:9], s[0:1], {KA['dbg']}",
      f"s_load_dwordx2 s[12:13], s[0:1], {KA['ckv']}", f"s_load_dwordx2 s[16:17], s[0:1], {KA['wuk']}",
      f"s_load_dwordx2 s[56:57], s[0:1], {KA['wuv']}", f"s_load_dwordx2 s[88:89], s[0:1], {KA['x']}",
      f"s_load_dwordx2 s[92:93], s[0:1], {KA['wmod']}", f"s_load_dwordx2 s[96:97], s[0:1], {KA['c']}")
    g.stamp("entry")
    g("v_lshrrev_b32 v14, 6, v0", "v_and_b32 v0, 63, v0", "s_nop 0", f"v_readfirstlane_b32 s{sWAVE}, v14")
    g(f"s_and_b32 s{sHEAD}, s2, 7", f"s_lshl_b32 s{sHEAD}, s{sHEAD}, 2", f"s_bfe_u32 s{sT1}, s2, 0x20003", f"s_add_u32 s{sHEAD}, s{sHEAD}, s{sT1}")
    g(f"s_lshr_b32 s{sI}, s2, 5", f"s_lshr_b32 s{sISA}, s{sWAVE}, 2")
    g(f"s_sub_u32 s{sT1}, 7, s{sWAVE}", f"s_sub_u32 s{sT2}, 15, s{sI}", f"s_cmp_eq_u32 s{sISA}, 0",
      f"s_cselect_b32 s{sSUB}, s{sWAVE}, s{sT1}", f"s_cselect_b32 s{sT3}, s{sT2}, s{sI}")
    g(f"s_lshl_b32 s{sT16}, s{sT3}, 3", f"s_lshl_b32 s{sT1}, s{sSUB}, 1", f"s_add_u32 s{sT16}, s{sT16}, s{sT1}")
    g(f"s_lshl_b32 s{sNB2}, s{sT2}, 1", f"s_lshl_b32 s{sNA2}, s{sI}, 1", f"s_lshl_b32 s{sNBo}, s{sT2}, 15", f"s_lshl_b32 s{sNAo}, s{sI}, 15")
    g(f"s_and_b32 s{sA4}, s{sWAVE}, 3", f"s_lshl_b32 s{sA4}, s{sA4}, 12")
    g(f"s_lshl_b32 s{sT1}, s{sHEAD}, 19", f"s_add_u32 s{sT1}, s{sT1}, s{sA4}",
      f"s_add_u32 s{sKF}, s{sT1}, {hex(WS_KF)}", f"s_add_u32 s{sVF}, s{sT1}, {hex(WS_VF)}")
    g(f"s_and_b32 s{sKB}, s2, 1", f"s_lshl_b32 s{sKB}, s{sKB}, 2", f"s_bfe_u32 s{sT1}, s2, 0x20003", f"s_add_u32 s{sKB}, s{sKB}, s{sT1}")
    g(f"s_bfe_u32 s{sHKV}, s2, 0x20001", f"s_lshl_b32 s{sHKV}, s{sHKV}, 3", f"s_lshr_b32 s{sT1}, s2, 5", f"s_add_u32 s{sHKV}, s{sHKV}, s{sT1}")
    g("v_lshrrev_b32 v14, 3, v0", "v_lshlrev_b32 v1, 10, v14", "v_lshrrev_b32 v14, 4, v0", "v_and_b32 v15, 7, v0", "v_xor_b32 v14, v14, v15",
      "v_xor_b32 v15, 4, v14", "v_lshl_add_u32 v2, v15, 4, v1", "v_lshl_add_u32 v1, v14, 4, v1", f"v_add_u32 v2, {8*1024-1024}, v2")
    setup_dma128(g, 8192); setup_tr128(g)
    g(f"s_mul_i32 s{sSTG}, s{sWAVE}, 12288", f"s_add_u32 s{sSTG}, s{sSTG}, {4*16384}",
      "v_and_b32 v14, 15, v0", "v_lshlrev_b32 v10, 7, v14", "v_lshrrev_b32 v14, 1, v14", "v_lshrrev_b32 v15, 4, v0", "v_xor_b32 v14, v14, v15",
      "v_lshl_add_u32 v10, v14, 4, v10", f"v_add_u32 v10, s{sSTG}, v10", "v_xor_b32 v11, 64, v10")
    g(f"v_lshlrev_b32 v{V_L16}, 4, v0")
    g(f"s_lshl_b32 s{sT1}, s{sKB}, 8", f"s_lshl_b32 s{sCROW}, s{sWAVE}, 5", f"s_add_u32 s{sCROW}, s{sT1}, s{sCROW}", f"s_lshl_b32 s{sCROW}, s{sCROW}, 10")
    g(f"s_lshl_b32 s{sWB}, s{sWAVE}, 17", f"s_lshl_b32 s{sT1}, s{sHEAD}, 8", f"s_add_u32 s{sWB}, s{sWB}, s{sT1}", f"s_lshl_b32 s{sM0B}, s{sWAVE}, 11")
    g(f"s_lshl_b32 s{sWBKV}, s{sWAVE}, 17", f"s_lshl_b32 s{sT1}, s{sHKV}, 8", f"s_add_u32 s{sWBKV}, s{sWBKV}, s{sT1}")
    g(f"s_lshl_b32 s{sSTB}, s{sHKV}, 19", f"s_lshl_b32 s{sT1}, s{sKB}, 3", f"s_add_u32 s{sT1}, s{sT1}, s{sWAVE}", f"s_lshl_b32 s{sT1}, s{sT1}, 13", f"s_add_u32 s{sSTB}, s{sSTB}, s{sT1}")
    g("v_lshrrev_b32 v14, 4, v0", "v_lshlrev_b32 v14, 2, v14", "v_and_b32 v15, 15, v0")
    for r in range(4):
        g(f"v_cmp_le_u32 s[{sMASK+2*r}:{sMASK+2*r+1}], v14, v15")
        if r < 3: g("v_add_u32 v14, 1, v14")
    g(f"s_mov_b32 s{sRESTART}, 0", f"s_mov_b32 s{sOOB}, {hex(OOB)}")
    g.stamp("pre_karg")
    g("s_waitcnt lgkmcnt(0)")
    g.stamp("karg")
    for s, n in ((S_WS, 'ws'), (S_DBG, 'dbg'), (S_A, 'ckv'), (S_B, 'wuk'), (S_C2, 'wuv'), (88, 'x'), (92, 'wmod'), (96, 'c')):
        finish_srd(g, s, n)
    def dma(c):
        if c < 16:
            j, q = c >> 2, c & 3
            srd = S_B if j < 2 else S_C2
            off = q*0x100000 + (j & 1)*128
        else:
            j, q = (c - 16) >> 2, c & 3
            srd = S_B; off = q*0x100000 + j*128
        return [f"s_add_u32 s{sT1}, s{sWBKV if c < 16 else sWB}, {hex(off)}", f"s_add_u32 m0, s{sM0B}, {hex(SLOT[c]*16384)}",
                (f"buffer_load_dwordx4 v{V_W0}, s[{srd}:{srd+3}], s{sT1} offen lds", ('W', c)),
                (f"buffer_load_dwordx4 v{V_W1}, s[{srd}:{srd+3}], s{sT1} offen offset:1024 lds", ('W', c))]
    def stage(p):
        out = []
        for hf in range(2):
            out += [f"s_add_u32 s{sT1}, s{sCROW}, {p*128 + hf*16384}", f"s_add_u32 m0, s{sSTG}, {(p%3)*4096 + hf*2048}",
                    (f"buffer_load_dwordx4 v{V_C0}, s[{S_A}:{S_A+3}], s{sT1} offen lds", ('P', p)),
                    (f"buffer_load_dwordx4 v{V_C1}, s[{S_A}:{S_A+3}], s{sT1} offen offset:1024 lds", ('P', p))]
        return out
    def stage_reads(p):
        return [f"ds_read_b128 a[{(s*2+t)*4}:{(s*2+t)*4+3}], v{V_SR+(s&1)} offset:{(p%3)*4096 + t*2048}" for s in (2*p, 2*p+1) for t in range(2)]
    MC, MW, MT, MA = 96, 100, 116, 120
    def mod_loads(lo, hi):
        g(f"s_cmp_ge_u32 s2, {lo}", f"s_cselect_b32 s{sT2}, 0, s{sOOB}", f"s_cmp_lt_u32 s2, {hi}", f"s_cselect_b32 s{sT2}, s{sT2}, s{sOOB}")
        g(f"v_and_b32 v{MT}, 3, v0", f"v_lshrrev_b32 v{MT+1}, 2, v0", f"s_lshl_b32 s{sT1}, s{sWAVE}, 4", f"v_add_u32 v{MT+1}, s{sT1}, v{MT+1}")
        g(f"s_movk_i32 s{sT1}, 6144", f"v_mul_lo_u32 v{MT+2}, v{MT+1}, s{sT1}", f"v_lshl_add_u32 v{MT+2}, v{MT}, 4, v{MT+2}", f"s_lshl_b32 s{sT1}, s2, 6", f"v_add_u32 v{MT+2}, s{sT1}, v{MT+2}")
        g(f"v_lshlrev_b32 v{MT+3}, 1, v{MT+1}")
        for t in range(4):
            g.vmem(f"buffer_load_ushort v{MC+t}, v{MT+3}, s[96:99], s{sT2} offen offset:{t*256}", 'mc')
        for t in range(4):
            g(f"s_add_u32 s{sT1}, s{sT2}, {hex(t*128*6144)}")
            g.vmem(f"buffer_load_dwordx4 v[{MW+4*t}:{MW+3+4*t}], v{MT+2}, s[92:95], s{sT1} offen", ('mw', t))
    def mod_partial(lo, hi, lds):
        skip = g.newlabel("modp")
        g.wait_vm(('mw', 3))
        g(f"s_cmp_ge_u32 s2, {lo}", f"s_cbranch_scc0 {skip}", f"s_cmp_lt_u32 s2, {hi}", f"s_cbranch_scc0 {skip}")
        g(f"s_mov_b32 s{sT1}, {hex(LOG2E)}")
        for t in range(4): g(f"v_lshlrev_b32 v{MC+t}, 16, v{MC+t}")
        for t in range(4): g(f"v_mul_f32 v{MT+t}, s{sT1}, v{MC+t}")
        for t in range(4): g(f"v_exp_f32 v{MT+t}, -v{MT+t}")
        g("s_nop 0")
        for t in range(4): g(f"v_add_f32 v{MT+t}, 1.0, v{MT+t}")
        for t in range(4): g(f"v_rcp_f32 v{MT+t}, v{MT+t}")
        g("s_nop 0")
        for t in range(4): g(f"v_mul_f32 v{MC+t}, v{MC+t}, v{MT+t}")
        g(f"s_mov_b32 s{sT2}, 0xffff0000")
        for t in range(4):
            for d in range(4):
                w = MW + 4*t + d
                g(f"v_lshlrev_b32 v{MT}, 16, v{w}", f"v_and_b32 v{MT+1}, s{sT2}, v{w}")
                if t == 0: g(f"v_mul_f32 v{MA+2*d}, v{MC}, v{MT}", f"v_mul_f32 v{MA+1+2*d}, v{MC}, v{MT+1}")
                else: g(f"v_fmac_f32 v{MA+2*d}, v{MC+t}, v{MT}", f"v_fmac_f32 v{MA+1+2*d}, v{MC+t}, v{MT+1}")
        for r in (8, 4):
            g("s_nop 1")
            for e in range(8): g(f"v_add_f32_dpp v{MA+e}, v{MA+e}, v{MA+e} row_ror:{r} row_mask:0xf bank_mask:0xf")
        g(f"v_lshrrev_b32 v{MT+1}, 4, v0", f"s_lshl_b32 s{sT1}, s{sWAVE}, 2", f"v_add_u32 v{MT+1}, s{sT1}, v{MT+1}", f"v_lshlrev_b32 v{MT+1}, 7, v{MT+1}",
          f"v_and_b32 v{MT}, 3, v0", f"v_lshl_add_u32 v{MT+1}, v{MT}, 5, v{MT+1}", f"v_add_u32 v{MT+1}, {lds}, v{MT+1}")
        g(f"v_and_b32 v{MT}, 15, v0", f"v_cmp_gt_u32 vcc, 4, v{MT}", "s_nop 1", "s_mov_b64 exec, vcc")
        g(f"ds_write_b128 v{MT+1}, v[{MA}:{MA+3}]", f"ds_write_b128 v{MT+1}, v[{MA+4}:{MA+7}] offset:16")
        g("s_mov_b64 exec, -1", "s_waitcnt lgkmcnt(0)")
        g.label(skip)
    def mod_final(lo, hi, lds):
        lskip = g.newlabel("modfin")
        g(f"s_cmp_ge_u32 s2, {lo}", f"s_cselect_b32 s{sT2}, 0, s{sOOB}", f"s_cmp_lt_u32 s2, {hi}", f"s_cselect_b32 s{sT2}, s{sT2}, s{sOOB}",
          f"s_cmp_eq_u32 s{sWAVE}, 0", f"s_cselect_b32 s{sT2}, s{sT2}, s{sOOB}")
        g(f"s_cmp_lg_u32 s{sT2}, 0", f"s_cbranch_scc1 {lskip}")
        g(f"v_and_b32 v{MT}, 31, v0", f"v_lshlrev_b32 v{MT}, 2, v{MT}", f"v_lshrrev_b32 v{MT+1}, 5, v0", f"v_lshl_add_u32 v{MT}, v{MT+1}, 11, v{MT}", f"v_add_u32 v{MT}, {lds}, v{MT}")
        g("s_waitcnt lgkmcnt(0)")
        for r in range(16):
            if r == 15: g("s_waitcnt lgkmcnt(7)")
            g(f"ds_read_b32 v{MW+r}, v{MT} offset:{r*128}")
        g("s_waitcnt lgkmcnt(0)")
        for st in (8, 4, 2, 1):
            for k in range(st): g(f"v_add_f32 v{MW+k}, v{MW+k}, v{MW+k+st}")
        g(f"v_mov_b32 v{MW+1}, v{MW}", "s_nop 1", f"v_permlane32_swap_b32 v{MW}, v{MW+1}", f"v_add_f32 v{MW}, v{MW}, v{MW+1}")
        g.label(lskip)
        g(f"v_lshlrev_b32 v{MT}, 2, v0", "v_cmp_gt_u32 vcc, 32, v0", f"v_mov_b32 v{MT+1}, {hex(OOB)}", "s_nop 0", f"v_cndmask_b32 v{MT}, v{MT+1}, v{MT}, vcc")
        g(f"s_lshl_b32 s{sT1}, s2, 7", f"s_add_u32 s{sT1}, s{sT1}, {hex(WS_MOD)}", f"s_add_u32 s{sT1}, s{sT1}, s{sT2}")
        g.vmem(f"buffer_store_dword v{MW}, v{MT}, s[{S_WS}:{S_WS+3}], s{sT1} offen sc1", 'modst')
        g(f"s_lshl_b32 s{sT1}, s2, 7", f"s_add_u32 s{sT1}, s{sT1}, {hex(WS_CNT)}", "s_cmp_lt_u32 s2, 32", f"s_cselect_b32 s{sT1}, s{sT1}, s{sOOB}",
          f"s_cmp_eq_u32 s{sWAVE}, 0", f"s_cselect_b32 s{sT1}, s{sT1}, s{sOOB}", f"v_mov_b32 v{MT+2}, 0", f"v_lshlrev_b32 v{MT+3}, 12, v0", "s_mov_b64 exec, 15")
        g.vmem(f"buffer_store_dword v{MT+2}, v{MT+3}, s[{S_WS}:{S_WS+3}], s{sT1} offen sc1", 'modst')
        g("s_mov_b64 exec, -1")
    def c_touch():
        g(f"s_lshr_b32 s{sT1}, s2, 5", f"s_mul_i32 s{sT1}, s{sT1}, 160", f"s_lshl_b32 s{sT2}, s{sWAVE}, 6", f"s_add_u32 s{sT1}, s{sT1}, s{sT2}", f"v_add_u32 v56, s{sT1}, v0")
        g(f"v_add_u32 v57, s{sT2}, v0", "v_mov_b32 v58, 0xcccd", "v_mul_u32_u24 v58, v56, v58", "v_lshrrev_b32 v58, 18, v58")
        g("v_mul_u32_u24 v59, 5, v58", "v_sub_u32 v59, v56, v59", "v_add_u32 v59, 3, v59", "v_lshlrev_b32 v59, 7, v59", "v_lshl_add_u32 v59, v58, 10, v59")
        g(f"s_lshl_b32 s{sT1}, s{sKB}, 18", f"v_add_u32 v59, s{sT1}, v59", "v_cmp_gt_u32 vcc, 160, v57", f"v_mov_b32 v58, {hex(OOB)}", "s_nop 0", "v_cndmask_b32 v59, v58, v59, vcc")
        g.vmem(f"buffer_load_dword v12, v59, s[{S_A}:{S_A+3}], 0 offen", 'tc')
    def w_touch_lin():
        g(f"s_lshl_b32 s{sT1}, s2, 2", f"s_and_b32 s{sT2}, s{sWAVE}, 3", f"s_add_u32 s{sT1}, s{sT1}, s{sT2}")
        g(f"s_and_b32 s{sT2}, s{sT1}, 511", f"s_lshl_b32 s{sT2}, s{sT2}, 13", f"s_cmp_lt_u32 s{sWAVE}, 4", f"s_cselect_b32 s{sT2}, s{sT2}, s{sOOB}")
        g("v_lshlrev_b32 v15, 7, v0", f"s_cmp_lt_u32 s{sT1}, 512", f"s_cselect_b32 s{sT3}, s{sT2}, s{sOOB}")
        g.vmem(f"buffer_load_dword v13, v15, s[{S_B}:{S_B+3}], s{sT3} offen", 'tw')
        g(f"s_cmp_lt_u32 s{sT1}, 512", f"s_cselect_b32 s{sT3}, s{sOOB}, s{sT2}")
        g.vmem(f"buffer_load_dword v14, v15, s[{S_C2}:{S_C2+3}], s{sT3} offen", 'tw')
    def w_touch():
        g(f"s_and_b32 s{sT1}, s{sKB}, 3", f"s_lshl_b32 s{sT1}, s{sT1}, 9", f"s_lshl_b32 s{sT2}, s{sWAVE}, 6", f"s_add_u32 s{sT1}, s{sT1}, s{sT2}", f"v_add_u32 v14, s{sT1}, v0")
        g("v_bfe_u32 v15, v14, 1, 9", "v_lshlrev_b32 v15, 13, v15", "v_and_b32 v14, 1, v14", "v_lshl_add_u32 v15, v14, 7, v15", f"s_lshl_b32 s{sT2}, s{sHKV}, 8", f"v_add_u32 v15, s{sT2}, v15")
        g(f"s_bitcmp1_b32 s{sKB}, 1", f"s_cselect_b32 s{sT2}, s{sOOB}, 0")
        g.vmem(f"buffer_load_dword v13, v15, s[{S_B}:{S_B+3}], s{sT2} offen", 'tw')
        g(f"s_cselect_b32 s{sT2}, 0, s{sOOB}")
        g.vmem(f"buffer_load_dword v14, v15, s[{S_C2}:{S_C2+3}], s{sT2} offen", 'tw')
    if OPT.get('ctouch'):
        lsk = g.newlabel("noct")
        g(f"s_cmp_lg_u32 s{sWAVE}, 7", f"s_cbranch_scc1 {lsk}", f"s_lshr_b32 s{sT1}, s2, 3")
        code_touch(g, 'mega_kernel', sT1, 3, 0, 16, 18, 60 if not Gen.STAMP else 96)
        g.label(lsk)
    pv = OPT.get('pro', 4)
    bar = (lambda: g("s_barrier")) if pv in (0, 2, 3, 5) else (lambda: None)
    emit(g, dma(0)); emit(g, stage(0)); g.stamp("iss0"); bar()
    if pv == 3:
        emit(g, stage(1)); emit(g, dma(1)); bar(); emit(g, stage(2)); c_touch(); emit(g, dma(2)); mod_loads(0, 96)
    elif pv == 6:
        emit(g, stage(1)); emit(g, dma(1)); emit(g, stage(2)); emit(g, dma(2)); mod_loads(0, 96)
    elif pv == 7:
        emit(g, stage(1)); emit(g, dma(1)); emit(g, stage(2)); c_touch(); emit(g, dma(2)); mod_loads(0, 96)
    elif pv == 8:
        emit(g, stage(1)); mod_loads(0, 96); emit(g, dma(1)); emit(g, stage(2)); emit(g, dma(2))
    elif pv == 5:
        emit(g, stage(1)); emit(g, dma(1)); emit(g, stage(2)); bar(); emit(g, dma(2)); mod_loads(0, 96)
    else:
        if pv != 2: c_touch()
        emit(g, stage(1)); mod_loads(0, 96); g.stamp("iss1"); bar()
        emit(g, dma(1)); emit(g, stage(2)); emit(g, dma(2)); g.stamp("iss2")
    g(f"s_lshl_b32 s{sT1}, s{sHEAD}, 3", f"s_add_u32 s{sT1}, s{sT1}, s{sWAVE}", f"s_lshl_b32 s{sT2}, s{sI}, 7", f"s_add_u32 s{sT2}, s{sT2}, s{sT1}",
      f"s_sub_u32 s{sT3}, 14, s{sI}", f"s_lshl_b32 s{sT3}, s{sT3}, 7", f"s_add_u32 s{sT3}, s{sT3}, s{sT1}",
      f"s_cmp_lt_u32 s{sT1}, 128", f"s_cselect_b32 s{sCNT}, s{sT2}, s{sT3}")
    g.wait_vm(('P', 0)); g.stamp("p0"); g(stage_reads(0))
    g.wait_vm(('W', 0)); g("s_waitcnt lgkmcnt(0)", "s_barrier")
    g.stamp("w0_landed")
    emit(g, stage(3))
    second = 512
    g(tr_reads(0, 0, second)); r1 = tr_reads(1, 1, second)
    g(r1[:7]); g("s_waitcnt lgkmcnt(7)"); g(r1[7])
    NKS, NCH = 96, 24
    def epilogue(j):
        buf = V_ACC + (j & 1) * 32
        A = lambda t, cb: buf + (t * 4 + cb) * 4
        groups = []
        for i in range(4):
            if j < 2:
                t, u = i >> 1, i & 1
                a, b = A(t, 2*u), A(t, 2*u+1); off = WS_KF + (t * 4 + 2*j + u) * 1024
            else:
                a, b = A(0, i), A(1, i); off = WS_VF + (4*(j-2) + i) * 1024
            grp = [f"v_cvt_pk_bf16_f32 v{a}, v{a}, v{a+1}", f"v_cvt_pk_bf16_f32 v{a+1}, v{a+2}, v{a+3}",
                   f"v_cvt_pk_bf16_f32 v{a+2}, v{b}, v{b+1}", f"v_cvt_pk_bf16_f32 v{a+3}, v{b+2}, v{b+3}"]
            st = [f"s_add_u32 s{sT1}, s{sSTB}, {hex(off)}", (f"buffer_store_dwordx4 v[{a}:{a+3}], v{V_L16}, s[{S_WS}:{S_WS+3}], s{sT1} offen{'' if OPT.get('kvplain') else ' sc1'}", ('st', j))]
            groups.append((grp, st))
        return groups
    def hload(s):
        out = []
        for t in range(2):
            out += [f"s_lshl_b32 s{sT1}, s{sT16}, 14", f"s_add_u32 s{sT1}, s{sT1}, {hex(WS_H + t*16384 + s*1024)}",
                    (f"buffer_load_dwordx4 a[{(s*2+t)*4}:{(s*2+t)*4+3}], v{V_L16}, s[{S_WS}:{S_WS+3}], s{sT1} offen sc1", ('H', s))]
        return out
    def ln1_loads():
        g(f"v_lshlrev_b32 v1, 5, v0", f"s_mov_b32 s{sT1}, {hex(WS_MOD)}")
        for k, off in enumerate((0, 16, 2048, 2064)):
            g.vmem(f"buffer_load_dwordx4 v[{72+4*k}:{75+4*k}], v1, s[{S_WS}:{S_WS+3}], s{sT1} offen offset:{off} sc1", 'lnm')
    def wsum_items(v, t):
        out = []
        for r in (8, 4, 2, 1): out += ["s_nop 1", f"v_add_f32_dpp v{v}, v{v}, v{v} row_ror:{r} row_mask:0xf bank_mask:0xf"]
        out += [f"v_mov_b32 v{t}, v{v}", "s_nop 1", f"v_permlane16_swap_b32 v{v}, v{t}", f"v_add_f32 v{v}, v{v}, v{t}"]
        out += [f"v_mov_b32 v{t}, v{v}", "s_nop 1", f"v_permlane32_swap_b32 v{v}, v{t}", f"v_add_f32 v{v}, v{v}, v{t}"]
        return out
    def ln1_stats_items():
        it = []
        for d in range(4): it += [f"v_lshlrev_b32 v{64+2*d}, 16, v{12+d}", f"v_and_b32 v{65+2*d}, 0xffff0000, v{12+d}"]
        it += ["v_add_f32 v10, v64, v65", "v_add_f32 v11, v66, v67", "v_add_f32 v10, v10, v11", "v_add_f32 v11, v68, v69", "v_add_f32 v10, v10, v11", "v_add_f32 v11, v70, v71", "v_add_f32 v10, v10, v11"]
        it += wsum_items(10, 11) + ["v_mul_f32 v10, 0x3b000000, v10"]
        it += [f"v_sub_f32 v{64+e}, v{64+e}, v10" for e in range(8)]
        it += ["v_mul_f32 v11, v64, v64"] + [f"v_fmac_f32 v11, v{64+e}, v{64+e}" for e in range(1, 8)]
        it += wsum_items(11, 10)
        it += ["v_mov_b32 v10, 0x3727c5ac", "v_fmac_f32 v10, 0x3b000000, v11", "v_rsq_f32 v10, v10", "s_nop 0", f"v_mul_f32 v10, {hex(QSCALE)}, v10"]
        it += [f"v_mul_f32 v{64+e}, v{64+e}, v10" for e in range(8)]
        return it
    def ln1_mod_items():
        it = [f"v_add_f32 v{80+e}, 1.0, v{80+e}" for e in range(8)] + [f"v_mul_f32 v{72+e}, {hex(QSCALE)}, v{72+e}" for e in range(8)]
        it += [f"v_fma_f32 v{64+e}, v{64+e}, v{80+e}, v{72+e}" for e in range(8)]
        it += [f"v_cvt_pk_bf16_f32 v{88+d}, v{64+2*d}, v{65+2*d}" for d in range(4)]
        it += ["v_lshrrev_b32 v1, 2, v0", "v_lshlrev_b32 v1, 10, v1", "v_and_b32 v2, 3, v0", "v_lshl_add_u32 v1, v2, 8, v1"]
        return it
    def ln1_store():
        g(f"s_lshr_b32 s{sT1}, s{sCNT}, 4", f"s_lshl_b32 s{sT1}, s{sT1}, 14", f"s_and_b32 s{sT2}, s{sCNT}, 15", f"s_lshl_b32 s{sT2}, s{sT2}, 4",
          f"s_add_u32 s{sT1}, s{sT1}, s{sT2}", f"s_add_u32 s{sT1}, s{sT1}, {hex(WS_H)}")
        g.vmem(f"buffer_store_dwordx4 v[88:91], v1, s[{S_WS}:{S_WS+3}], s{sT1} offen{'' if OPT.get('hplain') else ' sc1'}", 'hst')
    fq = []
    pend = []
    KVSIG, KVCHK = (17, 20) if OPT.get('nospread') or OPT.get('q_nospread') else (20, 22)
    dq = []
    for ks in range(NKS):
        c, kk = ks >> 2, ks & 3
        j = c >> 2; s = ks % 16
        if kk == 2 and c + 1 < NCH:
            if c == 0: mod_partial(0, 96, 3*16384)
            if c == 1: g.wait_vm('modst')
            if c == 5 and not OPT.get('noln'): g.stamp("b_5p"); poll_check(g, 2, S_DBG, 'pl0', sKO, 32, sT1, sT2)
            if c == 9 and not OPT.get('noln'): g.stamp("hst_pre"); g.wait_vm('hst'); g.stamp("hst_post")
            if c == 12 and not OPT.get('noln'): g.stamp("h_pre"); poll_check(g, 2, S_WS, 'plh', sKO, 32, sT1, sT2); g.stamp("h_chk")
            if c == KVSIG and not OPT.get('nost'): g.wait_vm(('st', 3))
            if c == KVCHK: g.stamp("kv_pre"); poll_check(g, 2, S_WS, 'plk', sM0K, 8, sT1, sT2); g.stamp("kv_chk")
            g.stamp(f"b_{c}a"); g.wait_vm(('W', c + 1)); g("s_barrier"); g.stamp(f"b_{c}")
            if c == 6:
                g(f"s_load_dwordx2 s[16:17], s[0:1], {KA['wq']}", "s_waitcnt lgkmcnt(0)"); finish_srd(g, S_B, 'wq')
            for cc in ISSUE.get(c, []): dq.append(dma(cc))
            g.stamp(f"b_{c}i")
            if c == 0:
                mod_final(0, 96, 3*16384)
                if OPT.get("wtouch"): w_touch()
            if c == 1:
                signal(g, S_DBG, C_START*4, 96, sT1, 0, 32); signal(g, S_DBG, 32*4, 96, sT1)
            if c == 2:
                g(f"s_lshl_b32 s{sT1}, s{sCNT}, 10")
                g.vmem(f"buffer_load_dwordx4 v[12:15], v{V_L16}, s[88:91], s{sT1} offen", 'lnx')
            if c == 4 and not OPT.get('noln'):
                g(f"s_mov_b32 s{sKO}, {C_START*4}"); poll_issue(g, 2, S_DBG, sKO, 'pl0', sT1)
            if c == 5 and not OPT.get('noln'): ln1_loads()
            if c == 9 and not OPT.get('noln'):
                cnt_off(g, sT3, C_H, sI); signal(g, S_WS, ('s', sT3), 1, sT1)
            if c == 11 and not OPT.get('noln'):
                cnt_off(g, sKO, C_H, sI); poll_issue(g, 2, S_WS, sKO, 'plh', sT1)
            if c == 12 and not OPT.get('noln') and OPT.get('th'):
                g(f"s_lshl_b32 s{sT1}, s{sT16}, 14", f"s_and_b32 s{sT2}, s{sHEAD}, 3", f"s_lshl_b32 s{sT2}, s{sT2}, 13", f"s_add_u32 s{sT1}, s{sT1}, s{sT2}",
                  f"s_add_u32 s{sT1}, s{sT1}, {hex(WS_H)}", "v_lshlrev_b32 v1, 7, v0")
                g.vmem(f"buffer_load_dword v2, v1, s[{S_WS}:{S_WS+3}], s{sT1} offen sc1", 'th')
            if c == KVSIG:
                cnt_off(g, sT3, C_KV, sHKV); signal(g, S_WS, ('s', sT3), 1, sT1)
            if c == KVCHK - 1:
                cnt_off(g, sM0K, C_KV, sHEAD); poll_issue(g, 2, S_WS, sM0K, 'plk', sT1)
            if c == KVCHK:
                emit(g, unit_sc1(0)); emit(g, unit_sc1(1))
                if KVCHK == 22: emit(g, unit_sc1(2))
            if c == KVCHK + 1 and KVCHK < 22: emit(g, unit_sc1(2))
            d = (SLOT[c + 1] - SLOT[c]) * 16384
            for cb in range(4): g(f"v_add_u32 v{V_TR+cb}, {hex(d & 0xffffffff)}, v{V_TR+cb}")
        extra = False
        if ks < 16:
            if ks % 2 == 1 and (ks + 1) // 2 <= 7:
                p = (ks + 1) // 2
                g.wait_vm(('P', p)); g(stage_reads(p)); extra = True
            if ks % 2 == 0 and ks >= 2 and ks // 2 + 3 <= 7: emit(g, stage(ks // 2 + 3))
        if 64 <= ks < 80 and not OPT.get('nohl'): g.wait_vm(('H', s))
        nxt = ks + 2
        reads = tr_reads(nxt, nxt & 3, second) if nxt < NKS else []
        buf = V_ACC + (j & 1) * 32
        if not OPT.get('noln'):
            if ks == 18: g.wait_vm('lnx'); fq += ln1_stats_items()
            if ks == 28: assert not fq; g.wait_vm('lnm'); fq += ln1_mod_items()
            if ks == 31: assert not fq; ln1_store()
        if j == 1: take = s in (1, 3, 5, 7)
        elif j == 4 and KVCHK == 20: take = s >= 1
        else: take = s % 4 == 1
        if OPT.get('nospread'): take = s >= 1 if j != 1 else take
        epi = pend.pop(0) if (pend and take) else None
        fb = ks % 3
        wfirst = j < 2 or j >= 4
        for m in range(8):
            cb, t = m >> 1, m & 1
            d = buf + (t * 4 + cb) * 4
            wf = f"v[{V_FR + fb*16 + cb*4}:{V_FR + fb*16 + cb*4 + 3}]"
            cf = f"a[{(s*2+t)*4}:{(s*2+t)*4+3}]"
            cin = "0" if s == 0 else f"v[{d}:{d+3}]"
            g(f"v_mfma_f32_16x16x32_bf16 v[{d}:{d+3}], {wf}, {cf}, {cin}" if wfirst else f"v_mfma_f32_16x16x32_bf16 v[{d}:{d+3}], {cf}, {wf}, {cin}")
            if m == 3 and extra: g("s_waitcnt lgkmcnt(3)")
            if m == 7 and reads: g("s_waitcnt lgkmcnt(7)")
            if reads: g(reads[m])
            elif m == 7 and ks + 1 < NKS: g("s_waitcnt lgkmcnt(0)")
            if epi and 1 <= m <= 4: g(epi[0][m-1])
            if epi and m == 5 and not OPT.get('nost'):
                g.stamp(f"st{ks}a"); emit(g, epi[1]); g.stamp(f"st{ks}b")
            if m == 2 and dq:
                g.stamp(f"dm{ks}a"); emit(g, dq.pop(0)); g.stamp(f"dm{ks}b")
            for _ in range(2 if not epi else 1):
                if fq: g(fq.pop(0))
        g.stamp(f"ke{ks}")
        for sh in HSCHED.get(ks, []):
            if not OPT.get('nohl'): emit(g, hload(sh))
        if s == 15:
            if j < 4: pend = epilogue(j)
            g.stamp(f"sub{j}_done")
    g("s_nop 7")
    for qs in range(2):
        for s in range(4):
            j, u = s >> 1, s & 1
            a = V_ACC + j*32 + (qs*4 + 2*u)*4; b = a + 4
            for k, (x, y) in enumerate(((a, a+1), (a+2, a+3), (b, b+1), (b+2, b+3))): g(f"v_cvt_pk_bf16_f32 v{16+k}, v{x}, v{y}")
            for k in range(4): g(f"v_accvgpr_write_b32 a{A_Q+(qs*4+s)*4+k}, v{16+k}")
    p_att.attention_body(g, unit_sc1, sc1=True, fused=fused)

def unit_sc1(u):
    its = uniform_unit(u)
    return [((x[0].replace(" lds", " sc1 lds"), x[1]) if isinstance(x, tuple) else x) for x in its]

tRB, tCB, tAO, tWO, tM0W, tR, tU, tX, tY, tZ, tRB4, tCB4, tT16 = 23, 24, 25, 26, 27, 28, 29, 30, 31, 32, 33, 34, 35
WS_ST = WS_STAT + 0x100000 * 0 + 0x40000
TAG = 0x3f800000
A_ACC, A_AF, V_WF, V_WV, RING, DEPTH = 0, 64, 16, 48, 5, 4
C_ALL = 32
C_PART = 64
WS_PART = 0x1200000

def stat_slot(g, dst, t):
    g(f"s_and_b32 s{dst}, s2, 7", f"s_lshl_b32 s{dst}, s{dst}, 2", f"s_bfe_u32 s{t}, s2, 0x20003", f"s_add_u32 s{dst}, s{dst}, s{t}",
      f"s_lshl_b32 s{dst}, s{dst}, 2", f"s_and_b32 s{t}, s{sWAVE}, 3", f"s_add_u32 s{dst}, s{dst}, s{t}", f"s_lshl_b32 s{dst}, s{dst}, 4",
      f"s_lshr_b32 s{t}, s2, 5", f"s_lshl_b32 s{t}, s{t}, 1", f"s_add_u32 s{dst}, s{dst}, s{t}",
      f"s_lshr_b32 s{t}, s{sWAVE}, 2", f"s_add_u32 s{dst}, s{dst}, s{t}", f"s_lshl_b32 s{dst}, s{dst}, 8", f"s_add_u32 s{dst}, s{dst}, {hex(WS_ST)}")

def spin(g, vdst, srd, soff, target, t1, t2, sleep=None):
    ok, loop = g.newlabel("sok"), g.newlabel("sloop")
    sleep = OPT.get('sleep', 4) if sleep is None else min(sleep, OPT.get('sleep', 4))
    g(f"s_cmp_lg_u32 s{sWAVE}, 0", f"s_cbranch_scc1 {ok}", f"s_mov_b32 s{t2}, 0x40000")
    g.label(loop)
    g(f"buffer_load_dword v{vdst}, off, s[{srd}:{srd+3}], s{soff} sc1", "s_waitcnt vmcnt(0)")
    g(f"v_readfirstlane_b32 s{t1}, v{vdst}", "s_nop 3", f"s_cmp_ge_u32 s{t1}, {target}", f"s_cbranch_scc1 {ok}")
    g(f"s_sleep {sleep}", f"s_sub_u32 s{t2}, s{t2}, 1", f"s_cmp_lg_u32 s{t2}, 0", f"s_cbranch_scc1 {loop}")
    g.label(ok)

def wsplit_setup(g, nks, a_off, a_nks, wname):
    g(f"s_load_dwordx2 s[{S_A}:{S_A+1}], s[0:1], {KA[wname]}")
    setup_dma128(g, 1024, nat=False, v0=V_WV, v1=V_WV+1); setup_tr128(g, nat=False)
    for p in range(1, 4): g(f"v_add_u32 v{V_WV+p}, {p*7168}, v{V_WV}")
    g(f"s_mul_i32 s{tM0W}, s{sWAVE}, {RING*4096}")
    for c in range(4): g(f"v_add_u32 v{V_TR+c}, s{tM0W}, v{V_TR+c}")
    g(f"s_mul_i32 s{tAO}, s{tRB}, {4*a_nks*1024}", f"s_mul_i32 s{tX}, s{sWAVE}, {nks*1024}", f"s_add_u32 s{tAO}, s{tAO}, s{tX}", f"s_add_u32 s{tAO}, s{tAO}, {hex(a_off)}")
    g(f"s_mul_i32 s{tWO}, s{sWAVE}, {nks*32*1024}", f"s_lshl_b32 s{tX}, s{tCB}, 7", f"s_add_u32 s{tWO}, s{tWO}, s{tX}")
    g("s_waitcnt lgkmcnt(0)"); finish_srd(g, S_A, wname)
def ws_wdma(j):
    out = [f"s_add_u32 m0, s{tM0W}, {(j % RING)*4096}", f"s_add_u32 s{tX}, s{tWO}, {j*32*1024}"]
    for p in range(4): out.append((f"buffer_load_dwordx4 v{V_WV+p}, s[{S_A}:{S_A+3}], s{tX} offen offset:{p*1024} lds", ('tW', j)))
    return out
def ws_aload(j, a_nks):
    out = []
    for r in range(4):
        b = A_AF + (j % DEPTH)*16 + r*4
        out += [f"s_add_u32 s{tY}, s{tAO}, {(r*a_nks + j)*1024}", (f"buffer_load_dwordx4 a[{b}:{b+3}], v{V_L16}, s[{S_WS}:{S_WS+3}], s{tY} offen sc1", ('tA', j))]
    return out
def ws_reads(j):
    fb = V_WF + (j & 1)*16
    out = []
    for c in range(4):
        out.append(f"ds_read_b64_tr_b16 v[{fb+4*c}:{fb+4*c+1}], v{V_TR+c} offset:{(j % RING)*4096}")
        out.append(f"ds_read_b64_tr_b16 v[{fb+4*c+2}:{fb+4*c+3}], v{V_TR+c} offset:{(j % RING)*4096+2048}")
    return out
def wsplit_main(g, nks, a_nks, tag, a_off=None):
    for j in range(min(DEPTH, nks)): emit(g, ws_aload(j, a_nks))
    if OPT.get('tact'):
        per = 2 if nks == 16 else 1
        if per == 2:
            g("v_lshrrev_b32 v1, 4, v0", f"v_mul_u32_u24 v1, {a_nks*1024}, v1", "v_bfe_u32 v10, v0, 3, 1", "v_lshl_add_u32 v1, v10, 10, v1", "v_and_b32 v10, 7, v0", "v_lshl_add_u32 v1, v10, 7, v1")
            g(f"s_lshl_b32 s{tX}, s{tCB}, 11", f"s_add_u32 s{tX}, s{tX}, s{tAO}")
        else:
            g("v_lshrrev_b32 v1, 3, v0", f"v_mul_u32_u24 v1, {a_nks*1024}, v1", "v_and_b32 v10, 7, v0", "v_lshl_add_u32 v1, v10, 7, v1",
              f"v_mov_b32 v10, {hex(OOB)}", "v_cmp_gt_u32 vcc, 32, v0", "s_nop 1", "v_cndmask_b32 v1, v10, v1, vcc")
            g(f"s_lshl_b32 s{tX}, s{tCB}, 10", f"s_add_u32 s{tX}, s{tX}, s{tAO}", f"s_cmp_lt_u32 s{tCB}, 7", f"s_cselect_b32 s{tX}, s{tX}, s{sOOB}")
        g.vmem(f"buffer_load_dword v2, v1, s[{S_WS}:{S_WS+3}], s{tX} offen sc1", 'tch')
    g.wait_vm(('tW', 0)); g(ws_reads(0))
    g.stamp(tag + "_first")
    for j in range(nks):
        rd = []
        if j + 1 < nks:
            g.wait_vm(('tW', j + 1)); rd = ws_reads(j + 1)
        g("s_waitcnt lgkmcnt(0)")
        g.wait_vm(('tA', j))
        fb = V_WF + (j & 1)*16
        for m in range(16):
            c, r = m >> 2, m & 3
            d = A_ACC + (c*4 + r)*4; b = A_AF + (j % DEPTH)*16 + r*4
            cin = "0" if j == 0 else f"a[{d}:{d+3}]"
            g(f"v_mfma_f32_16x16x32_bf16 a[{d}:{d+3}], v[{fb+4*c}:{fb+4*c+3}], a[{b}:{b+3}], {cin}")
            if rd and m < 8: g(rd[m])
            if m == 8 and j + DEPTH < nks: emit(g, ws_wdma(j + DEPTH))
        if j + DEPTH < nks: emit(g, ws_aload(j + DEPTH, a_nks))
    g.stamp(tag + "_loop")
    g("s_nop 7", "s_barrier")
    g(f"s_lshl_b32 s{tX}, s{sWAVE}, 14", f"v_add_u32 v10, s{tX}, v{V_L16}")
    for q in range(16): g(f"ds_write_b128 v10, a[{A_ACC+4*q}:{A_ACC+4*q+3}] offset:{q*1024}")
    g(f"s_lshl_b32 s{tX}, s{tU}, 3", f"s_add_u32 s{tX}, s{tX}, s{tR}", f"s_lshl_b32 s{tX}, s{tX}, 10", f"v_add_u32 v10, s{tX}, v{V_L16}", "v_add_u32 v11, 0x10000, v10",
      "s_waitcnt lgkmcnt(0)", "s_barrier")
    for p in range(8):
        a = 10 if p < 4 else 11
        for c in range(2):
            if p == 7 and c == 1: g("s_waitcnt lgkmcnt(8)")
            g(f"ds_read_b128 v[{64+(p*2+c)*4}:{64+(p*2+c)*4+3}], v{a} offset:{(p%4)*16384 + c*4096}")
    g("s_waitcnt lgkmcnt(0)")
    for st in (32, 16, 8):
        for k in range(st): g(f"v_add_f32 v{64+k}, v{64+k}, v{64+k+st}")
    g.stamp(tag + "_red")

def tail(g):
    g("v_mbcnt_lo_u32_b32 v0, -1, 0", "v_mbcnt_hi_u32_b32 v0, -1, v0", f"v_lshlrev_b32 v{V_L16}, 4, v0")
    g(f"s_and_b32 s{tRB}, s2, 7", f"s_lshl_b32 s{tRB}, s{tRB}, 2", f"s_bfe_u32 s{tX}, s2, 0x20003", f"s_add_u32 s{tRB}, s{tRB}, s{tX}", f"s_lshr_b32 s{tCB}, s2, 5")
    g(f"s_and_b32 s{tR}, s{sWAVE}, 3", f"s_lshr_b32 s{tU}, s{sWAVE}, 2")
    kKQ, kRB, kCB, kWR, kWC, kAO, kWO, kM0, kO = 36, 37, 38, 39, 40, 41, 42, 43, 44
    NS3 = 5
    g(f"s_bfe_u32 s{kKQ}, s2, 0x20001", f"s_and_b32 s{kRB}, s2, 1", f"s_lshl_b32 s{kRB}, s{kRB}, 3", f"s_bfe_u32 s{tX}, s2, 0x30003", f"s_add_u32 s{kRB}, s{kRB}, s{tX}", f"s_lshr_b32 s{kCB}, s2, 6")
    g(f"s_and_b32 s{kWR}, s{sWAVE}, 3", f"s_lshr_b32 s{kWC}, s{sWAVE}, 2")
    g(f"s_load_dwordx2 s[{S_A}:{S_A+1}], s[0:1], {KA['wo']}", f"s_load_dwordx2 s[{S_B}:{S_B+1}], s[0:1], {KA['x']}")
    g("v_lshrrev_b32 v14, 4, v0", "v_lshlrev_b32 v3, 10, v14", "v_bfe_u32 v15, v0, 1, 3", "v_xor_b32 v15, v15, v14", "v_and_b32 v10, 1, v0", "v_lshlrev_b32 v10, 4, v10",
      "v_add_u32 v3, v3, v10", "v_xor_b32 v11, 4, v15", "v_lshl_add_u32 v4, v11, 5, v3", "v_lshl_add_u32 v3, v15, 5, v3", f"v_add_u32 v4, {4*1024 - 1024}, v4")
    g("v_lshrrev_b32 v14, 4, v0", "v_bfe_u32 v15, v0, 2, 2", "v_lshl_add_u32 v14, v14, 2, v15", "v_lshlrev_b32 v6, 8, v14", "v_and_b32 v14, 7, v14", "v_lshl_add_u32 v6, v14, 5, v6",
      "v_and_b32 v15, 3, v0", "v_lshl_add_u32 v6, v15, 3, v6", f"s_lshl_b32 s{tX}, s{kWC}, 7", f"v_xor_b32 v6, s{tX}, v6", "v_add_u32 v6, 16384, v6")
    for c in range(1, 4): g(f"v_xor_b32 v{6+c}, {c << 5}, v6")
    g(f"s_lshl_b32 s{tX}, s{kWR}, 12", f"v_add_u32 v10, s{tX}, v{V_L16}")
    g(f"s_lshl_b32 s{kAO}, s{kRB}, 3", f"s_add_u32 s{kAO}, s{kAO}, s{sWAVE}", f"s_lshl_b32 s{kAO}, s{kAO}, 17", f"s_lshl_b32 s{tX}, s{kKQ}, 15", f"s_add_u32 s{kAO}, s{kAO}, s{tX}", f"s_add_u32 s{kAO}, s{kAO}, {hex(WS_CTX)}")
    g(f"s_lshl_b32 s{kWO}, s{kKQ}, 20", f"s_lshl_b32 s{tX}, s{sWAVE}, 13", f"s_add_u32 s{kWO}, s{kWO}, s{tX}", f"s_lshl_b32 s{tX}, s{kCB}, 8", f"s_add_u32 s{kWO}, s{kWO}, s{tX}")
    g(f"s_lshl_b32 s{kM0}, s{sWAVE}, 11")
    g("s_waitcnt lgkmcnt(0)"); finish_srd(g, S_A, 'wo'); finish_srd(g, S_B, 'x')
    def w3(st):
        return [f"s_add_u32 m0, s{kM0}, {(st % NS3)*32768 + 16384}", f"s_add_u32 s{tX}, s{kWO}, {st*64*1024}",
                (f"buffer_load_dwordx4 v3, s[{S_A}:{S_A+3}], s{tX} offen lds", ('3W', st)), (f"buffer_load_dwordx4 v4, s[{S_A}:{S_A+3}], s{tX} offen offset:1024 lds", ('3W', st))]
    def a3(st):
        return [f"s_add_u32 m0, s{kM0}, {(st % NS3)*32768}", f"s_add_u32 s{tX}, s{kAO}, {st*2048}",
                (f"buffer_load_dwordx4 v{V_L16}, s[{S_WS}:{S_WS+3}], s{tX} offen sc1 lds", ('3A', st)), (f"buffer_load_dwordx4 v{V_L16}, s[{S_WS}:{S_WS+3}], s{tX} offen offset:1024 sc1 lds", ('3A', st))]
    g.wait_vm('ctxst'); g("s_barrier")
    cnt_off(g, tX, C_CTX, sI); signal(g, S_WS, ('s', tX), 1, tY)
    for st in range(NS3 - 1): emit(g, w3(st))
    g(f"s_mov_b32 s{tZ}, {C_ALL*4}"); spin(g, 1, S_DBG, tZ, 256, tX, tY)
    g(f"s_sub_u32 s{tY}, 15, s{kRB}", f"s_min_u32 s{tX}, s{kRB}, s{tY}"); cnt_off(g, tZ, C_CTX, tX)
    spin(g, 1, S_WS, tZ, 32, tX, tY)
    g("s_barrier")
    g.stamp("ctx_ok")
    for st in range(NS3 - 1): emit(g, a3(st))
    g(f"s_lshl_b32 s{kO}, s{kCB}, 2", f"s_add_u32 s{kO}, s{kO}, s{kKQ}")
    g("v_and_b32 v12, 7, v0", "v_bfe_u32 v13, v0, 3, 2", "v_lshrrev_b32 v14, 5, v0")
    g(f"s_lshr_b32 s{tX}, s{kO}, 1", f"s_lshl_b32 s{tY}, s{kRB}, 3", f"s_add_u32 s{tT16}, s{tX}, s{tY}", f"s_and_b32 s{tZ}, s{kO}, 1")
    g(f"s_lshl_b32 s{tX}, s{tT16}, 4", f"s_lshl_b32 s{tY}, s{tZ}, 3", f"s_add_u32 s{tX}, s{tX}, s{tY}", f"v_add_u32 v15, s{tX}, v12")
    g(f"s_lshl_b32 s{tX}, s{sWAVE}, 1", f"v_add_u32 v11, s{tX}, v14", "v_lshlrev_b32 v11, 5, v11", "v_lshl_add_u32 v11, v13, 2, v11")
    g("v_lshlrev_b32 v15, 10, v15", "v_lshl_add_u32 v15, v11, 1, v15", "v_lshlrev_b32 v11, 2, v11")
    g(f"s_lshl_b32 s{tY}, s{tZ}, 7", "v_lshlrev_b32 v12, 4, v12", "v_lshl_add_u32 v12, v13, 8, v12", f"v_add_u32 v12, s{tY}, v12")
    g("v_lshl_add_u32 v13, v14, 11, v12", "v_lshl_add_u32 v12, v14, 10, v12")
    g.vmem(f"buffer_load_dwordx2 v[120:121], v15, s[{S_B}:{S_B+3}], 0 offen", 'xr'); g.vmem(f"buffer_load_dwordx2 v[122:123], v15, s[{S_B}:{S_B+3}], 0 offen offset:32", 'xr')
    g(f"s_mov_b32 s{tX}, {hex(WS_MOD + 1024*4)}")
    for k, off in enumerate((0, 64, 2048, 2048+64, 4096, 4096+64)):
        if off >= 4096: g(f"s_mov_b32 s{tX}, {hex(WS_MOD + 2048*4)}"); off -= 4096
        g.vmem(f"buffer_load_dwordx4 v[{96+4*k}:{99+4*k}], v11, s[{S_WS}:{S_WS+3}], s{tX} offen offset:{off} sc1", 'mods')
    def r3(ks):
        kk = ks & 1; fb = 16 + (ks & 1)*24
        out = [f"ds_read_b128 v[{fb+16+4*r}:{fb+16+4*r+3}], v10 offset:{r*2048+kk*1024}" for r in range(2)]
        for c in range(4):
            out.append(f"ds_read_b64_tr_b16 v[{fb+4*c}:{fb+4*c+1}], v{6+c} offset:{kk*8192}")
            out.append(f"ds_read_b64_tr_b16 v[{fb+4*c+2}:{fb+4*c+3}], v{6+c} offset:{kk*8192+4096}")
        return out
    g.wait_vm(('3A', 0)); g("s_barrier")
    g.stamp("k3_first")
    g(r3(0))
    NST = 16
    dq3 = []
    for ks in range(2*NST):
        st, kk = ks >> 1, ks & 1
        if kk == 1 and st + 1 < NST:
            if not OPT.get('k3nodma') or st + 1 < NS3 - 1: g.wait_vm(('3A', st + 1)); g.wait_vm(('3W', st + 1))
            if not OPT.get('k3nobar'): g("s_barrier")
            if st + NS3 - 1 < NST and not OPT.get('k3nodma'): dq3 = [w3(st + NS3 - 1), a3(st + NS3 - 1)]
            d = (((st + 1) % NS3) - (st % NS3)) * 32768
            for v in (6, 7, 8, 9, 10): g(f"v_add_u32 v{v}, {hex(d & 0xffffffff)}, v{v}")
        rd = r3(ks + 1) if ks + 1 < 2*NST else []
        last = not rd
        fb = 16 + (ks & 1)*24
        for m in range(8):
            c, r = m >> 1, m & 1
            if r == 0: g(f"s_waitcnt lgkmcnt({6 if not last else 6 - 2*c - 0 if False else (6 if not last else max(0, 6 - 2*c))})")
            d = 64 + (c*2 + r)*4
            cin = "0" if ks == 0 else f"v[{d}:{d+3}]"
            g(f"v_mfma_f32_16x16x32_bf16 v[{d}:{d+3}], v[{fb+4*c}:{fb+4*c+3}], v[{fb+16+4*r}:{fb+16+4*r+3}], {cin}")
            if rd:
                g(rd.pop(0))
                if m >= 6 and rd: g(rd.pop(0))
            if m in (3, 5) and dq3: emit(g, dq3.pop(0))
    g.stamp("k3_loop")
    g("s_nop 7")
    g(f"s_lshl_b32 s{tX}, s{kKQ}, 7", f"s_lshl_b32 s{tY}, s{kRB}, 3", f"s_add_u32 s{tX}, s{tX}, s{tY}", f"s_lshl_b32 s{tY}, s{kWR}, 1", f"s_add_u32 s{tX}, s{tX}, s{tY}",
      f"s_lshl_b32 s{tX}, s{tX}, 4", f"s_lshl_b32 s{tY}, s{kCB}, 2", f"s_add_u32 s{tX}, s{tX}, s{tY}", f"s_lshl_b32 s{tY}, s{kWC}, 1", f"s_add_u32 s{tX}, s{tX}, s{tY}",
      f"s_lshl_b32 s{tX}, s{tX}, 10", f"s_add_u32 s{tX}, s{tX}, {hex(WS_PART)}")
    for r in range(2):
        for cp in range(2):
            qa, qb = 64 + ((2*cp)*2 + r)*4, 64 + ((2*cp+1)*2 + r)*4
            t = 16 + (r*2 + cp)*4
            g(f"v_cvt_pk_bf16_f32 v{t}, v{qa}, v{qa+1}", f"v_cvt_pk_bf16_f32 v{t+1}, v{qa+2}, v{qa+3}", f"v_cvt_pk_bf16_f32 v{t+2}, v{qb}, v{qb+1}", f"v_cvt_pk_bf16_f32 v{t+3}, v{qb+2}, v{qb+3}")
            g.vmem(f"buffer_store_dwordx4 v[{t}:{t+3}], v{V_L16}, s[{S_WS}:{S_WS+3}], s{tX} offen offset:{cp*1024} sc1", 'pst')
        if r == 0: g(f"s_add_u32 s{tX}, s{tX}, 16384")
    g.wait_vm('pst'); g("s_barrier")
    cnt_off(g, tX, C_PART, kRB); signal(g, S_WS, ('s', tX), 1, tY)
    cnt_off(g, tY, C_PART, kRB); g(f"s_mov_b32 s{kAO}, s{tY}"); spin(g, 1, S_WS, kAO, 16, tX, tY, sleep=2)
    g("s_barrier")
    g.stamp("part_ok")
    g(f"s_lshl_b32 s{tX}, s{tT16}, 14", f"s_lshl_b32 s{tY}, s{sWAVE}, 11", f"s_add_u32 s{tX}, s{tX}, s{tY}", f"s_add_u32 s{tX}, s{tX}, {hex(WS_PART)}")
    for q in range(4):
        g.vmem(f"buffer_load_dwordx4 v[{16+4*q}:{19+4*q}], v12, s[{S_WS}:{S_WS+3}], s{tX} offen sc1", ('pl', q))
        if q < 3: g(f"s_add_u32 s{tX}, s{tX}, {128*16384}")
    for q in range(4):
        g.wait_vm(('pl', q))
        for d in range(4):
            if q == 0: g(f"v_lshlrev_b32 v{64+2*d}, 16, v{16+d}", f"v_and_b32 v{65+2*d}, 0xffff0000, v{16+d}")
            else: g(f"v_lshlrev_b32 v72, 16, v{16+4*q+d}", f"v_and_b32 v73, 0xffff0000, v{16+4*q+d}", f"v_add_f32 v{64+2*d}, v{64+2*d}, v72", f"v_add_f32 v{65+2*d}, v{65+2*d}, v73")
    for c in range(2):
        g(f"v_lshlrev_b32 v72, 16, v{120+2*c}", f"v_and_b32 v73, 0xffff0000, v{120+2*c}", f"v_lshlrev_b32 v74, 16, v{121+2*c}", f"v_and_b32 v75, 0xffff0000, v{121+2*c}")
        for k in range(4): g(f"v_fma_f32 v{64+4*c+k}, v{64+4*c+k}, v{96+4*c+k}, v{72+k}")
    g(f"s_lshl_b32 s{tX}, s{tT16}, 15", f"s_lshl_b32 s{tY}, s{sWAVE}, 12", f"s_add_u32 s{tX}, s{tX}, s{tY}", f"s_add_u32 s{tX}, s{tX}, {hex(WS_X1)}")
    g.vmem(f"buffer_store_dwordx4 v[64:67], v13, s[{S_WS}:{S_WS+3}], s{tX} offen sc1", 'x1st'); g.vmem(f"buffer_store_dwordx4 v[68:71], v13, s[{S_WS}:{S_WS+3}], s{tX} offen offset:1024 sc1", 'x1st')
    def red8(v, t):
        g("s_nop 1", f"v_add_f32_dpp v{v}, v{v}, v{v} row_ror:8 row_mask:0xf bank_mask:0xf")
        cross_g(g, v, t, "v_add_f32")
    g("v_add_f32 v72, v64, v65", "v_add_f32 v73, v66, v67", "v_add_f32 v74, v68, v69", "v_add_f32 v75, v70, v71", "v_add_f32 v72, v72, v73", "v_add_f32 v74, v74, v75", "v_add_f32 v72, v72, v74")
    red8(72, 73)
    g("v_mul_f32 v72, 0x3c800000, v72")
    g("v_sub_f32 v74, v64, v72", "v_mul_f32 v73, v74, v74")
    for k in range(1, 8): g(f"v_sub_f32 v74, v{64+k}, v72", "v_fmac_f32 v73, v74, v74")
    red8(73, 74)
    g("v_and_b32 v74, 7, v0", "v_lshlrev_b32 v74, 6, v74", f"s_lshl_b32 s{tX}, s{sWAVE}, 3", f"v_add_u32 v75, s{tX}, v74", "ds_write_b64 v75, v[72:73]", "s_waitcnt lgkmcnt(0)", "s_barrier")
    for q in range(4): g(f"ds_read_b128 v[{76+4*q}:{79+4*q}], v74 offset:{q*16}")
    g("s_waitcnt lgkmcnt(0)")
    g("v_add_f32 v72, v76, v78", "v_add_f32 v73, v80, v82", "v_add_f32 v72, v72, v73", "v_add_f32 v73, v84, v86", "v_add_f32 v72, v72, v73", "v_add_f32 v73, v88, v90", "v_add_f32 v72, v72, v73")
    g("v_mul_f32 v72, 0.125, v72" if False else "v_mul_f32 v72, 0x3e000000, v72")
    g("v_add_f32 v73, v77, v79")
    for q in range(2, 8): g(f"v_add_f32 v73, v73, v{77+2*q}")
    for q in range(8): g(f"v_sub_f32 v74, v{76+2*q}, v72", "v_mul_f32 v75, v74, v74", "v_fmac_f32 v73, 0x42800000, v75")
    g("v_mov_b32 v74, 0x3727c5ac", "v_fmac_f32 v74, 0x3b000000, v73", "v_rsq_f32 v74, v74", "s_nop 0")
    for k in range(8): g(f"v_sub_f32 v{64+k}, v{64+k}, v72")
    for k in range(8): g(f"v_mul_f32 v{64+k}, v{64+k}, v74")
    for k in range(8): g(f"v_add_f32 v{112+k}, 1.0, v{112+k}")
    for k in range(8): g(f"v_fma_f32 v{64+k}, v{64+k}, v{112+k}, v{104+k}")
    for k in range(4): g(f"v_cvt_pk_bf16_f32 v{72+k}, v{64+2*k}, v{65+2*k}")
    g(f"s_lshl_b32 s{tX}, s{tT16}, 14", f"s_lshl_b32 s{tY}, s{sWAVE}, 11", f"s_add_u32 s{tX}, s{tX}, s{tY}", f"s_add_u32 s{tX}, s{tX}, {hex(WS_H2)}")
    g.vmem(f"buffer_store_dwordx4 v[72:75], v12, s[{S_WS}:{S_WS+3}], s{tX} offen sc1", 'h2st')
    g(f"s_lshr_b32 s{kO}, s{kRB}, 1")
    g.stamp("stats_ok")
    LK5 = g.newlabel("k5")
    g(f"s_load_dwordx2 s[{S_A}:{S_A+1}], s[0:1], {KA['wg']}", f"s_load_dwordx2 s[{S_B}:{S_B+1}], s[0:1], {KA['wu']}")
    g(f"s_and_b32 s{tRB4}, s2, 1", f"s_lshl_b32 s{tRB4}, s{tRB4}, 2", f"s_bfe_u32 s{tX}, s2, 0x20003", f"s_add_u32 s{tRB4}, s{tRB4}, s{tX}",
      f"s_bfe_u32 s{tCB4}, s2, 0x20001", f"s_mul_i32 s{tCB4}, s{tCB4}, 7", f"s_lshr_b32 s{tX}, s2, 5", f"s_add_u32 s{tCB4}, s{tCB4}, s{tX}")
    g(f"s_lshl_b32 s{tT16}, s{tRB4}, 4", f"s_lshl_b32 s{tX}, s{sWAVE}, 1", f"s_add_u32 s{tT16}, s{tT16}, s{tX}")
    setup_dma128(g, 3584, nat=False); setup_tr128(g, nat=False)
    g(f"s_mul_i32 s{sWB}, s{sWAVE}, {16*3584}", f"s_lshl_b32 s{tX}, s{tCB4}, 7", f"s_add_u32 s{sWB}, s{sWB}, s{tX}", f"s_lshl_b32 s{sM0B}, s{sWAVE}, 11")
    g("s_waitcnt lgkmcnt(0)"); finish_srd(g, S_A, 'wg'); finish_srd(g, S_B, 'wu')
    def dma4(c):
        j, q = c >> 2, c & 3
        srd = S_A if j == 0 else S_B
        return [f"s_add_u32 s{tX}, s{sWB}, {hex(q*128*3584)}", f"s_add_u32 m0, s{sM0B}, {hex(c*16384)}",
                (f"buffer_load_dwordx4 v{V_W0}, s[{srd}:{srd+3}], s{tX} offen lds", ('W', c)),
                (f"buffer_load_dwordx4 v{V_W1}, s[{srd}:{srd+3}], s{tX} offen offset:1024 lds", ('W', c))]
    g.wait_vm('h2st'); g("s_barrier")
    cnt_off(g, tX, C_H2, 44); signal(g, S_WS, ('s', tX), 1, tY)
    g("s_cmp_ge_u32 s2, 224", f"s_cbranch_scc1 {LK5}")
    for c in range(4): emit(g, dma4(c))
    cnt_off(g, tZ, C_H2, tRB4); spin(g, 1, S_WS, tZ, 32, tX, tY)
    g("s_barrier")
    g.stamp("h2_ok")
    g.vm = [('W', c) for c in range(4) for _ in range(2)]
    def hload4(s4):
        out = []
        for t in range(2):
            out.append(f"s_lshl_b32 s{tX}, s{tT16}, 14"); out.append(f"s_add_u32 s{tX}, s{tX}, {hex(WS_H2 + t*16384 + s4*4096)}")
            for k in range(4):
                s = s4*4 + k
                out.append((f"buffer_load_dwordx4 a[{(s*2+t)*4}:{(s*2+t)*4+3}], v{V_L16}, s[{S_WS}:{S_WS+3}], s{tX} offen offset:{k*1024} sc1", ('H', s4)))
        return out
    emit(g, hload4(0)); emit(g, hload4(1))
    if OPT.get('th2'):
        g(f"s_lshr_b32 s{tX}, s2, 5", f"s_mul_i32 s{tX}, s{tX}, 20", f"v_add_u32 v1, s{tX}, v0", "v_lshrrev_b32 v11, 6, v1", "v_lshlrev_b32 v11, 14, v11", "v_and_b32 v10, 63, v1",
          "v_lshl_add_u32 v11, v10, 7, v11", "v_cmp_gt_u32 vcc, 20, v0", f"v_mov_b32 v10, {hex(OOB)}", "s_nop 0", "v_cndmask_b32 v11, v10, v11, vcc",
          "v_cmp_gt_u32 vcc, 128, v1", "s_nop 1", "v_cndmask_b32 v11, v10, v11, vcc")
        g(f"s_lshl_b32 s{tX}, s{tT16}, 14", f"s_add_u32 s{tX}, s{tX}, {hex(WS_H2 + 8192)}")
        g.vmem(f"buffer_load_dword v2, v11, s[{S_WS}:{S_WS+3}], s{tX} offen sc1", 'tch')
    g.wait_vm(('W', 0)); g("s_barrier")
    def hook(ks, where):
        if where == 'pre':
            if ks == 0: emit(g, hload4(2))
            if ks == 2: emit(g, hload4(3))
            if ks < 16 and ks % 4 == 0: g.wait_vm(('H', ks // 4))
        return False
    p_kv.gemm_res_loop(g, 2, list(range(8)), {0: [4, 5], 1: [6], 2: [7]}, dma4, lambda j: True, None, hook, second=2048)
    g.stamp("k4_loop")
    g("s_nop 7", f"s_mov_b32 s{tY}, {hex(LOG2E)}")
    for i in range(32):
        g(f"v_mul_f32 v{16+(i%16)}, s{tY}, v{64+i}")
        if i % 16 == 15:
            b = i - 15
            for k in range(16): g(f"v_exp_f32 v{16+k}, -v{16+k}")
            for k in range(16): g(f"v_add_f32 v{16+k}, 1.0, v{16+k}")
            for k in range(16): g(f"v_rcp_f32 v{16+k}, v{16+k}")
            for k in range(16): g(f"v_mul_f32 v{64+b+k}, v{64+b+k}, v{96+b+k}")
            for k in range(16): g(f"v_mul_f32 v{64+b+k}, v{64+b+k}, v{16+k}")
    g(f"s_mul_i32 s{tX}, s{tT16}, {56*1024}", f"s_lshl_b32 s{tY}, s{tCB4}, 11", f"s_add_u32 s{tX}, s{tX}, s{tY}", f"s_add_u32 s{tX}, s{tX}, {hex(WS_ACT)}")
    for t in range(2):
        for u in range(2):
            a = 64 + (t*4 + 2*u)*4
            for k in range(4): g(f"v_cvt_pk_bf16_f32 v{a+k}, v{a+2*k}, v{a+2*k+1}")
            g.vmem(f"buffer_store_dwordx4 v[{a}:{a+3}], v{V_L16}, s[{S_WS}:{S_WS+3}], s{tX} offen offset:{u*1024} sc1", 'actst')
        if t == 0: g(f"s_add_u32 s{tX}, s{tX}, {56*1024}")
    g("s_waitcnt vmcnt(0)", "s_barrier")
    cnt_off(g, tX, C_ACT, tRB4); signal(g, S_WS, ('s', tX), 1, tY)
    g.label(LK5)
    g.vm = []
    g.stamp("k5_entry")
    wsplit_setup(g, 7, WS_ACT, 56, 'wd')
    for j in range(DEPTH): emit(g, ws_wdma(j))
    if OPT.get('twd'):
        g(f"s_and_b32 s{tX}, s{tRB}, 3", f"s_mul_i32 s{tX}, s{tX}, 7", f"s_add_u32 s{tX}, s{tX}, s{sWAVE}", f"s_lshl_b32 s{tX}, s{tX}, 16", f"s_lshl_b32 s{tY}, s{tCB}, 7",
          f"s_add_u32 s{tX}, s{tX}, s{tY}", f"s_cmp_lt_u32 s{sWAVE}, 7", f"s_cselect_b32 s{tX}, s{tX}, s{sOOB}", "v_lshlrev_b32 v1, 10, v0")
        g.vmem(f"buffer_load_dword v2, v1, s[{S_A}:{S_A+3}], s{tX} offen", 'tch')
    X1LOAD = True
    g(f"s_lshl_b32 s{tX}, s{tCB}, 6", f"s_lshl_b32 s{tY}, s{tU}, 5", f"s_add_u32 s{tX}, s{tX}, s{tY}", "v_lshrrev_b32 v15, 4, v0", "v_lshlrev_b32 v15, 2, v15", f"v_add_u32 v15, s{tX}, v15")
    g("v_lshlrev_b32 v13, 2, v15", f"s_mov_b32 s{tX}, {hex(WS_MOD + 2560*4)}")
    g.vmem(f"buffer_load_dwordx4 v[60:63], v13, s[{S_WS}:{S_WS+3}], s{tX} offen sc1", 'gb'); g.vmem(f"buffer_load_dwordx4 v[12:15], v13, s[{S_WS}:{S_WS+3}], s{tX} offen offset:64 sc1", 'gb')
    g(f"s_load_dwordx2 s[{S_B}:{S_B+1}], s[0:1], {KA['out']}")
    g(f"s_lshr_b32 s{tX}, s{tRB}, 2"); cnt_off(g, tZ, C_ACT, tX); spin(g, 1, S_WS, tZ, 28, tX, tY)
    g("s_waitcnt lgkmcnt(0)"); finish_srd(g, S_B, 'out')
    g("s_barrier")
    g.stamp("act_ok")
    g(f"s_lshl_b32 s{tX}, s{tRB}, 2", f"s_add_u32 s{tX}, s{tX}, s{tR}", f"s_lshl_b32 s{tX}, s{tX}, 4", f"s_lshl_b32 s{tY}, s{tCB}, 1", f"s_add_u32 s{tX}, s{tX}, s{tY}",
      f"s_add_u32 s{tX}, s{tX}, s{tU}", f"s_lshl_b32 s{tX}, s{tX}, 11", f"s_add_u32 s{tX}, s{tX}, {hex(WS_X1)}")
    g.vmem(f"buffer_load_dwordx4 v[52:55], v{V_L16}, s[{S_WS}:{S_WS+3}], s{tX} offen sc1", 'x1l'); g.vmem(f"buffer_load_dwordx4 v[56:59], v{V_L16}, s[{S_WS}:{S_WS+3}], s{tX} offen offset:1024 sc1", 'x1l')
    wsplit_main(g, 7, 56, "k5")
    for k in range(4): g(f"v_fma_f32 v{64+k}, v{64+k}, v{60+k}, v{52+k}")
    for k in range(4): g(f"v_fma_f32 v{68+k}, v{68+k}, v{12+k}, v{56+k}")
    for k in range(4): g(f"v_cvt_pk_bf16_f32 v{16+k}, v{64+2*k}, v{65+2*k}")
    g(f"s_lshl_b32 s{tX}, s{tRB}, 6", f"s_lshl_b32 s{tY}, s{tR}, 4", f"s_add_u32 s{tX}, s{tX}, s{tY}", "v_and_b32 v20, 15, v0", f"v_add_u32 v20, s{tX}, v20")
    g(f"s_lshl_b32 s{tX}, s{tCB}, 6", f"s_lshl_b32 s{tY}, s{tU}, 5", f"s_add_u32 s{tX}, s{tX}, s{tY}", "v_lshrrev_b32 v21, 4, v0", "v_lshlrev_b32 v21, 2, v21", f"v_add_u32 v21, s{tX}, v21")
    g("v_lshlrev_b32 v20, 10, v20", "v_lshl_add_u32 v20, v21, 1, v20")
    g(f"buffer_store_dwordx2 v[16:17], v20, s[{S_B}:{S_B+3}], 0 offen", f"buffer_store_dwordx2 v[18:19], v20, s[{S_B}:{S_B+3}], 0 offen offset:32")
    if Gen.STAMP:
        g("s_waitcnt vmcnt(0)"); g.stamp("end"); g.dump_stamps(sWAVE, 2)

def tail_code_touch(g):
    lsk = g.newlabel("noct2")
    g(f"s_cmp_lg_u32 s{sWAVE}, 0", f"s_cbranch_scc1 {lsk}", f"s_lshr_b32 s{sT1}, s2, 3", "v_mbcnt_lo_u32_b32 v0, -1, 0", "v_mbcnt_hi_u32_b32 v0, -1, v0")
    code_touch(g, 'mega_kernel', sT1, 2, 3, 16, 18, 56)
    g.label(lsk)

def mega(g):
    if OPT.get('ctouch2'): OPT['hook_fin'] = tail_code_touch
    front(g, fused=True)
    tail(g)
```

```python
from core import *
import p_kv, p_att, p_mod
from p_kv import emit, V_W0, V_W1, V_L16, V_TR, V_FR, V_ACC, V_C0, V_C1, V_SR, setup_dma128, setup_tr128, tr_reads
from p_att import *
from p_mod import LOG2E, QSCALE

S_WS, S_DBG, S_A, S_B, S_C2 = 4, 8, 12, 16, 56
p_att.S_WS = S_WS
sCROW, sSTB, sSTG = 43, 54, 55
sHKV, sKB, sWBKV = 84, 87, 85
OOB = 0x7ff00000
KNAME = 'mega_kernel'
sOOB = 86
C_START, C_MOD2 = 0, 32
C_H, C_KV, C_CTX, C_H2, C_ACT = 0, 8, 40, 48, 56

SLOT = [0,1,2,3, 0,1, 2,4,5,6,7,8,9, 3, 0, 1,   2,4,5,3,6,7,8,9]
HSCHED = {52 + k: [k] for k in range(16)}
ISSUE = {1:[3, 4], 2:[5], 3:[6, 7], 4:[8, 9], 5:[10, 11], 6:[12, 13], 7:[14, 15], 8:[16], 9:[17], 10:[18], 11:[20], 12:[21], 13:[22], 14:[19], 15:[23]}

def poll_issue(g, vdst, srd, soff, tag, st):
    g(f"s_cmp_eq_u32 s{sWAVE}, 0", f"s_cselect_b32 s{st}, s{soff}, s{sOOB}")
    g.vmem(f"buffer_load_dword v{vdst}, off, s[{srd}:{srd+3}], s{st} sc1", tag)
def poll_check(g, vdst, srd, tag, soff, target, t1, t2):
    ok, loop = g.newlabel("pok"), g.newlabel("ploop")
    g.wait_vm(tag)
    g(f"s_cmp_lg_u32 s{sWAVE}, 0", f"s_cbranch_scc1 {ok}")
    g(f"v_readfirstlane_b32 s{t1}, v{vdst}", "s_nop 3", f"s_cmp_ge_u32 s{t1}, {target}")
    g(f"s_cbranch_scc1 {ok}", f"s_mov_b32 s{t2}, 0x40000")
    g.label(loop)
    g("s_sleep 8", f"buffer_load_dword v{vdst}, off, s[{srd}:{srd+3}], s{soff} sc1", "s_waitcnt vmcnt(0)")
    g(f"v_readfirstlane_b32 s{t1}, v{vdst}", "s_nop 3", f"s_cmp_ge_u32 s{t1}, {target}")
    g(f"s_cbranch_scc1 {ok}", f"s_sub_u32 s{t2}, s{t2}, 1", f"s_cmp_lg_u32 s{t2}, 0", f"s_cbranch_scc1 {loop}")
    g.label(ok)
def signal(g, srd, soff, vt, st, lo=None, hi=None):
    g(f"s_cmp_eq_u32 s{sWAVE}, 0", f"s_cselect_b32 s{st}, {('s%d' % soff[1]) if isinstance(soff, tuple) else soff}, s{sOOB}")
    if lo is not None:
        g(f"s_cmp_ge_u32 s3, {lo}", f"s_cselect_b32 s{st}, s{st}, s{sOOB}", f"s_cmp_lt_u32 s3, {hi}", f"s_cselect_b32 s{st}, s{st}, s{sOOB}")
    g(f"v_mov_b32 v{vt}, 1", "s_mov_b64 exec, 1")
    g.vmem(f"buffer_atomic_add v{vt}, off, s[{srd}:{srd+3}], s{st} sc1", 'sig')
    g("s_mov_b64 exec, -1")
def cnt_off(g, dst, base, idx_s):
    g(f"s_lshl_b32 s{dst}, s{idx_s}, 7", f"s_add_u32 s{dst}, s{dst}, {hex(WS_CNT + base*128)}")

def code_touch(g, kname, seg_s, nseg_bits, first_seg, vt, vdst, st):
    lab = g.newlabel("pc")
    g(f"s_getpc_b64 s[{st}:{st+1}]")
    g.label(lab)
    g(f"s_sub_u32 s{st}, s{st}, {lab}-{kname}", f"s_subb_u32 s{st+1}, s{st+1}, 0")
    g(f"s_and_b32 s{st+2}, s{seg_s}, {(1 << nseg_bits) - 1}", f"s_add_u32 s{st+2}, s{st+2}, {first_seg}", f"s_lshl_b32 s{st+2}, s{st+2}, 13")
    g(f"v_lshlrev_b32 v{vt}, 7, v0", f"v_add_u32 v{vt}, s{st+2}, v{vt}", f"v_min_u32 v{vt}, L_end_{kname}-{kname}, v{vt}")
    g(f"v_mov_b32 v{vt+1}, s{st+1}", f"v_add_co_u32 v{vt}, vcc, s{st}, v{vt}", "s_nop 1", f"v_addc_co_u32 v{vt+1}, vcc, 0, v{vt+1}, vcc")
    g(f"global_load_dword v{vdst}, v[{vt}:{vt+1}], off")

def front(g, fused=False):
    g(f"s_load_dwordx2 s[4:5], s[0:1], {KA['ws']}", f"s_load_dwordx2 s[8:9], s[0:1], {KA['dbg']}",
      f"s_load_dwordx2 s[12:13], s[0:1], {KA['ckv']}", f"s_load_dwordx2 s[16:17], s[0:1], {KA['wuk']}",
      f"s_load_dwordx2 s[56:57], s[0:1], {KA['wuv']}", f"s_load_dwordx2 s[88:89], s[0:1], {KA['x']}",
      f"s_load_dwordx2 s[92:93], s[0:1], {KA['wmod']}", f"s_load_dwordx2 s[96:97], s[0:1], {KA['c']}")
    g.stamp("entry")
    g(f"s_sub_u32 s3, s2, {OPT.get('modbase', 160)}", "s_min_u32 s3, s3, 96")
    g("v_lshrrev_b32 v14, 6, v0", "v_and_b32 v0, 63, v0", "s_nop 0", f"v_readfirstlane_b32 s{sWAVE}, v14")
    g(f"s_and_b32 s{sHEAD}, s2, 7", f"s_lshl_b32 s{sHEAD}, s{sHEAD}, 2", f"s_bfe_u32 s{sT1}, s2, 0x20003", f"s_add_u32 s{sHEAD}, s{sHEAD}, s{sT1}")
    g(f"s_lshr_b32 s{sI}, s2, 5", f"s_lshr_b32 s{sISA}, s{sWAVE}, 2")
    g(f"s_sub_u32 s{sT1}, 7, s{sWAVE}", f"s_sub_u32 s{sT2}, 15, s{sI}", f"s_cmp_eq_u32 s{sISA}, 0",
      f"s_cselect_b32 s{sSUB}, s{sWAVE}, s{sT1}", f"s_cselect_b32 s{sT3}, s{sT2}, s{sI}")
    g(f"s_lshl_b32 s{sT16}, s{sT3}, 3", f"s_lshl_b32 s{sT1}, s{sSUB}, 1", f"s_add_u32 s{sT16}, s{sT16}, s{sT1}")
    g(f"s_lshl_b32 s{sNB2}, s{sT2}, 1", f"s_lshl_b32 s{sNA2}, s{sI}, 1", f"s_lshl_b32 s{sNBo}, s{sT2}, 15", f"s_lshl_b32 s{sNAo}, s{sI}, 15")
    g(f"s_and_b32 s{sA4}, s{sWAVE}, 3", f"s_lshl_b32 s{sA4}, s{sA4}, 12")
    g(f"s_lshl_b32 s{sT1}, s{sHEAD}, 19", f"s_add_u32 s{sT1}, s{sT1}, s{sA4}",
      f"s_add_u32 s{sKF}, s{sT1}, {hex(WS_KF)}", f"s_add_u32 s{sVF}, s{sT1}, {hex(WS_VF)}")
    g(f"s_and_b32 s{sKB}, s2, 1", f"s_lshl_b32 s{sKB}, s{sKB}, 2", f"s_bfe_u32 s{sT1}, s2, 0x20003", f"s_add_u32 s{sKB}, s{sKB}, s{sT1}")
    g(f"s_bfe_u32 s{sHKV}, s2, 0x20001", f"s_lshl_b32 s{sHKV}, s{sHKV}, 3", f"s_lshr_b32 s{sT1}, s2, 5", f"s_add_u32 s{sHKV}, s{sHKV}, s{sT1}")
    g("v_lshrrev_b32 v14, 3, v0", "v_lshlrev_b32 v1, 10, v14", "v_lshrrev_b32 v14, 4, v0", "v_and_b32 v15, 7, v0", "v_xor_b32 v14, v14, v15",
      "v_xor_b32 v15, 4, v14", "v_lshl_add_u32 v2, v15, 4, v1", "v_lshl_add_u32 v1, v14, 4, v1", f"v_add_u32 v2, {8*1024-1024}, v2")
    setup_dma128(g, 8192); setup_tr128(g)
    g(f"s_mul_i32 s{sSTG}, s{sWAVE}, 12288", f"s_add_u32 s{sSTG}, s{sSTG}, {4*16384}",
      "v_and_b32 v14, 15, v0", "v_lshlrev_b32 v10, 7, v14", "v_lshrrev_b32 v14, 1, v14", "v_lshrrev_b32 v15, 4, v0", "v_xor_b32 v14, v14, v15",
      "v_lshl_add_u32 v10, v14, 4, v10", f"v_add_u32 v10, s{sSTG}, v10", "v_xor_b32 v11, 64, v10")
    g(f"v_lshlrev_b32 v{V_L16}, 4, v0")
    g(f"s_lshl_b32 s{sT1}, s{sKB}, 8", f"s_lshl_b32 s{sCROW}, s{sWAVE}, 5", f"s_add_u32 s{sCROW}, s{sT1}, s{sCROW}", f"s_lshl_b32 s{sCROW}, s{sCROW}, 10")
    g(f"s_lshl_b32 s{sWB}, s{sWAVE}, 17", f"s_lshl_b32 s{sT1}, s{sHEAD}, 8", f"s_add_u32 s{sWB}, s{sWB}, s{sT1}", f"s_lshl_b32 s{sM0B}, s{sWAVE}, 11")
    g(f"s_lshl_b32 s{sWBKV}, s{sWAVE}, 17", f"s_lshl_b32 s{sT1}, s{sHKV}, 8", f"s_add_u32 s{sWBKV}, s{sWBKV}, s{sT1}")
    g(f"s_lshl_b32 s{sSTB}, s{sHKV}, 19", f"s_lshl_b32 s{sT1}, s{sKB}, 3", f"s_add_u32 s{sT1}, s{sT1}, s{sWAVE}", f"s_lshl_b32 s{sT1}, s{sT1}, 13", f"s_add_u32 s{sSTB}, s{sSTB}, s{sT1}")
    g("v_lshrrev_b32 v14, 4, v0", "v_lshlrev_b32 v14, 2, v14", "v_and_b32 v15, 15, v0")
    for r in range(4):
        g(f"v_cmp_le_u32 s[{sMASK+2*r}:{sMASK+2*r+1}], v14, v15")
        if r < 3: g("v_add_u32 v14, 1, v14")
    g(f"s_mov_b32 s{sRESTART}, 0", f"s_mov_b32 s{sOOB}, {hex(OOB)}")
    g.stamp("pre_karg")
    g("s_waitcnt lgkmcnt(0)")
    g.stamp("karg")
    for s, n in ((S_WS, 'ws'), (S_DBG, 'dbg'), (S_A, 'ckv'), (S_B, 'wuk'), (S_C2, 'wuv'), (88, 'x'), (92, 'wmod'), (96, 'c')):
        finish_srd(g, s, n)
    def dma(c):
        if c < 16:
            j, q = c >> 2, c & 3
            srd = S_B if j < 2 else S_C2
            off = q*0x100000 + (j & 1)*128
        else:
            j, q = (c - 16) >> 2, c & 3
            srd = S_B; off = q*0x100000 + j*128
        base = sWBKV if c < 16 else sWB
        if OPT.get('bdma_hack'):
            lab = g.newlabel("nodma")
            return [f"s_cmp_lg_u32 s{sISA}, 0", f"s_cbranch_scc1 {lab}",
                    f"s_add_u32 s{sT1}, s{base}, {hex(off)}", f"s_add_u32 m0, s{sM0B}, {hex(SLOT[c]*16384)}",
                    (f"buffer_load_dwordx4 v{V_W0}, s[{srd}:{srd+3}], s{sT1} offen lds", ('W', c)),
                    (f"buffer_load_dwordx4 v{V_W1}, s[{srd}:{srd+3}], s{sT1} offen offset:1024 lds", ('W', c)),
                    f"s_add_u32 s{sT1}, s{sT1}, {4*16*8192}", f"s_add_u32 m0, m0, {4*2048}", "s_nop 0",
                    f"buffer_load_dwordx4 v{V_W0}, s[{srd}:{srd+3}], s{sT1} offen lds",
                    f"buffer_load_dwordx4 v{V_W1}, s[{srd}:{srd+3}], s{sT1} offen offset:1024 lds", lab + ":"]
        return [f"s_add_u32 s{sT1}, s{base}, {hex(off)}", f"s_add_u32 m0, s{sM0B}, {hex(SLOT[c]*16384)}",
                (f"buffer_load_dwordx4 v{V_W0}, s[{srd}:{srd+3}], s{sT1} offen lds", ('W', c)),
                (f"buffer_load_dwordx4 v{V_W1}, s[{srd}:{srd+3}], s{sT1} offen offset:1024 lds", ('W', c))]
    def stage(p):
        out = []
        for hf in range(2):
            out += [f"s_add_u32 s{sT1}, s{sCROW}, {p*128 + hf*16384}", f"s_add_u32 m0, s{sSTG}, {(p%3)*4096 + hf*2048}",
                    (f"buffer_load_dwordx4 v{V_C0}, s[{S_A}:{S_A+3}], s{sT1} offen lds", ('P', p)),
                    (f"buffer_load_dwordx4 v{V_C1}, s[{S_A}:{S_A+3}], s{sT1} offen offset:1024 lds", ('P', p))]
        return out
    def stage_reads(p):
        return [f"ds_read_b128 a[{(s*2+t)*4}:{(s*2+t)*4+3}], v{V_SR+(s&1)} offset:{(p%3)*4096 + t*2048}" for s in (2*p, 2*p+1) for t in range(2)]
    MC, MW, MT, MA = 96, 100, 116, 120
    def mod_loads(lo, hi):
        g(f"s_cmp_ge_u32 s3, {lo}", f"s_cselect_b32 s{sT2}, 0, s{sOOB}", f"s_cmp_lt_u32 s3, {hi}", f"s_cselect_b32 s{sT2}, s{sT2}, s{sOOB}")
        g(f"v_and_b32 v{MT}, 3, v0", f"v_lshrrev_b32 v{MT+1}, 2, v0", f"s_lshl_b32 s{sT1}, s{sWAVE}, 4", f"v_add_u32 v{MT+1}, s{sT1}, v{MT+1}")
        g(f"s_movk_i32 s{sT1}, 6144", f"v_mul_lo_u32 v{MT+2}, v{MT+1}, s{sT1}", f"v_lshl_add_u32 v{MT+2}, v{MT}, 4, v{MT+2}", f"s_lshl_b32 s{sT1}, s3, 6", f"v_add_u32 v{MT+2}, s{sT1}, v{MT+2}")
        g(f"v_lshlrev_b32 v{MT+3}, 1, v{MT+1}")
        for t in range(4):
            g.vmem(f"buffer_load_ushort v{MC+t}, v{MT+3}, s[96:99], s{sT2} offen offset:{t*256}", 'mc')
        for t in range(4):
            g(f"s_add_u32 s{sT1}, s{sT2}, {hex(t*128*6144)}")
            g.vmem(f"buffer_load_dwordx4 v[{MW+4*t}:{MW+3+4*t}], v{MT+2}, s[92:95], s{sT1} offen", ('mw', t))
    def mod_partial(lo, hi, lds):
        skip = g.newlabel("modp")
        g.wait_vm(('mw', 3))
        g(f"s_cmp_ge_u32 s3, {lo}", f"s_cbranch_scc0 {skip}", f"s_cmp_lt_u32 s3, {hi}", f"s_cbranch_scc0 {skip}")
        g(f"s_mov_b32 s{sT1}, {hex(LOG2E)}")
        for t in range(4): g(f"v_lshlrev_b32 v{MC+t}, 16, v{MC+t}")
        for t in range(4): g(f"v_mul_f32 v{MT+t}, s{sT1}, v{MC+t}")
        for t in range(4): g(f"v_exp_f32 v{MT+t}, -v{MT+t}")
        g("s_nop 0")
        for t in range(4): g(f"v_add_f32 v{MT+t}, 1.0, v{MT+t}")
        for t in range(4): g(f"v_rcp_f32 v{MT+t}, v{MT+t}")
        g("s_nop 0")
        for t in range(4): g(f"v_mul_f32 v{MC+t}, v{MC+t}, v{MT+t}")
        g(f"s_mov_b32 s{sT2}, 0xffff0000")
        for t in range(4):
            for d in range(4):
                w = MW + 4*t + d
                g(f"v_lshlrev_b32 v{MT}, 16, v{w}", f"v_and_b32 v{MT+1}, s{sT2}, v{w}")
                if t == 0: g(f"v_mul_f32 v{MA+2*d}, v{MC}, v{MT}", f"v_mul_f32 v{MA+1+2*d}, v{MC}, v{MT+1}")
                else: g(f"v_fmac_f32 v{MA+2*d}, v{MC+t}, v{MT}", f"v_fmac_f32 v{MA+1+2*d}, v{MC+t}, v{MT+1}")
        for r in (8, 4):
            g("s_nop 1")
            for e in range(8): g(f"v_add_f32_dpp v{MA+e}, v{MA+e}, v{MA+e} row_ror:{r} row_mask:0xf bank_mask:0xf")
        g(f"v_lshrrev_b32 v{MT+1}, 4, v0", f"s_lshl_b32 s{sT1}, s{sWAVE}, 2", f"v_add_u32 v{MT+1}, s{sT1}, v{MT+1}", f"v_lshlrev_b32 v{MT+1}, 7, v{MT+1}",
          f"v_and_b32 v{MT}, 3, v0", f"v_lshl_add_u32 v{MT+1}, v{MT}, 5, v{MT+1}", f"v_add_u32 v{MT+1}, {lds}, v{MT+1}")
        g(f"v_and_b32 v{MT}, 15, v0", f"v_cmp_gt_u32 vcc, 4, v{MT}", "s_nop 1", "s_mov_b64 exec, vcc")
        g(f"ds_write_b128 v{MT+1}, v[{MA}:{MA+3}]", f"ds_write_b128 v{MT+1}, v[{MA+4}:{MA+7}] offset:16")
        g("s_mov_b64 exec, -1", "s_waitcnt lgkmcnt(0)")
        g.label(skip)
    def mod_final(lo, hi, lds):
        lskip = g.newlabel("modfin")
        g(f"s_cmp_ge_u32 s3, {lo}", f"s_cselect_b32 s{sT2}, 0, s{sOOB}", f"s_cmp_lt_u32 s3, {hi}", f"s_cselect_b32 s{sT2}, s{sT2}, s{sOOB}",
          f"s_cmp_eq_u32 s{sWAVE}, 0", f"s_cselect_b32 s{sT2}, s{sT2}, s{sOOB}")
        g(f"s_cmp_lg_u32 s{sT2}, 0", f"s_cbranch_scc1 {lskip}")
        g(f"v_and_b32 v{MT}, 31, v0", f"v_lshlrev_b32 v{MT}, 2, v{MT}", f"v_lshrrev_b32 v{MT+1}, 5, v0", f"v_lshl_add_u32 v{MT}, v{MT+1}, 11, v{MT}", f"v_add_u32 v{MT}, {lds}, v{MT}")
        g("s_waitcnt lgkmcnt(0)")
        for r in range(16):
            if r == 15: g("s_waitcnt lgkmcnt(7)")
            g(f"ds_read_b32 v{MW+r}, v{MT} offset:{r*128}")
        g("s_waitcnt lgkmcnt(0)")
        for st in (8, 4, 2, 1):
            for k in range(st): g(f"v_add_f32 v{MW+k}, v{MW+k}, v{MW+k+st}")
        g(f"v_mov_b32 v{MW+1}, v{MW}", "s_nop 1", f"v_permlane32_swap_b32 v{MW}, v{MW+1}", f"v_add_f32 v{MW}, v{MW}, v{MW+1}")
        g.label(lskip)
        g(f"v_lshlrev_b32 v{MT}, 2, v0", "v_cmp_gt_u32 vcc, 32, v0", f"v_mov_b32 v{MT+1}, {hex(OOB)}", "s_nop 0", f"v_cndmask_b32 v{MT}, v{MT+1}, v{MT}, vcc")
        g(f"s_lshl_b32 s{sT1}, s3, 7", f"s_add_u32 s{sT1}, s{sT1}, {hex(WS_MOD)}", f"s_add_u32 s{sT1}, s{sT1}, s{sT2}")
        g.vmem(f"buffer_store_dword v{MW}, v{MT}, s[{S_WS}:{S_WS+3}], s{sT1} offen sc1", 'modst')
        g(f"s_lshl_b32 s{sT1}, s3, 7", f"s_add_u32 s{sT1}, s{sT1}, {hex(WS_CNT)}", "s_cmp_lt_u32 s3, 32", f"s_cselect_b32 s{sT1}, s{sT1}, s{sOOB}",
          f"s_cmp_eq_u32 s{sWAVE}, 0", f"s_cselect_b32 s{sT1}, s{sT1}, s{sOOB}", f"v_mov_b32 v{MT+2}, 0", f"v_lshlrev_b32 v{MT+3}, 12, v0", "s_mov_b64 exec, 15")
        g.vmem(f"buffer_store_dword v{MT+2}, v{MT+3}, s[{S_WS}:{S_WS+3}], s{sT1} offen sc1", 'modst')
        g("s_mov_b64 exec, -1")
    def c_touch():
        g(f"s_lshr_b32 s{sT1}, s2, 5", f"s_mul_i32 s{sT1}, s{sT1}, 160", f"s_lshl_b32 s{sT2}, s{sWAVE}, 6", f"s_add_u32 s{sT1}, s{sT1}, s{sT2}", f"v_add_u32 v56, s{sT1}, v0")
        g(f"v_add_u32 v57, s{sT2}, v0", "v_mov_b32 v58, 0xcccd", "v_mul_u32_u24 v58, v56, v58", "v_lshrrev_b32 v58, 18, v58")
        g("v_mul_u32_u24 v59, 5, v58", "v_sub_u32 v59, v56, v59", "v_add_u32 v59, 3, v59", "v_lshlrev_b32 v59, 7, v59", "v_lshl_add_u32 v59, v58, 10, v59")
        g(f"s_lshl_b32 s{sT1}, s{sKB}, 18", f"v_add_u32 v59, s{sT1}, v59", "v_cmp_gt_u32 vcc, 160, v57", f"v_mov_b32 v58, {hex(OOB)}", "s_nop 0", "v_cndmask_b32 v59, v58, v59, vcc")
        g.vmem(f"buffer_load_dword v12, v59, s[{S_A}:{S_A+3}], 0 offen", 'tc')
    def w_touch_lin():
        g(f"s_lshl_b32 s{sT1}, s2, 2", f"s_and_b32 s{sT2}, s{sWAVE}, 3", f"s_add_u32 s{sT1}, s{sT1}, s{sT2}")
        g(f"s_and_b32 s{sT2}, s{sT1}, 511", f"s_lshl_b32 s{sT2}, s{sT2}, 13", f"s_cmp_lt_u32 s{sWAVE}, 4", f"s_cselect_b32 s{sT2}, s{sT2}, s{sOOB}")
        g("v_lshlrev_b32 v15, 7, v0", f"s_cmp_lt_u32 s{sT1}, 512", f"s_cselect_b32 s{sT3}, s{sT2}, s{sOOB}")
        g.vmem(f"buffer_load_dword v13, v15, s[{S_B}:{S_B+3}], s{sT3} offen", 'tw')
        g(f"s_cmp_lt_u32 s{sT1}, 512", f"s_cselect_b32 s{sT3}, s{sOOB}, s{sT2}")
        g.vmem(f"buffer_load_dword v14, v15, s[{S_C2}:{S_C2+3}], s{sT3} offen", 'tw')
    def w_touch():
        g(f"s_and_b32 s{sT1}, s{sKB}, 3", f"s_lshl_b32 s{sT1}, s{sT1}, 9", f"s_lshl_b32 s{sT2}, s{sWAVE}, 6", f"s_add_u32 s{sT1}, s{sT1}, s{sT2}", f"v_add_u32 v14, s{sT1}, v0")
        g("v_bfe_u32 v15, v14, 1, 9", "v_lshlrev_b32 v15, 13, v15", "v_and_b32 v14, 1, v14", "v_lshl_add_u32 v15, v14, 7, v15", f"s_lshl_b32 s{sT2}, s{sHKV}, 8", f"v_add_u32 v15, s{sT2}, v15")
        g(f"s_bitcmp1_b32 s{sKB}, 1", f"s_cselect_b32 s{sT2}, s{sOOB}, 0")
        g.vmem(f"buffer_load_dword v13, v15, s[{S_B}:{S_B+3}], s{sT2} offen", 'tw')
        g(f"s_cselect_b32 s{sT2}, 0, s{sOOB}")
        g.vmem(f"buffer_load_dword v14, v15, s[{S_C2}:{S_C2+3}], s{sT2} offen", 'tw')
    if OPT.get('ctouch'):
        lsk = g.newlabel("noct")
        g(f"s_cmp_lg_u32 s{sWAVE}, 7", f"s_cbranch_scc1 {lsk}", f"s_lshr_b32 s{sT1}, s2, 3")
        code_touch(g, KNAME, sT1, 3, 0, 16, 18, 60 if not Gen.STAMP else 96)
        g.label(lsk)
    pv = OPT.get('pro', 4)
    bar = (lambda: g("s_barrier")) if pv in (0, 2, 3, 5) else (lambda: None)
    emit(g, dma(0)); emit(g, stage(0)); g.stamp("iss0"); bar()
    if pv == 3:
        emit(g, stage(1)); emit(g, dma(1)); bar(); emit(g, stage(2)); c_touch(); emit(g, dma(2)); mod_loads(0, 96)
    elif pv == 6:
        emit(g, stage(1)); emit(g, dma(1)); emit(g, stage(2)); emit(g, dma(2)); mod_loads(0, 96)
    elif pv == 7:
        emit(g, stage(1)); emit(g, dma(1)); emit(g, stage(2)); c_touch(); emit(g, dma(2)); mod_loads(0, 96)
    elif pv == 8:
        emit(g, stage(1)); mod_loads(0, 96); emit(g, dma(1)); emit(g, stage(2)); emit(g, dma(2))
    elif pv == 5:
        emit(g, stage(1)); emit(g, dma(1)); emit(g, stage(2)); bar(); emit(g, dma(2)); mod_loads(0, 96)
    else:
        if pv != 2: c_touch()
        emit(g, stage(1)); mod_loads(0, 96); g.stamp("iss1"); bar()
        emit(g, dma(1)); emit(g, stage(2)); emit(g, dma(2)); g.stamp("iss2")
    g(f"s_lshl_b32 s{sT1}, s{sHEAD}, 3", f"s_add_u32 s{sT1}, s{sT1}, s{sWAVE}", f"s_lshl_b32 s{sT2}, s{sI}, 7", f"s_add_u32 s{sT2}, s{sT2}, s{sT1}",
      f"s_sub_u32 s{sT3}, 14, s{sI}", f"s_lshl_b32 s{sT3}, s{sT3}, 7", f"s_add_u32 s{sT3}, s{sT3}, s{sT1}",
      f"s_cmp_lt_u32 s{sT1}, 128", f"s_cselect_b32 s{sCNT}, s{sT2}, s{sT3}")
    g.wait_vm(('P', 0)); g.stamp("p0"); g(stage_reads(0))
    g.wait_vm(('W', 0)); g("s_waitcnt lgkmcnt(0)", "s_barrier")
    g.stamp("w0_landed")
    emit(g, stage(3))
    second = 512
    g(tr_reads(0, 0, second)); r1 = tr_reads(1, 1, second)
    g(r1[:7]); g("s_waitcnt lgkmcnt(7)"); g(r1[7])
    NKS, NCH = 96, 24
    def epilogue(j):
        buf = V_ACC + (j & 1) * 32
        A = lambda t, cb: buf + (t * 4 + cb) * 4
        groups = []
        for i in range(4):
            if j < 2:
                t, u = i >> 1, i & 1
                a, b = A(t, 2*u), A(t, 2*u+1); off = WS_KF + (t * 4 + 2*j + u) * 1024
            else:
                a, b = A(0, i), A(1, i); off = WS_VF + (4*(j-2) + i) * 1024
            grp = [f"v_cvt_pk_bf16_f32 v{a}, v{a}, v{a+1}", f"v_cvt_pk_bf16_f32 v{a+1}, v{a+2}, v{a+3}",
                   f"v_cvt_pk_bf16_f32 v{a+2}, v{b}, v{b+1}", f"v_cvt_pk_bf16_f32 v{a+3}, v{b+2}, v{b+3}"]
            st = [f"s_add_u32 s{sT1}, s{sSTB}, {hex(off)}", (f"buffer_store_dwordx4 v[{a}:{a+3}], v{V_L16}, s[{S_WS}:{S_WS+3}], s{sT1} offen{'' if OPT.get('kvplain') else ' sc1'}", ('st', j))]
            groups.append((grp, st))
        return groups
    def hload(s):
        out = []
        for t in range(2):
            out += [f"s_lshl_b32 s{sT1}, s{sT16}, 14", f"s_add_u32 s{sT1}, s{sT1}, {hex(WS_H + t*16384 + s*1024)}",
                    (f"buffer_load_dwordx4 a[{(s*2+t)*4}:{(s*2+t)*4+3}], v{V_L16}, s[{S_WS}:{S_WS+3}], s{sT1} offen sc1", ('H', s))]
        return out
    def ln1_loads():
        g(f"v_lshlrev_b32 v1, 5, v0", f"s_mov_b32 s{sT1}, {hex(WS_MOD)}")
        for k, off in enumerate((0, 16, 2048, 2064)):
            g.vmem(f"buffer_load_dwordx4 v[{72+4*k}:{75+4*k}], v1, s[{S_WS}:{S_WS+3}], s{sT1} offen offset:{off} sc1", 'lnm')
    def wsum_items(v, t):
        out = []
        for r in (8, 4, 2, 1): out += ["s_nop 1", f"v_add_f32_dpp v{v}, v{v}, v{v} row_ror:{r} row_mask:0xf bank_mask:0xf"]
        out += [f"v_mov_b32 v{t}, v{v}", "s_nop 1", f"v_permlane16_swap_b32 v{v}, v{t}", f"v_add_f32 v{v}, v{v}, v{t}"]
        out += [f"v_mov_b32 v{t}, v{v}", "s_nop 1", f"v_permlane32_swap_b32 v{v}, v{t}", f"v_add_f32 v{v}, v{v}, v{t}"]
        return out
    def ln1_stats_items():
        it = []
        for d in range(4): it += [f"v_lshlrev_b32 v{64+2*d}, 16, v{12+d}", f"v_and_b32 v{65+2*d}, 0xffff0000, v{12+d}"]
        it += ["v_add_f32 v10, v64, v65", "v_add_f32 v11, v66, v67", "v_add_f32 v10, v10, v11", "v_add_f32 v11, v68, v69", "v_add_f32 v10, v10, v11", "v_add_f32 v11, v70, v71", "v_add_f32 v10, v10, v11"]
        it += wsum_items(10, 11) + ["v_mul_f32 v10, 0x3b000000, v10"]
        it += [f"v_sub_f32 v{64+e}, v{64+e}, v10" for e in range(8)]
        it += ["v_mul_f32 v11, v64, v64"] + [f"v_fmac_f32 v11, v{64+e}, v{64+e}" for e in range(1, 8)]
        it += wsum_items(11, 10)
        it += ["v_mov_b32 v10, 0x3727c5ac", "v_fmac_f32 v10, 0x3b000000, v11", "v_rsq_f32 v10, v10", "s_nop 0", f"v_mul_f32 v10, {hex(QSCALE)}, v10"]
        it += [f"v_mul_f32 v{64+e}, v{64+e}, v10" for e in range(8)]
        return it
    def ln1_mod_items():
        it = [f"v_add_f32 v{80+e}, 1.0, v{80+e}" for e in range(8)] + [f"v_mul_f32 v{72+e}, {hex(QSCALE)}, v{72+e}" for e in range(8)]
        it += [f"v_fma_f32 v{64+e}, v{64+e}, v{80+e}, v{72+e}" for e in range(8)]
        it += [f"v_cvt_pk_bf16_f32 v{88+d}, v{64+2*d}, v{65+2*d}" for d in range(4)]
        it += ["v_lshrrev_b32 v1, 2, v0", "v_lshlrev_b32 v1, 10, v1", "v_and_b32 v2, 3, v0", "v_lshl_add_u32 v1, v2, 8, v1"]
        return it
    def ln1_store():
        g(f"s_lshr_b32 s{sT1}, s{sCNT}, 4", f"s_lshl_b32 s{sT1}, s{sT1}, 14", f"s_and_b32 s{sT2}, s{sCNT}, 15", f"s_lshl_b32 s{sT2}, s{sT2}, 4",
          f"s_add_u32 s{sT1}, s{sT1}, s{sT2}", f"s_add_u32 s{sT1}, s{sT1}, {hex(WS_H)}")
        g.vmem(f"buffer_store_dwordx4 v[88:91], v1, s[{S_WS}:{S_WS+3}], s{sT1} offen{'' if OPT.get('hplain') else ' sc1'}", 'hst')
    fq = []
    pend = []
    KVSIG, KVCHK = (17, 20) if OPT.get('nospread') or OPT.get('q_nospread') else (20, 22)
    dq = []
    for ks in range(NKS):
        c, kk = ks >> 2, ks & 3
        j = c >> 2; s = ks % 16
        if kk == 2 and c + 1 < NCH:
            if c == 0: mod_partial(0, 96, 3*16384)
            if c == 1: g.wait_vm('modst')
            if c == 5 and not OPT.get('noln'): g.stamp("b_5p"); poll_check(g, 2, S_DBG, 'pl0', sKO, 32, sT1, sT2)
            if c == 9 and not OPT.get('noln'): g.stamp("hst_pre"); g.wait_vm('hst'); g.stamp("hst_post")
            if c == 12 and not OPT.get('noln'): g.stamp("h_pre"); poll_check(g, 2, S_WS, 'plh', sKO, 32, sT1, sT2); g.stamp("h_chk")
            if c == KVSIG and not OPT.get('nost'): g.wait_vm(('st', 3))
            if c == KVCHK: g.stamp("kv_pre"); poll_check(g, 2, S_WS, 'plk', sM0K, 8, sT1, sT2); g.stamp("kv_chk")
            g.stamp(f"b_{c}a"); g.wait_vm(('W', c + 1)); g("s_barrier"); g.stamp(f"b_{c}")
            if c == 6:
                g(f"s_load_dwordx2 s[16:17], s[0:1], {KA['wq']}", "s_waitcnt lgkmcnt(0)"); finish_srd(g, S_B, 'wq')
            for cc in ISSUE.get(c, []): dq.append(dma(cc))
            g.stamp(f"b_{c}i")
            if c == 0:
                mod_final(0, 96, 3*16384)
                if OPT.get("wtouch"): w_touch()
            if c == 1:
                signal(g, S_DBG, C_START*4, 96, sT1, 0, 32); signal(g, S_DBG, 32*4, 96, sT1)
            if c == 2:
                g(f"s_lshl_b32 s{sT1}, s{sCNT}, 10")
                g.vmem(f"buffer_load_dwordx4 v[12:15], v{V_L16}, s[88:91], s{sT1} offen", 'lnx')
            if c == 4 and not OPT.get('noln'):
                g(f"s_mov_b32 s{sKO}, {C_START*4}"); poll_issue(g, 2, S_DBG, sKO, 'pl0', sT1)
            if c == 5 and not OPT.get('noln'): ln1_loads()
            if c == 9 and not OPT.get('noln'):
                cnt_off(g, sT3, C_H, sI); signal(g, S_WS, ('s', sT3), 1, sT1)
            if c == 11 and not OPT.get('noln'):
                cnt_off(g, sKO, C_H, sI); poll_issue(g, 2, S_WS, sKO, 'plh', sT1)
            if c == 12 and not OPT.get('noln') and OPT.get('th'):
                g(f"s_lshl_b32 s{sT1}, s{sT16}, 14", f"s_and_b32 s{sT2}, s{sHEAD}, 3", f"s_lshl_b32 s{sT2}, s{sT2}, 13", f"s_add_u32 s{sT1}, s{sT1}, s{sT2}",
                  f"s_add_u32 s{sT1}, s{sT1}, {hex(WS_H)}", "v_lshlrev_b32 v1, 7, v0")
                g.vmem(f"buffer_load_dword v2, v1, s[{S_WS}:{S_WS+3}], s{sT1} offen sc1", 'th')
            if c == KVSIG:
                cnt_off(g, sT3, C_KV, sHKV); signal(g, S_WS, ('s', sT3), 1, sT1)
            if c == KVCHK - 1:
                cnt_off(g, sM0K, C_KV, sHEAD); poll_issue(g, 2, S_WS, sM0K, 'plk', sT1)
            if c == KVCHK:
                emit(g, unit_sc1(0)); emit(g, unit_sc1(1))
                if KVCHK == 22: emit(g, unit_sc1(2))
            if c == KVCHK + 1 and KVCHK < 22: emit(g, unit_sc1(2))
            d = (SLOT[c + 1] - SLOT[c]) * 16384
            for cb in range(4): g(f"v_add_u32 v{V_TR+cb}, {hex(d & 0xffffffff)}, v{V_TR+cb}")
        extra = False
        if ks < 16:
            if ks % 2 == 1 and (ks + 1) // 2 <= 7:
                p = (ks + 1) // 2
                g.wait_vm(('P', p)); g(stage_reads(p)); extra = True
            if ks % 2 == 0 and ks >= 2 and ks // 2 + 3 <= 7: emit(g, stage(ks // 2 + 3))
        if 64 <= ks < 80 and not OPT.get('nohl'): g.wait_vm(('H', s))
        nxt = ks + 2
        reads = tr_reads(nxt, nxt & 3, second) if nxt < NKS else []
        buf = V_ACC + (j & 1) * 32
        if not OPT.get('noln'):
            if ks == 18: g.wait_vm('lnx'); fq += ln1_stats_items()
            if ks == 28: assert not fq; g.wait_vm('lnm'); fq += ln1_mod_items()
            if ks == 31: assert not fq; ln1_store()
        if j == 1: take = s in (1, 3, 5, 7)
        elif j == 4 and KVCHK == 20: take = s >= 1
        else: take = s % 4 == 1
        if OPT.get('nospread'): take = s >= 1 if j != 1 else take
        epi = pend.pop(0) if (pend and take) else None
        fb = ks % 3
        wfirst = j < 2 or j >= 4
        for m in range(8):
            cb, t = m >> 1, m & 1
            d = buf + (t * 4 + cb) * 4
            wf = f"v[{V_FR + fb*16 + cb*4}:{V_FR + fb*16 + cb*4 + 3}]"
            cf = f"a[{(s*2+t)*4}:{(s*2+t)*4+3}]"
            cin = "0" if s == 0 else f"v[{d}:{d+3}]"
            g(f"v_mfma_f32_16x16x32_bf16 v[{d}:{d+3}], {wf}, {cf}, {cin}" if wfirst else f"v_mfma_f32_16x16x32_bf16 v[{d}:{d+3}], {cf}, {wf}, {cin}")
            if m == 3 and extra: g("s_waitcnt lgkmcnt(3)")
            if m == 7 and reads: g("s_waitcnt lgkmcnt(7)")
            if reads: g(reads[m])
            elif m == 7 and ks + 1 < NKS: g("s_waitcnt lgkmcnt(0)")
            if epi and 1 <= m <= 4: g(epi[0][m-1])
            if epi and m == 5 and not OPT.get('nost'):
                g.stamp(f"st{ks}a"); emit(g, epi[1]); g.stamp(f"st{ks}b")
            if m == 2 and dq:
                g.stamp(f"dm{ks}a"); emit(g, dq.pop(0)); g.stamp(f"dm{ks}b")
            for _ in range(2 if not epi else 1):
                if fq: g(fq.pop(0))
        g.stamp(f"ke{ks}")
        for sh in HSCHED.get(ks, []):
            if not OPT.get('nohl'): emit(g, hload(sh))
        if s == 15:
            if j < 4: pend = epilogue(j)
            g.stamp(f"sub{j}_done")
    if OPT.get('endq'):
        g("s_waitcnt vmcnt(0)", "s_endpgm")
    g("s_nop 7")
    for qs in range(2):
        for s in range(4):
            j, u = s >> 1, s & 1
            a = V_ACC + j*32 + (qs*4 + 2*u)*4; b = a + 4
            for k, (x, y) in enumerate(((a, a+1), (a+2, a+3), (b, b+1), (b+2, b+3))): g(f"v_cvt_pk_bf16_f32 v{16+k}, v{x}, v{y}")
            for k in range(4): g(f"v_accvgpr_write_b32 a{A_Q+(qs*4+s)*4+k}, v{16+k}")
    p_att.attention_body(g, unit_sc1, sc1=True, fused=fused)

def unit_sc1(u):
    its = uniform_unit(u)
    return [((x[0].replace(" lds", " sc1 lds"), x[1]) if isinstance(x, tuple) else x) for x in its]

tRB, tCB, tAO, tWO, tM0W, tR, tU, tX, tY, tZ, tRB4, tCB4, tT16 = 23, 24, 25, 26, 27, 28, 29, 30, 31, 32, 33, 34, 35
WS_ST = WS_STAT + 0x100000 * 0 + 0x40000
TAG = 0x3f800000
A_ACC, A_AF, V_WF, V_WV, RING, DEPTH = 0, 64, 16, 48, 5, 4
C_ALL = 32
C_PART = 64
C_CTX2 = 80
WS_PART = 0x1200000

def stat_slot(g, dst, t):
    g(f"s_and_b32 s{dst}, s2, 7", f"s_lshl_b32 s{dst}, s{dst}, 2", f"s_bfe_u32 s{t}, s2, 0x20003", f"s_add_u32 s{dst}, s{dst}, s{t}",
      f"s_lshl_b32 s{dst}, s{dst}, 2", f"s_and_b32 s{t}, s{sWAVE}, 3", f"s_add_u32 s{dst}, s{dst}, s{t}", f"s_lshl_b32 s{dst}, s{dst}, 4",
      f"s_lshr_b32 s{t}, s2, 5", f"s_lshl_b32 s{t}, s{t}, 1", f"s_add_u32 s{dst}, s{dst}, s{t}",
      f"s_lshr_b32 s{t}, s{sWAVE}, 2", f"s_add_u32 s{dst}, s{dst}, s{t}", f"s_lshl_b32 s{dst}, s{dst}, 8", f"s_add_u32 s{dst}, s{dst}, {hex(WS_ST)}")

def spin(g, vdst, srd, soff, target, t1, t2, sleep=None):
    ok, loop = g.newlabel("sok"), g.newlabel("sloop")
    sleep = OPT.get('sleep', 4) if sleep is None else min(sleep, OPT.get('sleep', 4))
    g(f"s_cmp_lg_u32 s{sWAVE}, 0", f"s_cbranch_scc1 {ok}", f"s_mov_b32 s{t2}, 0x40000")
    g.label(loop)
    g(f"buffer_load_dword v{vdst}, off, s[{srd}:{srd+3}], s{soff} sc1", "s_waitcnt vmcnt(0)")
    g(f"v_readfirstlane_b32 s{t1}, v{vdst}", "s_nop 3", f"s_cmp_ge_u32 s{t1}, {target}", f"s_cbranch_scc1 {ok}")
    g(f"s_sleep {sleep}", f"s_sub_u32 s{t2}, s{t2}, 1", f"s_cmp_lg_u32 s{t2}, 0", f"s_cbranch_scc1 {loop}")
    g.label(ok)

def wsplit_setup(g, nks, a_off, a_nks, wname):
    g(f"s_load_dwordx2 s[{S_A}:{S_A+1}], s[0:1], {KA[wname]}")
    setup_dma128(g, 1024, nat=False, v0=V_WV, v1=V_WV+1); setup_tr128(g, nat=False)
    for p in range(1, 4): g(f"v_add_u32 v{V_WV+p}, {p*7168}, v{V_WV}")
    g(f"s_mul_i32 s{tM0W}, s{sWAVE}, {RING*4096}")
    for c in range(4): g(f"v_add_u32 v{V_TR+c}, s{tM0W}, v{V_TR+c}")
    g(f"s_mul_i32 s{tAO}, s{tRB}, {4*a_nks*1024}", f"s_mul_i32 s{tX}, s{sWAVE}, {nks*1024}", f"s_add_u32 s{tAO}, s{tAO}, s{tX}", f"s_add_u32 s{tAO}, s{tAO}, {hex(a_off)}")
    g(f"s_mul_i32 s{tWO}, s{sWAVE}, {nks*32*1024}", f"s_lshl_b32 s{tX}, s{tCB}, 7", f"s_add_u32 s{tWO}, s{tWO}, s{tX}")
    g("s_waitcnt lgkmcnt(0)"); finish_srd(g, S_A, wname)
def ws_wdma(j):
    out = [f"s_add_u32 m0, s{tM0W}, {(j % RING)*4096}", f"s_add_u32 s{tX}, s{tWO}, {j*32*1024}"]
    for p in range(4): out.append((f"buffer_load_dwordx4 v{V_WV+p}, s[{S_A}:{S_A+3}], s{tX} offen offset:{p*1024} lds", ('tW', j)))
    return out
def ws_aload(j, a_nks):
    out = []
    for r in range(4):
        b = A_AF + (j % DEPTH)*16 + r*4
        out += [f"s_add_u32 s{tY}, s{tAO}, {(r*a_nks + j)*1024}", (f"buffer_load_dwordx4 a[{b}:{b+3}], v{V_L16}, s[{S_WS}:{S_WS+3}], s{tY} offen sc1", ('tA', j))]
    return out
def ws_reads(j):
    fb = V_WF + (j & 1)*16
    out = []
    for c in range(4):
        out.append(f"ds_read_b64_tr_b16 v[{fb+4*c}:{fb+4*c+1}], v{V_TR+c} offset:{(j % RING)*4096}")
        out.append(f"ds_read_b64_tr_b16 v[{fb+4*c+2}:{fb+4*c+3}], v{V_TR+c} offset:{(j % RING)*4096+2048}")
    return out
def wsplit_main(g, nks, a_nks, tag, a_off=None):
    for j in range(min(DEPTH, nks)): emit(g, ws_aload(j, a_nks))
    if OPT.get('tact'):
        per = 2 if nks == 16 else 1
        if per == 2:
            g("v_lshrrev_b32 v1, 4, v0", f"v_mul_u32_u24 v1, {a_nks*1024}, v1", "v_bfe_u32 v10, v0, 3, 1", "v_lshl_add_u32 v1, v10, 10, v1", "v_and_b32 v10, 7, v0", "v_lshl_add_u32 v1, v10, 7, v1")
            g(f"s_lshl_b32 s{tX}, s{tCB}, 11", f"s_add_u32 s{tX}, s{tX}, s{tAO}")
        else:
            g("v_lshrrev_b32 v1, 3, v0", f"v_mul_u32_u24 v1, {a_nks*1024}, v1", "v_and_b32 v10, 7, v0", "v_lshl_add_u32 v1, v10, 7, v1",
              f"v_mov_b32 v10, {hex(OOB)}", "v_cmp_gt_u32 vcc, 32, v0", "s_nop 1", "v_cndmask_b32 v1, v10, v1, vcc")
            g(f"s_lshl_b32 s{tX}, s{tCB}, 10", f"s_add_u32 s{tX}, s{tX}, s{tAO}", f"s_cmp_lt_u32 s{tCB}, 7", f"s_cselect_b32 s{tX}, s{tX}, s{sOOB}")
        g.vmem(f"buffer_load_dword v2, v1, s[{S_WS}:{S_WS+3}], s{tX} offen sc1", 'tch')
    g.wait_vm(('tW', 0)); g(ws_reads(0))
    g.stamp(tag + "_first")
    for j in range(nks):
        rd = []
        if j + 1 < nks:
            g.wait_vm(('tW', j + 1)); rd = ws_reads(j + 1)
        g("s_waitcnt lgkmcnt(0)")
        g.wait_vm(('tA', j))
        fb = V_WF + (j & 1)*16
        for m in range(16):
            c, r = m >> 2, m & 3
            d = A_ACC + (c*4 + r)*4; b = A_AF + (j % DEPTH)*16 + r*4
            cin = "0" if j == 0 else f"a[{d}:{d+3}]"
            g(f"v_mfma_f32_16x16x32_bf16 a[{d}:{d+3}], v[{fb+4*c}:{fb+4*c+3}], a[{b}:{b+3}], {cin}")
            if rd and m < 8: g(rd[m])
            if m == 8 and j + DEPTH < nks: emit(g, ws_wdma(j + DEPTH))
        if j + DEPTH < nks: emit(g, ws_aload(j + DEPTH, a_nks))
    g.stamp(tag + "_loop")
    g("s_nop 7", "s_barrier")
    g(f"s_lshl_b32 s{tX}, s{sWAVE}, 14", f"v_add_u32 v10, s{tX}, v{V_L16}")
    for q in range(16): g(f"ds_write_b128 v10, a[{A_ACC+4*q}:{A_ACC+4*q+3}] offset:{q*1024}")
    g(f"s_lshl_b32 s{tX}, s{tU}, 3", f"s_add_u32 s{tX}, s{tX}, s{tR}", f"s_lshl_b32 s{tX}, s{tX}, 10", f"v_add_u32 v10, s{tX}, v{V_L16}", "v_add_u32 v11, 0x10000, v10",
      "s_waitcnt lgkmcnt(0)", "s_barrier")
    for p in range(8):
        a = 10 if p < 4 else 11
        for c in range(2):
            if p == 7 and c == 1: g("s_waitcnt lgkmcnt(8)")
            g(f"ds_read_b128 v[{64+(p*2+c)*4}:{64+(p*2+c)*4+3}], v{a} offset:{(p%4)*16384 + c*4096}")
    g("s_waitcnt lgkmcnt(0)")
    for st in (32, 16, 8):
        for k in range(st): g(f"v_add_f32 v{64+k}, v{64+k}, v{64+k+st}")
    g.stamp(tag + "_red")

def tail(g):
    g("v_mbcnt_lo_u32_b32 v0, -1, 0", "v_mbcnt_hi_u32_b32 v0, -1, v0", f"v_lshlrev_b32 v{V_L16}, 4, v0")
    g(f"s_and_b32 s{tRB}, s2, 7", f"s_lshl_b32 s{tRB}, s{tRB}, 2", f"s_bfe_u32 s{tX}, s2, 0x20003", f"s_add_u32 s{tRB}, s{tRB}, s{tX}", f"s_lshr_b32 s{tCB}, s2, 5")
    g(f"s_and_b32 s{tR}, s{sWAVE}, 3", f"s_lshr_b32 s{tU}, s{sWAVE}, 2")
    kKQ, kRB, kCB, kWR, kWC, kAO, kWO, kM0, kO = 36, 37, 38, 39, 40, 41, 42, 43, 44
    NS3 = 5
    g(f"s_bfe_u32 s{kKQ}, s2, 0x20001", f"s_and_b32 s{kRB}, s2, 1", f"s_lshl_b32 s{kRB}, s{kRB}, 3", f"s_bfe_u32 s{tX}, s2, 0x30003", f"s_add_u32 s{kRB}, s{kRB}, s{tX}", f"s_lshr_b32 s{kCB}, s2, 6")
    g(f"s_and_b32 s{kWR}, s{sWAVE}, 3", f"s_lshr_b32 s{kWC}, s{sWAVE}, 2")
    g(f"s_load_dwordx2 s[{S_A}:{S_A+1}], s[0:1], {KA['wo']}", f"s_load_dwordx2 s[{S_B}:{S_B+1}], s[0:1], {KA['x']}")
    g("v_lshrrev_b32 v14, 4, v0", "v_lshlrev_b32 v3, 10, v14", "v_bfe_u32 v15, v0, 1, 3", "v_xor_b32 v15, v15, v14", "v_and_b32 v10, 1, v0", "v_lshlrev_b32 v10, 4, v10",
      "v_add_u32 v3, v3, v10", "v_xor_b32 v11, 4, v15", "v_lshl_add_u32 v4, v11, 5, v3", "v_lshl_add_u32 v3, v15, 5, v3", f"v_add_u32 v4, {4*1024 - 1024}, v4")
    g("v_lshrrev_b32 v14, 4, v0", "v_bfe_u32 v15, v0, 2, 2", "v_lshl_add_u32 v14, v14, 2, v15", "v_lshlrev_b32 v6, 8, v14", "v_and_b32 v14, 7, v14", "v_lshl_add_u32 v6, v14, 5, v6",
      "v_and_b32 v15, 3, v0", "v_lshl_add_u32 v6, v15, 3, v6", f"s_lshl_b32 s{tX}, s{kWC}, 7", f"v_xor_b32 v6, s{tX}, v6", "v_add_u32 v6, 16384, v6")
    for c in range(1, 4): g(f"v_xor_b32 v{6+c}, {c << 5}, v6")
    g(f"s_lshl_b32 s{tX}, s{kWR}, 12", f"v_add_u32 v10, s{tX}, v{V_L16}")
    g(f"s_lshl_b32 s{kAO}, s{kRB}, 3", f"s_add_u32 s{kAO}, s{kAO}, s{sWAVE}", f"s_lshl_b32 s{kAO}, s{kAO}, 17", f"s_lshl_b32 s{tX}, s{kKQ}, 15", f"s_add_u32 s{kAO}, s{kAO}, s{tX}", f"s_add_u32 s{kAO}, s{kAO}, {hex(WS_CTX)}")
    g(f"s_lshl_b32 s{kWO}, s{kKQ}, 20", f"s_lshl_b32 s{tX}, s{sWAVE}, 13", f"s_add_u32 s{kWO}, s{kWO}, s{tX}", f"s_lshl_b32 s{tX}, s{kCB}, 8", f"s_add_u32 s{kWO}, s{kWO}, s{tX}")
    g(f"s_lshl_b32 s{kM0}, s{sWAVE}, 11")
    g("s_waitcnt lgkmcnt(0)"); finish_srd(g, S_A, 'wo'); finish_srd(g, S_B, 'x')
    def w3(st):
        return [f"s_add_u32 m0, s{kM0}, {(st % NS3)*32768 + 16384}", f"s_add_u32 s{tX}, s{kWO}, {st*64*1024}",
                (f"buffer_load_dwordx4 v3, s[{S_A}:{S_A+3}], s{tX} offen lds", ('3W', st)), (f"buffer_load_dwordx4 v4, s[{S_A}:{S_A+3}], s{tX} offen offset:1024 lds", ('3W', st))]
    def a3(st):
        return [f"s_add_u32 m0, s{kM0}, {(st % NS3)*32768}", f"s_add_u32 s{tX}, s{kAO}, {st*2048}",
                (f"buffer_load_dwordx4 v{V_L16}, s[{S_WS}:{S_WS+3}], s{tX} offen sc1 lds", ('3A', st)), (f"buffer_load_dwordx4 v{V_L16}, s[{S_WS}:{S_WS+3}], s{tX} offen offset:1024 sc1 lds", ('3A', st))]
    g.wait_vm('ctxst'); g("s_barrier")
    g(f"s_lshl_b32 s{tZ}, s{sI}, 2", f"s_lshr_b32 s{tY}, s{sHEAD}, 3", f"s_add_u32 s{tZ}, s{tZ}, s{tY}")
    cnt_off(g, tX, C_CTX2, tZ); signal(g, S_WS, ('s', tX), 1, tY)
    for st in range(NS3 - 1): emit(g, w3(st))
    g(f"s_mov_b32 s{tZ}, {C_ALL*4}"); spin(g, 1, S_DBG, tZ, 256, tX, tY)
    g(f"s_sub_u32 s{tY}, 15, s{kRB}", f"s_min_u32 s{tX}, s{kRB}, s{tY}", f"s_lshl_b32 s{tX}, s{tX}, 2", f"s_add_u32 s{tX}, s{tX}, s{kKQ}"); cnt_off(g, tZ, C_CTX2, tX)
    spin(g, 1, S_WS, tZ, 8, tX, tY)
    g("s_barrier")
    g.stamp("ctx_ok")
    for st in range(NS3 - 1): emit(g, a3(st))
    g(f"s_lshl_b32 s{kO}, s{kCB}, 2", f"s_add_u32 s{kO}, s{kO}, s{kKQ}")
    g("v_and_b32 v12, 7, v0", "v_bfe_u32 v13, v0, 3, 2", "v_lshrrev_b32 v14, 5, v0")
    g(f"s_lshr_b32 s{tX}, s{kO}, 1", f"s_lshl_b32 s{tY}, s{kRB}, 3", f"s_add_u32 s{tT16}, s{tX}, s{tY}", f"s_and_b32 s{tZ}, s{kO}, 1")
    g(f"s_lshl_b32 s{tX}, s{tT16}, 4", f"s_lshl_b32 s{tY}, s{tZ}, 3", f"s_add_u32 s{tX}, s{tX}, s{tY}", f"v_add_u32 v15, s{tX}, v12")
    g(f"s_lshl_b32 s{tX}, s{sWAVE}, 1", f"v_add_u32 v11, s{tX}, v14", "v_lshlrev_b32 v11, 5, v11", "v_lshl_add_u32 v11, v13, 2, v11")
    g("v_lshlrev_b32 v15, 10, v15", "v_lshl_add_u32 v15, v11, 1, v15", "v_lshlrev_b32 v11, 2, v11")
    g(f"s_lshl_b32 s{tY}, s{tZ}, 7", "v_lshlrev_b32 v12, 4, v12", "v_lshl_add_u32 v12, v13, 8, v12", f"v_add_u32 v12, s{tY}, v12")
    g("v_lshl_add_u32 v13, v14, 11, v12", "v_lshl_add_u32 v12, v14, 10, v12")
    g.vmem(f"buffer_load_dwordx2 v[120:121], v15, s[{S_B}:{S_B+3}], 0 offen", 'xr'); g.vmem(f"buffer_load_dwordx2 v[122:123], v15, s[{S_B}:{S_B+3}], 0 offen offset:32", 'xr')
    g(f"s_mov_b32 s{tX}, {hex(WS_MOD + 1024*4)}")
    for k, off in enumerate((0, 64, 2048, 2048+64, 4096, 4096+64)):
        if off >= 4096: g(f"s_mov_b32 s{tX}, {hex(WS_MOD + 2048*4)}"); off -= 4096
        g.vmem(f"buffer_load_dwordx4 v[{96+4*k}:{99+4*k}], v11, s[{S_WS}:{S_WS+3}], s{tX} offen offset:{off} sc1", 'mods')
    def r3(ks):
        kk = ks & 1; fb = 16 + (ks & 1)*24
        out = [f"ds_read_b128 v[{fb+16+4*r}:{fb+16+4*r+3}], v10 offset:{r*2048+kk*1024}" for r in range(2)]
        for c in range(4):
            out.append(f"ds_read_b64_tr_b16 v[{fb+4*c}:{fb+4*c+1}], v{6+c} offset:{kk*8192}")
            out.append(f"ds_read_b64_tr_b16 v[{fb+4*c+2}:{fb+4*c+3}], v{6+c} offset:{kk*8192+4096}")
        return out
    g.wait_vm(('3A', 0)); g("s_barrier")
    g.stamp("k3_first")
    g(r3(0))
    NST = 16
    dq3 = []
    for ks in range(2*NST):
        st, kk = ks >> 1, ks & 1
        if kk == 1 and st + 1 < NST:
            if not OPT.get('k3nodma') or st + 1 < NS3 - 1: g.wait_vm(('3A', st + 1)); g.wait_vm(('3W', st + 1))
            if not OPT.get('k3nobar'): g("s_barrier")
            if st + NS3 - 1 < NST and not OPT.get('k3nodma'): dq3 = [w3(st + NS3 - 1), a3(st + NS3 - 1)]
            d = (((st + 1) % NS3) - (st % NS3)) * 32768
            for v in (6, 7, 8, 9, 10): g(f"v_add_u32 v{v}, {hex(d & 0xffffffff)}, v{v}")
        rd = r3(ks + 1) if ks + 1 < 2*NST else []
        last = not rd
        fb = 16 + (ks & 1)*24
        for m in range(8):
            c, r = m >> 1, m & 1
            if r == 0: g(f"s_waitcnt lgkmcnt({6 if not last else 6 - 2*c - 0 if False else (6 if not last else max(0, 6 - 2*c))})")
            d = 64 + (c*2 + r)*4
            cin = "0" if ks == 0 else f"v[{d}:{d+3}]"
            g(f"v_mfma_f32_16x16x32_bf16 v[{d}:{d+3}], v[{fb+4*c}:{fb+4*c+3}], v[{fb+16+4*r}:{fb+16+4*r+3}], {cin}")
            if rd:
                g(rd.pop(0))
                if m >= 6 and rd: g(rd.pop(0))
            if m in (3, 5) and dq3: emit(g, dq3.pop(0))
    g.stamp("k3_loop")
    g("s_nop 7")
    g(f"s_lshl_b32 s{tX}, s{kKQ}, 7", f"s_lshl_b32 s{tY}, s{kRB}, 3", f"s_add_u32 s{tX}, s{tX}, s{tY}", f"s_lshl_b32 s{tY}, s{kWR}, 1", f"s_add_u32 s{tX}, s{tX}, s{tY}",
      f"s_lshl_b32 s{tX}, s{tX}, 4", f"s_lshl_b32 s{tY}, s{kCB}, 2", f"s_add_u32 s{tX}, s{tX}, s{tY}", f"s_lshl_b32 s{tY}, s{kWC}, 1", f"s_add_u32 s{tX}, s{tX}, s{tY}",
      f"s_lshl_b32 s{tX}, s{tX}, 10", f"s_add_u32 s{tX}, s{tX}, {hex(WS_PART)}")
    for r in range(2):
        for cp in range(2):
            qa, qb = 64 + ((2*cp)*2 + r)*4, 64 + ((2*cp+1)*2 + r)*4
            t = 16 + (r*2 + cp)*4
            g(f"v_cvt_pk_bf16_f32 v{t}, v{qa}, v{qa+1}", f"v_cvt_pk_bf16_f32 v{t+1}, v{qa+2}, v{qa+3}", f"v_cvt_pk_bf16_f32 v{t+2}, v{qb}, v{qb+1}", f"v_cvt_pk_bf16_f32 v{t+3}, v{qb+2}, v{qb+3}")
            g.vmem(f"buffer_store_dwordx4 v[{t}:{t+3}], v{V_L16}, s[{S_WS}:{S_WS+3}], s{tX} offen offset:{cp*1024} sc1", 'pst')
        if r == 0: g(f"s_add_u32 s{tX}, s{tX}, 16384")
    g.wait_vm('pst'); g("s_barrier")
    cnt_off(g, tX, C_PART, kRB); signal(g, S_WS, ('s', tX), 1, tY)
    cnt_off(g, tY, C_PART, kRB); g(f"s_mov_b32 s{kAO}, s{tY}"); spin(g, 1, S_WS, kAO, 16, tX, tY, sleep=2)
    g("s_barrier")
    g.stamp("part_ok")
    g(f"s_lshl_b32 s{tX}, s{tT16}, 14", f"s_lshl_b32 s{tY}, s{sWAVE}, 11", f"s_add_u32 s{tX}, s{tX}, s{tY}", f"s_add_u32 s{tX}, s{tX}, {hex(WS_PART)}")
    for q in range(4):
        g.vmem(f"buffer_load_dwordx4 v[{16+4*q}:{19+4*q}], v12, s[{S_WS}:{S_WS+3}], s{tX} offen sc1", ('pl', q))
        if q < 3: g(f"s_add_u32 s{tX}, s{tX}, {128*16384}")
    for q in range(4):
        g.wait_vm(('pl', q))
        for d in range(4):
            if q == 0: g(f"v_lshlrev_b32 v{64+2*d}, 16, v{16+d}", f"v_and_b32 v{65+2*d}, 0xffff0000, v{16+d}")
            else: g(f"v_lshlrev_b32 v72, 16, v{16+4*q+d}", f"v_and_b32 v73, 0xffff0000, v{16+4*q+d}", f"v_add_f32 v{64+2*d}, v{64+2*d}, v72", f"v_add_f32 v{65+2*d}, v{65+2*d}, v73")
    for c in range(2):
        g(f"v_lshlrev_b32 v72, 16, v{120+2*c}", f"v_and_b32 v73, 0xffff0000, v{120+2*c}", f"v_lshlrev_b32 v74, 16, v{121+2*c}", f"v_and_b32 v75, 0xffff0000, v{121+2*c}")
        for k in range(4): g(f"v_fma_f32 v{64+4*c+k}, v{64+4*c+k}, v{96+4*c+k}, v{72+k}")
    g(f"s_lshl_b32 s{tX}, s{tT16}, 15", f"s_lshl_b32 s{tY}, s{sWAVE}, 12", f"s_add_u32 s{tX}, s{tX}, s{tY}", f"s_add_u32 s{tX}, s{tX}, {hex(WS_X1)}")
    g.vmem(f"buffer_store_dwordx4 v[64:67], v13, s[{S_WS}:{S_WS+3}], s{tX} offen sc1", 'x1st'); g.vmem(f"buffer_store_dwordx4 v[68:71], v13, s[{S_WS}:{S_WS+3}], s{tX} offen offset:1024 sc1", 'x1st')
    def red8(v, t):
        g("s_nop 1", f"v_add_f32_dpp v{v}, v{v}, v{v} row_ror:8 row_mask:0xf bank_mask:0xf")
        cross_g(g, v, t, "v_add_f32")
    g("v_add_f32 v72, v64, v65", "v_add_f32 v73, v66, v67", "v_add_f32 v74, v68, v69", "v_add_f32 v75, v70, v71", "v_add_f32 v72, v72, v73", "v_add_f32 v74, v74, v75", "v_add_f32 v72, v72, v74")
    red8(72, 73)
    g("v_mul_f32 v72, 0x3c800000, v72")
    g("v_sub_f32 v74, v64, v72", "v_mul_f32 v73, v74, v74")
    for k in range(1, 8): g(f"v_sub_f32 v74, v{64+k}, v72", "v_fmac_f32 v73, v74, v74")
    red8(73, 74)
    g("v_and_b32 v74, 7, v0", "v_lshlrev_b32 v74, 6, v74", f"s_lshl_b32 s{tX}, s{sWAVE}, 3", f"v_add_u32 v75, s{tX}, v74", "ds_write_b64 v75, v[72:73]", "s_waitcnt lgkmcnt(0)", "s_barrier")
    for q in range(4): g(f"ds_read_b128 v[{76+4*q}:{79+4*q}], v74 offset:{q*16}")
    g("s_waitcnt lgkmcnt(0)")
    g("v_add_f32 v72, v76, v78", "v_add_f32 v73, v80, v82", "v_add_f32 v72, v72, v73", "v_add_f32 v73, v84, v86", "v_add_f32 v72, v72, v73", "v_add_f32 v73, v88, v90", "v_add_f32 v72, v72, v73")
    g("v_mul_f32 v72, 0.125, v72" if False else "v_mul_f32 v72, 0x3e000000, v72")
    g("v_add_f32 v73, v77, v79")
    for q in range(2, 8): g(f"v_add_f32 v73, v73, v{77+2*q}")
    for q in range(8): g(f"v_sub_f32 v74, v{76+2*q}, v72", "v_mul_f32 v75, v74, v74", "v_fmac_f32 v73, 0x42800000, v75")
    g("v_mov_b32 v74, 0x3727c5ac", "v_fmac_f32 v74, 0x3b000000, v73", "v_rsq_f32 v74, v74", "s_nop 0")
    for k in range(8): g(f"v_sub_f32 v{64+k}, v{64+k}, v72")
    for k in range(8): g(f"v_mul_f32 v{64+k}, v{64+k}, v74")
    for k in range(8): g(f"v_add_f32 v{112+k}, 1.0, v{112+k}")
    for k in range(8): g(f"v_fma_f32 v{64+k}, v{64+k}, v{112+k}, v{104+k}")
    for k in range(4): g(f"v_cvt_pk_bf16_f32 v{72+k}, v{64+2*k}, v{65+2*k}")
    g(f"s_lshl_b32 s{tX}, s{tT16}, 14", f"s_lshl_b32 s{tY}, s{sWAVE}, 11", f"s_add_u32 s{tX}, s{tX}, s{tY}", f"s_add_u32 s{tX}, s{tX}, {hex(WS_H2)}")
    g.vmem(f"buffer_store_dwordx4 v[72:75], v12, s[{S_WS}:{S_WS+3}], s{tX} offen sc1", 'h2st')
    g(f"s_lshr_b32 s{kO}, s{kRB}, 1")
    g.stamp("stats_ok")
    LK5 = g.newlabel("k5")
    g(f"s_load_dwordx2 s[{S_A}:{S_A+1}], s[0:1], {KA['wg']}", f"s_load_dwordx2 s[{S_B}:{S_B+1}], s[0:1], {KA['wu']}")
    g(f"s_and_b32 s{tRB4}, s2, 1", f"s_lshl_b32 s{tRB4}, s{tRB4}, 2", f"s_bfe_u32 s{tX}, s2, 0x20003", f"s_add_u32 s{tRB4}, s{tRB4}, s{tX}",
      f"s_bfe_u32 s{tCB4}, s2, 0x20001", f"s_mul_i32 s{tCB4}, s{tCB4}, 7", f"s_lshr_b32 s{tX}, s2, 5", f"s_add_u32 s{tCB4}, s{tCB4}, s{tX}")
    g(f"s_lshl_b32 s{tT16}, s{tRB4}, 4", f"s_lshl_b32 s{tX}, s{sWAVE}, 1", f"s_add_u32 s{tT16}, s{tT16}, s{tX}")
    setup_dma128(g, 3584, nat=False); setup_tr128(g, nat=False)
    g(f"s_mul_i32 s{sWB}, s{sWAVE}, {16*3584}", f"s_lshl_b32 s{tX}, s{tCB4}, 7", f"s_add_u32 s{sWB}, s{sWB}, s{tX}", f"s_lshl_b32 s{sM0B}, s{sWAVE}, 11")
    g("s_waitcnt lgkmcnt(0)"); finish_srd(g, S_A, 'wg'); finish_srd(g, S_B, 'wu')
    def dma4(c):
        j, q = c >> 2, c & 3
        srd = S_A if j == 0 else S_B
        return [f"s_add_u32 s{tX}, s{sWB}, {hex(q*128*3584)}", f"s_add_u32 m0, s{sM0B}, {hex(c*16384)}",
                (f"buffer_load_dwordx4 v{V_W0}, s[{srd}:{srd+3}], s{tX} offen lds", ('W', c)),
                (f"buffer_load_dwordx4 v{V_W1}, s[{srd}:{srd+3}], s{tX} offen offset:1024 lds", ('W', c))]
    g.wait_vm('h2st'); g("s_barrier")
    cnt_off(g, tX, C_H2, 44); signal(g, S_WS, ('s', tX), 1, tY)
    g("s_cmp_ge_u32 s2, 224", f"s_cbranch_scc1 {LK5}")
    for c in (0, 4, 1, 5): emit(g, dma4(c))
    for cb in range(4): g(f"v_add_u32 v{10+cb}, 0x10000, v{V_TR+cb}")
    cnt_off(g, tZ, C_H2, tRB4); spin(g, 1, S_WS, tZ, 32, tX, tY)
    g("s_barrier")
    g.stamp("h2_ok")
    g.vm = [('W', c) for c in (0, 4, 1, 5) for _ in range(2)]
    def hload4(s4):
        out = []
        for t in range(2):
            out.append(f"s_lshl_b32 s{tX}, s{tT16}, 14"); out.append(f"s_add_u32 s{tX}, s{tX}, {hex(WS_H2 + t*16384 + s4*4096)}")
            for k in range(4):
                s = s4*4 + k
                out.append((f"buffer_load_dwordx4 a[{(s*2+t)*4}:{(s*2+t)*4+3}], v{V_L16}, s[{S_WS}:{S_WS+3}], s{tX} offen offset:{k*1024} sc1", ('H', s4)))
        return out
    def rd4(ks):
        j, s_ = ks >> 4, ks & 15
        q, kk = s_ >> 2, s_ & 3
        fb = V_FR + (ks % 3)*16
        out = []
        for c in range(4):
            a_ = (V_TR if c < 2 else 10) + 2*j + (c & 1)
            off = q*16384 + kk*4096
            out.append(f"ds_read_b64_tr_b16 v[{fb+4*c}:{fb+4*c+1}], v{a_} offset:{off}")
            out.append(f"ds_read_b64_tr_b16 v[{fb+4*c+2}:{fb+4*c+3}], v{a_} offset:{off+2048}")
        return out
    def silu_items(j):
        it = []
        buf = 64 + 32*j
        T = (1, 2, 14, 15)
        for t in range(2):
            for c in range(2):
                G, U = buf + (t*4 + c)*4, buf + (t*4 + 2 + c)*4
                it += [f"v_mul_f32 v{T[k]}, s{tZ}, v{G+k}" for k in range(4)]
                it += [f"v_exp_f32 v{T[k]}, -v{T[k]}" for k in range(4)]
                it += [f"v_mul_f32 v{G+k}, v{G+k}, v{U+k}" for k in range(4)]
                it += [f"v_add_f32 v{T[k]}, 1.0, v{T[k]}" for k in range(4)]
                it += [f"v_rcp_f32 v{T[k]}, v{T[k]}" for k in range(4)] + ["s_nop 0"]
                it += [f"v_mul_f32 v{G+k}, v{G+k}, v{T[k]}" for k in range(4)]
            G0, G1 = buf + (t*4)*4, buf + (t*4 + 1)*4
            it += [f"v_cvt_pk_bf16_f32 v{G0}, v{G0}, v{G0+1}", f"v_cvt_pk_bf16_f32 v{G0+1}, v{G0+2}, v{G0+3}", f"v_cvt_pk_bf16_f32 v{G0+2}, v{G1}, v{G1+1}", f"v_cvt_pk_bf16_f32 v{G0+3}, v{G1+2}, v{G1+3}"]
            it += [('ST', t, j)]
        return it
    def act_store(t, j):
        a_ = 64 + 32*j + (t*4)*4
        g(f"s_add_u32 s{tX}, s{kAO}, {t*56*1024 + j*1024}")
        g.vmem(f"buffer_store_dwordx4 v[{a_}:{a_+3}], v{V_L16}, s[{S_WS}:{S_WS+3}], s{tX} offen sc1", 'actst')
    g(f"s_mul_i32 s{kAO}, s{tT16}, {56*1024}", f"s_lshl_b32 s{tY}, s{tCB4}, 11", f"s_add_u32 s{kAO}, s{kAO}, s{tY}", f"s_add_u32 s{kAO}, s{kAO}, {hex(WS_ACT)}")
    emit(g, hload4(0)); emit(g, hload4(1))
    g.wait_vm(('W', 4)); g("s_barrier")
    g(rd4(0)); r1 = rd4(1); g(r1[:7]); g("s_waitcnt lgkmcnt(7)"); g(r1[7])
    fq4, dq4 = [], []
    for ks in range(32):
        j, s_ = ks >> 4, ks & 15
        if ks in (2, 6, 10):
            q = ks // 4 + 1
            g.wait_vm(('W', 4 + q)); g("s_barrier")
            if q + 1 < 4: dq4 = [dma4(q + 1), dma4(4 + q + 1)]
        if ks == 0: emit(g, hload4(2))
        if ks == 2: emit(g, hload4(3))
        if ks < 16 and ks % 4 == 0: g.wait_vm(('H', ks // 4))
        if ks == 17:
            g(f"s_mov_b32 s{tZ}, {hex(LOG2E)}"); fq4 = silu_items(0)
        reads = rd4(ks + 2) if ks + 2 < 32 else []
        fb = V_FR + (ks % 3)*16
        for m in range(8):
            c, t = m >> 1, m & 1
            d = 64 + 32*j + (t*4 + c)*4
            cin = "0" if s_ == 0 else f"v[{d}:{d+3}]"
            g(f"v_mfma_f32_16x16x32_bf16 v[{d}:{d+3}], v[{fb+4*c}:{fb+4*c+3}], a[{(s_*2+t)*4}:{(s_*2+t)*4+3}], {cin}")
            if m == 7 and reads: g("s_waitcnt lgkmcnt(7)")
            if reads: g(reads[m])
            elif m == 7 and ks + 1 < 32: g("s_waitcnt lgkmcnt(0)")
            if m == 2 and dq4: emit(g, dq4.pop(0))
            for _ in range(2):
                if fq4:
                    x = fq4.pop(0)
                    if isinstance(x, tuple): act_store(x[1], x[2])
                    else: g(x)
    assert not fq4
    g.stamp("k4_loop")
    g("s_nop 7")
    for x in silu_items(1):
        if isinstance(x, tuple): act_store(x[1], x[2])
        else: g(x)
    g("s_waitcnt vmcnt(0)", "s_barrier")
    cnt_off(g, tX, C_ACT, tRB4); signal(g, S_WS, ('s', tX), 1, tY)
    g.label(LK5)
    g.vm = []
    g.stamp("k5_entry")
    wsplit_setup(g, 7, WS_ACT, 56, 'wd')
    for j in range(DEPTH): emit(g, ws_wdma(j))
    if OPT.get('twd'):
        g(f"s_and_b32 s{tX}, s{tRB}, 3", f"s_mul_i32 s{tX}, s{tX}, 7", f"s_add_u32 s{tX}, s{tX}, s{sWAVE}", f"s_lshl_b32 s{tX}, s{tX}, 16", f"s_lshl_b32 s{tY}, s{tCB}, 7",
          f"s_add_u32 s{tX}, s{tX}, s{tY}", f"s_cmp_lt_u32 s{sWAVE}, 7", f"s_cselect_b32 s{tX}, s{tX}, s{sOOB}", "v_lshlrev_b32 v1, 10, v0")
        g.vmem(f"buffer_load_dword v2, v1, s[{S_A}:{S_A+3}], s{tX} offen", 'tch')
    X1LOAD = True
    g(f"s_lshl_b32 s{tX}, s{tCB}, 6", f"s_lshl_b32 s{tY}, s{tU}, 5", f"s_add_u32 s{tX}, s{tX}, s{tY}", "v_lshrrev_b32 v15, 4, v0", "v_lshlrev_b32 v15, 2, v15", f"v_add_u32 v15, s{tX}, v15")
    g("v_lshlrev_b32 v13, 2, v15", f"s_mov_b32 s{tX}, {hex(WS_MOD + 2560*4)}")
    g.vmem(f"buffer_load_dwordx4 v[60:63], v13, s[{S_WS}:{S_WS+3}], s{tX} offen sc1", 'gb'); g.vmem(f"buffer_load_dwordx4 v[12:15], v13, s[{S_WS}:{S_WS+3}], s{tX} offen offset:64 sc1", 'gb')
    g(f"s_load_dwordx2 s[{S_B}:{S_B+1}], s[0:1], {KA['out']}")
    g(f"s_lshr_b32 s{tX}, s{tRB}, 2"); cnt_off(g, tZ, C_ACT, tX); spin(g, 1, S_WS, tZ, 28, tX, tY)
    g("s_waitcnt lgkmcnt(0)"); finish_srd(g, S_B, 'out')
    g("s_barrier")
    g.stamp("act_ok")
    g(f"s_lshl_b32 s{tX}, s{tRB}, 2", f"s_add_u32 s{tX}, s{tX}, s{tR}", f"s_lshl_b32 s{tX}, s{tX}, 4", f"s_lshl_b32 s{tY}, s{tCB}, 1", f"s_add_u32 s{tX}, s{tX}, s{tY}",
      f"s_add_u32 s{tX}, s{tX}, s{tU}", f"s_lshl_b32 s{tX}, s{tX}, 11", f"s_add_u32 s{tX}, s{tX}, {hex(WS_X1)}")
    g.vmem(f"buffer_load_dwordx4 v[52:55], v{V_L16}, s[{S_WS}:{S_WS+3}], s{tX} offen sc1", 'x1l'); g.vmem(f"buffer_load_dwordx4 v[56:59], v{V_L16}, s[{S_WS}:{S_WS+3}], s{tX} offen offset:1024 sc1", 'x1l')
    wsplit_main(g, 7, 56, "k5")
    for k in range(4): g(f"v_fma_f32 v{64+k}, v{64+k}, v{60+k}, v{52+k}")
    for k in range(4): g(f"v_fma_f32 v{68+k}, v{68+k}, v{12+k}, v{56+k}")
    for k in range(4): g(f"v_cvt_pk_bf16_f32 v{16+k}, v{64+2*k}, v{65+2*k}")
    g(f"s_lshl_b32 s{tX}, s{tRB}, 6", f"s_lshl_b32 s{tY}, s{tR}, 4", f"s_add_u32 s{tX}, s{tX}, s{tY}", "v_and_b32 v20, 15, v0", f"v_add_u32 v20, s{tX}, v20")
    g(f"s_lshl_b32 s{tX}, s{tCB}, 6", f"s_lshl_b32 s{tY}, s{tU}, 5", f"s_add_u32 s{tX}, s{tX}, s{tY}", "v_lshrrev_b32 v21, 4, v0", "v_lshlrev_b32 v21, 2, v21", f"v_add_u32 v21, s{tX}, v21")
    g("v_lshlrev_b32 v20, 10, v20", "v_lshl_add_u32 v20, v21, 1, v20")
    g(f"buffer_store_dwordx2 v[16:17], v20, s[{S_B}:{S_B+3}], 0 offen", f"buffer_store_dwordx2 v[18:19], v20, s[{S_B}:{S_B+3}], 0 offen offset:32")
    if Gen.STAMP:
        g("s_waitcnt vmcnt(0)"); g.stamp("end"); g.dump_stamps(sWAVE, 2)

def tail_code_touch(g):
    lsk = g.newlabel("noct2")
    g(f"s_cmp_lg_u32 s{sWAVE}, 0", f"s_cbranch_scc1 {lsk}", f"s_lshr_b32 s{sT1}, s2, 3", "v_mbcnt_lo_u32_b32 v0, -1, 0", "v_mbcnt_hi_u32_b32 v0, -1, v0")
    code_touch(g, KNAME, sT1, 2, 3, 16, 18, 56)
    g.label(lsk)

def mega(g):
    if OPT.get('ctouch2'): OPT['hook_fin'] = tail_code_touch
    front(g, fused=True)
    tail(g)
```

```python
from core import *
import p_kv
from p_kv import emit, V_W0, V_W1, V_L16, V_TR, V_FR, V_ACC, setup_dma128, setup_tr128, gemm_res_loop

V_CUR, V_NXT, V_L0, V_L1 = 1, 2, 3, 4
V_NEG = 8
V_S = 16
V_P = 48
V_O = 64
A_Q = 0
A_F = 32
S_WQ, S_WS = 4, 8
sWAVE, sHEAD, sI, sISA, sSUB, sT16, sNB2, sNA2, sT, sCNT = 20, 21, 22, 23, 24, 25, 26, 27, 28, 29
sKF, sVF, sNAo, sNBo, sA4, sKO, sVO, sM0K, sT1, sT2, sT3, sSLOT, sRESTART = 30, 31, 32, 33, 34, 35, 36, 37, 38, 39, 40, 41, 42
sFLAG = 52
sMASK = 44
sWB, sM0B = 52, 53
LDS_FLAG = 0x20000
OPT = {}
SC1 = ''

def fr(i, n=8): return f"a[{A_F+4*(i%n)}:{A_F+4*(i%n)+3}]"
def Sreg(buf, qs, kb): return V_S + buf*16 + (qs*2+kb)*4
def v4(b): return f"v[{b}:{b+3}]"

def reads_for(gi):
    a = V_CUR if (gi < 16 or OPT.get('oneaddr', 1)) else V_NXT
    gg = gi % 16
    it, t = gg >> 3, gg & 7
    return (f"ds_read_b128 {fr(2*gi)}, v{a} offset:{it*8192 + t*1024}",
            f"ds_read_b128 {fr(2*gi+1)}, v{a} offset:{16384 + it*8192 + t*1024}")

def gen_iter(g, it, qk, sm, pv, prev_sm, czero=False, dmas=None, lookahead=True, loopctl=False):
    dmas = dmas or {}
    Sc = V_S + (1-it)*16
    Sp = V_S + it*16
    Pn = V_P + (1-it)*8; Pp = V_P + it*8
    for t in range(8):
        gi = it*8 + t
        kb, s = t >> 2, t & 3
        kf, vf = fr(2*gi), fr(2*gi+1)
        M = [None]*4
        if qk:
            for qs in range(2):
                d = Sreg(it, qs, kb)
                c = ("0" if czero else v4(V_NEG+4*qs)) if s == 0 else v4(d)
                M[qs] = f"v_mfma_f32_16x16x32_bf16 {v4(d)}, {kf}, a[{A_Q+(qs*4+s)*4}:{A_Q+(qs*4+s)*4+3}], {c}"
        if pv:
            for qs in range(2):
                d = V_O + (qs*8+t)*4
                M[2+qs] = f"v_mfma_f32_16x16x32_bf16 {v4(d)}, {vf}, {v4(Pp+4*qs)}, {v4(d)}"
        E0 = E1 = C = A0 = A1 = None
        if sm:
            E0, E1 = f"v_exp_f32 v{Sc+2*t}, v{Sc+2*t}", f"v_exp_f32 v{Sc+2*t+1}, v{Sc+2*t+1}"
        if t > 0 and sm:
            p0 = Sc + 2*(t-1); lq = V_L0 + ((t-1) >> 2); dst = Pn + t-1
        elif t == 0 and prev_sm:
            p0 = Sp + 14; lq = V_L1; dst = Pp + 7
        else:
            p0 = None
        if p0 is not None:
            C = f"v_cvt_pk_bf16_f32 v{dst}, v{p0}, v{p0+1}"
            A0, A1 = f"v_add_f32 v{lq}, v{lq}, v{p0}", f"v_add_f32 v{lq}, v{lq}, v{p0+1}"
        R0 = R1 = None
        pre = []
        if lookahead or gi + 2 < 16:
            R0, R1 = reads_for(gi + 2)
        if OPT.get('oneaddr', 1) and lookahead:
            if gi == 12: pre = [f"s_add_u32 s{sSLOT}, s{sSLOT}, 32768"]
            if gi == 13:
                pre = [f"s_and_b32 s{sSLOT}, s{sSLOT}, 0x1ffff"] if not OPT.get('five') else [f"s_cmp_eq_u32 s{sSLOT}, 0x28000", f"s_cselect_b32 s{sSLOT}, 0, s{sSLOT}"]
        if loopctl and gi == 10: pre = pre + [f"s_sub_u32 s{sCNT}, s{sCNT}, 1"]
        D = dmas.get(gi, [])
        W = "s_waitcnt lgkmcnt(2)" if (R0 is not None) else "s_waitcnt lgkmcnt(0)"
        if OPT.get('oneaddr', 1) and lookahead and gi == 14:
            g(f"v_add_u32 v{V_CUR}, s{sSLOT}, v{V_L16}")
        seq = [M[0], R0, E0, M[1], R1, C, M[2]] + pre
        g([x for x in seq if x])
        emit(g, D)
        if t == 0 and prev_sm and E1 is None and not D: g("s_nop 1")
        g([x for x in [E1, M[3]] if x])
        g(W)
        g([x for x in [A0, A1] if x])
        if not pv and t == 0 and prev_sm: pass

def unit_addr(g):
    g(f"s_add_u32 s{sT1}, s{sT}, 3", f"s_lshl_b32 s{sKO}, s{sT1}, 14", f"s_sub_u32 s{sVO}, s{sKO}, 16384",
      f"s_sub_u32 s{sT2}, s{sT1}, s{sNB2}", f"s_sub_u32 s{sT2}, s{sT2}, 1",
      f"s_bitcmp1_b32 s{sT2}, 0", f"s_cselect_b32 s{sT3}, s{sNAo}, s{sNBo}",
      f"s_and_b32 s{sT2}, s{sT2}, 2", f"s_lshl_b32 s{sT2}, s{sT2}, 13", f"s_add_u32 s{sT3}, s{sT3}, s{sT2}",
      f"s_cmp_le_u32 s{sT1}, s{sNB2}", f"s_cselect_b32 s{sKO}, s{sKO}, s{sT3}", f"s_cselect_b32 s{sVO}, s{sVO}, s{sT3}",
      f"s_add_u32 s{sKO}, s{sKO}, s{sKF}", f"s_add_u32 s{sVO}, s{sVO}, s{sVF}",
      f"s_and_b32 s{sT1}, s{sT1}, 3", f"s_lshl_b32 s{sT1}, s{sT1}, 15", f"s_add_u32 s{sM0K}, s{sT1}, s{sA4}")

sUS = 53
def unit_addr5(g, off):
    g(f"s_add_u32 s{sT1}, s{sT}, {off}", f"s_lshl_b32 s{sKO}, s{sT1}, 14", f"s_sub_u32 s{sVO}, s{sKO}, 16384",
      f"s_sub_u32 s{sT2}, s{sT1}, s{sNB2}", f"s_sub_u32 s{sT2}, s{sT2}, 1",
      f"s_bitcmp1_b32 s{sT2}, 0", f"s_cselect_b32 s{sT3}, s{sNAo}, s{sNBo}",
      f"s_and_b32 s{sT2}, s{sT2}, 2", f"s_lshl_b32 s{sT2}, s{sT2}, 13", f"s_add_u32 s{sT3}, s{sT3}, s{sT2}",
      f"s_cmp_le_u32 s{sT1}, s{sNB2}", f"s_cselect_b32 s{sKO}, s{sKO}, s{sT3}", f"s_cselect_b32 s{sVO}, s{sVO}, s{sT3}",
      f"s_add_u32 s{sKO}, s{sKO}, s{sKF}", f"s_add_u32 s{sVO}, s{sVO}, s{sVF}",
      f"s_add_u32 s{sM0K}, s{sUS}, s{sA4}",
      f"s_add_u32 s{sUS}, s{sUS}, 32768", f"s_cmp_eq_u32 s{sUS}, 0x28000", f"s_cselect_b32 s{sUS}, 0, s{sUS}")

def unit_dma_list():
    d = {}
    for k in range(4):
        d[k] = ([f"s_mov_b32 m0, s{sM0K}", "s_nop 0"] if k == 0 else []) + [(f"buffer_load_dwordx4 v{V_L16}, s[{S_WS}:{S_WS+3}], s{sKO} offen offset:{k*1024}{SC1} lds", 'U')]
        d[4+k] = ([f"s_add_u32 m0, s{sM0K}, 16384", "s_nop 0"] if k == 0 else []) + [(f"buffer_load_dwordx4 v{V_L16}, s[{S_WS}:{S_WS+3}], s{sVO} offen offset:{k*1024}{SC1} lds", 'U')]
    return d

def step_begin(g, isA):
    if isA: g("s_waitcnt vmcnt(8)")
    g("s_barrier")
    if isA: unit_addr(g)

def step_addr_advance(g):
    if OPT.get('oneaddr', 1): return
    g(f"v_mov_b32 v{V_CUR}, v{V_NXT}", f"s_add_u32 s{sSLOT}, s{sSLOT}, 32768", f"s_and_b32 s{sSLOT}, s{sSLOT}, 0x1ffff",
      f"v_add_u32 v{V_NXT}, s{sSLOT}, v{V_L16}")

def uniform_unit(u):
    kblk, vblk = 2*u, max(2*u-2, 0)
    items = [f"s_add_u32 s{sKO}, s{sKF}, {kblk*8192}", f"s_add_u32 s{sVO}, s{sVF}, {vblk*8192}",
             f"s_cmp_eq_u32 s{sISA}, 0", f"s_cselect_b32 s{sKO}, s{sKO}, s{sVO}",
             f"s_lshl_b32 s{sT1}, s{sISA}, 14", f"s_add_u32 s{sT1}, s{sT1}, s{sA4}", f"s_add_u32 m0, s{sT1}, {u*32768}", "s_nop 0"]
    for k in range(4):
        items.append((f"buffer_load_dwordx4 v{V_L16}, s[{S_WS}:{S_WS+3}], s{sKO} offen offset:{k*1024} lds", ('U', u)))
    return items

def cross_g(g, v, t, op):
    g(f"v_mov_b32 v{t}, v{v}", "s_nop 1", f"v_permlane16_swap_b32 v{v}, v{t}", f"{op} v{v}, v{v}, v{t}")
    g(f"v_mov_b32 v{t}, v{v}", "s_nop 1", f"v_permlane32_swap_b32 v{v}, v{t}", f"{op} v{v}, v{v}, v{t}")

def diag_block(g, masked, maxonly=False, addr=V_CUR, noV=False):
    for t in range(8):
        g(f"ds_read_b128 {fr(t,16)}, v{addr} offset:{t*1024}")
    if not maxonly:
        for t in range(7):
            g(f"ds_read_b128 {fr(8+t,16)}, v{addr} offset:{16384+t*1024}")
        g("s_waitcnt lgkmcnt(7)")
    else:
        g("s_waitcnt lgkmcnt(0)")
    for t in range(8):
        kb, s = t >> 2, t & 3
        for qs in range(2):
            if masked and qs == 0 and kb == 1: continue
            d = Sreg(0, qs, kb)
            c = ("0" if maxonly else v4(V_NEG+4*qs)) if s == 0 else v4(d)
            g(f"v_mfma_f32_16x16x32_bf16 {v4(d)}, {fr(t,16)}, a[{A_Q+(qs*4+s)*4}:{A_Q+(qs*4+s)*4+3}], {c}")
    if not maxonly: g(f"ds_read_b128 {fr(15,16)}, v{addr} offset:{16384+7*1024}")
    g("s_nop 7")
    regs = [(qs, kb, r) for qs in range(2) for kb in range(2) for r in range(4)]
    if maxonly:
        for qs, kb, r in regs:
            if masked and qs == 0 and kb == 1: continue
            x = Sreg(0, qs, kb) + r
            if masked and qs == kb:
                g(f"v_cndmask_b32 v{x}, v{V_L0}, v{x}, s[{sMASK+2*r}:{sMASK+2*r+1}]")
            g(f"v_max_f32 v{6+qs}, v{6+qs}, v{x}")
        return
    for qs, kb, r in regs:
        x = Sreg(0, qs, kb) + r
        if masked and qs == 0 and kb == 1: continue
        g(f"v_exp_f32 v{x}, v{x}")
    g("s_nop 0")
    for qs, kb, r in regs:
        x = Sreg(0, qs, kb) + r
        if masked and qs == 0 and kb == 1: continue
        if masked and qs == kb:
            g(f"v_cndmask_b32 v{x}, 0, v{x}, s[{sMASK+2*r}:{sMASK+2*r+1}]")
        g(f"v_add_f32 v{V_L0+qs}, v{V_L0+qs}, v{x}")
    for x in range(8):
        if masked and x in (2, 3): g(f"v_mov_b32 v{V_P+x}, 0")
        else: g(f"v_cvt_pk_bf16_f32 v{V_P+x}, v{V_S+2*x}, v{V_S+2*x+1}")
    g("s_waitcnt lgkmcnt(0)", "s_nop 0")
    for t in range(8):
        for qs in range(2):
            d = V_O + (qs*8+t)*4
            g(f"v_mfma_f32_16x16x32_bf16 {v4(d)}, {fr(8+t,16)}, {v4(V_P+4*qs)}, {v4(d)}")

def phase_att(g):
    g(f"s_load_dwordx2 s[4:5], s[0:1], {KA['wq']}", f"s_load_dwordx2 s[8:9], s[0:1], {KA['ws']}")
    g("v_lshrrev_b32 v14, 6, v0", "v_and_b32 v0, 63, v0", "s_nop 0", f"v_readfirstlane_b32 s{sWAVE}, v14")
    g(f"s_and_b32 s{sHEAD}, s2, 7", f"s_lshl_b32 s{sHEAD}, s{sHEAD}, 2", f"s_bfe_u32 s{sT1}, s2, 0x20003", f"s_add_u32 s{sHEAD}, s{sHEAD}, s{sT1}")
    g(f"s_lshr_b32 s{sI}, s2, 5", f"s_lshr_b32 s{sISA}, s{sWAVE}, 2")
    g(f"s_sub_u32 s{sT1}, 7, s{sWAVE}", f"s_sub_u32 s{sT2}, 15, s{sI}", f"s_cmp_eq_u32 s{sISA}, 0",
      f"s_cselect_b32 s{sSUB}, s{sWAVE}, s{sT1}", f"s_cselect_b32 s{sT3}, s{sT2}, s{sI}")
    g(f"s_lshl_b32 s{sT16}, s{sT3}, 3", f"s_lshl_b32 s{sT1}, s{sSUB}, 1", f"s_add_u32 s{sT16}, s{sT16}, s{sT1}")
    g(f"s_lshl_b32 s{sNB2}, s{sT2}, 1", f"s_lshl_b32 s{sNA2}, s{sI}, 1",
      f"s_lshl_b32 s{sNBo}, s{sT2}, 15", f"s_lshl_b32 s{sNAo}, s{sI}, 15")
    g(f"s_and_b32 s{sA4}, s{sWAVE}, 3", f"s_lshl_b32 s{sA4}, s{sA4}, 12")
    g(f"s_lshl_b32 s{sT1}, s{sHEAD}, 19", f"s_add_u32 s{sT1}, s{sT1}, s{sA4}",
      f"s_add_u32 s{sKF}, s{sT1}, {hex(WS_KF)}", f"s_add_u32 s{sVF}, s{sT1}, {hex(WS_VF)}")
    setup_dma128(g, 8192); setup_tr128(g)
    g(f"v_lshlrev_b32 v{V_L16}, 4, v0")
    g(f"s_lshl_b32 s{sWB}, s{sWAVE}, 17", f"s_lshl_b32 s{sT1}, s{sHEAD}, 8", f"s_add_u32 s{sWB}, s{sWB}, s{sT1}", f"s_lshl_b32 s{sM0B}, s{sWAVE}, 11")
    g("v_lshrrev_b32 v14, 4, v0", "v_lshlrev_b32 v14, 2, v14", "v_and_b32 v15, 15, v0")
    for r in range(4):
        g(f"v_cmp_le_u32 s[{sMASK+2*r}:{sMASK+2*r+1}], v14, v15")
        if r < 3: g("v_add_u32 v14, 1, v14")
    g(f"s_mov_b32 s{sRESTART}, 0")
    g("s_waitcnt lgkmcnt(0)")
    p_kv.finish_srd(g, S_WQ, 'wq'); p_kv.finish_srd(g, S_WS, 'ws')
    def dma(c):
        j, q = c >> 2, c & 3
        return [f"s_add_u32 s{sT1}, s{sWB}, {hex(q*0x100000 + j*128)}", f"s_add_u32 m0, s{sM0B}, {hex(c*16384)}",
                (f"buffer_load_dwordx4 v{V_W0}, s[{S_WQ}:{S_WQ+3}], s{sT1} offen lds", ('W', c)),
                (f"buffer_load_dwordx4 v{V_W1}, s[{S_WQ}:{S_WQ+3}], s{sT1} offen offset:1024 lds", ('W', c))]
    def hload(s4):
        out = []
        for t in range(2):
            out.append(f"s_lshl_b32 s{sT1}, s{sT16}, 14")
            out.append(f"s_add_u32 s{sT1}, s{sT1}, {hex(WS_H + t*16384 + s4*4096)}")
            for k in range(4):
                s = s4*4 + k
                out.append((f"buffer_load_dwordx4 a[{(s*2+t)*4}:{(s*2+t)*4+3}], v{V_L16}, s[{S_WS}:{S_WS+3}], s{sT1} offen offset:{k*1024}", ('H', s4)))
        return out
    g.stamp("att_entry")
    emit(g, dma(0)); emit(g, hload(0)); emit(g, dma(1)); emit(g, hload(1)); emit(g, dma(2)); emit(g, hload(2)); emit(g, hload(3))
    for c in range(3, 8): emit(g, dma(c))
    g.wait_vm(('W', 0)); g("s_waitcnt lgkmcnt(0)", "s_barrier")
    g.stamp("q_w0")
    def hook(ks, where):
        if where == 'pre' and ks < 16 and ks % 4 == 0: g.wait_vm(('H', ks // 4))
        if where == 'barrier':
            if ks == 10: emit(g, uniform_unit(0))
            if ks == 18: emit(g, uniform_unit(1))
            if ks == 26: emit(g, uniform_unit(2))
        return False
    gemm_res_loop(g, 2, list(range(8)), {}, dma, lambda j: True, None, hook)
    g.stamp("q_done")
    g("s_nop 7")
    for qs in range(2):
        for s in range(4):
            j, u = s >> 1, s & 1
            a = V_ACC + j*32 + (qs*4 + 2*u)*4; b = a + 4
            for k, (x, y) in enumerate(((a, a+1), (a+2, a+3), (b, b+1), (b+2, b+3))):
                g(f"v_cvt_pk_bf16_f32 v{16+k}, v{x}, v{y}")
            for k in range(4):
                g(f"v_accvgpr_write_b32 a{A_Q+(qs*4+s)*4+k}, v{16+k}")
    attention_body(g, uniform_unit)

def dma_all(g, lst):
    for k, items in sorted(lst.items()): emit(g, items)

def main_five(g, first_part, LA, LDIAG):
    def dmas2():
        return unit_dma_list()
    g(f"s_cmp_lg_u32 s{sISA}, 0", f"s_cbranch_scc1 {LA}")
    if OPT.get('prioB'): g(f"s_setprio {OPT['prioB']}")
    first_part(False)
    gen_iter(g, 1, True, True, False, False)
    if not OPT.get('nopf'):
        skip_pf = g.newlabel("nopf")
        g(f"s_cmp_lg_u32 s{sRESTART}, 0", f"s_cbranch_scc1 {skip_pf}")
        g(f"s_lshl_b32 s{sT1}, s2, 2", f"s_add_u32 s{sT1}, s{sT1}, s{sWAVE}", f"v_lshlrev_b32 v6, 3, v{V_L16}")
        for k, (n, st) in enumerate((('wo', 0), ('wg', 512), ('wu', 736), ('wd', 288))):
            g(prefetch_lines(g, 88+2*k, n, sT1, st, 7, 0, 6, sT2))
        if OPT.get('hook_bstart'): OPT['hook_bstart'](g)
        g.label(skip_pf)
    gen_iter(g, 0, True, True, True, True); gen_iter(g, 1, True, True, True, True)
    g(f"s_lshr_b32 s{sCNT}, s{sNB2}, 1", f"s_sub_u32 s{sCNT}, s{sCNT}, 1")
    lb = g.newlabel("Bloop"); g.label(lb)
    g("s_barrier")
    gen_iter(g, 0, True, True, True, True); gen_iter(g, 1, True, True, True, True)
    gen_iter(g, 0, True, True, True, True); gen_iter(g, 1, True, True, True, True, loopctl=True)
    g(f"s_cmp_lg_u32 s{sCNT}, 0", f"s_cbranch_scc1 {lb}")
    g("s_barrier")
    gen_iter(g, 0, False, True, True, True); gen_iter(g, 1, False, False, True, True, lookahead=False)
    g.stamp("B_main_done"); g.stamp("Bdone_c", True)
    g(f"s_branch {LDIAG}")
    g.label(LA)
    if OPT.get('prioA'): g(f"s_setprio {OPT['prioA']}")
    lidle_chk, lidle, ldrain, la = g.newlabel("Aidlechk"), g.newlabel("Aidle"), g.newlabel("Adrain"), g.newlabel("Aloop")
    lz = g.newlabel("Azero")
    g(f"s_cmp_eq_u32 s{sNA2}, 0", f"s_cbranch_scc1 {lz}")
    first_part(True, unit_off=3)
    unit_addr5(g, 4)
    gen_iter(g, 1, True, True, False, False, dmas={8+k: v for k, v in unit_dma_list().items()})
    gen_iter(g, 0, True, True, True, True); gen_iter(g, 1, True, True, True, True)
    g(f"s_lshr_b32 s{sCNT}, s{sNA2}, 1", f"s_sub_u32 s{sCNT}, s{sCNT}, 1", f"s_cmp_eq_u32 s{sCNT}, 0", f"s_cbranch_scc1 {ldrain}")
    g.label(la)
    g(f"s_add_u32 s{sT}, s{sT}, 2", "s_waitcnt vmcnt(0)", "s_barrier")
    unit_addr5(g, 3)
    gen_iter(g, 0, True, True, True, True, dmas=unit_dma_list())
    unit_addr5(g, 4)
    gen_iter(g, 1, True, True, True, True, dmas={8+k: v for k, v in unit_dma_list().items()})
    gen_iter(g, 0, True, True, True, True); gen_iter(g, 1, True, True, True, True, loopctl=True)
    g(f"s_cmp_lg_u32 s{sCNT}, 0", f"s_cbranch_scc1 {la}")
    g.label(ldrain)
    g(f"s_add_u32 s{sT}, s{sT}, 2", "s_waitcnt vmcnt(0)", "s_barrier")
    unit_addr5(g, 3)
    gen_iter(g, 0, False, True, True, True, dmas=unit_dma_list())
    unit_addr5(g, 4)
    gen_iter(g, 1, False, False, True, True, dmas={8+k: v for k, v in unit_dma_list().items()}, lookahead=False)
    g(f"s_branch {lidle_chk}")
    g.label(lz)
    first_part(True, unit_off=3)
    unit_addr5(g, 4); dma_all(g, unit_dma_list())
    g.label(lidle_chk)
    g("s_waitcnt lgkmcnt(0)")
    ld5 = g.newlabel("d5")
    g(f"s_cmp_ge_u32 s{sT}, s{sNB2}", f"s_cbranch_scc1 {ld5}")
    g.label(lidle)
    g(f"s_add_u32 s{sT}, s{sT}, 2", "s_waitcnt vmcnt(0)", "s_barrier")
    unit_addr5(g, 3); dma_all(g, unit_dma_list())
    unit_addr5(g, 4); dma_all(g, unit_dma_list())
    g(f"s_cmp_lt_u32 s{sT}, s{sNB2}", f"s_cbranch_scc1 {lidle}")
    g.label(ld5)
    g.label(LDIAG)
    g("s_barrier")

def attention_body(g, unit_fn, sc1=False, fused=False):
    global SC1
    SC1 = ' sc1' if (sc1 and not OPT.get('unit_nosc1')) else ''
    L_START = g.newlabel("att_start")
    g.label(L_START)
    g.vm = [('U', 0)]*4 + [('U', 1)]*4 + [('U', 2)]*4
    if not OPT.get('nopf'):
        for k, n in enumerate(('wo', 'wg', 'wu', 'wd')): g(f"s_load_dwordx2 s[{88+2*k}:{89+2*k}], s[0:1], {KA[n]}")
    for r in range(64): g(f"v_mov_b32 v{V_O+r}, 0")
    g(f"v_mov_b32 v{V_L0}, 0", f"v_mov_b32 v{V_L1}, 0")
    if OPT.get('oneaddr', 1): g(f"v_mov_b32 v{V_CUR}, v{V_L16}", f"s_mov_b32 s{sSLOT}, 0", f"s_mov_b32 s{sT}, 0")
    else: g(f"v_mov_b32 v{V_CUR}, v{V_L16}", f"v_add_u32 v{V_NXT}, 0x8000, v{V_L16}", f"s_mov_b32 s{sSLOT}, 0x8000", f"s_mov_b32 s{sT}, 0")
    if OPT.get('five'):
        g(f"s_mov_b32 s{sUS}, {3*32768}", "s_waitcnt vmcnt(0) lgkmcnt(0)", "s_barrier")
    else:
        g.wait_vm(('U', 1)); g("s_waitcnt lgkmcnt(0)", "s_barrier")
        g(f"v_mov_b32 v6, {hex(LDS_FLAG)}", "v_mov_b32 v7, 0", "ds_write_b32 v6, v7", "s_waitcnt lgkmcnt(0)")
    g.stamp("step0"); g.stamp("step0_c", True)
    LA, LB = g.newlabel("pathA"), g.newlabel("pathB")
    LDIAG = g.newlabel("diag")
    def first_part(isA, unit_off=None):
        dm = None
        if isA:
            if unit_off is None: unit_addr(g)
            else: unit_addr5(g, unit_off)
            dm = unit_dma_list()
        r0, r1 = reads_for(0), reads_for(1)
        g(r0[0], r0[1], r1[0], r1[1], "s_waitcnt lgkmcnt(2)")
        gen_iter(g, 0, True, False, False, False, czero=True, dmas=dm)
        g("s_nop 7")
        skip = g.newlabel("nomax")
        g(f"s_cmp_lg_u32 s{sRESTART}, 0", f"s_cbranch_scc1 {skip}")
        for qs in range(2):
            b = V_S + qs*8
            g(f"v_max3_f32 v6, v{b}, v{b+1}, v{b+2}", f"v_max3_f32 v6, v6, v{b+3}, v{b+4}", f"v_max3_f32 v6, v6, v{b+5}, v{b+6}", f"v_max_f32 v6, v6, v{b+7}")
            cross_g(g, 6, 7, "v_max_f32")
            for k in range(4): g(f"v_sub_f32 v{V_NEG+4*qs+k}, 0, v6")
        g.label(skip)
        for qs in range(2):
            for k in range(8): g(f"v_add_f32 v{V_S+qs*8+k}, v{V_S+qs*8+k}, v{V_NEG+4*qs}")
        g("s_nop 1")
    if OPT.get('five'):
        main_five(g, first_part, LA, LDIAG)
    else:
        g(f"s_cmp_lg_u32 s{sISA}, 0", f"s_cbranch_scc1 {LA}")
        if OPT.get('prioB'): g(f"s_setprio {OPT['prioB']}")
        first_part(False)
        gen_iter(g, 1, True, True, False, False)
        g("s_waitcnt vmcnt(0)")
        if not OPT.get('nopf'):
            skip_pf = g.newlabel("nopf")
            g(f"s_cmp_lg_u32 s{sRESTART}, 0", f"s_cbranch_scc1 {skip_pf}")
            g(f"s_lshl_b32 s{sT1}, s2, 2", f"s_add_u32 s{sT1}, s{sT1}, s{sWAVE}", f"v_lshlrev_b32 v6, 3, v{V_L16}")
            for k, (n, st) in enumerate((('wo', 0), ('wg', 512), ('wu', 736), ('wd', 288))):
                ins = prefetch_lines(g, 88+2*k, n, sT1, st, 7, 0, 6, sT2)
                g(ins)
            g.label(skip_pf)
        g(f"s_sub_u32 s{sCNT}, s{sNB2}, 1")
        lb = g.newlabel("Bloop"); g.label(lb)
        step_begin(g, False); step_addr_advance(g)
        gen_iter(g, 0, True, True, True, True); gen_iter(g, 1, True, True, True, True, loopctl=True)
        g(f"s_cmp_lg_u32 s{sCNT}, 0", f"s_cbranch_scc1 {lb}")
        step_begin(g, False); step_addr_advance(g)
        gen_iter(g, 0, False, True, True, True); gen_iter(g, 1, False, False, True, True, lookahead=False)
        g.stamp("B_main_done"); g.stamp("Bdone_c", True)
        g(f"s_branch {LDIAG}")
        g.label(LA)
        if OPT.get('prioA'): g(f"s_setprio {OPT['prioA']}")
        first_part(True)
        lidle = g.newlabel("Aidle"); lidle_chk = g.newlabel("Aidlechk")
        g(f"s_cmp_eq_u32 s{sNA2}, 0", f"s_cbranch_scc1 {lidle_chk}")
        gen_iter(g, 1, True, True, False, False)
        g(f"s_sub_u32 s{sCNT}, s{sNA2}, 1")
        la = g.newlabel("Aloop"); g.label(la)
        g(f"s_add_u32 s{sT}, s{sT}, 1")
        step_begin(g, True); step_addr_advance(g)
        gen_iter(g, 0, True, True, True, True, dmas=unit_dma_list()); gen_iter(g, 1, True, True, True, True, loopctl=True)
        g(f"s_cmp_lg_u32 s{sCNT}, 0", f"s_cbranch_scc1 {la}")
        g(f"s_add_u32 s{sT}, s{sT}, 1")
        step_begin(g, True); step_addr_advance(g)
        gen_iter(g, 0, False, True, True, True, dmas=unit_dma_list()); gen_iter(g, 1, False, False, True, True, lookahead=False)
        g.label(lidle_chk)
        g("s_waitcnt lgkmcnt(0)")
        g(f"s_cmp_ge_u32 s{sT}, s{sNB2}", f"s_cbranch_scc1 {LDIAG}")
        g.label(lidle)
        g(f"s_add_u32 s{sT}, s{sT}, 1")
        step_begin(g, True)
        for k, items in sorted(unit_dma_list().items()): emit(g, items)
        g(f"s_cmp_lt_u32 s{sT}, s{sNB2}", f"s_cbranch_scc1 {lidle}")
        g.label(LDIAG)
        LD_B = g.newlabel("d0B"); LD_go = g.newlabel("d0go")
        g(f"s_cmp_eq_u32 s{sISA}, 0", f"s_cbranch_scc1 {LD_B}")
        g(f"s_add_u32 s{sT}, s{sT}, 1")
        step_begin(g, True)
        for k, items in sorted(unit_dma_list().items()): emit(g, items)
        g(f"s_branch {LD_go}")
        g.label(LD_B); g("s_barrier")
        g.label(LD_go)
    g.stamp("diag_start")
    if OPT.get('five'):
        def mod5(dst, src):
            g(f"s_mul_i32 s{dst}, s{src}, 0xcccd", f"s_lshr_b32 s{dst}, s{dst}, 18", f"s_mul_i32 s{dst}, s{dst}, 5", f"s_sub_u32 s{dst}, s{src}, s{dst}", f"s_lshl_b32 s{dst}, s{dst}, 15")
        g(f"s_add_u32 s{sT1}, s{sNB2}, s{sISA}", f"s_add_u32 s{sT1}, s{sT1}, 1"); mod5(sT2, sT1)
        g(f"s_add_u32 s{sT1}, s{sT1}, 2"); mod5(sT3, sT1)
        g(f"v_add_u32 v{V_CUR}, s{sT2}, v{V_L16}", f"v_add_u32 v{V_NXT}, s{sT3}, v{V_L16}")
        mod5(sFLAG, sNB2)
        g(f"v_mov_b32 v6, s{sFLAG}", "v_mov_b32 v7, 0", "ds_write_b32 v6, v7", "s_waitcnt lgkmcnt(0)")
    else:
        g(f"s_add_u32 s{sT1}, s{sNB2}, s{sISA}", f"s_add_u32 s{sT2}, s{sT1}, 1", f"s_and_b32 s{sT2}, s{sT2}, 3", f"s_lshl_b32 s{sT2}, s{sT2}, 15",
          f"s_add_u32 s{sT3}, s{sT1}, 3", f"s_and_b32 s{sT3}, s{sT3}, 3", f"s_lshl_b32 s{sT3}, s{sT3}, 15",
          f"v_add_u32 v{V_CUR}, s{sT2}, v{V_L16}", f"v_add_u32 v{V_NXT}, s{sT3}, v{V_L16}")
    Lm0, Lb1, Lfin = g.newlabel("m0"), g.newlabel("b1"), g.newlabel("fin")
    g(f"s_cmp_eq_u32 s{sSUB}, 0", f"s_cbranch_scc1 {Lm0}")
    diag_block(g, False); g(f"s_branch {Lb1}")
    g.label(Lm0); diag_block(g, True)
    g.label(Lb1)
    g("s_waitcnt vmcnt(0)", "s_barrier")
    g(f"s_cmp_eq_u32 s{sSUB}, 0", f"s_cbranch_scc1 {Lfin}")
    g(f"s_mov_b32 s{sCNT}, 1", f"v_add_u32 v{V_CUR}, 8192, v{V_CUR}")
    Ll, Llast = g.newlabel("dl"), g.newlabel("dlast")
    g.label(Ll)
    g(f"s_cmp_eq_u32 s{sCNT}, s{sSUB}", f"s_cbranch_scc1 {Llast}")
    diag_block(g, False)
    g(f"s_add_u32 s{sCNT}, s{sCNT}, 1", f"v_mov_b32 v{V_CUR}, v{V_NXT}", f"v_add_u32 v{V_NXT}, 8192, v{V_NXT}", f"s_branch {Ll}")
    g.label(Llast); diag_block(g, True)
    g.label(Lfin)
    if OPT.get('hook_fin'): OPT['hook_fin'](g)
    g.stamp("diag_done")
    if OPT.get('prioA') or OPT.get('prioB'): g("s_setprio 0")
    cross_g(g, V_L0, 6, "v_add_f32"); cross_g(g, V_L1, 6, "v_add_f32")
    LFB, LOK = g.newlabel("fallback"), g.newlabel("ok")
    Lpass = g.newlabel("pass")
    g(f"s_cmp_lg_u32 s{sRESTART}, 0", f"s_cbranch_scc1 {Lpass}")
    if OPT.get('nocheck'): g(f"s_branch {Lpass}")
    g(f"s_mov_b32 s{sT1}, 0x21800000", f"s_mov_b32 s{sT2}, 0x5d800000",
      f"v_cmp_le_f32 vcc, s{sT1}, v{V_L0}", f"v_cmp_le_f32 s[56:57], s{sT1}, v{V_L1}", "s_nop 1", "s_and_b64 s[56:57], s[56:57], vcc",
      f"v_cmp_ge_f32 vcc, s{sT2}, v{V_L0}", "s_nop 1", "s_and_b64 s[56:57], s[56:57], vcc",
      f"v_cmp_ge_f32 vcc, s{sT2}, v{V_L1}", "s_nop 1", "s_and_b64 s[56:57], s[56:57], vcc")
    g("s_cmp_eq_u64 s[56:57], exec", f"s_cbranch_scc1 {Lpass}", f"v_mov_b32 v6, {('s%d' % sFLAG) if OPT.get('five') else hex(LDS_FLAG)}", "v_mov_b32 v7, 1", "ds_write_b32 v6, v7")
    g.label(Lpass)
    g.vm = []
    g(f"v_rcp_f32 v{V_L0}, v{V_L0}", f"v_rcp_f32 v{V_L1}, v{V_L1}", "s_nop 7")
    g(f"s_lshl_b32 s{sT1}, s{sT16}, 17", f"s_lshl_b32 s{sT2}, s{sHEAD}, 12", f"s_add_u32 s{sT1}, s{sT1}, s{sT2}", f"s_add_u32 s{sT1}, s{sT1}, {hex(WS_CTX)}")
    for qs in range(2):
        for s in range(4):
            a = V_O + (qs*8 + 2*s)*4
            for k in range(8): g(f"v_mul_f32 v{a+k}, v{a+k}, v{V_L0+qs}")
            for k in range(4): g(f"v_cvt_pk_bf16_f32 v{a+k}, v{a+2*k}, v{a+2*k+1}")
            g.vmem(f"buffer_store_dwordx4 v[{a}:{a+3}], v{V_L16}, s[{S_WS}:{S_WS+3}], s{sT1} offen offset:{s*1024}{SC1 if fused else ''}", 'ctxst')
        if qs == 0: g(f"s_add_u32 s{sT1}, s{sT1}, 0x20000")
    g("s_waitcnt lgkmcnt(0)", "s_barrier", f"v_mov_b32 v6, {('s%d' % sFLAG) if OPT.get('five') else hex(LDS_FLAG)}", "ds_read_b32 v7, v6", "s_waitcnt lgkmcnt(0)", "s_nop 0",
      f"v_readfirstlane_b32 s{sT1}, v7", "s_nop 3", f"s_cmp_lg_u32 s{sRESTART}, 0", f"s_cselect_b32 s{sT1}, 0, s{sT1}", f"s_cmp_lg_u32 s{sT1}, 0", f"s_cbranch_scc1 {LFB}")
    g.stamp("ctx_stored")
    if Gen.STAMP and not fused:
        g("s_waitcnt vmcnt(0)"); g.stamp("att_end"); g.dump_stamps(sWAVE, 2)
    if fused: g.stamp("att_end")
    vm_at_end = list(g.vm)
    LEND = g.newlabel("attend")
    g(f"s_branch {LEND}")
    g.label(LFB)
    g("s_waitcnt vmcnt(0)")
    g(f"s_mov_b32 s{sRESTART}, 1", "v_mov_b32 v6, 0xff800000", "v_mov_b32 v7, 0xff800000", f"v_mov_b32 v{V_L0}, 0xff800000")
    g(f"s_cmp_eq_u32 s{sISA}, 0", f"s_cselect_b32 s{sT3}, s{sNB2}, s{sNA2}", f"s_lshl_b32 s{sT3}, s{sT3}, 1", f"s_add_u32 s{sCNT}, s{sT3}, s{sSUB}")
    g(f"s_mov_b32 s{sT}, 0")
    Lf, Lf2 = g.newlabel("fb"), g.newlabel("fbn")
    g.label(Lf)
    g("s_barrier")
    Lnod = g.newlabel("fbnod")
    g(f"s_cmp_eq_u32 s{sISA}, 0", f"s_cbranch_scc1 {Lnod}")
    g(f"s_lshl_b32 s{sKO}, s{sT}, 14", f"s_add_u32 s{sKO}, s{sKO}, s{sKF}", f"s_mov_b32 m0, s{sA4}", "s_nop 0")
    for k in range(4): g(f"buffer_load_dwordx4 v{V_L16}, s[{S_WS}:{S_WS+3}], s{sKO} offen offset:{k*1024}{SC1} lds")
    g("s_waitcnt vmcnt(0)")
    g.label(Lnod)
    g("s_barrier")
    for jj in range(2):
        Lskip, Lmask, Lnext = g.newlabel("fs"), g.newlabel("fm"), g.newlabel("fx")
        g(f"s_lshl_b32 s{sT1}, s{sT}, 1", f"s_add_u32 s{sT1}, s{sT1}, {jj}", f"v_add_u32 v{V_CUR}, {jj*8192}, v{V_L16}")
        g(f"s_cmp_gt_u32 s{sT1}, s{sCNT}", f"s_cbranch_scc1 {Lnext}", f"s_cmp_eq_u32 s{sT1}, s{sCNT}", f"s_cbranch_scc1 {Lmask}")
        diag_block(g, False, maxonly=True); g(f"s_branch {Lnext}")
        g.label(Lmask); diag_block(g, True, maxonly=True)
        g.label(Lnext)
    g(f"s_add_u32 s{sT}, s{sT}, 1", f"s_add_u32 s{sT1}, s{sNB2}, 2", f"s_cmp_lt_u32 s{sT}, s{sT1}", f"s_cbranch_scc1 {Lf}")
    for qs in range(2):
        cross_g(g, 6+qs, V_L1, "v_max_f32")
        for k in range(4): g(f"v_sub_f32 v{V_NEG+4*qs+k}, 0, v{6+qs}")
    g("s_barrier")
    sv = g.vm; g.vm = []
    for u in range(3): emit(g, unit_fn(u))
    g.vm = sv
    g(f"s_branch {L_START}")
    g.label(LEND)
    g.vm = vm_at_end
```

```python
import sys
from core import *
import p_mod, p_kv, p_att, p_tail, mega

HEADER = open('adaLN_cond__compressed_kv_cla__swiglu_ffn__prompt.s.ref').read().split('; Override launch')[0]

STD = 'adaLN_cond__compressed_kv_cla__swiglu_ffn__prompt_kernel'
def build(kernels):
    out = HEADER
    for name, grid, block, lds, fn, nv, ao in kernels:
        if name == STD and len(kernels) == 1:
            out += f"; @launch grid=({grid},1,1) block=({block},1,1) lds={lds}\n"
        else:
            out += f"; @launch kernel={name} grid=({grid},1,1) block=({block},1,1) lds={lds}\n"
    out += '.amdgcn_target "amdgcn-amd-amdhsa--gfx950"\n.text\n'
    seen = set()
    for name, grid, block, lds, fn, nv, ao in kernels:
        if name in seen: continue
        seen.add(name)
        g = Gen(); g.uid = len(seen) * 1000
        end = f"L_end_{name}"
        g(f"s_cmp_ge_u32 s2, {grid}", f"s_cbranch_scc1 {end}")
        fn(g)
        g.label(end); g("s_endpgm")
        out += kernel_header(name) + g.text()
    out += '.section .rodata,"a"\n'
    seen = set()
    for name, grid, block, lds, fn, nv, ao in kernels:
        if name in seen: continue
        seen.add(name)
        out += kernel_desc(name, nv, ao)
    return out

def k_mod(g): p_mod.phase_mod(g)
def k_kv(g):
    g.stamp("entry")
    p_kv.phase_kv(g, p_mod.ln1_tail)

def k_att(g): p_att.phase_att(g)
KERNELS = {
  'std': (STD, 256, 512, 163840, mega.mega, 256, 128),
  'mega': ('mega_kernel', 256, 512, 163840, mega.mega, 256, 128),
  'front': ('front_kernel', 256, 512, 163840, mega.front, 256, 128),
  'k3': ('k3_kernel', 256, 512, 163840, p_tail.k3, 256, 128),
  'ln2': ('ln2_kernel', 256, 512, 0, p_tail.ln2, 64, 64),
  'k4': ('k4_kernel', 224, 512, 131072, p_tail.k4, 256, 128),
  'k5': ('k5_kernel', 256, 512, 163840, p_tail.k5, 256, 128),
}
if __name__ == "__main__":
    names = [a for a in sys.argv[2:] if a != 'STAMP' and '=' not in a]
    mega.KNAME = KERNELS[names[0]][0]
    for a in sys.argv[2:]:
        if '=' in a:
            k, v = a.split('='); p_att.OPT[k] = int(v); p_tail.OPT[k] = int(v)
    Gen.STAMP = 'STAMP' in sys.argv
    open(sys.argv[1], 'w').write(build([KERNELS[n] for n in names]))
```

```python
from core import *
import p_kv, p_att, p_mod
from p_kv import emit, V_W0, V_W1, V_L16, V_TR, V_FR, V_ACC, V_C0, V_C1, V_SR, setup_dma128, setup_tr128, tr_reads
from p_att import *
from p_mod import LOG2E, QSCALE

S_WS, S_DBG, S_A, S_B, S_C2 = 4, 8, 12, 16, 56
p_att.S_WS = S_WS
sCROW, sSTB, sSTG = 43, 54, 55
sHKV, sKB, sWBKV = 84, 87, 85
OOB = 0x7ff00000
KNAME = 'mega_kernel'
sOOB = 86
C_START, C_MOD2 = 0, 32
C_H, C_KV, C_CTX, C_H2, C_ACT = 0, 8, 40, 48, 56

SLOT = [0,1,2,3, 0,1, 2,4,5,6,7,8,9, 3, 0, 1,   2,4,5,3,6,7,8,9]
HSCHED = {52 + k: [k] for k in range(16)}
ISSUE = {1:[3, 4], 2:[5], 3:[6, 7], 4:[8, 9], 5:[10, 11], 6:[12, 13], 7:[14, 15], 8:[16], 9:[17], 10:[18], 11:[20], 12:[21], 13:[22], 14:[19], 15:[23]}

def poll_issue(g, vdst, srd, soff, tag, st):
    g(f"s_cmp_eq_u32 s{sWAVE}, 0", f"s_cselect_b32 s{st}, s{soff}, s{sOOB}")
    g.vmem(f"buffer_load_dword v{vdst}, off, s[{srd}:{srd+3}], s{st} sc1", tag)
def poll_check(g, vdst, srd, tag, soff, target, t1, t2):
    ok, loop = g.newlabel("pok"), g.newlabel("ploop")
    g.wait_vm(tag)
    g(f"s_cmp_lg_u32 s{sWAVE}, 0", f"s_cbranch_scc1 {ok}")
    g(f"v_readfirstlane_b32 s{t1}, v{vdst}", "s_nop 3", f"s_cmp_ge_u32 s{t1}, {target}")
    g(f"s_cbranch_scc1 {ok}", f"s_mov_b32 s{t2}, 0x40000")
    g.label(loop)
    g("s_sleep 8", f"buffer_load_dword v{vdst}, off, s[{srd}:{srd+3}], s{soff} sc1", "s_waitcnt vmcnt(0)")
    g(f"v_readfirstlane_b32 s{t1}, v{vdst}", "s_nop 3", f"s_cmp_ge_u32 s{t1}, {target}")
    g(f"s_cbranch_scc1 {ok}", f"s_sub_u32 s{t2}, s{t2}, 1", f"s_cmp_lg_u32 s{t2}, 0", f"s_cbranch_scc1 {loop}")
    g.label(ok)
def signal(g, srd, soff, vt, st, lo=None, hi=None):
    g(f"s_cmp_eq_u32 s{sWAVE}, 0", f"s_cselect_b32 s{st}, {('s%d' % soff[1]) if isinstance(soff, tuple) else soff}, s{sOOB}")
    if lo is not None:
        g(f"s_cmp_ge_u32 s3, {lo}", f"s_cselect_b32 s{st}, s{st}, s{sOOB}", f"s_cmp_lt_u32 s3, {hi}", f"s_cselect_b32 s{st}, s{st}, s{sOOB}")
    g(f"v_mov_b32 v{vt}, 1", "s_mov_b64 exec, 1")
    g.vmem(f"buffer_atomic_add v{vt}, off, s[{srd}:{srd+3}], s{st} sc1", 'sig')
    g("s_mov_b64 exec, -1")
def cnt_off(g, dst, base, idx_s):
    g(f"s_lshl_b32 s{dst}, s{idx_s}, 7", f"s_add_u32 s{dst}, s{dst}, {hex(WS_CNT + base*128)}")

def code_touch(g, kname, seg_s, nseg_bits, first_seg, vt, vdst, st):
    lab = g.newlabel("pc")
    g(f"s_getpc_b64 s[{st}:{st+1}]")
    g.label(lab)
    g(f"s_sub_u32 s{st}, s{st}, {lab}-{kname}", f"s_subb_u32 s{st+1}, s{st+1}, 0")
    g(f"s_and_b32 s{st+2}, s{seg_s}, {(1 << nseg_bits) - 1}", f"s_add_u32 s{st+2}, s{st+2}, {first_seg}", f"s_lshl_b32 s{st+2}, s{st+2}, 13")
    g(f"v_lshlrev_b32 v{vt}, 7, v0", f"v_add_u32 v{vt}, s{st+2}, v{vt}", f"v_min_u32 v{vt}, L_end_{kname}-{kname}, v{vt}")
    g(f"v_mov_b32 v{vt+1}, s{st+1}", f"v_add_co_u32 v{vt}, vcc, s{st}, v{vt}", "s_nop 1", f"v_addc_co_u32 v{vt+1}, vcc, 0, v{vt+1}, vcc")
    g(f"global_load_dword v{vdst}, v[{vt}:{vt+1}], off")

def front(g, fused=False):
    g(f"s_load_dwordx2 s[4:5], s[0:1], {KA['ws']}", f"s_load_dwordx2 s[8:9], s[0:1], {KA['dbg']}",
      f"s_load_dwordx2 s[12:13], s[0:1], {KA['ckv']}", f"s_load_dwordx2 s[16:17], s[0:1], {KA['wuk']}",
      f"s_load_dwordx2 s[56:57], s[0:1], {KA['wuv']}", f"s_load_dwordx2 s[88:89], s[0:1], {KA['x']}",
      f"s_load_dwordx2 s[92:93], s[0:1], {KA['wmod']}", f"s_load_dwordx2 s[96:97], s[0:1], {KA['c']}")
    g.stamp("entry")
    g(f"s_sub_u32 s3, s2, {OPT.get('modbase', 160)}", "s_min_u32 s3, s3, 96")
    g("v_lshrrev_b32 v14, 6, v0", "v_and_b32 v0, 63, v0", "s_nop 0", f"v_readfirstlane_b32 s{sWAVE}, v14")
    g(f"s_and_b32 s{sHEAD}, s2, 7", f"s_lshl_b32 s{sHEAD}, s{sHEAD}, 2", f"s_bfe_u32 s{sT1}, s2, 0x20003", f"s_add_u32 s{sHEAD}, s{sHEAD}, s{sT1}")
    g(f"s_lshr_b32 s{sI}, s2, 5", f"s_lshr_b32 s{sISA}, s{sWAVE}, 2")
    g(f"s_sub_u32 s{sT1}, 7, s{sWAVE}", f"s_sub_u32 s{sT2}, 15, s{sI}", f"s_cmp_eq_u32 s{sISA}, 0",
      f"s_cselect_b32 s{sSUB}, s{sWAVE}, s{sT1}", f"s_cselect_b32 s{sT3}, s{sT2}, s{sI}")
    g(f"s_lshl_b32 s{sT16}, s{sT3}, 3", f"s_lshl_b32 s{sT1}, s{sSUB}, 1", f"s_add_u32 s{sT16}, s{sT16}, s{sT1}")
    g(f"s_lshl_b32 s{sNB2}, s{sT2}, 1", f"s_lshl_b32 s{sNA2}, s{sI}, 1", f"s_lshl_b32 s{sNBo}, s{sT2}, 15", f"s_lshl_b32 s{sNAo}, s{sI}, 15")
    g(f"s_and_b32 s{sA4}, s{sWAVE}, 3", f"s_lshl_b32 s{sA4}, s{sA4}, 12")
    g(f"s_lshl_b32 s{sT1}, s{sHEAD}, 19", f"s_add_u32 s{sT1}, s{sT1}, s{sA4}",
      f"s_add_u32 s{sKF}, s{sT1}, {hex(WS_KF)}", f"s_add_u32 s{sVF}, s{sT1}, {hex(WS_VF)}")
    g(f"s_and_b32 s{sKB}, s2, 1", f"s_lshl_b32 s{sKB}, s{sKB}, 2", f"s_bfe_u32 s{sT1}, s2, 0x20003", f"s_add_u32 s{sKB}, s{sKB}, s{sT1}")
    g(f"s_bfe_u32 s{sHKV}, s2, 0x20001", f"s_lshl_b32 s{sHKV}, s{sHKV}, 3", f"s_lshr_b32 s{sT1}, s2, 5", f"s_add_u32 s{sHKV}, s{sHKV}, s{sT1}")
    g("v_lshrrev_b32 v14, 3, v0", "v_lshlrev_b32 v1, 10, v14", "v_lshrrev_b32 v14, 4, v0", "v_and_b32 v15, 7, v0", "v_xor_b32 v14, v14, v15",
      "v_xor_b32 v15, 4, v14", "v_lshl_add_u32 v2, v15, 4, v1", "v_lshl_add_u32 v1, v14, 4, v1", f"v_add_u32 v2, {8*1024-1024}, v2")
    setup_dma128(g, 8192); setup_tr128(g)
    g(f"s_mul_i32 s{sSTG}, s{sWAVE}, 12288", f"s_add_u32 s{sSTG}, s{sSTG}, {4*16384}",
      "v_and_b32 v14, 15, v0", "v_lshlrev_b32 v10, 7, v14", "v_lshrrev_b32 v14, 1, v14", "v_lshrrev_b32 v15, 4, v0", "v_xor_b32 v14, v14, v15",
      "v_lshl_add_u32 v10, v14, 4, v10", f"v_add_u32 v10, s{sSTG}, v10", "v_xor_b32 v11, 64, v10")
    g(f"v_lshlrev_b32 v{V_L16}, 4, v0")
    g(f"s_lshl_b32 s{sT1}, s{sKB}, 8", f"s_lshl_b32 s{sCROW}, s{sWAVE}, 5", f"s_add_u32 s{sCROW}, s{sT1}, s{sCROW}", f"s_lshl_b32 s{sCROW}, s{sCROW}, 10")
    g(f"s_lshl_b32 s{sWB}, s{sWAVE}, 17", f"s_lshl_b32 s{sT1}, s{sHEAD}, 8", f"s_add_u32 s{sWB}, s{sWB}, s{sT1}", f"s_lshl_b32 s{sM0B}, s{sWAVE}, 11")
    g(f"s_lshl_b32 s{sWBKV}, s{sWAVE}, 17", f"s_lshl_b32 s{sT1}, s{sHKV}, 8", f"s_add_u32 s{sWBKV}, s{sWBKV}, s{sT1}")
    g(f"s_lshl_b32 s{sSTB}, s{sHKV}, 19", f"s_lshl_b32 s{sT1}, s{sKB}, 3", f"s_add_u32 s{sT1}, s{sT1}, s{sWAVE}", f"s_lshl_b32 s{sT1}, s{sT1}, 13", f"s_add_u32 s{sSTB}, s{sSTB}, s{sT1}")
    g("v_lshrrev_b32 v14, 4, v0", "v_lshlrev_b32 v14, 2, v14", "v_and_b32 v15, 15, v0")
    for r in range(4):
        g(f"v_cmp_le_u32 s[{sMASK+2*r}:{sMASK+2*r+1}], v14, v15")
        if r < 3: g("v_add_u32 v14, 1, v14")
    g(f"s_mov_b32 s{sRESTART}, 0", f"s_mov_b32 s{sOOB}, {hex(OOB)}")
    g.stamp("pre_karg")
    g("s_waitcnt lgkmcnt(0)")
    g.stamp("karg")
    for s, n in ((S_WS, 'ws'), (S_DBG, 'dbg'), (S_A, 'ckv'), (S_B, 'wuk'), (S_C2, 'wuv'), (88, 'x'), (92, 'wmod'), (96, 'c')):
        finish_srd(g, s, n)
    def dma(c):
        if c < 16:
            j, q = c >> 2, c & 3
            srd = S_B if j < 2 else S_C2
            off = q*0x100000 + (j & 1)*128
        else:
            j, q = (c - 16) >> 2, c & 3
            srd = S_B; off = q*0x100000 + j*128
        base = sWBKV if c < 16 else sWB
        if OPT.get('bdma_hack'):
            lab = g.newlabel("nodma")
            return [f"s_cmp_lg_u32 s{sISA}, 0", f"s_cbranch_scc1 {lab}",
                    f"s_add_u32 s{sT1}, s{base}, {hex(off)}", f"s_add_u32 m0, s{sM0B}, {hex(SLOT[c]*16384)}",
                    (f"buffer_load_dwordx4 v{V_W0}, s[{srd}:{srd+3}], s{sT1} offen lds", ('W', c)),
                    (f"buffer_load_dwordx4 v{V_W1}, s[{srd}:{srd+3}], s{sT1} offen offset:1024 lds", ('W', c)),
                    f"s_add_u32 s{sT1}, s{sT1}, {4*16*8192}", f"s_add_u32 m0, m0, {4*2048}", "s_nop 0",
                    f"buffer_load_dwordx4 v{V_W0}, s[{srd}:{srd+3}], s{sT1} offen lds",
                    f"buffer_load_dwordx4 v{V_W1}, s[{srd}:{srd+3}], s{sT1} offen offset:1024 lds", lab + ":"]
        return [f"s_add_u32 s{sT1}, s{base}, {hex(off)}", f"s_add_u32 m0, s{sM0B}, {hex(SLOT[c]*16384)}",
                (f"buffer_load_dwordx4 v{V_W0}, s[{srd}:{srd+3}], s{sT1} offen lds", ('W', c)),
                (f"buffer_load_dwordx4 v{V_W1}, s[{srd}:{srd+3}], s{sT1} offen offset:1024 lds", ('W', c))]
    def stage(p):
        out = []
        for hf in range(2):
            out += [f"s_add_u32 s{sT1}, s{sCROW}, {p*128 + hf*16384}", f"s_add_u32 m0, s{sSTG}, {(p%3)*4096 + hf*2048}",
                    (f"buffer_load_dwordx4 v{V_C0}, s[{S_A}:{S_A+3}], s{sT1} offen lds", ('P', p)),
                    (f"buffer_load_dwordx4 v{V_C1}, s[{S_A}:{S_A+3}], s{sT1} offen offset:1024 lds", ('P', p))]
        return out
    def stage_reads(p):
        return [f"ds_read_b128 a[{(s*2+t)*4}:{(s*2+t)*4+3}], v{V_SR+(s&1)} offset:{(p%3)*4096 + t*2048}" for s in (2*p, 2*p+1) for t in range(2)]
    MC, MW, MT, MA = 96, 100, 116, 120
    def mod_loads(lo, hi):
        g(f"s_cmp_ge_u32 s3, {lo}", f"s_cselect_b32 s{sT2}, 0, s{sOOB}", f"s_cmp_lt_u32 s3, {hi}", f"s_cselect_b32 s{sT2}, s{sT2}, s{sOOB}")
        g(f"v_and_b32 v{MT}, 3, v0", f"v_lshrrev_b32 v{MT+1}, 2, v0", f"s_lshl_b32 s{sT1}, s{sWAVE}, 4", f"v_add_u32 v{MT+1}, s{sT1}, v{MT+1}")
        g(f"s_movk_i32 s{sT1}, 6144", f"v_mul_lo_u32 v{MT+2}, v{MT+1}, s{sT1}", f"v_lshl_add_u32 v{MT+2}, v{MT}, 4, v{MT+2}", f"s_lshl_b32 s{sT1}, s3, 6", f"v_add_u32 v{MT+2}, s{sT1}, v{MT+2}")
        g(f"v_lshlrev_b32 v{MT+3}, 1, v{MT+1}")
        for t in range(4):
            g.vmem(f"buffer_load_ushort v{MC+t}, v{MT+3}, s[96:99], s{sT2} offen offset:{t*256}", 'mc')
        for t in range(4):
            g(f"s_add_u32 s{sT1}, s{sT2}, {hex(t*128*6144)}")
            g.vmem(f"buffer_load_dwordx4 v[{MW+4*t}:{MW+3+4*t}], v{MT+2}, s[92:95], s{sT1} offen", ('mw', t))
    def mod_partial(lo, hi, lds):
        skip = g.newlabel("modp")
        g.wait_vm(('mw', 3))
        g(f"s_cmp_ge_u32 s3, {lo}", f"s_cbranch_scc0 {skip}", f"s_cmp_lt_u32 s3, {hi}", f"s_cbranch_scc0 {skip}")
        g(f"s_mov_b32 s{sT1}, {hex(LOG2E)}")
        for t in range(4): g(f"v_lshlrev_b32 v{MC+t}, 16, v{MC+t}")
        for t in range(4): g(f"v_mul_f32 v{MT+t}, s{sT1}, v{MC+t}")
        for t in range(4): g(f"v_exp_f32 v{MT+t}, -v{MT+t}")
        g("s_nop 0")
        for t in range(4): g(f"v_add_f32 v{MT+t}, 1.0, v{MT+t}")
        for t in range(4): g(f"v_rcp_f32 v{MT+t}, v{MT+t}")
        g("s_nop 0")
        for t in range(4): g(f"v_mul_f32 v{MC+t}, v{MC+t}, v{MT+t}")
        g(f"s_mov_b32 s{sT2}, 0xffff0000")
        for t in range(4):
            for d in range(4):
                w = MW + 4*t + d
                g(f"v_lshlrev_b32 v{MT}, 16, v{w}", f"v_and_b32 v{MT+1}, s{sT2}, v{w}")
                if t == 0: g(f"v_mul_f32 v{MA+2*d}, v{MC}, v{MT}", f"v_mul_f32 v{MA+1+2*d}, v{MC}, v{MT+1}")
                else: g(f"v_fmac_f32 v{MA+2*d}, v{MC+t}, v{MT}", f"v_fmac_f32 v{MA+1+2*d}, v{MC+t}, v{MT+1}")
        for r in (8, 4):
            g("s_nop 1")
            for e in range(8): g(f"v_add_f32_dpp v{MA+e}, v{MA+e}, v{MA+e} row_ror:{r} row_mask:0xf bank_mask:0xf")
        g(f"v_lshrrev_b32 v{MT+1}, 4, v0", f"s_lshl_b32 s{sT1}, s{sWAVE}, 2", f"v_add_u32 v{MT+1}, s{sT1}, v{MT+1}", f"v_lshlrev_b32 v{MT+1}, 7, v{MT+1}",
          f"v_and_b32 v{MT}, 3, v0", f"v_lshl_add_u32 v{MT+1}, v{MT}, 5, v{MT+1}", f"v_add_u32 v{MT+1}, {lds}, v{MT+1}")
        g(f"v_and_b32 v{MT}, 15, v0", f"v_cmp_gt_u32 vcc, 4, v{MT}", "s_nop 1", "s_mov_b64 exec, vcc")
        g(f"ds_write_b128 v{MT+1}, v[{MA}:{MA+3}]", f"ds_write_b128 v{MT+1}, v[{MA+4}:{MA+7}] offset:16")
        g("s_mov_b64 exec, -1", "s_waitcnt lgkmcnt(0)")
        g.label(skip)
    def mod_final(lo, hi, lds):
        lskip = g.newlabel("modfin")
        g(f"s_cmp_ge_u32 s3, {lo}", f"s_cselect_b32 s{sT2}, 0, s{sOOB}", f"s_cmp_lt_u32 s3, {hi}", f"s_cselect_b32 s{sT2}, s{sT2}, s{sOOB}",
          f"s_cmp_eq_u32 s{sWAVE}, 0", f"s_cselect_b32 s{sT2}, s{sT2}, s{sOOB}")
        g(f"s_cmp_lg_u32 s{sT2}, 0", f"s_cbranch_scc1 {lskip}")
        g(f"v_and_b32 v{MT}, 31, v0", f"v_lshlrev_b32 v{MT}, 2, v{MT}", f"v_lshrrev_b32 v{MT+1}, 5, v0", f"v_lshl_add_u32 v{MT}, v{MT+1}, 11, v{MT}", f"v_add_u32 v{MT}, {lds}, v{MT}")
        g("s_waitcnt lgkmcnt(0)")
        for r in range(16):
            if r == 15: g("s_waitcnt lgkmcnt(7)")
            g(f"ds_read_b32 v{MW+r}, v{MT} offset:{r*128}")
        g("s_waitcnt lgkmcnt(0)")
        for st in (8, 4, 2, 1):
            for k in range(st): g(f"v_add_f32 v{MW+k}, v{MW+k}, v{MW+k+st}")
        g(f"v_mov_b32 v{MW+1}, v{MW}", "s_nop 1", f"v_permlane32_swap_b32 v{MW}, v{MW+1}", f"v_add_f32 v{MW}, v{MW}, v{MW+1}")
        g.label(lskip)
        g(f"v_lshlrev_b32 v{MT}, 2, v0", "v_cmp_gt_u32 vcc, 32, v0", f"v_mov_b32 v{MT+1}, {hex(OOB)}", "s_nop 0", f"v_cndmask_b32 v{MT}, v{MT+1}, v{MT}, vcc")
        g(f"s_lshl_b32 s{sT1}, s3, 7", f"s_add_u32 s{sT1}, s{sT1}, {hex(WS_MOD)}", f"s_add_u32 s{sT1}, s{sT1}, s{sT2}")
        g.vmem(f"buffer_store_dword v{MW}, v{MT}, s[{S_WS}:{S_WS+3}], s{sT1} offen sc1", 'modst')
        g(f"s_lshl_b32 s{sT1}, s3, 7", f"s_add_u32 s{sT1}, s{sT1}, {hex(WS_CNT)}", "s_cmp_lt_u32 s3, 32", f"s_cselect_b32 s{sT1}, s{sT1}, s{sOOB}",
          f"s_cmp_eq_u32 s{sWAVE}, 0", f"s_cselect_b32 s{sT1}, s{sT1}, s{sOOB}", f"v_mov_b32 v{MT+2}, 0", f"v_lshlrev_b32 v{MT+3}, 12, v0", "s_mov_b64 exec, 15")
        g.vmem(f"buffer_store_dword v{MT+2}, v{MT+3}, s[{S_WS}:{S_WS+3}], s{sT1} offen sc1", 'modst')
        g("s_mov_b64 exec, -1")
    def c_touch():
        g(f"s_lshr_b32 s{sT1}, s2, 5", f"s_mul_i32 s{sT1}, s{sT1}, 160", f"s_lshl_b32 s{sT2}, s{sWAVE}, 6", f"s_add_u32 s{sT1}, s{sT1}, s{sT2}", f"v_add_u32 v56, s{sT1}, v0")
        g(f"v_add_u32 v57, s{sT2}, v0", "v_mov_b32 v58, 0xcccd", "v_mul_u32_u24 v58, v56, v58", "v_lshrrev_b32 v58, 18, v58")
        g("v_mul_u32_u24 v59, 5, v58", "v_sub_u32 v59, v56, v59", "v_add_u32 v59, 3, v59", "v_lshlrev_b32 v59, 7, v59", "v_lshl_add_u32 v59, v58, 10, v59")
        g(f"s_lshl_b32 s{sT1}, s{sKB}, 18", f"v_add_u32 v59, s{sT1}, v59", "v_cmp_gt_u32 vcc, 160, v57", f"v_mov_b32 v58, {hex(OOB)}", "s_nop 0", "v_cndmask_b32 v59, v58, v59, vcc")
        g.vmem(f"buffer_load_dword v12, v59, s[{S_A}:{S_A+3}], 0 offen", 'tc')
    def w_touch_lin():
        g(f"s_lshl_b32 s{sT1}, s2, 2", f"s_and_b32 s{sT2}, s{sWAVE}, 3", f"s_add_u32 s{sT1}, s{sT1}, s{sT2}")
        g(f"s_and_b32 s{sT2}, s{sT1}, 511", f"s_lshl_b32 s{sT2}, s{sT2}, 13", f"s_cmp_lt_u32 s{sWAVE}, 4", f"s_cselect_b32 s{sT2}, s{sT2}, s{sOOB}")
        g("v_lshlrev_b32 v15, 7, v0", f"s_cmp_lt_u32 s{sT1}, 512", f"s_cselect_b32 s{sT3}, s{sT2}, s{sOOB}")
        g.vmem(f"buffer_load_dword v13, v15, s[{S_B}:{S_B+3}], s{sT3} offen", 'tw')
        g(f"s_cmp_lt_u32 s{sT1}, 512", f"s_cselect_b32 s{sT3}, s{sOOB}, s{sT2}")
        g.vmem(f"buffer_load_dword v14, v15, s[{S_C2}:{S_C2+3}], s{sT3} offen", 'tw')
    def w_touch():
        g(f"s_and_b32 s{sT1}, s{sKB}, 3", f"s_lshl_b32 s{sT1}, s{sT1}, 9", f"s_lshl_b32 s{sT2}, s{sWAVE}, 6", f"s_add_u32 s{sT1}, s{sT1}, s{sT2}", f"v_add_u32 v14, s{sT1}, v0")
        g("v_bfe_u32 v15, v14, 1, 9", "v_lshlrev_b32 v15, 13, v15", "v_and_b32 v14, 1, v14", "v_lshl_add_u32 v15, v14, 7, v15", f"s_lshl_b32 s{sT2}, s{sHKV}, 8", f"v_add_u32 v15, s{sT2}, v15")
        g(f"s_bitcmp1_b32 s{sKB}, 1", f"s_cselect_b32 s{sT2}, s{sOOB}, 0")
        g.vmem(f"buffer_load_dword v13, v15, s[{S_B}:{S_B+3}], s{sT2} offen", 'tw')
        g(f"s_cselect_b32 s{sT2}, 0, s{sOOB}")
        g.vmem(f"buffer_load_dword v14, v15, s[{S_C2}:{S_C2+3}], s{sT2} offen", 'tw')
    if OPT.get('fprio'):
        lp = g.newlabel("fp")
        g(f"s_cmp_eq_u32 s{sISA}, {0 if OPT['fprio'] == 1 else 1}", f"s_cbranch_scc1 {lp}", "s_setprio 1"); g.label(lp)
    if OPT.get('ctouch'):
        lsk = g.newlabel("noct")
        g(f"s_cmp_lg_u32 s{sWAVE}, 7", f"s_cbranch_scc1 {lsk}", f"s_lshr_b32 s{sT1}, s2, 3")
        code_touch(g, KNAME, sT1, 3, 0, 16, 18, 60 if not Gen.STAMP else 96)
        g.label(lsk)
    pv = OPT.get('pro', 4)
    bar = (lambda: g("s_barrier")) if pv in (0, 2, 3, 5) else (lambda: None)
    emit(g, dma(0)); emit(g, stage(0)); g.stamp("iss0"); bar()
    if pv == 3:
        emit(g, stage(1)); emit(g, dma(1)); bar(); emit(g, stage(2)); c_touch(); emit(g, dma(2)); mod_loads(0, 96)
    elif pv == 6:
        emit(g, stage(1)); emit(g, dma(1)); emit(g, stage(2)); emit(g, dma(2)); mod_loads(0, 96)
    elif pv == 7:
        emit(g, stage(1)); emit(g, dma(1)); emit(g, stage(2)); c_touch(); emit(g, dma(2)); mod_loads(0, 96)
    elif pv == 8:
        emit(g, stage(1)); mod_loads(0, 96); emit(g, dma(1)); emit(g, stage(2)); emit(g, dma(2))
    elif pv == 5:
        emit(g, stage(1)); emit(g, dma(1)); emit(g, stage(2)); bar(); emit(g, dma(2)); mod_loads(0, 96)
    else:
        if pv != 2: c_touch()
        emit(g, stage(1)); mod_loads(0, 96); g.stamp("iss1"); bar()
        emit(g, dma(1)); emit(g, stage(2)); emit(g, dma(2)); g.stamp("iss2")
    g(f"s_lshl_b32 s{sT1}, s{sHEAD}, 3", f"s_add_u32 s{sT1}, s{sT1}, s{sWAVE}", f"s_lshl_b32 s{sT2}, s{sI}, 7", f"s_add_u32 s{sT2}, s{sT2}, s{sT1}",
      f"s_sub_u32 s{sT3}, 14, s{sI}", f"s_lshl_b32 s{sT3}, s{sT3}, 7", f"s_add_u32 s{sT3}, s{sT3}, s{sT1}",
      f"s_cmp_lt_u32 s{sT1}, 128", f"s_cselect_b32 s{sCNT}, s{sT2}, s{sT3}")
    g.wait_vm(('P', 0)); g.stamp("p0"); g(stage_reads(0))
    g.wait_vm(('W', 0)); g("s_waitcnt lgkmcnt(0)", "s_barrier")
    g.stamp("w0_landed")
    emit(g, stage(3))
    second = 512
    g(tr_reads(0, 0, second)); r1 = tr_reads(1, 1, second)
    g(r1[:7]); g("s_waitcnt lgkmcnt(7)"); g(r1[7])
    NKS, NCH = 96, 24
    def epilogue(j):
        buf = V_ACC + (j & 1) * 32
        A = lambda t, cb: buf + (t * 4 + cb) * 4
        groups = []
        for i in range(4):
            if j < 2:
                t, u = i >> 1, i & 1
                a, b = A(t, 2*u), A(t, 2*u+1); off = WS_KF + (t * 4 + 2*j + u) * 1024
            else:
                a, b = A(0, i), A(1, i); off = WS_VF + (4*(j-2) + i) * 1024
            grp = [f"v_cvt_pk_bf16_f32 v{a}, v{a}, v{a+1}", f"v_cvt_pk_bf16_f32 v{a+1}, v{a+2}, v{a+3}",
                   f"v_cvt_pk_bf16_f32 v{a+2}, v{b}, v{b+1}", f"v_cvt_pk_bf16_f32 v{a+3}, v{b+2}, v{b+3}"]
            st = [f"s_add_u32 s{sT1}, s{sSTB}, {hex(off)}", (f"buffer_store_dwordx4 v[{a}:{a+3}], v{V_L16}, s[{S_WS}:{S_WS+3}], s{sT1} offen{'' if OPT.get('kvplain') else ' sc1'}", ('st', j))]
            groups.append((grp, st))
        return groups
    def hload(s):
        out = []
        for t in range(2):
            out += [f"s_lshl_b32 s{sT1}, s{sT16}, 14", f"s_add_u32 s{sT1}, s{sT1}, {hex(WS_H + t*16384 + s*1024)}",
                    (f"buffer_load_dwordx4 a[{(s*2+t)*4}:{(s*2+t)*4+3}], v{V_L16}, s[{S_WS}:{S_WS+3}], s{sT1} offen sc1", ('H', s))]
        return out
    def ln1_loads():
        g(f"v_lshlrev_b32 v1, 5, v0", f"s_mov_b32 s{sT1}, {hex(WS_MOD)}")
        for k, off in enumerate((0, 16, 2048, 2064)):
            g.vmem(f"buffer_load_dwordx4 v[{72+4*k}:{75+4*k}], v1, s[{S_WS}:{S_WS+3}], s{sT1} offen offset:{off} sc1", 'lnm')
    def wsum_items(v, t):
        out = []
        for r in (8, 4, 2, 1): out += ["s_nop 1", f"v_add_f32_dpp v{v}, v{v}, v{v} row_ror:{r} row_mask:0xf bank_mask:0xf"]
        out += [f"v_mov_b32 v{t}, v{v}", "s_nop 1", f"v_permlane16_swap_b32 v{v}, v{t}", f"v_add_f32 v{v}, v{v}, v{t}"]
        out += [f"v_mov_b32 v{t}, v{v}", "s_nop 1", f"v_permlane32_swap_b32 v{v}, v{t}", f"v_add_f32 v{v}, v{v}, v{t}"]
        return out
    def ln1_stats_items():
        it = []
        for d in range(4): it += [f"v_lshlrev_b32 v{64+2*d}, 16, v{12+d}", f"v_and_b32 v{65+2*d}, 0xffff0000, v{12+d}"]
        it += ["v_add_f32 v10, v64, v65", "v_add_f32 v11, v66, v67", "v_add_f32 v10, v10, v11", "v_add_f32 v11, v68, v69", "v_add_f32 v10, v10, v11", "v_add_f32 v11, v70, v71", "v_add_f32 v10, v10, v11"]
        it += wsum_items(10, 11) + ["v_mul_f32 v10, 0x3b000000, v10"]
        it += [f"v_sub_f32 v{64+e}, v{64+e}, v10" for e in range(8)]
        it += ["v_mul_f32 v11, v64, v64"] + [f"v_fmac_f32 v11, v{64+e}, v{64+e}" for e in range(1, 8)]
        it += wsum_items(11, 10)
        it += ["v_mov_b32 v10, 0x3727c5ac", "v_fmac_f32 v10, 0x3b000000, v11", "v_rsq_f32 v10, v10", "s_nop 0", f"v_mul_f32 v10, {hex(QSCALE)}, v10"]
        it += [f"v_mul_f32 v{64+e}, v{64+e}, v10" for e in range(8)]
        return it
    def ln1_mod_items():
        it = [f"v_add_f32 v{80+e}, 1.0, v{80+e}" for e in range(8)] + [f"v_mul_f32 v{72+e}, {hex(QSCALE)}, v{72+e}" for e in range(8)]
        it += [f"v_fma_f32 v{64+e}, v{64+e}, v{80+e}, v{72+e}" for e in range(8)]
        it += [f"v_cvt_pk_bf16_f32 v{88+d}, v{64+2*d}, v{65+2*d}" for d in range(4)]
        it += ["v_lshrrev_b32 v1, 2, v0", "v_lshlrev_b32 v1, 10, v1", "v_and_b32 v2, 3, v0", "v_lshl_add_u32 v1, v2, 8, v1"]
        return it
    def ln1_store():
        g(f"s_lshr_b32 s{sT1}, s{sCNT}, 4", f"s_lshl_b32 s{sT1}, s{sT1}, 14", f"s_and_b32 s{sT2}, s{sCNT}, 15", f"s_lshl_b32 s{sT2}, s{sT2}, 4",
          f"s_add_u32 s{sT1}, s{sT1}, s{sT2}", f"s_add_u32 s{sT1}, s{sT1}, {hex(WS_H)}")
        g.vmem(f"buffer_store_dwordx4 v[88:91], v1, s[{S_WS}:{S_WS+3}], s{sT1} offen{'' if OPT.get('hplain') else ' sc1'}", 'hst')
    fq = []
    pend = []
    KVSIG, KVCHK = (17, 20) if OPT.get('nospread') or OPT.get('q_nospread') else (20, 22)
    dq = []
    for ks in range(NKS):
        c, kk = ks >> 2, ks & 3
        j = c >> 2; s = ks % 16
        if kk == 2 and c + 1 < NCH:
            if c == 0: mod_partial(0, 96, 3*16384)
            if c == 1: g.wait_vm('modst')
            if c == 5 and not OPT.get('noln'): g.stamp("b_5p"); poll_check(g, 2, S_DBG, 'pl0', sKO, 32, sT1, sT2)
            if c == 9 and not OPT.get('noln'): g.stamp("hst_pre"); g.wait_vm('hst'); g.stamp("hst_post")
            if c == 12 and not OPT.get('noln'): g.stamp("h_pre"); poll_check(g, 2, S_WS, 'plh', sKO, 32, sT1, sT2); g.stamp("h_chk")
            if c == KVSIG and not OPT.get('nost'): g.wait_vm(('st', 3))
            if c == KVCHK: g.stamp("kv_pre"); poll_check(g, 2, S_WS, 'plk', sM0K, 8, sT1, sT2); g.stamp("kv_chk")
            g.stamp(f"b_{c}a"); g.wait_vm(('W', c + 1)); g("s_barrier"); g.stamp(f"b_{c}")
            if c == 6:
                g(f"s_load_dwordx2 s[16:17], s[0:1], {KA['wq']}", "s_waitcnt lgkmcnt(0)"); finish_srd(g, S_B, 'wq')
            for cc in ISSUE.get(c, []): dq.append(dma(cc))
            g.stamp(f"b_{c}i")
            if c == 0:
                mod_final(0, 96, 3*16384)
                if OPT.get("wtouch"): w_touch()
            if c == 1:
                signal(g, S_DBG, C_START*4, 96, sT1, 0, 32); signal(g, S_DBG, 32*4, 96, sT1)
            if c == 2:
                g(f"s_lshl_b32 s{sT1}, s{sCNT}, 10")
                g.vmem(f"buffer_load_dwordx4 v[12:15], v{V_L16}, s[88:91], s{sT1} offen", 'lnx')
            if c == 4 and not OPT.get('noln'):
                g(f"s_mov_b32 s{sKO}, {C_START*4}"); poll_issue(g, 2, S_DBG, sKO, 'pl0', sT1)
            if c == 5 and not OPT.get('noln'): ln1_loads()
            if c == 9 and not OPT.get('noln'):
                cnt_off(g, sT3, C_H, sI); signal(g, S_WS, ('s', sT3), 1, sT1)
            if c == 11 and not OPT.get('noln'):
                cnt_off(g, sKO, C_H, sI); poll_issue(g, 2, S_WS, sKO, 'plh', sT1)
            if c == 12 and not OPT.get('noln') and OPT.get('th'):
                g(f"s_lshl_b32 s{sT1}, s{sT16}, 14", f"s_and_b32 s{sT2}, s{sHEAD}, 3", f"s_lshl_b32 s{sT2}, s{sT2}, 13", f"s_add_u32 s{sT1}, s{sT1}, s{sT2}",
                  f"s_add_u32 s{sT1}, s{sT1}, {hex(WS_H)}", "v_lshlrev_b32 v1, 7, v0")
                g.vmem(f"buffer_load_dword v2, v1, s[{S_WS}:{S_WS+3}], s{sT1} offen sc1", 'th')
            if c == KVSIG:
                cnt_off(g, sT3, C_KV, sHKV); signal(g, S_WS, ('s', sT3), 1, sT1)
            if c == KVCHK - 1:
                cnt_off(g, sM0K, C_KV, sHEAD); poll_issue(g, 2, S_WS, sM0K, 'plk', sT1)
            if c == KVCHK:
                emit(g, unit_sc1(0)); emit(g, unit_sc1(1))
                if KVCHK == 22: emit(g, unit_sc1(2))
            if c == KVCHK + 1 and KVCHK < 22: emit(g, unit_sc1(2))
            d = (SLOT[c + 1] - SLOT[c]) * 16384
            for cb in range(4): g(f"v_add_u32 v{V_TR+cb}, {hex(d & 0xffffffff)}, v{V_TR+cb}")
        extra = False
        if ks < 16:
            if ks % 2 == 1 and (ks + 1) // 2 <= 7:
                p = (ks + 1) // 2
                g.wait_vm(('P', p)); g(stage_reads(p)); extra = True
            if ks % 2 == 0 and ks >= 2 and ks // 2 + 3 <= 7: emit(g, stage(ks // 2 + 3))
        if 64 <= ks < 80 and not OPT.get('nohl'): g.wait_vm(('H', s))
        nxt = ks + 2
        reads = tr_reads(nxt, nxt & 3, second) if nxt < NKS else []
        buf = V_ACC + (j & 1) * 32
        if not OPT.get('noln'):
            if ks == 18: g.wait_vm('lnx'); fq += ln1_stats_items()
            if ks == 28: assert not fq; g.wait_vm('lnm'); fq += ln1_mod_items()
            if ks == 31: assert not fq; ln1_store()
        if j == 1: take = s in (1, 3, 5, 7)
        elif j == 4 and KVCHK == 20: take = s >= 1
        else: take = s % 4 == 1
        if OPT.get('nospread'): take = s >= 1 if j != 1 else take
        epi = pend.pop(0) if (pend and take) else None
        fb = ks % 3
        wfirst = j < 2 or j >= 4
        for m in range(8):
            cb, t = m >> 1, m & 1
            d = buf + (t * 4 + cb) * 4
            wf = f"v[{V_FR + fb*16 + cb*4}:{V_FR + fb*16 + cb*4 + 3}]"
            cf = f"a[{(s*2+t)*4}:{(s*2+t)*4+3}]"
            cin = "0" if s == 0 else f"v[{d}:{d+3}]"
            g(f"v_mfma_f32_16x16x32_bf16 v[{d}:{d+3}], {wf}, {cf}, {cin}" if wfirst else f"v_mfma_f32_16x16x32_bf16 v[{d}:{d+3}], {cf}, {wf}, {cin}")
            if m == 3 and extra: g("s_waitcnt lgkmcnt(3)")
            if m == 7 and reads: g("s_waitcnt lgkmcnt(7)")
            if reads: g(reads[m])
            elif m == 7 and ks + 1 < NKS: g("s_waitcnt lgkmcnt(0)")
            if epi and 1 <= m <= 4: g(epi[0][m-1])
            if epi and m == 5 and not OPT.get('nost'):
                g.stamp(f"st{ks}a"); emit(g, epi[1]); g.stamp(f"st{ks}b")
            if m == 2 and dq:
                g.stamp(f"dm{ks}a"); emit(g, dq.pop(0)); g.stamp(f"dm{ks}b")
            for _ in range(2 if not epi else 1):
                if fq: g(fq.pop(0))
        g.stamp(f"ke{ks}")
        for sh in HSCHED.get(ks, []):
            if not OPT.get('nohl'): emit(g, hload(sh))
        if s == 15:
            if j < 4: pend = epilogue(j)
            g.stamp(f"sub{j}_done")
    if OPT.get('fprio'): g("s_setprio 0")
    if OPT.get('endq'):
        g("s_waitcnt vmcnt(0)", "s_endpgm")
    g("s_nop 7")
    for qs in range(2):
        for s in range(4):
            j, u = s >> 1, s & 1
            a = V_ACC + j*32 + (qs*4 + 2*u)*4; b = a + 4
            for k, (x, y) in enumerate(((a, a+1), (a+2, a+3), (b, b+1), (b+2, b+3))): g(f"v_cvt_pk_bf16_f32 v{16+k}, v{x}, v{y}")
            for k in range(4): g(f"v_accvgpr_write_b32 a{A_Q+(qs*4+s)*4+k}, v{16+k}")
    p_att.attention_body(g, unit_sc1, sc1=True, fused=fused)

def unit_sc1(u):
    its = uniform_unit(u)
    return [((x[0].replace(" lds", " sc1 lds"), x[1]) if isinstance(x, tuple) else x) for x in its]

tRB, tCB, tAO, tWO, tM0W, tR, tU, tX, tY, tZ, tRB4, tCB4, tT16 = 23, 24, 25, 26, 27, 28, 29, 30, 31, 32, 33, 34, 35
WS_ST = WS_STAT + 0x100000 * 0 + 0x40000
TAG = 0x3f800000
A_ACC, A_AF, V_WF, V_WV, RING, DEPTH = 0, 64, 16, 48, 5, 4
C_ALL = 32
C_PART = 64
C_CTX2 = 80
WS_PART = 0x1200000

def stat_slot(g, dst, t):
    g(f"s_and_b32 s{dst}, s2, 7", f"s_lshl_b32 s{dst}, s{dst}, 2", f"s_bfe_u32 s{t}, s2, 0x20003", f"s_add_u32 s{dst}, s{dst}, s{t}",
      f"s_lshl_b32 s{dst}, s{dst}, 2", f"s_and_b32 s{t}, s{sWAVE}, 3", f"s_add_u32 s{dst}, s{dst}, s{t}", f"s_lshl_b32 s{dst}, s{dst}, 4",
      f"s_lshr_b32 s{t}, s2, 5", f"s_lshl_b32 s{t}, s{t}, 1", f"s_add_u32 s{dst}, s{dst}, s{t}",
      f"s_lshr_b32 s{t}, s{sWAVE}, 2", f"s_add_u32 s{dst}, s{dst}, s{t}", f"s_lshl_b32 s{dst}, s{dst}, 8", f"s_add_u32 s{dst}, s{dst}, {hex(WS_ST)}")

def spin(g, vdst, srd, soff, target, t1, t2, sleep=None):
    ok, loop = g.newlabel("sok"), g.newlabel("sloop")
    sleep = OPT.get('sleep', 4) if sleep is None else min(sleep, OPT.get('sleep', 4))
    g(f"s_cmp_lg_u32 s{sWAVE}, 0", f"s_cbranch_scc1 {ok}", f"s_mov_b32 s{t2}, 0x40000")
    g.label(loop)
    g(f"buffer_load_dword v{vdst}, off, s[{srd}:{srd+3}], s{soff} sc1", "s_waitcnt vmcnt(0)")
    g(f"v_readfirstlane_b32 s{t1}, v{vdst}", "s_nop 3", f"s_cmp_ge_u32 s{t1}, {target}", f"s_cbranch_scc1 {ok}")
    g(f"s_sleep {sleep}", f"s_sub_u32 s{t2}, s{t2}, 1", f"s_cmp_lg_u32 s{t2}, 0", f"s_cbranch_scc1 {loop}")
    g.label(ok)

def wsplit_setup(g, nks, a_off, a_nks, wname):
    g(f"s_load_dwordx2 s[{S_A}:{S_A+1}], s[0:1], {KA[wname]}")
    setup_dma128(g, 1024, nat=False, v0=V_WV, v1=V_WV+1); setup_tr128(g, nat=False)
    for p in range(1, 4): g(f"v_add_u32 v{V_WV+p}, {p*7168}, v{V_WV}")
    g(f"s_mul_i32 s{tM0W}, s{sWAVE}, {RING*4096}")
    for c in range(4): g(f"v_add_u32 v{V_TR+c}, s{tM0W}, v{V_TR+c}")
    g(f"s_mul_i32 s{tAO}, s{tRB}, {4*a_nks*1024}", f"s_mul_i32 s{tX}, s{sWAVE}, {nks*1024}", f"s_add_u32 s{tAO}, s{tAO}, s{tX}", f"s_add_u32 s{tAO}, s{tAO}, {hex(a_off)}")
    g(f"s_mul_i32 s{tWO}, s{sWAVE}, {nks*32*1024}", f"s_lshl_b32 s{tX}, s{tCB}, 7", f"s_add_u32 s{tWO}, s{tWO}, s{tX}")
    g("s_waitcnt lgkmcnt(0)"); finish_srd(g, S_A, wname)
def ws_wdma(j):
    out = [f"s_add_u32 m0, s{tM0W}, {(j % RING)*4096}", f"s_add_u32 s{tX}, s{tWO}, {j*32*1024}"]
    for p in range(4): out.append((f"buffer_load_dwordx4 v{V_WV+p}, s[{S_A}:{S_A+3}], s{tX} offen offset:{p*1024} lds", ('tW', j)))
    return out
def ws_aload(j, a_nks):
    out = []
    for r in range(4):
        b = A_AF + (j % DEPTH)*16 + r*4
        out += [f"s_add_u32 s{tY}, s{tAO}, {(r*a_nks + j)*1024}", (f"buffer_load_dwordx4 a[{b}:{b+3}], v{V_L16}, s[{S_WS}:{S_WS+3}], s{tY} offen sc1", ('tA', j))]
    return out
def ws_reads(j):
    fb = V_WF + (j & 1)*16
    out = []
    for c in range(4):
        out.append(f"ds_read_b64_tr_b16 v[{fb+4*c}:{fb+4*c+1}], v{V_TR+c} offset:{(j % RING)*4096}")
        out.append(f"ds_read_b64_tr_b16 v[{fb+4*c+2}:{fb+4*c+3}], v{V_TR+c} offset:{(j % RING)*4096+2048}")
    return out
def wsplit_main(g, nks, a_nks, tag, a_off=None):
    for j in range(min(DEPTH, nks)): emit(g, ws_aload(j, a_nks))
    if OPT.get('tact'):
        per = 2 if nks == 16 else 1
        if per == 2:
            g("v_lshrrev_b32 v1, 4, v0", f"v_mul_u32_u24 v1, {a_nks*1024}, v1", "v_bfe_u32 v10, v0, 3, 1", "v_lshl_add_u32 v1, v10, 10, v1", "v_and_b32 v10, 7, v0", "v_lshl_add_u32 v1, v10, 7, v1")
            g(f"s_lshl_b32 s{tX}, s{tCB}, 11", f"s_add_u32 s{tX}, s{tX}, s{tAO}")
        else:
            g("v_lshrrev_b32 v1, 3, v0", f"v_mul_u32_u24 v1, {a_nks*1024}, v1", "v_and_b32 v10, 7, v0", "v_lshl_add_u32 v1, v10, 7, v1",
              f"v_mov_b32 v10, {hex(OOB)}", "v_cmp_gt_u32 vcc, 32, v0", "s_nop 1", "v_cndmask_b32 v1, v10, v1, vcc")
            g(f"s_lshl_b32 s{tX}, s{tCB}, 10", f"s_add_u32 s{tX}, s{tX}, s{tAO}", f"s_cmp_lt_u32 s{tCB}, 7", f"s_cselect_b32 s{tX}, s{tX}, s{sOOB}")
        g.vmem(f"buffer_load_dword v2, v1, s[{S_WS}:{S_WS+3}], s{tX} offen sc1", 'tch')
    g.wait_vm(('tW', 0)); g(ws_reads(0))
    g.stamp(tag + "_first")
    for j in range(nks):
        rd = []
        if j + 1 < nks:
            g.wait_vm(('tW', j + 1)); rd = ws_reads(j + 1)
        g("s_waitcnt lgkmcnt(0)")
        g.wait_vm(('tA', j))
        fb = V_WF + (j & 1)*16
        for m in range(16):
            c, r = m >> 2, m & 3
            d = A_ACC + (c*4 + r)*4; b = A_AF + (j % DEPTH)*16 + r*4
            cin = "0" if j == 0 else f"a[{d}:{d+3}]"
            g(f"v_mfma_f32_16x16x32_bf16 a[{d}:{d+3}], v[{fb+4*c}:{fb+4*c+3}], a[{b}:{b+3}], {cin}")
            if rd and m < 8: g(rd[m])
            if m == 8 and j + DEPTH < nks: emit(g, ws_wdma(j + DEPTH))
        if j + DEPTH < nks: emit(g, ws_aload(j + DEPTH, a_nks))
    g.stamp(tag + "_loop")
    g("s_nop 7", "s_barrier")
    g(f"s_lshl_b32 s{tX}, s{sWAVE}, 14", f"v_add_u32 v10, s{tX}, v{V_L16}")
    for q in range(16): g(f"ds_write_b128 v10, a[{A_ACC+4*q}:{A_ACC+4*q+3}] offset:{q*1024}")
    g(f"s_lshl_b32 s{tX}, s{tU}, 3", f"s_add_u32 s{tX}, s{tX}, s{tR}", f"s_lshl_b32 s{tX}, s{tX}, 10", f"v_add_u32 v10, s{tX}, v{V_L16}", "v_add_u32 v11, 0x10000, v10",
      "s_waitcnt lgkmcnt(0)", "s_barrier")
    for p in range(8):
        a = 10 if p < 4 else 11
        for c in range(2):
            if p == 7 and c == 1: g("s_waitcnt lgkmcnt(8)")
            g(f"ds_read_b128 v[{64+(p*2+c)*4}:{64+(p*2+c)*4+3}], v{a} offset:{(p%4)*16384 + c*4096}")
    g("s_waitcnt lgkmcnt(0)")
    for st in (32, 16, 8):
        for k in range(st): g(f"v_add_f32 v{64+k}, v{64+k}, v{64+k+st}")
    g.stamp(tag + "_red")

def tail(g):
    g("v_mbcnt_lo_u32_b32 v0, -1, 0", "v_mbcnt_hi_u32_b32 v0, -1, v0", f"v_lshlrev_b32 v{V_L16}, 4, v0")
    g(f"s_and_b32 s{tRB}, s2, 7", f"s_lshl_b32 s{tRB}, s{tRB}, 2", f"s_bfe_u32 s{tX}, s2, 0x20003", f"s_add_u32 s{tRB}, s{tRB}, s{tX}", f"s_lshr_b32 s{tCB}, s2, 5")
    g(f"s_and_b32 s{tR}, s{sWAVE}, 3", f"s_lshr_b32 s{tU}, s{sWAVE}, 2")
    if OPT.get('tprio'):
        lp = g.newlabel("tp")
        g(f"s_cmp_lt_u32 s{sWAVE}, 4", f"s_cbranch_scc1 {lp}", "s_setprio 1"); g.label(lp)
    kKQ, kRB, kCB, kWR, kWC, kAO, kWO, kM0, kO = 36, 37, 38, 39, 40, 41, 42, 43, 44
    NS3 = 5
    g(f"s_bfe_u32 s{kKQ}, s2, 0x20001", f"s_and_b32 s{kRB}, s2, 1", f"s_lshl_b32 s{kRB}, s{kRB}, 3", f"s_bfe_u32 s{tX}, s2, 0x30003", f"s_add_u32 s{kRB}, s{kRB}, s{tX}", f"s_lshr_b32 s{kCB}, s2, 6")
    g(f"s_and_b32 s{kWR}, s{sWAVE}, 3", f"s_lshr_b32 s{kWC}, s{sWAVE}, 2")
    g(f"s_load_dwordx2 s[{S_A}:{S_A+1}], s[0:1], {KA['wo']}", f"s_load_dwordx2 s[{S_B}:{S_B+1}], s[0:1], {KA['x']}")
    g("v_lshrrev_b32 v14, 4, v0", "v_lshlrev_b32 v3, 10, v14", "v_bfe_u32 v15, v0, 1, 3", "v_xor_b32 v15, v15, v14", "v_and_b32 v10, 1, v0", "v_lshlrev_b32 v10, 4, v10",
      "v_add_u32 v3, v3, v10", "v_xor_b32 v11, 4, v15", "v_lshl_add_u32 v4, v11, 5, v3", "v_lshl_add_u32 v3, v15, 5, v3", f"v_add_u32 v4, {4*1024 - 1024}, v4")
    g("v_lshrrev_b32 v14, 4, v0", "v_bfe_u32 v15, v0, 2, 2", "v_lshl_add_u32 v14, v14, 2, v15", "v_lshlrev_b32 v6, 8, v14", "v_and_b32 v14, 7, v14", "v_lshl_add_u32 v6, v14, 5, v6",
      "v_and_b32 v15, 3, v0", "v_lshl_add_u32 v6, v15, 3, v6", f"s_lshl_b32 s{tX}, s{kWC}, 7", f"v_xor_b32 v6, s{tX}, v6", "v_add_u32 v6, 16384, v6")
    for c in range(1, 4): g(f"v_xor_b32 v{6+c}, {c << 5}, v6")
    g(f"s_lshl_b32 s{tX}, s{kWR}, 12", f"v_add_u32 v10, s{tX}, v{V_L16}")
    g(f"s_lshl_b32 s{kAO}, s{kRB}, 3", f"s_add_u32 s{kAO}, s{kAO}, s{sWAVE}", f"s_lshl_b32 s{kAO}, s{kAO}, 17", f"s_lshl_b32 s{tX}, s{kKQ}, 15", f"s_add_u32 s{kAO}, s{kAO}, s{tX}", f"s_add_u32 s{kAO}, s{kAO}, {hex(WS_CTX)}")
    g(f"s_lshl_b32 s{kWO}, s{kKQ}, 20", f"s_lshl_b32 s{tX}, s{sWAVE}, 13", f"s_add_u32 s{kWO}, s{kWO}, s{tX}", f"s_lshl_b32 s{tX}, s{kCB}, 8", f"s_add_u32 s{kWO}, s{kWO}, s{tX}")
    g(f"s_lshl_b32 s{kM0}, s{sWAVE}, 11")
    g("s_waitcnt lgkmcnt(0)"); finish_srd(g, S_A, 'wo'); finish_srd(g, S_B, 'x')
    def w3(st):
        return [f"s_add_u32 m0, s{kM0}, {(st % NS3)*32768 + 16384}", f"s_add_u32 s{tX}, s{kWO}, {st*64*1024}",
                (f"buffer_load_dwordx4 v3, s[{S_A}:{S_A+3}], s{tX} offen lds", ('3W', st)), (f"buffer_load_dwordx4 v4, s[{S_A}:{S_A+3}], s{tX} offen offset:1024 lds", ('3W', st))]
    def a3(st):
        return [f"s_add_u32 m0, s{kM0}, {(st % NS3)*32768}", f"s_add_u32 s{tX}, s{kAO}, {st*2048}",
                (f"buffer_load_dwordx4 v{V_L16}, s[{S_WS}:{S_WS+3}], s{tX} offen sc1 lds", ('3A', st)), (f"buffer_load_dwordx4 v{V_L16}, s[{S_WS}:{S_WS+3}], s{tX} offen offset:1024 sc1 lds", ('3A', st))]
    g.wait_vm('ctxst'); g("s_barrier")
    g(f"s_lshl_b32 s{tZ}, s{sI}, 2", f"s_lshr_b32 s{tY}, s{sHEAD}, 3", f"s_add_u32 s{tZ}, s{tZ}, s{tY}")
    cnt_off(g, tX, C_CTX2, tZ); signal(g, S_WS, ('s', tX), 1, tY)
    for st in range(NS3 - 1): emit(g, w3(st))
    g(f"s_mov_b32 s{tZ}, {C_ALL*4}"); spin(g, 1, S_DBG, tZ, 256, tX, tY)
    g(f"s_sub_u32 s{tY}, 15, s{kRB}", f"s_min_u32 s{tX}, s{kRB}, s{tY}", f"s_lshl_b32 s{tX}, s{tX}, 2", f"s_add_u32 s{tX}, s{tX}, s{kKQ}"); cnt_off(g, tZ, C_CTX2, tX)
    spin(g, 1, S_WS, tZ, 8, tX, tY)
    g("s_barrier")
    g.stamp("ctx_ok")
    for st in range(NS3 - 1): emit(g, a3(st))
    g(f"s_lshl_b32 s{kO}, s{kCB}, 2", f"s_add_u32 s{kO}, s{kO}, s{kKQ}")
    g("v_and_b32 v12, 7, v0", "v_bfe_u32 v13, v0, 3, 2", "v_lshrrev_b32 v14, 5, v0")
    g(f"s_lshr_b32 s{tX}, s{kO}, 1", f"s_lshl_b32 s{tY}, s{kRB}, 3", f"s_add_u32 s{tT16}, s{tX}, s{tY}", f"s_and_b32 s{tZ}, s{kO}, 1")
    g(f"s_lshl_b32 s{tX}, s{tT16}, 4", f"s_lshl_b32 s{tY}, s{tZ}, 3", f"s_add_u32 s{tX}, s{tX}, s{tY}", f"v_add_u32 v15, s{tX}, v12")
    g(f"s_lshl_b32 s{tX}, s{sWAVE}, 1", f"v_add_u32 v11, s{tX}, v14", "v_lshlrev_b32 v11, 5, v11", "v_lshl_add_u32 v11, v13, 2, v11")
    g("v_lshlrev_b32 v15, 10, v15", "v_lshl_add_u32 v15, v11, 1, v15", "v_lshlrev_b32 v11, 2, v11")
    g(f"s_lshl_b32 s{tY}, s{tZ}, 7", "v_lshlrev_b32 v12, 4, v12", "v_lshl_add_u32 v12, v13, 8, v12", f"v_add_u32 v12, s{tY}, v12")
    g("v_lshl_add_u32 v13, v14, 11, v12", "v_lshl_add_u32 v12, v14, 10, v12")
    g.vmem(f"buffer_load_dwordx2 v[120:121], v15, s[{S_B}:{S_B+3}], 0 offen", 'xr'); g.vmem(f"buffer_load_dwordx2 v[122:123], v15, s[{S_B}:{S_B+3}], 0 offen offset:32", 'xr')
    g(f"s_mov_b32 s{tX}, {hex(WS_MOD + 1024*4)}")
    for k, off in enumerate((0, 64, 2048, 2048+64, 4096, 4096+64)):
        if off >= 4096: g(f"s_mov_b32 s{tX}, {hex(WS_MOD + 2048*4)}"); off -= 4096
        g.vmem(f"buffer_load_dwordx4 v[{96+4*k}:{99+4*k}], v11, s[{S_WS}:{S_WS+3}], s{tX} offen offset:{off} sc1", 'mods')
    def r3(ks):
        kk = ks & 1; fb = 16 + (ks & 1)*24
        out = [f"ds_read_b128 v[{fb+16+4*r}:{fb+16+4*r+3}], v10 offset:{r*2048+kk*1024}" for r in range(2)]
        for c in range(4):
            out.append(f"ds_read_b64_tr_b16 v[{fb+4*c}:{fb+4*c+1}], v{6+c} offset:{kk*8192}")
            out.append(f"ds_read_b64_tr_b16 v[{fb+4*c+2}:{fb+4*c+3}], v{6+c} offset:{kk*8192+4096}")
        return out
    g.wait_vm(('3A', 0)); g("s_barrier")
    g.stamp("k3_first")
    g(r3(0))
    NST = 16
    dq3 = []
    for ks in range(2*NST):
        st, kk = ks >> 1, ks & 1
        if kk == 1 and st + 1 < NST:
            if not OPT.get('k3nodma') or st + 1 < NS3 - 1: g.wait_vm(('3A', st + 1)); g.wait_vm(('3W', st + 1))
            if not OPT.get('k3nobar'): g("s_barrier")
            if st + NS3 - 1 < NST and not OPT.get('k3nodma'): dq3 = [w3(st + NS3 - 1), a3(st + NS3 - 1)]
            d = (((st + 1) % NS3) - (st % NS3)) * 32768
            for v in (6, 7, 8, 9, 10): g(f"v_add_u32 v{v}, {hex(d & 0xffffffff)}, v{v}")
        rd = r3(ks + 1) if ks + 1 < 2*NST else []
        last = not rd
        fb = 16 + (ks & 1)*24
        for m in range(8):
            c, r = m >> 1, m & 1
            if r == 0: g(f"s_waitcnt lgkmcnt({6 if not last else 6 - 2*c - 0 if False else (6 if not last else max(0, 6 - 2*c))})")
            d = 64 + (c*2 + r)*4
            cin = "0" if ks == 0 else f"v[{d}:{d+3}]"
            g(f"v_mfma_f32_16x16x32_bf16 v[{d}:{d+3}], v[{fb+4*c}:{fb+4*c+3}], v[{fb+16+4*r}:{fb+16+4*r+3}], {cin}")
            if rd:
                g(rd.pop(0))
                if m >= 6 and rd: g(rd.pop(0))
            if m in (3, 5) and dq3: emit(g, dq3.pop(0))
    g.stamp("k3_loop")
    g("s_nop 7")
    g(f"s_lshl_b32 s{tX}, s{kKQ}, 7", f"s_lshl_b32 s{tY}, s{kRB}, 3", f"s_add_u32 s{tX}, s{tX}, s{tY}", f"s_lshl_b32 s{tY}, s{kWR}, 1", f"s_add_u32 s{tX}, s{tX}, s{tY}",
      f"s_lshl_b32 s{tX}, s{tX}, 4", f"s_lshl_b32 s{tY}, s{kCB}, 2", f"s_add_u32 s{tX}, s{tX}, s{tY}", f"s_lshl_b32 s{tY}, s{kWC}, 1", f"s_add_u32 s{tX}, s{tX}, s{tY}",
      f"s_lshl_b32 s{tX}, s{tX}, 10", f"s_add_u32 s{tX}, s{tX}, {hex(WS_PART)}")
    for r in range(2):
        for cp in range(2):
            qa, qb = 64 + ((2*cp)*2 + r)*4, 64 + ((2*cp+1)*2 + r)*4
            t = 16 + (r*2 + cp)*4
            g(f"v_cvt_pk_bf16_f32 v{t}, v{qa}, v{qa+1}", f"v_cvt_pk_bf16_f32 v{t+1}, v{qa+2}, v{qa+3}", f"v_cvt_pk_bf16_f32 v{t+2}, v{qb}, v{qb+1}", f"v_cvt_pk_bf16_f32 v{t+3}, v{qb+2}, v{qb+3}")
            g.vmem(f"buffer_store_dwordx4 v[{t}:{t+3}], v{V_L16}, s[{S_WS}:{S_WS+3}], s{tX} offen offset:{cp*1024} sc1", 'pst')
        if r == 0: g(f"s_add_u32 s{tX}, s{tX}, 16384")
    g.wait_vm('pst'); g("s_barrier")
    cnt_off(g, tX, C_PART, kRB); signal(g, S_WS, ('s', tX), 1, tY)
    cnt_off(g, tY, C_PART, kRB); g(f"s_mov_b32 s{kAO}, s{tY}"); spin(g, 1, S_WS, kAO, 16, tX, tY, sleep=2)
    g("s_barrier")
    g.stamp("part_ok")
    g(f"s_lshl_b32 s{tX}, s{tT16}, 14", f"s_lshl_b32 s{tY}, s{sWAVE}, 11", f"s_add_u32 s{tX}, s{tX}, s{tY}", f"s_add_u32 s{tX}, s{tX}, {hex(WS_PART)}")
    for q in range(4):
        g.vmem(f"buffer_load_dwordx4 v[{16+4*q}:{19+4*q}], v12, s[{S_WS}:{S_WS+3}], s{tX} offen sc1", ('pl', q))
        if q < 3: g(f"s_add_u32 s{tX}, s{tX}, {128*16384}")
    for q in range(4):
        g.wait_vm(('pl', q))
        for d in range(4):
            if q == 0: g(f"v_lshlrev_b32 v{64+2*d}, 16, v{16+d}", f"v_and_b32 v{65+2*d}, 0xffff0000, v{16+d}")
            else: g(f"v_lshlrev_b32 v72, 16, v{16+4*q+d}", f"v_and_b32 v73, 0xffff0000, v{16+4*q+d}", f"v_add_f32 v{64+2*d}, v{64+2*d}, v72", f"v_add_f32 v{65+2*d}, v{65+2*d}, v73")
    for c in range(2):
        g(f"v_lshlrev_b32 v72, 16, v{120+2*c}", f"v_and_b32 v73, 0xffff0000, v{120+2*c}", f"v_lshlrev_b32 v74, 16, v{121+2*c}", f"v_and_b32 v75, 0xffff0000, v{121+2*c}")
        for k in range(4): g(f"v_fma_f32 v{64+4*c+k}, v{64+4*c+k}, v{96+4*c+k}, v{72+k}")
    g(f"s_lshl_b32 s{tX}, s{tT16}, 15", f"s_lshl_b32 s{tY}, s{sWAVE}, 12", f"s_add_u32 s{tX}, s{tX}, s{tY}", f"s_add_u32 s{tX}, s{tX}, {hex(WS_X1)}")
    g.vmem(f"buffer_store_dwordx4 v[64:67], v13, s[{S_WS}:{S_WS+3}], s{tX} offen sc1", 'x1st'); g.vmem(f"buffer_store_dwordx4 v[68:71], v13, s[{S_WS}:{S_WS+3}], s{tX} offen offset:1024 sc1", 'x1st')
    def red8(v, t):
        g("s_nop 1", f"v_add_f32_dpp v{v}, v{v}, v{v} row_ror:8 row_mask:0xf bank_mask:0xf")
        cross_g(g, v, t, "v_add_f32")
    g("v_add_f32 v72, v64, v65", "v_add_f32 v73, v66, v67", "v_add_f32 v74, v68, v69", "v_add_f32 v75, v70, v71", "v_add_f32 v72, v72, v73", "v_add_f32 v74, v74, v75", "v_add_f32 v72, v72, v74")
    red8(72, 73)
    g("v_mul_f32 v72, 0x3c800000, v72")
    g("v_sub_f32 v74, v64, v72", "v_mul_f32 v73, v74, v74")
    for k in range(1, 8): g(f"v_sub_f32 v74, v{64+k}, v72", "v_fmac_f32 v73, v74, v74")
    red8(73, 74)
    g("v_and_b32 v74, 7, v0", "v_lshlrev_b32 v74, 6, v74", f"s_lshl_b32 s{tX}, s{sWAVE}, 3", f"v_add_u32 v75, s{tX}, v74", "ds_write_b64 v75, v[72:73]", "s_waitcnt lgkmcnt(0)", "s_barrier")
    for q in range(4): g(f"ds_read_b128 v[{76+4*q}:{79+4*q}], v74 offset:{q*16}")
    g("s_waitcnt lgkmcnt(0)")
    g("v_add_f32 v72, v76, v78", "v_add_f32 v73, v80, v82", "v_add_f32 v72, v72, v73", "v_add_f32 v73, v84, v86", "v_add_f32 v72, v72, v73", "v_add_f32 v73, v88, v90", "v_add_f32 v72, v72, v73")
    g("v_mul_f32 v72, 0.125, v72" if False else "v_mul_f32 v72, 0x3e000000, v72")
    g("v_add_f32 v73, v77, v79")
    for q in range(2, 8): g(f"v_add_f32 v73, v73, v{77+2*q}")
    for q in range(8): g(f"v_sub_f32 v74, v{76+2*q}, v72", "v_mul_f32 v75, v74, v74", "v_fmac_f32 v73, 0x42800000, v75")
    g("v_mov_b32 v74, 0x3727c5ac", "v_fmac_f32 v74, 0x3b000000, v73", "v_rsq_f32 v74, v74", "s_nop 0")
    for k in range(8): g(f"v_sub_f32 v{64+k}, v{64+k}, v72")
    for k in range(8): g(f"v_mul_f32 v{64+k}, v{64+k}, v74")
    for k in range(8): g(f"v_add_f32 v{112+k}, 1.0, v{112+k}")
    for k in range(8): g(f"v_fma_f32 v{64+k}, v{64+k}, v{112+k}, v{104+k}")
    for k in range(4): g(f"v_cvt_pk_bf16_f32 v{72+k}, v{64+2*k}, v{65+2*k}")
    g(f"s_lshl_b32 s{tX}, s{tT16}, 14", f"s_lshl_b32 s{tY}, s{sWAVE}, 11", f"s_add_u32 s{tX}, s{tX}, s{tY}", f"s_add_u32 s{tX}, s{tX}, {hex(WS_H2)}")
    g.vmem(f"buffer_store_dwordx4 v[72:75], v12, s[{S_WS}:{S_WS+3}], s{tX} offen sc1", 'h2st')
    g(f"s_lshr_b32 s{kO}, s{kRB}, 1")
    g.stamp("stats_ok")
    LK5 = g.newlabel("k5")
    g(f"s_load_dwordx2 s[{S_A}:{S_A+1}], s[0:1], {KA['wg']}", f"s_load_dwordx2 s[{S_B}:{S_B+1}], s[0:1], {KA['wu']}")
    g(f"s_and_b32 s{tRB4}, s2, 1", f"s_lshl_b32 s{tRB4}, s{tRB4}, 2", f"s_bfe_u32 s{tX}, s2, 0x20003", f"s_add_u32 s{tRB4}, s{tRB4}, s{tX}",
      f"s_bfe_u32 s{tCB4}, s2, 0x20001", f"s_mul_i32 s{tCB4}, s{tCB4}, 7", f"s_lshr_b32 s{tX}, s2, 5", f"s_add_u32 s{tCB4}, s{tCB4}, s{tX}")
    g(f"s_lshl_b32 s{tT16}, s{tRB4}, 4", f"s_lshl_b32 s{tX}, s{sWAVE}, 1", f"s_add_u32 s{tT16}, s{tT16}, s{tX}")
    setup_dma128(g, 3584, nat=False); setup_tr128(g, nat=False)
    g(f"s_mul_i32 s{sWB}, s{sWAVE}, {16*3584}", f"s_lshl_b32 s{tX}, s{tCB4}, 7", f"s_add_u32 s{sWB}, s{sWB}, s{tX}", f"s_lshl_b32 s{sM0B}, s{sWAVE}, 11")
    g("s_waitcnt lgkmcnt(0)"); finish_srd(g, S_A, 'wg'); finish_srd(g, S_B, 'wu')
    def dma4(c):
        j, q = c >> 2, c & 3
        srd = S_A if j == 0 else S_B
        return [f"s_add_u32 s{tX}, s{sWB}, {hex(q*128*3584)}", f"s_add_u32 m0, s{sM0B}, {hex(c*16384)}",
                (f"buffer_load_dwordx4 v{V_W0}, s[{srd}:{srd+3}], s{tX} offen lds", ('W', c)),
                (f"buffer_load_dwordx4 v{V_W1}, s[{srd}:{srd+3}], s{tX} offen offset:1024 lds", ('W', c))]
    g.wait_vm('h2st'); g("s_barrier")
    cnt_off(g, tX, C_H2, 44); signal(g, S_WS, ('s', tX), 1, tY)
    g("s_cmp_ge_u32 s2, 224", f"s_cbranch_scc1 {LK5}")
    for c in (0, 4, 1, 5): emit(g, dma4(c))
    for cb in range(4): g(f"v_add_u32 v{10+cb}, 0x10000, v{V_TR+cb}")
    cnt_off(g, tZ, C_H2, tRB4); spin(g, 1, S_WS, tZ, 32, tX, tY)
    g("s_barrier")
    g.stamp("h2_ok")
    g.vm = [('W', c) for c in (0, 4, 1, 5) for _ in range(2)]
    def hload4(s4):
        out = []
        for t in range(2):
            out.append(f"s_lshl_b32 s{tX}, s{tT16}, 14"); out.append(f"s_add_u32 s{tX}, s{tX}, {hex(WS_H2 + t*16384 + s4*4096)}")
            for k in range(4):
                s = s4*4 + k
                out.append((f"buffer_load_dwordx4 a[{(s*2+t)*4}:{(s*2+t)*4+3}], v{V_L16}, s[{S_WS}:{S_WS+3}], s{tX} offen offset:{k*1024} sc1", ('H', s4)))
        return out
    def rd4(ks):
        j, s_ = ks >> 4, ks & 15
        q, kk = s_ >> 2, s_ & 3
        fb = V_FR + (ks % 3)*16
        out = []
        for c in range(4):
            a_ = (V_TR if c < 2 else 10) + 2*j + (c & 1)
            off = q*16384 + kk*4096
            out.append(f"ds_read_b64_tr_b16 v[{fb+4*c}:{fb+4*c+1}], v{a_} offset:{off}")
            out.append(f"ds_read_b64_tr_b16 v[{fb+4*c+2}:{fb+4*c+3}], v{a_} offset:{off+2048}")
        return out
    def silu_items(j):
        it = []
        buf = 64 + 32*j
        T = (1, 2, 14, 15)
        for t in range(2):
            for c in range(2):
                G, U = buf + (t*4 + c)*4, buf + (t*4 + 2 + c)*4
                it += [f"v_mul_f32 v{T[k]}, s{tZ}, v{G+k}" for k in range(4)]
                it += [f"v_exp_f32 v{T[k]}, -v{T[k]}" for k in range(4)]
                it += [f"v_mul_f32 v{G+k}, v{G+k}, v{U+k}" for k in range(4)]
                it += [f"v_add_f32 v{T[k]}, 1.0, v{T[k]}" for k in range(4)]
                it += [f"v_rcp_f32 v{T[k]}, v{T[k]}" for k in range(4)] + ["s_nop 0"]
                it += [f"v_mul_f32 v{G+k}, v{G+k}, v{T[k]}" for k in range(4)]
            G0, G1 = buf + (t*4)*4, buf + (t*4 + 1)*4
            it += [f"v_cvt_pk_bf16_f32 v{G0}, v{G0}, v{G0+1}", f"v_cvt_pk_bf16_f32 v{G0+1}, v{G0+2}, v{G0+3}", f"v_cvt_pk_bf16_f32 v{G0+2}, v{G1}, v{G1+1}", f"v_cvt_pk_bf16_f32 v{G0+3}, v{G1+2}, v{G1+3}"]
            it += [('ST', t, j)]
        return it
    def act_store(t, j):
        a_ = 64 + 32*j + (t*4)*4
        g(f"s_add_u32 s{tX}, s{kAO}, {t*56*1024 + j*1024}")
        g.vmem(f"buffer_store_dwordx4 v[{a_}:{a_+3}], v{V_L16}, s[{S_WS}:{S_WS+3}], s{tX} offen sc1", 'actst')
    g(f"s_mul_i32 s{kAO}, s{tT16}, {56*1024}", f"s_lshl_b32 s{tY}, s{tCB4}, 11", f"s_add_u32 s{kAO}, s{kAO}, s{tY}", f"s_add_u32 s{kAO}, s{kAO}, {hex(WS_ACT)}")
    emit(g, hload4(0)); emit(g, hload4(1))
    g.wait_vm(('W', 4)); g("s_barrier")
    g(rd4(0)); r1 = rd4(1); g(r1[:7]); g("s_waitcnt lgkmcnt(7)"); g(r1[7])
    fq4, dq4 = [], []
    for ks in range(32):
        j, s_ = ks >> 4, ks & 15
        if ks in (2, 6, 10):
            q = ks // 4 + 1
            g.wait_vm(('W', 4 + q)); g("s_barrier")
            if q + 1 < 4: dq4 = [dma4(q + 1), dma4(4 + q + 1)]
        if ks == 0: emit(g, hload4(2))
        if ks == 2: emit(g, hload4(3))
        if ks < 16 and ks % 4 == 0: g.wait_vm(('H', ks // 4))
        if ks == 17:
            g(f"s_mov_b32 s{tZ}, {hex(LOG2E)}"); fq4 = silu_items(0)
        reads = rd4(ks + 2) if ks + 2 < 32 else []
        fb = V_FR + (ks % 3)*16
        for m in range(8):
            c, t = m >> 1, m & 1
            d = 64 + 32*j + (t*4 + c)*4
            cin = "0" if s_ == 0 else f"v[{d}:{d+3}]"
            g(f"v_mfma_f32_16x16x32_bf16 v[{d}:{d+3}], v[{fb+4*c}:{fb+4*c+3}], a[{(s_*2+t)*4}:{(s_*2+t)*4+3}], {cin}")
            if m == 7 and reads: g("s_waitcnt lgkmcnt(7)")
            if reads: g(reads[m])
            elif m == 7 and ks + 1 < 32: g("s_waitcnt lgkmcnt(0)")
            if m == 2 and dq4: emit(g, dq4.pop(0))
            for _ in range(2):
                if fq4:
                    x = fq4.pop(0)
                    if isinstance(x, tuple): act_store(x[1], x[2])
                    else: g(x)
    assert not fq4
    g.stamp("k4_loop")
    g("s_nop 7")
    for x in silu_items(1):
        if isinstance(x, tuple): act_store(x[1], x[2])
        else: g(x)
    g("s_waitcnt vmcnt(0)", "s_barrier")
    cnt_off(g, tX, C_ACT, tRB4); signal(g, S_WS, ('s', tX), 1, tY)
    g.label(LK5)
    g.vm = []
    g.stamp("k5_entry")
    wsplit_setup(g, 7, WS_ACT, 56, 'wd')
    for j in range(DEPTH): emit(g, ws_wdma(j))
    if OPT.get('twd'):
        g(f"s_and_b32 s{tX}, s{tRB}, 3", f"s_mul_i32 s{tX}, s{tX}, 7", f"s_add_u32 s{tX}, s{tX}, s{sWAVE}", f"s_lshl_b32 s{tX}, s{tX}, 16", f"s_lshl_b32 s{tY}, s{tCB}, 7",
          f"s_add_u32 s{tX}, s{tX}, s{tY}", f"s_cmp_lt_u32 s{sWAVE}, 7", f"s_cselect_b32 s{tX}, s{tX}, s{sOOB}", "v_lshlrev_b32 v1, 10, v0")
        g.vmem(f"buffer_load_dword v2, v1, s[{S_A}:{S_A+3}], s{tX} offen", 'tch')
    X1LOAD = True
    g(f"s_lshl_b32 s{tX}, s{tCB}, 6", f"s_lshl_b32 s{tY}, s{tU}, 5", f"s_add_u32 s{tX}, s{tX}, s{tY}", "v_lshrrev_b32 v15, 4, v0", "v_lshlrev_b32 v15, 2, v15", f"v_add_u32 v15, s{tX}, v15")
    g("v_lshlrev_b32 v13, 2, v15", f"s_mov_b32 s{tX}, {hex(WS_MOD + 2560*4)}")
    g.vmem(f"buffer_load_dwordx4 v[60:63], v13, s[{S_WS}:{S_WS+3}], s{tX} offen sc1", 'gb'); g.vmem(f"buffer_load_dwordx4 v[12:15], v13, s[{S_WS}:{S_WS+3}], s{tX} offen offset:64 sc1", 'gb')
    g(f"s_load_dwordx2 s[{S_B}:{S_B+1}], s[0:1], {KA['out']}")
    g(f"s_lshr_b32 s{tX}, s{tRB}, 2"); cnt_off(g, tZ, C_ACT, tX); spin(g, 1, S_WS, tZ, 28, tX, tY)
    g("s_waitcnt lgkmcnt(0)"); finish_srd(g, S_B, 'out')
    g("s_barrier")
    g.stamp("act_ok")
    g(f"s_lshl_b32 s{tX}, s{tRB}, 2", f"s_add_u32 s{tX}, s{tX}, s{tR}", f"s_lshl_b32 s{tX}, s{tX}, 4", f"s_lshl_b32 s{tY}, s{tCB}, 1", f"s_add_u32 s{tX}, s{tX}, s{tY}",
      f"s_add_u32 s{tX}, s{tX}, s{tU}", f"s_lshl_b32 s{tX}, s{tX}, 11", f"s_add_u32 s{tX}, s{tX}, {hex(WS_X1)}")
    g.vmem(f"buffer_load_dwordx4 v[52:55], v{V_L16}, s[{S_WS}:{S_WS+3}], s{tX} offen sc1", 'x1l'); g.vmem(f"buffer_load_dwordx4 v[56:59], v{V_L16}, s[{S_WS}:{S_WS+3}], s{tX} offen offset:1024 sc1", 'x1l')
    wsplit_main(g, 7, 56, "k5")
    for k in range(4): g(f"v_fma_f32 v{64+k}, v{64+k}, v{60+k}, v{52+k}")
    for k in range(4): g(f"v_fma_f32 v{68+k}, v{68+k}, v{12+k}, v{56+k}")
    for k in range(4): g(f"v_cvt_pk_bf16_f32 v{16+k}, v{64+2*k}, v{65+2*k}")
    g(f"s_lshl_b32 s{tX}, s{tRB}, 6", f"s_lshl_b32 s{tY}, s{tR}, 4", f"s_add_u32 s{tX}, s{tX}, s{tY}", "v_and_b32 v20, 15, v0", f"v_add_u32 v20, s{tX}, v20")
    g(f"s_lshl_b32 s{tX}, s{tCB}, 6", f"s_lshl_b32 s{tY}, s{tU}, 5", f"s_add_u32 s{tX}, s{tX}, s{tY}", "v_lshrrev_b32 v21, 4, v0", "v_lshlrev_b32 v21, 2, v21", f"v_add_u32 v21, s{tX}, v21")
    g("v_lshlrev_b32 v20, 10, v20", "v_lshl_add_u32 v20, v21, 1, v20")
    g(f"buffer_store_dwordx2 v[16:17], v20, s[{S_B}:{S_B+3}], 0 offen", f"buffer_store_dwordx2 v[18:19], v20, s[{S_B}:{S_B+3}], 0 offen offset:32")
    if Gen.STAMP:
        g("s_waitcnt vmcnt(0)"); g.stamp("end"); g.dump_stamps(sWAVE, 2)

def tail_code_touch(g):
    lsk = g.newlabel("noct2")
    g(f"s_cmp_lg_u32 s{sWAVE}, 0", f"s_cbranch_scc1 {lsk}", f"s_lshr_b32 s{sT1}, s2, 3", "v_mbcnt_lo_u32_b32 v0, -1, 0", "v_mbcnt_hi_u32_b32 v0, -1, v0")
    code_touch(g, KNAME, sT1, 2, 3, 16, 18, 56)
    g.label(lsk)

def mega(g):
    if OPT.get('ctouch2'): OPT['hook_fin'] = tail_code_touch
    front(g, fused=True)
    tail(g)
```

```python
class Gen:
    def __init__(self):
        self.L = []
        self._vm = []
        self._done = -1
        self.uid = 0
    def __call__(self, *ss):
        for s in ss:
            if isinstance(s, (list, tuple)):
                self(*s)
            elif s:
                self.L.append(s)
    def label(self, name):
        self.L.append(name + ":")
    def newlabel(self, base):
        self.uid += 1
        return f"L_{base}_{self.uid}"
    @property
    def vm(self): return self._vm
    @vm.setter
    def vm(self, v): self._vm = v; self._done = -1
    def vmem(self, instr, tag=None):
        self.L.append(instr); self.vm.append(tag)
    def vm_note(self, tag):
        self.vm.append(tag)
    def vm_count_after(self, tag):
        idx = max(i for i, t in enumerate(self.vm) if t == tag)
        return len(self.vm) - 1 - idx
    def wait_vm(self, tag, extra=""):
        n = self.vm_count_after(tag)
        idx = len(self._vm) - 1 - n
        if idx <= self._done and not extra: return
        assert n <= 63, f"vmcnt {n} too large for tag {tag}"
        self._done = max(self._done, idx)
        self.L.append(f"s_waitcnt vmcnt({n}){extra}")
    STAMP = False
    STAMP_SKIP = set(__import__('os').environ.get('SKIP', 'mod_part,sub1_done,sub2_done,diag_start,ctx_stored').split(','))
    def stamp(self, name="", cyc=False):
        if not Gen.STAMP: return
        keep = __import__('os').environ.get('KEEP')
        if keep:
            if name not in keep.split(','): return
        elif name in Gen.STAMP_SKIP or name.startswith('b_') or name[:2] in ('st', 'dm', 'ke', 'mo') or name in ('pre_karg', 'karg', 'iss0', 'iss1', 'iss2', 'p0'): return
        if not hasattr(self, 'stamps'): self.stamps = []
        r = 60 + 2 * len(self.stamps)
        assert r <= 82, 'too many stamps'
        self.stamps.append(name)
        self.L.append(f"s_memtime s[{r}:{r+1}]" if cyc else f"s_memrealtime s[{r}:{r+1}]")
        both = __import__('os').environ.get('BOTH')
        if both and not cyc and name in both.split(','):
            r = 60 + 2 * len(self.stamps)
            assert r <= 82, 'too many stamps'
            self.stamps.append(name + '_c')
            self.L.append(f"s_memtime s[{r}:{r+1}]")
    def dump_stamps(self, wave_sreg, slot):
        if not Gen.STAMP or not hasattr(self, 'stamps'): return
        n = len(self.stamps)
        self(f"s_load_dwordx2 s[56:57], s[0:1], {KA['ws']}", "s_waitcnt lgkmcnt(0)", "s_mov_b32 s58, 0x10000000", "s_mov_b32 s59, 0x20000")
        self(f"s_lshl_b32 s54, s2, 3", f"s_add_u32 s54, s54, s{wave_sreg}", "s_lshl_b32 s54, s54, 7", f"s_add_u32 s54, s54, {hex(WS_T + slot * 0x40000)}")
        for i in range(n):
            self(f"v_mov_b32 v14, s{60+2*i}", f"v_mov_b32 v15, {i*4}", "s_nop 0", "buffer_store_dword v14, v15, s[56:59], s54 offen")
        self("s_waitcnt vmcnt(0)")
        print("stamps slot", slot, self.stamps)
    def text(self):
        return "\n".join(self.L) + "\n"

def vr(b, n=1, k="v"):
    return f"{k}{b}" if n == 1 else f"{k}[{b}:{b+n-1}]"
def ar(b, n=1):
    return vr(b, n, "a")
def sr(b, n=1):
    return vr(b, n, "s")

KA = dict(x=0, ckv=8, wq=16, wuk=24, wuv=32, wo=40, bx=48, wg=56, wu=64, wd=72, c=80, wmod=88, out=96, dbg=104, ws=112)
SZ = dict(x=2048*512*2, ckv=2048*512*2, wq=512*4096*2, wuk=512*4096*2, wuv=512*4096*2, wo=4096*512*2,
          wg=512*1792*2, wu=512*1792*2, wd=1792*512*2, c=512*2, wmod=512*3072*2, out=2048*512*2, dbg=256, ws=0x10000000)
WS_MOD  = 0x0000000
WS_STAT = 0x0010000
WS_CNT  = 0x0020000
WS_T    = 0x8000000
WS_H    = 0x0100000
WS_X1   = 0x0400000
WS_H2   = 0x0800000
WS_ACT  = 0x0A00000
HST = 0x80000 + int(__import__('os').environ.get('HPAD', '0'), 0)
WS_KF   = 0x2000000
WS_VF   = 0x3100000
WS_CTX  = 0x4200000

def load_srd(g, s, name, tmp=None):
    g(f"s_load_dwordx2 {sr(s,2)}, s[0:1], {KA[name]}")
def finish_srd(g, s, name):
    import re
    for line in reversed(g.L):
        m = re.match(r"s_load_dwordx2 s\[(\d+):(\d+)\], s\[0:1\], (\d+)", line)
        if m and int(m.group(1)) == s:
            assert int(m.group(3)) == KA[name], f"SRD s{s}: pointer at kernarg {m.group(3)} but sized as {name}"
            break
    else:
        raise AssertionError(f"SRD s{s} ({name}): no kernarg load found")
    g(f"s_mov_b32 s{s+2}, {hex(SZ[name])}", f"s_mov_b32 s{s+3}, 0x20000")

def kernel_header(name):
    return f""".globl {name}
.p2align 8
.type {name},@function
{name}:
"""
def kernel_desc(name, nv=256, ao=128, ns=102):
    return f""".p2align 6
.amdhsa_kernel {name}
  .amdhsa_next_free_vgpr {nv}
  .amdhsa_next_free_sgpr {ns}
  .amdhsa_accum_offset {ao}
  .amdhsa_group_segment_fixed_size 0
  .amdhsa_kernarg_size 120
  .amdhsa_user_sgpr_count 2
  .amdhsa_user_sgpr_kernarg_segment_ptr 1
  .amdhsa_system_sgpr_workgroup_id_x 1
.end_amdhsa_kernel
"""

def wave_sum64(g, v, t):
    for r in (8, 4, 2, 1):
        g("s_nop 1", f"v_add_f32_dpp v{v}, v{v}, v{v} row_ror:{r} row_mask:0xf bank_mask:0xf")
    g(f"v_mov_b32 v{t}, v{v}", "s_nop 1", f"v_permlane16_swap_b32 v{v}, v{t}", f"v_add_f32 v{v}, v{v}, v{t}")
    g(f"v_mov_b32 v{t}, v{v}", "s_nop 1", f"v_permlane32_swap_b32 v{v}, v{t}", f"v_add_f32 v{v}, v{v}, v{t}")


def prefetch_lines(g, ptr_s, name, gw_s, start, vtmp, vdst, lane128, stmp, srd=96):
    g(f"s_mov_b32 s{srd}, s{ptr_s}", f"s_mov_b32 s{srd+1}, s{ptr_s+1}", f"s_mov_b32 s{srd+2}, {hex(SZ[name])}", f"s_mov_b32 s{srd+3}, 0x20000")
    g(f"s_sub_u32 s{stmp}, s{gw_s}, {start}", f"s_lshl_b32 s{stmp}, s{stmp}, 13", f"v_add_u32 v{vtmp}, s{stmp}, v{lane128}")
    return f"buffer_load_dword v{vdst}, v{vtmp}, s[{srd}:{srd+3}], 0 offen"
```

```python
from core import *
import p_kv, p_att, p_mod
from p_kv import emit, V_W0, V_W1, V_L16, V_TR, V_FR, V_ACC, V_C0, V_C1, V_SR, setup_dma128, setup_tr128, tr_reads
from p_att import *
from p_mod import LOG2E, QSCALE

S_WS, S_DBG, S_A, S_B, S_C2 = 4, 8, 12, 16, 56
p_att.S_WS = S_WS
sCROW, sSTB, sSTG = 43, 54, 55
sHKV, sKB, sWBKV = 84, 87, 85
OOB = 0x7ff00000
KNAME = 'mega_kernel'
sOOB = 86
C_START, C_MOD2 = 0, 32
C_H, C_KV, C_CTX, C_H2, C_ACT = 0, 8, 40, 48, 56

SLOT = [0,1,2,3, 0,1, 2,4,5,6,7,8,9, 3, 0, 1,   2,4,5,3,6,7,8,9]
HSCHED = {52 + k: [k] for k in range(16)}
ISSUE = {1:[3, 4], 2:[5], 3:[6, 7], 4:[8, 9], 5:[10, 11], 6:[12, 13], 7:[14, 15], 8:[16], 9:[17], 10:[18], 11:[20], 12:[21], 13:[22], 14:[19], 15:[23]}

def poll_issue(g, vdst, srd, soff, tag, st):
    g(f"s_cmp_eq_u32 s{sWAVE}, 0", f"s_cselect_b32 s{st}, s{soff}, s{sOOB}")
    g.vmem(f"buffer_load_dword v{vdst}, off, s[{srd}:{srd+3}], s{st} sc1", tag)
def poll_check(g, vdst, srd, tag, soff, target, t1, t2):
    ok, loop = g.newlabel("pok"), g.newlabel("ploop")
    g.wait_vm(tag)
    g(f"s_cmp_lg_u32 s{sWAVE}, 0", f"s_cbranch_scc1 {ok}")
    g(f"v_readfirstlane_b32 s{t1}, v{vdst}", "s_nop 3", f"s_cmp_ge_u32 s{t1}, {target}")
    g(f"s_cbranch_scc1 {ok}", f"s_mov_b32 s{t2}, 0x40000")
    g.label(loop)
    g("s_sleep 8", f"buffer_load_dword v{vdst}, off, s[{srd}:{srd+3}], s{soff} sc1", "s_waitcnt vmcnt(0)")
    g(f"v_readfirstlane_b32 s{t1}, v{vdst}", "s_nop 3", f"s_cmp_ge_u32 s{t1}, {target}")
    g(f"s_cbranch_scc1 {ok}", f"s_sub_u32 s{t2}, s{t2}, 1", f"s_cmp_lg_u32 s{t2}, 0", f"s_cbranch_scc1 {loop}")
    g.label(ok)
def signal(g, srd, soff, vt, st, lo=None, hi=None):
    g(f"s_cmp_eq_u32 s{sWAVE}, 0", f"s_cselect_b32 s{st}, {('s%d' % soff[1]) if isinstance(soff, tuple) else soff}, s{sOOB}")
    if lo is not None:
        g(f"s_cmp_ge_u32 s3, {lo}", f"s_cselect_b32 s{st}, s{st}, s{sOOB}", f"s_cmp_lt_u32 s3, {hi}", f"s_cselect_b32 s{st}, s{st}, s{sOOB}")
    g(f"v_mov_b32 v{vt}, 1", "s_mov_b64 exec, 1")
    g.vmem(f"buffer_atomic_add v{vt}, off, s[{srd}:{srd+3}], s{st} sc1", 'sig')
    g("s_mov_b64 exec, -1")
def cnt_off(g, dst, base, idx_s):
    g(f"s_lshl_b32 s{dst}, s{idx_s}, 7", f"s_add_u32 s{dst}, s{dst}, {hex(WS_CNT + base*128)}")

def code_touch(g, kname, seg_s, nseg_bits, first_seg, vt, vdst, st):
    lab = g.newlabel("pc")
    g(f"s_getpc_b64 s[{st}:{st+1}]")
    g.label(lab)
    g(f"s_sub_u32 s{st}, s{st}, {lab}-{kname}", f"s_subb_u32 s{st+1}, s{st+1}, 0")
    g(f"s_and_b32 s{st+2}, s{seg_s}, {(1 << nseg_bits) - 1}", f"s_add_u32 s{st+2}, s{st+2}, {first_seg}", f"s_lshl_b32 s{st+2}, s{st+2}, 13")
    g(f"v_lshlrev_b32 v{vt}, 7, v0", f"v_add_u32 v{vt}, s{st+2}, v{vt}", f"v_min_u32 v{vt}, L_end_{kname}-{kname}, v{vt}")
    g(f"v_mov_b32 v{vt+1}, s{st+1}", f"v_add_co_u32 v{vt}, vcc, s{st}, v{vt}", "s_nop 1", f"v_addc_co_u32 v{vt+1}, vcc, 0, v{vt+1}, vcc")
    g(f"global_load_dword v{vdst}, v[{vt}:{vt+1}], off")

def front(g, fused=False):
    g(f"s_load_dwordx2 s[4:5], s[0:1], {KA['ws']}", f"s_load_dwordx2 s[8:9], s[0:1], {KA['dbg']}",
      f"s_load_dwordx2 s[12:13], s[0:1], {KA['ckv']}", f"s_load_dwordx2 s[16:17], s[0:1], {KA['wuk']}",
      f"s_load_dwordx2 s[56:57], s[0:1], {KA['wuv']}", f"s_load_dwordx2 s[88:89], s[0:1], {KA['x']}",
      f"s_load_dwordx2 s[92:93], s[0:1], {KA['wmod']}", f"s_load_dwordx2 s[96:97], s[0:1], {KA['c']}")
    g.stamp("entry")
    g(f"s_sub_u32 s3, s2, {OPT.get('modbase', 160)}", "s_min_u32 s3, s3, 96")
    g("v_lshrrev_b32 v14, 6, v0", "v_and_b32 v0, 63, v0", "s_nop 0", f"v_readfirstlane_b32 s{sWAVE}, v14")
    g(f"s_and_b32 s{sHEAD}, s2, 7", f"s_lshl_b32 s{sHEAD}, s{sHEAD}, 2", f"s_bfe_u32 s{sT1}, s2, 0x20003", f"s_add_u32 s{sHEAD}, s{sHEAD}, s{sT1}")
    g(f"s_lshr_b32 s{sI}, s2, 5", f"s_lshr_b32 s{sISA}, s{sWAVE}, 2")
    g(f"s_sub_u32 s{sT1}, 7, s{sWAVE}", f"s_sub_u32 s{sT2}, 15, s{sI}", f"s_cmp_eq_u32 s{sISA}, 0",
      f"s_cselect_b32 s{sSUB}, s{sWAVE}, s{sT1}", f"s_cselect_b32 s{sT3}, s{sT2}, s{sI}")
    g(f"s_lshl_b32 s{sT16}, s{sT3}, 3", f"s_lshl_b32 s{sT1}, s{sSUB}, 1", f"s_add_u32 s{sT16}, s{sT16}, s{sT1}")
    g(f"s_lshl_b32 s{sNB2}, s{sT2}, 1", f"s_lshl_b32 s{sNA2}, s{sI}, 1", f"s_lshl_b32 s{sNBo}, s{sT2}, 15", f"s_lshl_b32 s{sNAo}, s{sI}, 15")
    g(f"s_and_b32 s{sA4}, s{sWAVE}, 3", f"s_lshl_b32 s{sA4}, s{sA4}, 12")
    g(f"s_mul_i32 s{sT1}, s{sHEAD}, {HST}", f"s_add_u32 s{sT1}, s{sT1}, s{sA4}",
      f"s_add_u32 s{sKF}, s{sT1}, {hex(WS_KF)}", f"s_add_u32 s{sVF}, s{sT1}, {hex(WS_VF)}")
    g(f"s_and_b32 s{sKB}, s2, 1", f"s_lshl_b32 s{sKB}, s{sKB}, 2", f"s_bfe_u32 s{sT1}, s2, 0x20003", f"s_add_u32 s{sKB}, s{sKB}, s{sT1}")
    g(f"s_bfe_u32 s{sHKV}, s2, 0x20001", f"s_lshl_b32 s{sHKV}, s{sHKV}, 3", f"s_lshr_b32 s{sT1}, s2, 5", f"s_xor_b32 s{sT1}, s{sT1}, {OPT.get('hx', 0)}", f"s_add_u32 s{sHKV}, s{sHKV}, s{sT1}")
    g("v_lshrrev_b32 v14, 3, v0", "v_lshlrev_b32 v1, 10, v14", "v_lshrrev_b32 v14, 4, v0", "v_and_b32 v15, 7, v0", "v_xor_b32 v14, v14, v15",
      "v_xor_b32 v15, 4, v14", "v_lshl_add_u32 v2, v15, 4, v1", "v_lshl_add_u32 v1, v14, 4, v1", f"v_add_u32 v2, {8*1024-1024}, v2")
    setup_dma128(g, 8192); setup_tr128(g)
    g(f"s_mul_i32 s{sSTG}, s{sWAVE}, 12288", f"s_add_u32 s{sSTG}, s{sSTG}, {4*16384}",
      "v_and_b32 v14, 15, v0", "v_lshlrev_b32 v10, 7, v14", "v_lshrrev_b32 v14, 1, v14", "v_lshrrev_b32 v15, 4, v0", "v_xor_b32 v14, v14, v15",
      "v_lshl_add_u32 v10, v14, 4, v10", f"v_add_u32 v10, s{sSTG}, v10", "v_xor_b32 v11, 64, v10")
    g(f"v_lshlrev_b32 v{V_L16}, 4, v0")
    g(f"s_lshl_b32 s{sT1}, s{sKB}, 8", f"s_lshl_b32 s{sCROW}, s{sWAVE}, 5", f"s_add_u32 s{sCROW}, s{sT1}, s{sCROW}", f"s_lshl_b32 s{sCROW}, s{sCROW}, 10")
    g(f"s_lshl_b32 s{sWB}, s{sWAVE}, 17", f"s_lshl_b32 s{sT1}, s{sHEAD}, 8", f"s_add_u32 s{sWB}, s{sWB}, s{sT1}", f"s_lshl_b32 s{sM0B}, s{sWAVE}, 11")
    g(f"s_lshl_b32 s{sWBKV}, s{sWAVE}, 17", f"s_lshl_b32 s{sT1}, s{sHKV}, 8", f"s_add_u32 s{sWBKV}, s{sWBKV}, s{sT1}")
    g(f"s_mul_i32 s{sSTB}, s{sHKV}, {HST}", f"s_lshl_b32 s{sT1}, s{sKB}, 3", f"s_add_u32 s{sT1}, s{sT1}, s{sWAVE}", f"s_lshl_b32 s{sT1}, s{sT1}, 13", f"s_add_u32 s{sSTB}, s{sSTB}, s{sT1}")
    g("v_lshrrev_b32 v14, 4, v0", "v_lshlrev_b32 v14, 2, v14", "v_and_b32 v15, 15, v0")
    for r in range(4):
        g(f"v_cmp_le_u32 s[{sMASK+2*r}:{sMASK+2*r+1}], v14, v15")
        if r < 3: g("v_add_u32 v14, 1, v14")
    g(f"s_mov_b32 s{sRESTART}, 0", f"s_mov_b32 s{sOOB}, {hex(OOB)}")
    g.stamp("pre_karg")
    g("s_waitcnt lgkmcnt(0)")
    g.stamp("karg")
    for s, n in ((S_WS, 'ws'), (S_DBG, 'dbg'), (S_A, 'ckv'), (S_B, 'wuk'), (S_C2, 'wuv'), (88, 'x'), (92, 'wmod'), (96, 'c')):
        finish_srd(g, s, n)
    def dma(c):
        if c < 16:
            j, q = c >> 2, c & 3
            srd = S_B if j < 2 else S_C2
            off = q*0x100000 + (j & 1)*128
        else:
            j, q = (c - 16) >> 2, c & 3
            srd = S_B; off = q*0x100000 + j*128
        base = sWBKV if c < 16 else sWB
        if OPT.get('bdma_hack'):
            lab = g.newlabel("nodma")
            return [f"s_cmp_lg_u32 s{sISA}, 0", f"s_cbranch_scc1 {lab}",
                    f"s_add_u32 s{sT1}, s{base}, {hex(off)}", f"s_add_u32 m0, s{sM0B}, {hex(SLOT[c]*16384)}",
                    (f"buffer_load_dwordx4 v{V_W0}, s[{srd}:{srd+3}], s{sT1} offen lds", ('W', c)),
                    (f"buffer_load_dwordx4 v{V_W1}, s[{srd}:{srd+3}], s{sT1} offen offset:1024 lds", ('W', c)),
                    f"s_add_u32 s{sT1}, s{sT1}, {4*16*8192}", f"s_add_u32 m0, m0, {4*2048}", "s_nop 0",
                    f"buffer_load_dwordx4 v{V_W0}, s[{srd}:{srd+3}], s{sT1} offen lds",
                    f"buffer_load_dwordx4 v{V_W1}, s[{srd}:{srd+3}], s{sT1} offen offset:1024 lds", lab + ":"]
        return [f"s_add_u32 s{sT1}, s{base}, {hex(off)}", f"s_add_u32 m0, s{sM0B}, {hex(SLOT[c]*16384)}",
                (f"buffer_load_dwordx4 v{V_W0}, s[{srd}:{srd+3}], s{sT1} offen lds", ('W', c)),
                (f"buffer_load_dwordx4 v{V_W1}, s[{srd}:{srd+3}], s{sT1} offen offset:1024 lds", ('W', c))]
    def stage(p):
        out = []
        for hf in range(2):
            out += [f"s_add_u32 s{sT1}, s{sCROW}, {p*128 + hf*16384}", f"s_add_u32 m0, s{sSTG}, {(p%3)*4096 + hf*2048}",
                    (f"buffer_load_dwordx4 v{V_C0}, s[{S_A}:{S_A+3}], s{sT1} offen lds", ('P', p)),
                    (f"buffer_load_dwordx4 v{V_C1}, s[{S_A}:{S_A+3}], s{sT1} offen offset:1024 lds", ('P', p))]
        return out
    def stage_reads(p):
        return [f"ds_read_b128 a[{(s*2+t)*4}:{(s*2+t)*4+3}], v{V_SR+(s&1)} offset:{(p%3)*4096 + t*2048}" for s in (2*p, 2*p+1) for t in range(2)]
    MC, MW, MT, MA = 96, 100, 116, 120
    def mod_loads(lo, hi):
        g(f"s_cmp_ge_u32 s3, {lo}", f"s_cselect_b32 s{sT2}, 0, s{sOOB}", f"s_cmp_lt_u32 s3, {hi}", f"s_cselect_b32 s{sT2}, s{sT2}, s{sOOB}")
        g(f"v_and_b32 v{MT}, 3, v0", f"v_lshrrev_b32 v{MT+1}, 2, v0", f"s_lshl_b32 s{sT1}, s{sWAVE}, 4", f"v_add_u32 v{MT+1}, s{sT1}, v{MT+1}")
        g(f"s_movk_i32 s{sT1}, 6144", f"v_mul_lo_u32 v{MT+2}, v{MT+1}, s{sT1}", f"v_lshl_add_u32 v{MT+2}, v{MT}, 4, v{MT+2}", f"s_lshl_b32 s{sT1}, s3, 6", f"v_add_u32 v{MT+2}, s{sT1}, v{MT+2}")
        g(f"v_lshlrev_b32 v{MT+3}, 1, v{MT+1}")
        for t in range(4):
            g.vmem(f"buffer_load_ushort v{MC+t}, v{MT+3}, s[96:99], s{sT2} offen offset:{t*256}", 'mc')
        for t in range(4):
            g(f"s_add_u32 s{sT1}, s{sT2}, {hex(t*128*6144)}")
            g.vmem(f"buffer_load_dwordx4 v[{MW+4*t}:{MW+3+4*t}], v{MT+2}, s[92:95], s{sT1} offen", ('mw', t))
    def mod_partial(lo, hi, lds):
        skip = g.newlabel("modp")
        g.stamp("mo_pre"); g.wait_vm(('mw', 3)); g.stamp("mo_w")
        g(f"s_cmp_ge_u32 s3, {lo}", f"s_cbranch_scc0 {skip}", f"s_cmp_lt_u32 s3, {hi}", f"s_cbranch_scc0 {skip}")
        g(f"s_mov_b32 s{sT1}, {hex(LOG2E)}")
        for t in range(4): g(f"v_lshlrev_b32 v{MC+t}, 16, v{MC+t}")
        for t in range(4): g(f"v_mul_f32 v{MT+t}, s{sT1}, v{MC+t}")
        for t in range(4): g(f"v_exp_f32 v{MT+t}, -v{MT+t}")
        g("s_nop 0")
        for t in range(4): g(f"v_add_f32 v{MT+t}, 1.0, v{MT+t}")
        for t in range(4): g(f"v_rcp_f32 v{MT+t}, v{MT+t}")
        g("s_nop 0")
        for t in range(4): g(f"v_mul_f32 v{MC+t}, v{MC+t}, v{MT+t}")
        g(f"s_mov_b32 s{sT2}, 0xffff0000")
        for t in range(4):
            for d in range(4):
                w = MW + 4*t + d
                g(f"v_lshlrev_b32 v{MT}, 16, v{w}", f"v_and_b32 v{MT+1}, s{sT2}, v{w}")
                if t == 0: g(f"v_mul_f32 v{MA+2*d}, v{MC}, v{MT}", f"v_mul_f32 v{MA+1+2*d}, v{MC}, v{MT+1}")
                else: g(f"v_fmac_f32 v{MA+2*d}, v{MC+t}, v{MT}", f"v_fmac_f32 v{MA+1+2*d}, v{MC+t}, v{MT+1}")
        for r in (8, 4):
            g("s_nop 1")
            for e in range(8): g(f"v_add_f32_dpp v{MA+e}, v{MA+e}, v{MA+e} row_ror:{r} row_mask:0xf bank_mask:0xf")
        g(f"v_lshrrev_b32 v{MT+1}, 4, v0", f"s_lshl_b32 s{sT1}, s{sWAVE}, 2", f"v_add_u32 v{MT+1}, s{sT1}, v{MT+1}", f"v_lshlrev_b32 v{MT+1}, 7, v{MT+1}",
          f"v_and_b32 v{MT}, 3, v0", f"v_lshl_add_u32 v{MT+1}, v{MT}, 5, v{MT+1}", f"v_add_u32 v{MT+1}, {lds}, v{MT+1}")
        g(f"v_and_b32 v{MT}, 15, v0", f"v_cmp_gt_u32 vcc, 4, v{MT}", "s_nop 1", "s_mov_b64 exec, vcc")
        g(f"ds_write_b128 v{MT+1}, v[{MA}:{MA+3}]", f"ds_write_b128 v{MT+1}, v[{MA+4}:{MA+7}] offset:16")
        g("s_mov_b64 exec, -1", "s_waitcnt lgkmcnt(0)")
        g.label(skip)
        g.stamp("mo_p")
    def mod_final(lo, hi, lds):
        lskip = g.newlabel("modfin")
        g(f"s_cmp_ge_u32 s3, {lo}", f"s_cselect_b32 s{sT2}, 0, s{sOOB}", f"s_cmp_lt_u32 s3, {hi}", f"s_cselect_b32 s{sT2}, s{sT2}, s{sOOB}",
          f"s_cmp_eq_u32 s{sWAVE}, 0", f"s_cselect_b32 s{sT2}, s{sT2}, s{sOOB}")
        g(f"s_cmp_lg_u32 s{sT2}, 0", f"s_cbranch_scc1 {lskip}")
        g(f"v_and_b32 v{MT}, 31, v0", f"v_lshlrev_b32 v{MT}, 2, v{MT}", f"v_lshrrev_b32 v{MT+1}, 5, v0", f"v_lshl_add_u32 v{MT}, v{MT+1}, 11, v{MT}", f"v_add_u32 v{MT}, {lds}, v{MT}")
        g("s_waitcnt lgkmcnt(0)")
        for r in range(16):
            if r == 15: g("s_waitcnt lgkmcnt(7)")
            g(f"ds_read_b32 v{MW+r}, v{MT} offset:{r*128}")
        g("s_waitcnt lgkmcnt(0)")
        for st in (8, 4, 2, 1):
            for k in range(st): g(f"v_add_f32 v{MW+k}, v{MW+k}, v{MW+k+st}")
        g(f"v_mov_b32 v{MW+1}, v{MW}", "s_nop 1", f"v_permlane32_swap_b32 v{MW}, v{MW+1}", f"v_add_f32 v{MW}, v{MW}, v{MW+1}")
        g.label(lskip)
        g(f"v_lshlrev_b32 v{MT}, 2, v0", "v_cmp_gt_u32 vcc, 32, v0", f"v_mov_b32 v{MT+1}, {hex(OOB)}", "s_nop 0", f"v_cndmask_b32 v{MT}, v{MT+1}, v{MT}, vcc")
        g(f"s_lshl_b32 s{sT1}, s3, 7", f"s_add_u32 s{sT1}, s{sT1}, {hex(WS_MOD)}", f"s_add_u32 s{sT1}, s{sT1}, s{sT2}")
        g.vmem(f"buffer_store_dword v{MW}, v{MT}, s[{S_WS}:{S_WS+3}], s{sT1} offen sc1", 'modst')
        g.stamp("mo_f")
        g(f"s_lshl_b32 s{sT1}, s3, 7", f"s_add_u32 s{sT1}, s{sT1}, {hex(WS_CNT)}", "s_cmp_lt_u32 s3, 32", f"s_cselect_b32 s{sT1}, s{sT1}, s{sOOB}",
          f"s_cmp_eq_u32 s{sWAVE}, 0", f"s_cselect_b32 s{sT1}, s{sT1}, s{sOOB}", f"v_mov_b32 v{MT+2}, 0", f"v_lshlrev_b32 v{MT+3}, 12, v0", "s_mov_b64 exec, 15")
        g.vmem(f"buffer_store_dword v{MT+2}, v{MT+3}, s[{S_WS}:{S_WS+3}], s{sT1} offen sc1", 'modst')
        g("s_mov_b64 exec, -1")
    def c_touch():
        g(f"s_lshr_b32 s{sT1}, s2, 5", f"s_mul_i32 s{sT1}, s{sT1}, 160", f"s_lshl_b32 s{sT2}, s{sWAVE}, 6", f"s_add_u32 s{sT1}, s{sT1}, s{sT2}", f"v_add_u32 v56, s{sT1}, v0")
        g(f"v_add_u32 v57, s{sT2}, v0", "v_mov_b32 v58, 0xcccd", "v_mul_u32_u24 v58, v56, v58", "v_lshrrev_b32 v58, 18, v58")
        g("v_mul_u32_u24 v59, 5, v58", "v_sub_u32 v59, v56, v59", "v_add_u32 v59, 3, v59", "v_lshlrev_b32 v59, 7, v59", "v_lshl_add_u32 v59, v58, 10, v59")
        g(f"s_lshl_b32 s{sT1}, s{sKB}, 18", f"v_add_u32 v59, s{sT1}, v59", "v_cmp_gt_u32 vcc, 160, v57", f"v_mov_b32 v58, {hex(OOB)}", "s_nop 0", "v_cndmask_b32 v59, v58, v59, vcc")
        g.vmem(f"buffer_load_dword v12, v59, s[{S_A}:{S_A+3}], 0 offen", 'tc')
    def w_touch_lin():
        g(f"s_lshl_b32 s{sT1}, s2, 2", f"s_and_b32 s{sT2}, s{sWAVE}, 3", f"s_add_u32 s{sT1}, s{sT1}, s{sT2}")
        g(f"s_and_b32 s{sT2}, s{sT1}, 511", f"s_lshl_b32 s{sT2}, s{sT2}, 13", f"s_cmp_lt_u32 s{sWAVE}, 4", f"s_cselect_b32 s{sT2}, s{sT2}, s{sOOB}")
        g("v_lshlrev_b32 v15, 7, v0", f"s_cmp_lt_u32 s{sT1}, 512", f"s_cselect_b32 s{sT3}, s{sT2}, s{sOOB}")
        g.vmem(f"buffer_load_dword v13, v15, s[{S_B}:{S_B+3}], s{sT3} offen", 'tw')
        g(f"s_cmp_lt_u32 s{sT1}, 512", f"s_cselect_b32 s{sT3}, s{sOOB}, s{sT2}")
        g.vmem(f"buffer_load_dword v14, v15, s[{S_C2}:{S_C2+3}], s{sT3} offen", 'tw')
    def w_touch():
        g(f"s_and_b32 s{sT1}, s{sKB}, 3", f"s_lshl_b32 s{sT1}, s{sT1}, 9", f"s_lshl_b32 s{sT2}, s{sWAVE}, 6", f"s_add_u32 s{sT1}, s{sT1}, s{sT2}", f"v_add_u32 v14, s{sT1}, v0")
        g("v_bfe_u32 v15, v14, 1, 9", "v_lshlrev_b32 v15, 13, v15", "v_and_b32 v14, 1, v14", "v_lshl_add_u32 v15, v14, 7, v15", f"s_lshl_b32 s{sT2}, s{sHKV}, 8", f"v_add_u32 v15, s{sT2}, v15")
        g(f"s_bitcmp1_b32 s{sKB}, 1", f"s_cselect_b32 s{sT2}, s{sOOB}, 0")
        g.vmem(f"buffer_load_dword v13, v15, s[{S_B}:{S_B+3}], s{sT2} offen", 'tw')
        g(f"s_cselect_b32 s{sT2}, 0, s{sOOB}")
        g.vmem(f"buffer_load_dword v14, v15, s[{S_C2}:{S_C2+3}], s{sT2} offen", 'tw')
    if OPT.get('fprio'):
        lp = g.newlabel("fp")
        g(f"s_cmp_eq_u32 s{sISA}, {0 if OPT['fprio'] == 1 else 1}", f"s_cbranch_scc1 {lp}", "s_setprio 1"); g.label(lp)
    if OPT.get('ctouch'):
        lsk = g.newlabel("noct")
        g(f"s_cmp_lg_u32 s{sWAVE}, 7", f"s_cbranch_scc1 {lsk}", f"s_lshr_b32 s{sT1}, s2, 3")
        code_touch(g, KNAME, sT1, 3, 0, 16, 18, 60 if not Gen.STAMP else 96)
        g.label(lsk)
    pv = OPT.get('pro', 4)
    bar = (lambda: g("s_barrier")) if pv in (0, 2, 3, 5) else (lambda: None)
    if pv == 10: mod_loads(0, 96)
    emit(g, dma(0)); emit(g, stage(0)); g.stamp("iss0"); bar()
    if pv == 10:
        emit(g, stage(1)); emit(g, dma(1)); emit(g, stage(2)); emit(g, dma(2))
    elif pv == 3:
        emit(g, stage(1)); emit(g, dma(1)); bar(); emit(g, stage(2)); c_touch(); emit(g, dma(2)); mod_loads(0, 96)
    elif pv == 6:
        emit(g, stage(1)); emit(g, dma(1)); emit(g, stage(2)); emit(g, dma(2)); mod_loads(0, 96)
    elif pv == 7:
        emit(g, stage(1)); emit(g, dma(1)); emit(g, stage(2)); c_touch(); emit(g, dma(2)); mod_loads(0, 96)
    elif pv == 8:
        emit(g, stage(1)); mod_loads(0, 96); emit(g, dma(1)); emit(g, stage(2)); emit(g, dma(2))
    elif pv == 5:
        emit(g, stage(1)); emit(g, dma(1)); emit(g, stage(2)); bar(); emit(g, dma(2)); mod_loads(0, 96)
    else:
        if pv != 2: c_touch()
        emit(g, stage(1)); mod_loads(0, 96); g.stamp("iss1"); bar()
        emit(g, dma(1)); emit(g, stage(2)); emit(g, dma(2)); g.stamp("iss2")
    g(f"s_lshl_b32 s{sT1}, s{sHEAD}, 3", f"s_add_u32 s{sT1}, s{sT1}, s{sWAVE}", f"s_lshl_b32 s{sT2}, s{sI}, 7", f"s_add_u32 s{sT2}, s{sT2}, s{sT1}",
      f"s_sub_u32 s{sT3}, 14, s{sI}", f"s_lshl_b32 s{sT3}, s{sT3}, 7", f"s_add_u32 s{sT3}, s{sT3}, s{sT1}",
      f"s_cmp_lt_u32 s{sT1}, 128", f"s_cselect_b32 s{sCNT}, s{sT2}, s{sT3}")
    if pv == 10: mod_partial(0, 96, 3*16384)
    g.wait_vm(('P', 0)); g.stamp("p0"); g(stage_reads(0))
    g.wait_vm(('W', 0)); g("s_waitcnt lgkmcnt(0)", "s_barrier")
    g.stamp("w0_landed")
    emit(g, stage(3))
    if pv == 10: mod_final(0, 96, 3*16384)
    second = 512
    g(tr_reads(0, 0, second)); r1 = tr_reads(1, 1, second)
    g(r1[:7]); g("s_waitcnt lgkmcnt(7)"); g(r1[7])
    NKS, NCH = 96, 24
    def epilogue(j):
        buf = V_ACC + (j & 1) * 32
        A = lambda t, cb: buf + (t * 4 + cb) * 4
        groups = []
        for i in range(4):
            if j < 2:
                t, u = i >> 1, i & 1
                a, b = A(t, 2*u), A(t, 2*u+1); off = WS_KF + (t * 4 + 2*j + u) * 1024
            else:
                a, b = A(0, i), A(1, i); off = WS_VF + (4*(j-2) + i) * 1024
            grp = [f"v_cvt_pk_bf16_f32 v{a}, v{a}, v{a+1}", f"v_cvt_pk_bf16_f32 v{a+1}, v{a+2}, v{a+3}",
                   f"v_cvt_pk_bf16_f32 v{a+2}, v{b}, v{b+1}", f"v_cvt_pk_bf16_f32 v{a+3}, v{b+2}, v{b+3}"]
            st = [f"s_add_u32 s{sT1}, s{sSTB}, {hex(off)}", (f"buffer_store_dwordx4 v[{a}:{a+3}], v{V_L16}, s[{S_WS}:{S_WS+3}], s{sT1} offen{'' if OPT.get('kvplain') else ' sc1'}", ('st', j))]
            groups.append((grp, st))
        return groups
    def hload(s):
        out = []
        for t in range(2):
            out += [f"s_lshl_b32 s{sT1}, s{sT16}, 14", f"s_add_u32 s{sT1}, s{sT1}, {hex(WS_H + t*16384 + s*1024)}",
                    (f"buffer_load_dwordx4 a[{(s*2+t)*4}:{(s*2+t)*4+3}], v{V_L16}, s[{S_WS}:{S_WS+3}], s{sT1} offen sc1", ('H', s))]
        return out
    def ln1_loads():
        g(f"v_lshlrev_b32 v1, 5, v0", f"s_mov_b32 s{sT1}, {hex(WS_MOD)}")
        for k, off in enumerate((0, 16, 2048, 2064)):
            g.vmem(f"buffer_load_dwordx4 v[{72+4*k}:{75+4*k}], v1, s[{S_WS}:{S_WS+3}], s{sT1} offen offset:{off} sc1", 'lnm')
    def wsum_items(v, t):
        out = []
        for r in (8, 4, 2, 1): out += ["s_nop 1", f"v_add_f32_dpp v{v}, v{v}, v{v} row_ror:{r} row_mask:0xf bank_mask:0xf"]
        out += [f"v_mov_b32 v{t}, v{v}", "s_nop 1", f"v_permlane16_swap_b32 v{v}, v{t}", f"v_add_f32 v{v}, v{v}, v{t}"]
        out += [f"v_mov_b32 v{t}, v{v}", "s_nop 1", f"v_permlane32_swap_b32 v{v}, v{t}", f"v_add_f32 v{v}, v{v}, v{t}"]
        return out
    def ln1_stats_items():
        it = []
        for d in range(4): it += [f"v_lshlrev_b32 v{64+2*d}, 16, v{12+d}", f"v_and_b32 v{65+2*d}, 0xffff0000, v{12+d}"]
        it += ["v_add_f32 v10, v64, v65", "v_add_f32 v11, v66, v67", "v_add_f32 v10, v10, v11", "v_add_f32 v11, v68, v69", "v_add_f32 v10, v10, v11", "v_add_f32 v11, v70, v71", "v_add_f32 v10, v10, v11"]
        it += wsum_items(10, 11) + ["v_mul_f32 v10, 0x3b000000, v10"]
        it += [f"v_sub_f32 v{64+e}, v{64+e}, v10" for e in range(8)]
        it += ["v_mul_f32 v11, v64, v64"] + [f"v_fmac_f32 v11, v{64+e}, v{64+e}" for e in range(1, 8)]
        it += wsum_items(11, 10)
        it += ["v_mov_b32 v10, 0x3727c5ac", "v_fmac_f32 v10, 0x3b000000, v11", "v_rsq_f32 v10, v10", "s_nop 0", f"v_mul_f32 v10, {hex(QSCALE)}, v10"]
        it += [f"v_mul_f32 v{64+e}, v{64+e}, v10" for e in range(8)]
        return it
    def ln1_mod_items():
        it = [f"v_add_f32 v{80+e}, 1.0, v{80+e}" for e in range(8)] + [f"v_mul_f32 v{72+e}, {hex(QSCALE)}, v{72+e}" for e in range(8)]
        it += [f"v_fma_f32 v{64+e}, v{64+e}, v{80+e}, v{72+e}" for e in range(8)]
        it += [f"v_cvt_pk_bf16_f32 v{88+d}, v{64+2*d}, v{65+2*d}" for d in range(4)]
        it += ["v_lshrrev_b32 v1, 2, v0", "v_lshlrev_b32 v1, 10, v1", "v_and_b32 v2, 3, v0", "v_lshl_add_u32 v1, v2, 8, v1"]
        return it
    def ln1_to_lds():
        g(f"v_mul_u32_u24 v1, 144, v0", f"s_lshl_b32 s{sT1}, s{sWAVE}, 4", f"s_add_u32 s{sT1}, s{sT1}, {2*16384}", f"v_add_u32 v1, s{sT1}, v1", "ds_write_b128 v1, v[88:91]", "s_waitcnt lgkmcnt(0)")
    def ln1_from_lds():
        g("v_lshrrev_b32 v1, 3, v0", f"s_lshl_b32 s{sT1}, s{sWAVE}, 3", f"v_add_u32 v1, s{sT1}, v1", "v_mul_u32_u24 v1, 144, v1", "v_and_b32 v2, 7, v0", "v_lshl_add_u32 v1, v2, 4, v1",
          f"v_add_u32 v1, {2*16384}, v1", "ds_read_b128 v[12:15], v1")
        g("v_lshrrev_b32 v1, 5, v0", "v_lshlrev_b32 v1, 10, v1", "v_bfe_u32 v10, v0, 3, 2", "v_lshl_add_u32 v1, v10, 8, v1", "v_lshl_add_u32 v1, v2, 4, v1")
        g(f"s_lshr_b32 s{sT1}, s{sCNT}, 4", f"s_lshl_b32 s{sT1}, s{sT1}, 14", f"s_and_b32 s{sT2}, s{sCNT}, 8", f"s_lshl_b32 s{sT2}, s{sT2}, 4", f"s_add_u32 s{sT1}, s{sT1}, s{sT2}",
          f"s_lshl_b32 s{sT2}, s{sWAVE}, 11", f"s_add_u32 s{sT1}, s{sT1}, s{sT2}", f"s_add_u32 s{sT1}, s{sT1}, {hex(WS_H)}", "s_waitcnt lgkmcnt(0)")
        g.vmem(f"buffer_store_dwordx4 v[12:15], v1, s[{S_WS}:{S_WS+3}], s{sT1} offen sc1", 'hst')
    def ln1_store():
        g(f"s_lshr_b32 s{sT1}, s{sCNT}, 4", f"s_lshl_b32 s{sT1}, s{sT1}, 14", f"s_and_b32 s{sT2}, s{sCNT}, 15", f"s_lshl_b32 s{sT2}, s{sT2}, 4",
          f"s_add_u32 s{sT1}, s{sT1}, s{sT2}", f"s_add_u32 s{sT1}, s{sT1}, {hex(WS_H)}")
        g.vmem(f"buffer_store_dwordx4 v[88:91], v1, s[{S_WS}:{S_WS+3}], s{sT1} offen{'' if OPT.get('hplain') else ' sc1'}", 'hst')
    fq = []
    pend = []
    HSIG = 10 if OPT.get('hlds') else 9
    if OPT.get('hlds'):
        ISSUE.pop(8); ISSUE[9] = [16]; ISSUE[10] = [17, 18]
    KVSIG, KVCHK = (17, 20) if OPT.get('nospread') or OPT.get('q_nospread') else (20, 22)
    dq = []
    for ks in range(NKS):
        c, kk = ks >> 2, ks & 3
        j = c >> 2; s = ks % 16
        if kk == 2 and c + 1 < NCH:
            if c == 0 and OPT.get('pro', 4) != 10: mod_partial(0, 96, 3*16384)
            if c == 1: g.wait_vm('modst')
            if c == 5 and not OPT.get('noln'): g.stamp("b_5p"); poll_check(g, 2, S_DBG, 'pl0', sKO, 32, sT1, sT2)
            if c == HSIG and not OPT.get('noln'): g.stamp("hst_pre"); g.wait_vm('hst'); g.stamp("hst_post")
            if c == 12 and not OPT.get('noln'): g.stamp("h_pre"); poll_check(g, 2, S_WS, 'plh', sKO, 32, sT1, sT2); g.stamp("h_chk")
            if c == KVSIG and not OPT.get('nost'): g.wait_vm(('st', 3))
            if c == KVCHK: g.stamp("kv_pre"); poll_check(g, 2, S_WS, 'plk', sM0K, 8, sT1, sT2); g.stamp("kv_chk")
            g.stamp(f"b_{c}a"); g.wait_vm(('W', c + 1)); g("s_barrier"); g.stamp(f"b_{c}")
            if c == 6:
                g(f"s_load_dwordx2 s[16:17], s[0:1], {KA['wq']}", "s_waitcnt lgkmcnt(0)"); finish_srd(g, S_B, 'wq')
            for cc in ISSUE.get(c, []): dq.append(dma(cc))
            g.stamp(f"b_{c}i")
            if c == 0 and OPT.get('pro', 4) != 10:
                mod_final(0, 96, 3*16384)
                if OPT.get("wtouch"): w_touch()
            if c == 1:
                signal(g, S_DBG, C_START*4, 96, sT1, 0, 32)
                if OPT.get('all_early'): signal(g, S_DBG, 32*4, 96, sT1)
            if c == 2:
                g(f"s_lshl_b32 s{sT1}, s{sCNT}, 10")
                g.vmem(f"buffer_load_dwordx4 v[12:15], v{V_L16}, s[88:91], s{sT1} offen", 'lnx')
            if c == 4 and not OPT.get('noln'):
                g(f"s_mov_b32 s{sKO}, {C_START*4}"); poll_issue(g, 2, S_DBG, sKO, 'pl0', sT1)
            if c == 5 and not OPT.get('noln'): ln1_loads()
            if c == 8 and OPT.get('hlds') and not OPT.get('noln'): ln1_from_lds()
            if c == HSIG and not OPT.get('noln'):
                cnt_off(g, sT3, C_H, sI); signal(g, S_WS, ('s', sT3), 1, sT1)
            if c == 11 and not OPT.get('noln'):
                cnt_off(g, sKO, C_H, sI); poll_issue(g, 2, S_WS, sKO, 'plh', sT1)
            if c == 12 and not OPT.get('noln') and OPT.get('th'):
                g(f"s_lshl_b32 s{sT1}, s{sT16}, 14", f"s_and_b32 s{sT2}, s{sHEAD}, 3", f"s_lshl_b32 s{sT2}, s{sT2}, 13", f"s_add_u32 s{sT1}, s{sT1}, s{sT2}",
                  f"s_add_u32 s{sT1}, s{sT1}, {hex(WS_H)}", "v_lshlrev_b32 v1, 7, v0")
                g.vmem(f"buffer_load_dword v2, v1, s[{S_WS}:{S_WS+3}], s{sT1} offen sc1", 'th')
            if c == KVSIG:
                cnt_off(g, sT3, C_KV, sHKV); signal(g, S_WS, ('s', sT3), 1, sT1)
            if c == KVCHK - 1:
                cnt_off(g, sM0K, C_KV, sHEAD); poll_issue(g, 2, S_WS, sM0K, 'plk', sT1)
            if c == KVCHK:
                emit(g, unit_sc1(0)); emit(g, unit_sc1(1))
                if KVCHK == 22: emit(g, unit_sc1(2))
            if c == KVCHK + 1 and KVCHK < 22: emit(g, unit_sc1(2))
            d = (SLOT[c + 1] - SLOT[c]) * 16384
            for cb in range(4): g(f"v_add_u32 v{V_TR+cb}, {hex(d & 0xffffffff)}, v{V_TR+cb}")
        extra = False
        if ks < 16:
            if ks % 2 == 1 and (ks + 1) // 2 <= 7:
                p = (ks + 1) // 2
                g.wait_vm(('P', p)); g(stage_reads(p)); extra = True
            if ks % 2 == 0 and ks >= 2 and ks // 2 + 3 <= 7: emit(g, stage(ks // 2 + 3))
        if 64 <= ks < 80 and not OPT.get('nohl'): g.wait_vm(('H', s))
        nxt = ks + 2
        reads = tr_reads(nxt, nxt & 3, second) if nxt < NKS else []
        buf = V_ACC + (j & 1) * 32
        sv = OPT.get('stv', 0)
        if not OPT.get('noln'):
            if ks == (18 if sv == 0 else 17): g.wait_vm('lnx'); fq += ln1_stats_items()
            if ks == 28: assert not fq; g.wait_vm('lnm'); fq += ln1_mod_items()
            if ks == 31:
                assert not fq
                if OPT.get('hlds'): ln1_to_lds()
                else: ln1_store()
        if sv == 0:
            if j == 1: take = s in (1, 3, 5, 7)
            elif j == 4 and KVCHK == 20: take = s >= 1
            else: take = s % 4 == 1
        else:
            if j == 1: take = s in (0, 3, 4, 7)
            elif j == 3 and sv == 2: take = s in (0, 1, 2, 3)
            elif j == 3 and sv == 3: take = s in (0, 1, 3, 4)
            else: take = s % 4 == 3
        if OPT.get('nospread'): take = s >= 1 if j != 1 else take
        epi = pend.pop(0) if (pend and take) else None
        fb = ks % 3
        wfirst = j < 2 or j >= 4
        for m in range(8):
            cb, t = m >> 1, m & 1
            d = buf + (t * 4 + cb) * 4
            wf = f"v[{V_FR + fb*16 + cb*4}:{V_FR + fb*16 + cb*4 + 3}]"
            cf = f"a[{(s*2+t)*4}:{(s*2+t)*4+3}]"
            cin = "0" if s == 0 else f"v[{d}:{d+3}]"
            g(f"v_mfma_f32_16x16x32_bf16 v[{d}:{d+3}], {wf}, {cf}, {cin}" if wfirst else f"v_mfma_f32_16x16x32_bf16 v[{d}:{d+3}], {cf}, {wf}, {cin}")
            if m == 3 and extra: g("s_waitcnt lgkmcnt(3)")
            if m == 7 and reads: g("s_waitcnt lgkmcnt(7)")
            if reads: g(reads[m])
            elif m == 7 and ks + 1 < NKS: g("s_waitcnt lgkmcnt(0)")
            if epi and 1 <= m <= 4: g(epi[0][m-1])
            if epi and m == 5 and not OPT.get('nost'):
                g.stamp(f"st{ks}a"); emit(g, epi[1]); g.stamp(f"st{ks}b")
            if m == 2 and dq:
                g.stamp(f"dm{ks}a"); emit(g, dq.pop(0)); g.stamp(f"dm{ks}b")
            for _ in range(2 if not epi else 1):
                if fq: g(fq.pop(0))
        g.stamp(f"ke{ks}")
        for sh in HSCHED.get(ks, []):
            if not OPT.get('nohl'): emit(g, hload(sh))
        if s == 15:
            if j < 4: pend = epilogue(j)
            g.stamp(f"sub{j}_done")
    if OPT.get('fprio'): g("s_setprio 0")
    if OPT.get('endq'):
        g("s_waitcnt vmcnt(0)", "s_endpgm")
    g("s_nop 7")
    for qs in range(2):
        for s in range(4):
            j, u = s >> 1, s & 1
            a = V_ACC + j*32 + (qs*4 + 2*u)*4; b = a + 4
            for k, (x, y) in enumerate(((a, a+1), (a+2, a+3), (b, b+1), (b+2, b+3))): g(f"v_cvt_pk_bf16_f32 v{16+k}, v{x}, v{y}")
            for k in range(4): g(f"v_accvgpr_write_b32 a{A_Q+(qs*4+s)*4+k}, v{16+k}")
    p_att.attention_body(g, unit_sc1, sc1=True, fused=fused)

def unit_sc1(u):
    its = uniform_unit(u)
    return [((x[0].replace(" lds", " sc1 lds"), x[1]) if isinstance(x, tuple) else x) for x in its]

tRB, tCB, tAO, tWO, tM0W, tR, tU, tX, tY, tZ, tRB4, tCB4, tT16 = 23, 24, 25, 26, 27, 28, 29, 30, 31, 32, 33, 34, 35
WS_ST = WS_STAT + 0x100000 * 0 + 0x40000
TAG = 0x3f800000
A_ACC, A_AF, V_WF, V_WV, RING, DEPTH = 0, 64, 16, 48, 5, 4
C_ALL = 32
C_PART = 64
C_CTX2 = 80
WS_PART = 0x1200000

def stat_slot(g, dst, t):
    g(f"s_and_b32 s{dst}, s2, 7", f"s_lshl_b32 s{dst}, s{dst}, 2", f"s_bfe_u32 s{t}, s2, 0x20003", f"s_add_u32 s{dst}, s{dst}, s{t}",
      f"s_lshl_b32 s{dst}, s{dst}, 2", f"s_and_b32 s{t}, s{sWAVE}, 3", f"s_add_u32 s{dst}, s{dst}, s{t}", f"s_lshl_b32 s{dst}, s{dst}, 4",
      f"s_lshr_b32 s{t}, s2, 5", f"s_lshl_b32 s{t}, s{t}, 1", f"s_add_u32 s{dst}, s{dst}, s{t}",
      f"s_lshr_b32 s{t}, s{sWAVE}, 2", f"s_add_u32 s{dst}, s{dst}, s{t}", f"s_lshl_b32 s{dst}, s{dst}, 8", f"s_add_u32 s{dst}, s{dst}, {hex(WS_ST)}")

def spin(g, vdst, srd, soff, target, t1, t2, sleep=None):
    ok, loop = g.newlabel("sok"), g.newlabel("sloop")
    sleep = OPT.get('sleep', 4) if sleep is None else min(sleep, OPT.get('sleep', 4))
    g(f"s_cmp_lg_u32 s{sWAVE}, 0", f"s_cbranch_scc1 {ok}", f"s_mov_b32 s{t2}, 0x40000")
    g.label(loop)
    g(f"buffer_load_dword v{vdst}, off, s[{srd}:{srd+3}], s{soff} sc1", "s_waitcnt vmcnt(0)")
    g(f"v_readfirstlane_b32 s{t1}, v{vdst}", "s_nop 3", f"s_cmp_ge_u32 s{t1}, {target}", f"s_cbranch_scc1 {ok}")
    g(f"s_sleep {sleep}", f"s_sub_u32 s{t2}, s{t2}, 1", f"s_cmp_lg_u32 s{t2}, 0", f"s_cbranch_scc1 {loop}")
    g.label(ok)

def wsplit_setup(g, nks, a_off, a_nks, wname):
    g(f"s_load_dwordx2 s[{S_A}:{S_A+1}], s[0:1], {KA[wname]}")
    setup_dma128(g, 1024, nat=False, v0=V_WV, v1=V_WV+1); setup_tr128(g, nat=False)
    for p in range(1, 4): g(f"v_add_u32 v{V_WV+p}, {p*7168}, v{V_WV}")
    g(f"s_mul_i32 s{tM0W}, s{sWAVE}, {RING*4096}")
    for c in range(4): g(f"v_add_u32 v{V_TR+c}, s{tM0W}, v{V_TR+c}")
    g(f"s_mul_i32 s{tAO}, s{tRB}, {4*a_nks*1024}", f"s_mul_i32 s{tX}, s{sWAVE}, {nks*1024}", f"s_add_u32 s{tAO}, s{tAO}, s{tX}", f"s_add_u32 s{tAO}, s{tAO}, {hex(a_off)}")
    g(f"s_mul_i32 s{tWO}, s{sWAVE}, {nks*32*1024}", f"s_lshl_b32 s{tX}, s{tCB}, 7", f"s_add_u32 s{tWO}, s{tWO}, s{tX}")
    g("s_waitcnt lgkmcnt(0)"); finish_srd(g, S_A, wname)
def ws_wdma(j):
    out = [f"s_add_u32 m0, s{tM0W}, {(j % RING)*4096}", f"s_add_u32 s{tX}, s{tWO}, {j*32*1024}"]
    for p in range(4): out.append((f"buffer_load_dwordx4 v{V_WV+p}, s[{S_A}:{S_A+3}], s{tX} offen offset:{p*1024} lds", ('tW', j)))
    return out
def ws_aload(j, a_nks):
    out = []
    for r in range(4):
        b = A_AF + (j % DEPTH)*16 + r*4
        out += [f"s_add_u32 s{tY}, s{tAO}, {(r*a_nks + j)*1024}", (f"buffer_load_dwordx4 a[{b}:{b+3}], v{V_L16}, s[{S_WS}:{S_WS+3}], s{tY} offen sc1", ('tA', j))]
    return out
def ws_reads(j):
    fb = V_WF + (j & 1)*16
    out = []
    for c in range(4):
        out.append(f"ds_read_b64_tr_b16 v[{fb+4*c}:{fb+4*c+1}], v{V_TR+c} offset:{(j % RING)*4096}")
        out.append(f"ds_read_b64_tr_b16 v[{fb+4*c+2}:{fb+4*c+3}], v{V_TR+c} offset:{(j % RING)*4096+2048}")
    return out
def wsplit_main(g, nks, a_nks, tag, a_off=None):
    for j in range(min(DEPTH, nks)): emit(g, ws_aload(j, a_nks))
    if OPT.get('tact'):
        per = 2 if nks == 16 else 1
        if per == 2:
            g("v_lshrrev_b32 v1, 4, v0", f"v_mul_u32_u24 v1, {a_nks*1024}, v1", "v_bfe_u32 v10, v0, 3, 1", "v_lshl_add_u32 v1, v10, 10, v1", "v_and_b32 v10, 7, v0", "v_lshl_add_u32 v1, v10, 7, v1")
            g(f"s_lshl_b32 s{tX}, s{tCB}, 11", f"s_add_u32 s{tX}, s{tX}, s{tAO}")
        else:
            g("v_lshrrev_b32 v1, 3, v0", f"v_mul_u32_u24 v1, {a_nks*1024}, v1", "v_and_b32 v10, 7, v0", "v_lshl_add_u32 v1, v10, 7, v1",
              f"v_mov_b32 v10, {hex(OOB)}", "v_cmp_gt_u32 vcc, 32, v0", "s_nop 1", "v_cndmask_b32 v1, v10, v1, vcc")
            g(f"s_lshl_b32 s{tX}, s{tCB}, 10", f"s_add_u32 s{tX}, s{tX}, s{tAO}", f"s_cmp_lt_u32 s{tCB}, 7", f"s_cselect_b32 s{tX}, s{tX}, s{sOOB}")
        g.vmem(f"buffer_load_dword v2, v1, s[{S_WS}:{S_WS+3}], s{tX} offen sc1", 'tch')
    g.wait_vm(('tW', 0)); g(ws_reads(0))
    g.stamp(tag + "_first")
    for j in range(nks):
        rd = []
        if j + 1 < nks:
            g.wait_vm(('tW', j + 1)); rd = ws_reads(j + 1)
        g("s_waitcnt lgkmcnt(0)")
        g.wait_vm(('tA', j))
        fb = V_WF + (j & 1)*16
        for m in range(16):
            c, r = m >> 2, m & 3
            d = A_ACC + (c*4 + r)*4; b = A_AF + (j % DEPTH)*16 + r*4
            cin = "0" if j == 0 else f"a[{d}:{d+3}]"
            g(f"v_mfma_f32_16x16x32_bf16 a[{d}:{d+3}], v[{fb+4*c}:{fb+4*c+3}], a[{b}:{b+3}], {cin}")
            if rd and m < 8: g(rd[m])
            if m == 8 and j + DEPTH < nks: emit(g, ws_wdma(j + DEPTH))
        if j + DEPTH < nks: emit(g, ws_aload(j + DEPTH, a_nks))
    g.stamp(tag + "_loop")
    g("s_nop 7", "s_barrier")
    g(f"s_lshl_b32 s{tX}, s{sWAVE}, 14", f"v_add_u32 v10, s{tX}, v{V_L16}")
    for q in range(16): g(f"ds_write_b128 v10, a[{A_ACC+4*q}:{A_ACC+4*q+3}] offset:{q*1024}")
    g(f"s_lshl_b32 s{tX}, s{tU}, 3", f"s_add_u32 s{tX}, s{tX}, s{tR}", f"s_lshl_b32 s{tX}, s{tX}, 10", f"v_add_u32 v10, s{tX}, v{V_L16}", "v_add_u32 v11, 0x10000, v10",
      "s_waitcnt lgkmcnt(0)", "s_barrier")
    for p in range(8):
        a = 10 if p < 4 else 11
        for c in range(2):
            if p == 7 and c == 1: g("s_waitcnt lgkmcnt(8)")
            g(f"ds_read_b128 v[{64+(p*2+c)*4}:{64+(p*2+c)*4+3}], v{a} offset:{(p%4)*16384 + c*4096}")
    g("s_waitcnt lgkmcnt(0)")
    for st in (32, 16, 8):
        for k in range(st): g(f"v_add_f32 v{64+k}, v{64+k}, v{64+k+st}")
    g.stamp(tag + "_red")

def tail(g):
    g("v_mbcnt_lo_u32_b32 v0, -1, 0", "v_mbcnt_hi_u32_b32 v0, -1, v0", f"v_lshlrev_b32 v{V_L16}, 4, v0")
    g(f"s_and_b32 s{tRB}, s2, 7", f"s_lshl_b32 s{tRB}, s{tRB}, 2", f"s_bfe_u32 s{tX}, s2, 0x20003", f"s_add_u32 s{tRB}, s{tRB}, s{tX}", f"s_lshr_b32 s{tCB}, s2, 5")
    g(f"s_and_b32 s{tR}, s{sWAVE}, 3", f"s_lshr_b32 s{tU}, s{sWAVE}, 2")
    if OPT.get('tprio'):
        lp = g.newlabel("tp")
        g(f"s_cmp_lt_u32 s{sWAVE}, 4", f"s_cbranch_scc1 {lp}", "s_setprio 1"); g.label(lp)
    kKQ, kRB, kCB, kWR, kWC, kAO, kWO, kM0, kO = 36, 37, 38, 39, 40, 41, 42, 43, 44
    NS3 = 5
    g(f"s_bfe_u32 s{kKQ}, s2, 0x20001", f"s_and_b32 s{kRB}, s2, 1", f"s_lshl_b32 s{kRB}, s{kRB}, 3", f"s_bfe_u32 s{tX}, s2, 0x30003", f"s_add_u32 s{kRB}, s{kRB}, s{tX}", f"s_lshr_b32 s{kCB}, s2, 6")
    g(f"s_and_b32 s{kWR}, s{sWAVE}, 3", f"s_lshr_b32 s{kWC}, s{sWAVE}, 2")
    g(f"s_load_dwordx2 s[{S_A}:{S_A+1}], s[0:1], {KA['wo']}", f"s_load_dwordx2 s[{S_B}:{S_B+1}], s[0:1], {KA['x']}")
    g("v_lshrrev_b32 v14, 4, v0", "v_lshlrev_b32 v3, 10, v14", "v_bfe_u32 v15, v0, 1, 3", "v_xor_b32 v15, v15, v14", "v_and_b32 v10, 1, v0", "v_lshlrev_b32 v10, 4, v10",
      "v_add_u32 v3, v3, v10", "v_xor_b32 v11, 4, v15", "v_lshl_add_u32 v4, v11, 5, v3", "v_lshl_add_u32 v3, v15, 5, v3", f"v_add_u32 v4, {4*1024 - 1024}, v4")
    g("v_lshrrev_b32 v14, 4, v0", "v_bfe_u32 v15, v0, 2, 2", "v_lshl_add_u32 v14, v14, 2, v15", "v_lshlrev_b32 v6, 8, v14", "v_and_b32 v14, 7, v14", "v_lshl_add_u32 v6, v14, 5, v6",
      "v_and_b32 v15, 3, v0", "v_lshl_add_u32 v6, v15, 3, v6", f"s_lshl_b32 s{tX}, s{kWC}, 7", f"v_xor_b32 v6, s{tX}, v6", "v_add_u32 v6, 16384, v6")
    for c in range(1, 4): g(f"v_xor_b32 v{6+c}, {c << 5}, v6")
    g(f"s_lshl_b32 s{tX}, s{kWR}, 12", f"v_add_u32 v10, s{tX}, v{V_L16}")
    g(f"s_lshl_b32 s{kAO}, s{kRB}, 3", f"s_add_u32 s{kAO}, s{kAO}, s{sWAVE}", f"s_lshl_b32 s{kAO}, s{kAO}, 17", f"s_lshl_b32 s{tX}, s{kKQ}, 15", f"s_add_u32 s{kAO}, s{kAO}, s{tX}", f"s_add_u32 s{kAO}, s{kAO}, {hex(WS_CTX)}")
    g(f"s_lshl_b32 s{kWO}, s{kKQ}, 20", f"s_lshl_b32 s{tX}, s{sWAVE}, 13", f"s_add_u32 s{kWO}, s{kWO}, s{tX}", f"s_lshl_b32 s{tX}, s{kCB}, 8", f"s_add_u32 s{kWO}, s{kWO}, s{tX}")
    g(f"s_lshl_b32 s{kM0}, s{sWAVE}, 11")
    g("s_waitcnt lgkmcnt(0)"); finish_srd(g, S_A, 'wo'); finish_srd(g, S_B, 'x')
    def w3(st):
        return [f"s_add_u32 m0, s{kM0}, {(st % NS3)*32768 + 16384}", f"s_add_u32 s{tX}, s{kWO}, {st*64*1024}",
                (f"buffer_load_dwordx4 v3, s[{S_A}:{S_A+3}], s{tX} offen lds", ('3W', st)), (f"buffer_load_dwordx4 v4, s[{S_A}:{S_A+3}], s{tX} offen offset:1024 lds", ('3W', st))]
    def a3(st):
        return [f"s_add_u32 m0, s{kM0}, {(st % NS3)*32768}", f"s_add_u32 s{tX}, s{kAO}, {st*2048}",
                (f"buffer_load_dwordx4 v{V_L16}, s[{S_WS}:{S_WS+3}], s{tX} offen sc1 lds", ('3A', st)), (f"buffer_load_dwordx4 v{V_L16}, s[{S_WS}:{S_WS+3}], s{tX} offen offset:1024 sc1 lds", ('3A', st))]
    g.wait_vm('ctxst'); g("s_barrier")
    g(f"s_lshl_b32 s{tZ}, s{sI}, 2", f"s_lshr_b32 s{tY}, s{sHEAD}, 3", f"s_add_u32 s{tZ}, s{tZ}, s{tY}")
    cnt_off(g, tX, C_CTX2, tZ); signal(g, S_WS, ('s', tX), 1, tY)
    for st in range(NS3 - 1): emit(g, w3(st))
    g(f"s_mov_b32 s{tZ}, {C_ALL*4}"); spin(g, 1, S_DBG, tZ, 256, tX, tY)
    g(f"s_sub_u32 s{tY}, 15, s{kRB}", f"s_min_u32 s{tX}, s{kRB}, s{tY}", f"s_lshl_b32 s{tX}, s{tX}, 2", f"s_add_u32 s{tX}, s{tX}, s{kKQ}"); cnt_off(g, tZ, C_CTX2, tX)
    spin(g, 1, S_WS, tZ, 8, tX, tY)
    g("s_barrier")
    g.stamp("ctx_ok")
    for st in range(NS3 - 1): emit(g, a3(st))
    g(f"s_lshl_b32 s{kO}, s{kCB}, 2", f"s_add_u32 s{kO}, s{kO}, s{kKQ}")
    g("v_and_b32 v12, 7, v0", "v_bfe_u32 v13, v0, 3, 2", "v_lshrrev_b32 v14, 5, v0")
    g(f"s_lshr_b32 s{tX}, s{kO}, 1", f"s_lshl_b32 s{tY}, s{kRB}, 3", f"s_add_u32 s{tT16}, s{tX}, s{tY}", f"s_and_b32 s{tZ}, s{kO}, 1")
    g(f"s_lshl_b32 s{tX}, s{tT16}, 4", f"s_lshl_b32 s{tY}, s{tZ}, 3", f"s_add_u32 s{tX}, s{tX}, s{tY}", f"v_add_u32 v15, s{tX}, v12")
    g(f"s_lshl_b32 s{tX}, s{sWAVE}, 1", f"v_add_u32 v11, s{tX}, v14", "v_lshlrev_b32 v11, 5, v11", "v_lshl_add_u32 v11, v13, 2, v11")
    g("v_lshlrev_b32 v15, 10, v15", "v_lshl_add_u32 v15, v11, 1, v15", "v_lshlrev_b32 v11, 2, v11")
    g(f"s_lshl_b32 s{tY}, s{tZ}, 7", "v_lshlrev_b32 v12, 4, v12", "v_lshl_add_u32 v12, v13, 8, v12", f"v_add_u32 v12, s{tY}, v12")
    g("v_lshl_add_u32 v13, v14, 11, v12", "v_lshl_add_u32 v12, v14, 10, v12")
    g.vmem(f"buffer_load_dwordx2 v[120:121], v15, s[{S_B}:{S_B+3}], 0 offen", 'xr'); g.vmem(f"buffer_load_dwordx2 v[122:123], v15, s[{S_B}:{S_B+3}], 0 offen offset:32", 'xr')
    g(f"s_mov_b32 s{tX}, {hex(WS_MOD + 1024*4)}")
    for k, off in enumerate((0, 64, 2048, 2048+64, 4096, 4096+64)):
        if off >= 4096: g(f"s_mov_b32 s{tX}, {hex(WS_MOD + 2048*4)}"); off -= 4096
        g.vmem(f"buffer_load_dwordx4 v[{96+4*k}:{99+4*k}], v11, s[{S_WS}:{S_WS+3}], s{tX} offen offset:{off} sc1", 'mods')
    def r3(ks):
        kk = ks & 1; fb = 16 + (ks & 1)*24
        out = [f"ds_read_b128 v[{fb+16+4*r}:{fb+16+4*r+3}], v10 offset:{r*2048+kk*1024}" for r in range(2)]
        for c in range(4):
            out.append(f"ds_read_b64_tr_b16 v[{fb+4*c}:{fb+4*c+1}], v{6+c} offset:{kk*8192}")
            out.append(f"ds_read_b64_tr_b16 v[{fb+4*c+2}:{fb+4*c+3}], v{6+c} offset:{kk*8192+4096}")
        return out
    g.wait_vm(('3A', 0)); g("s_barrier")
    g.stamp("k3_first")
    g(r3(0))
    NST = 16
    dq3 = []
    for ks in range(2*NST):
        st, kk = ks >> 1, ks & 1
        if kk == 1 and st + 1 < NST:
            if not OPT.get('k3nodma') or st + 1 < NS3 - 1: g.wait_vm(('3A', st + 1)); g.wait_vm(('3W', st + 1))
            if not OPT.get('k3nobar'): g("s_barrier")
            if st + NS3 - 1 < NST and not OPT.get('k3nodma'): dq3 = [w3(st + NS3 - 1), a3(st + NS3 - 1)]
            d = (((st + 1) % NS3) - (st % NS3)) * 32768
            for v in (6, 7, 8, 9, 10): g(f"v_add_u32 v{v}, {hex(d & 0xffffffff)}, v{v}")
        rd = r3(ks + 1) if ks + 1 < 2*NST else []
        last = not rd
        fb = 16 + (ks & 1)*24
        for m in range(8):
            c, r = m >> 1, m & 1
            if r == 0: g(f"s_waitcnt lgkmcnt({6 if not last else 6 - 2*c - 0 if False else (6 if not last else max(0, 6 - 2*c))})")
            d = 64 + (c*2 + r)*4
            cin = "0" if ks == 0 else f"v[{d}:{d+3}]"
            g(f"v_mfma_f32_16x16x32_bf16 v[{d}:{d+3}], v[{fb+4*c}:{fb+4*c+3}], v[{fb+16+4*r}:{fb+16+4*r+3}], {cin}")
            if rd:
                g(rd.pop(0))
                if m >= 6 and rd: g(rd.pop(0))
            if m in (3, 5) and dq3: emit(g, dq3.pop(0))
    g.stamp("k3_loop")
    g("s_nop 7")
    g(f"s_lshl_b32 s{tX}, s{kKQ}, 7", f"s_lshl_b32 s{tY}, s{kRB}, 3", f"s_add_u32 s{tX}, s{tX}, s{tY}", f"s_lshl_b32 s{tY}, s{kWR}, 1", f"s_add_u32 s{tX}, s{tX}, s{tY}",
      f"s_lshl_b32 s{tX}, s{tX}, 4", f"s_lshl_b32 s{tY}, s{kCB}, 2", f"s_add_u32 s{tX}, s{tX}, s{tY}", f"s_lshl_b32 s{tY}, s{kWC}, 1", f"s_add_u32 s{tX}, s{tX}, s{tY}",
      f"s_lshl_b32 s{tX}, s{tX}, 10", f"s_add_u32 s{tX}, s{tX}, {hex(WS_PART)}")
    for r in range(2):
        for cp in range(2):
            qa, qb = 64 + ((2*cp)*2 + r)*4, 64 + ((2*cp+1)*2 + r)*4
            t = 16 + (r*2 + cp)*4
            g(f"v_cvt_pk_bf16_f32 v{t}, v{qa}, v{qa+1}", f"v_cvt_pk_bf16_f32 v{t+1}, v{qa+2}, v{qa+3}", f"v_cvt_pk_bf16_f32 v{t+2}, v{qb}, v{qb+1}", f"v_cvt_pk_bf16_f32 v{t+3}, v{qb+2}, v{qb+3}")
            g.vmem(f"buffer_store_dwordx4 v[{t}:{t+3}], v{V_L16}, s[{S_WS}:{S_WS+3}], s{tX} offen offset:{cp*1024} sc1", 'pst')
        if r == 0: g(f"s_add_u32 s{tX}, s{tX}, 16384")
    g.wait_vm('pst'); g("s_barrier")
    cnt_off(g, tX, C_PART, kRB); signal(g, S_WS, ('s', tX), 1, tY)
    cnt_off(g, tY, C_PART, kRB); g(f"s_mov_b32 s{kAO}, s{tY}"); spin(g, 1, S_WS, kAO, 16, tX, tY, sleep=2)
    g("s_barrier")
    g.stamp("part_ok")
    g(f"s_lshl_b32 s{tX}, s{tT16}, 14", f"s_lshl_b32 s{tY}, s{sWAVE}, 11", f"s_add_u32 s{tX}, s{tX}, s{tY}", f"s_add_u32 s{tX}, s{tX}, {hex(WS_PART)}")
    for q in range(4):
        g.vmem(f"buffer_load_dwordx4 v[{16+4*q}:{19+4*q}], v12, s[{S_WS}:{S_WS+3}], s{tX} offen sc1", ('pl', q))
        if q < 3: g(f"s_add_u32 s{tX}, s{tX}, {128*16384}")
    for q in range(4):
        g.wait_vm(('pl', q))
        for d in range(4):
            if q == 0: g(f"v_lshlrev_b32 v{64+2*d}, 16, v{16+d}", f"v_and_b32 v{65+2*d}, 0xffff0000, v{16+d}")
            else: g(f"v_lshlrev_b32 v72, 16, v{16+4*q+d}", f"v_and_b32 v73, 0xffff0000, v{16+4*q+d}", f"v_add_f32 v{64+2*d}, v{64+2*d}, v72", f"v_add_f32 v{65+2*d}, v{65+2*d}, v73")
    for c in range(2):
        g(f"v_lshlrev_b32 v72, 16, v{120+2*c}", f"v_and_b32 v73, 0xffff0000, v{120+2*c}", f"v_lshlrev_b32 v74, 16, v{121+2*c}", f"v_and_b32 v75, 0xffff0000, v{121+2*c}")
        for k in range(4): g(f"v_fma_f32 v{64+4*c+k}, v{64+4*c+k}, v{96+4*c+k}, v{72+k}")
    g(f"s_lshl_b32 s{tX}, s{tT16}, 15", f"s_lshl_b32 s{tY}, s{sWAVE}, 12", f"s_add_u32 s{tX}, s{tX}, s{tY}", f"s_add_u32 s{tX}, s{tX}, {hex(WS_X1)}")
    g.vmem(f"buffer_store_dwordx4 v[64:67], v13, s[{S_WS}:{S_WS+3}], s{tX} offen sc1", 'x1st'); g.vmem(f"buffer_store_dwordx4 v[68:71], v13, s[{S_WS}:{S_WS+3}], s{tX} offen offset:1024 sc1", 'x1st')
    def red8(v, t):
        g("s_nop 1", f"v_add_f32_dpp v{v}, v{v}, v{v} row_ror:8 row_mask:0xf bank_mask:0xf")
        cross_g(g, v, t, "v_add_f32")
    g("v_add_f32 v72, v64, v65", "v_add_f32 v73, v66, v67", "v_add_f32 v74, v68, v69", "v_add_f32 v75, v70, v71", "v_add_f32 v72, v72, v73", "v_add_f32 v74, v74, v75", "v_add_f32 v72, v72, v74")
    red8(72, 73)
    g("v_mul_f32 v72, 0x3c800000, v72")
    g("v_sub_f32 v74, v64, v72", "v_mul_f32 v73, v74, v74")
    for k in range(1, 8): g(f"v_sub_f32 v74, v{64+k}, v72", "v_fmac_f32 v73, v74, v74")
    red8(73, 74)
    g("v_and_b32 v74, 7, v0", "v_lshlrev_b32 v74, 6, v74", f"s_lshl_b32 s{tX}, s{sWAVE}, 3", f"v_add_u32 v75, s{tX}, v74", "ds_write_b64 v75, v[72:73]", "s_waitcnt lgkmcnt(0)", "s_barrier")
    for q in range(4): g(f"ds_read_b128 v[{76+4*q}:{79+4*q}], v74 offset:{q*16}")
    g("s_waitcnt lgkmcnt(0)")
    g("v_add_f32 v72, v76, v78", "v_add_f32 v73, v80, v82", "v_add_f32 v72, v72, v73", "v_add_f32 v73, v84, v86", "v_add_f32 v72, v72, v73", "v_add_f32 v73, v88, v90", "v_add_f32 v72, v72, v73")
    g("v_mul_f32 v72, 0.125, v72" if False else "v_mul_f32 v72, 0x3e000000, v72")
    g("v_add_f32 v73, v77, v79")
    for q in range(2, 8): g(f"v_add_f32 v73, v73, v{77+2*q}")
    for q in range(8): g(f"v_sub_f32 v74, v{76+2*q}, v72", "v_mul_f32 v75, v74, v74", "v_fmac_f32 v73, 0x42800000, v75")
    g("v_mov_b32 v74, 0x3727c5ac", "v_fmac_f32 v74, 0x3b000000, v73", "v_rsq_f32 v74, v74", "s_nop 0")
    for k in range(8): g(f"v_sub_f32 v{64+k}, v{64+k}, v72")
    for k in range(8): g(f"v_mul_f32 v{64+k}, v{64+k}, v74")
    for k in range(8): g(f"v_add_f32 v{112+k}, 1.0, v{112+k}")
    for k in range(8): g(f"v_fma_f32 v{64+k}, v{64+k}, v{112+k}, v{104+k}")
    for k in range(4): g(f"v_cvt_pk_bf16_f32 v{72+k}, v{64+2*k}, v{65+2*k}")
    g(f"s_lshl_b32 s{tX}, s{tT16}, 14", f"s_lshl_b32 s{tY}, s{sWAVE}, 11", f"s_add_u32 s{tX}, s{tX}, s{tY}", f"s_add_u32 s{tX}, s{tX}, {hex(WS_H2)}")
    g.vmem(f"buffer_store_dwordx4 v[72:75], v12, s[{S_WS}:{S_WS+3}], s{tX} offen sc1", 'h2st')
    g(f"s_lshr_b32 s{kO}, s{kRB}, 1")
    g.stamp("stats_ok")
    LK5 = g.newlabel("k5")
    g(f"s_load_dwordx2 s[{S_A}:{S_A+1}], s[0:1], {KA['wg']}", f"s_load_dwordx2 s[{S_B}:{S_B+1}], s[0:1], {KA['wu']}")
    g(f"s_and_b32 s{tRB4}, s2, 1", f"s_lshl_b32 s{tRB4}, s{tRB4}, 2", f"s_bfe_u32 s{tX}, s2, 0x20003", f"s_add_u32 s{tRB4}, s{tRB4}, s{tX}",
      f"s_bfe_u32 s{tCB4}, s2, 0x20001", f"s_mul_i32 s{tCB4}, s{tCB4}, 7", f"s_lshr_b32 s{tX}, s2, 5", f"s_add_u32 s{tCB4}, s{tCB4}, s{tX}")
    g(f"s_lshl_b32 s{tT16}, s{tRB4}, 4", f"s_lshl_b32 s{tX}, s{sWAVE}, 1", f"s_add_u32 s{tT16}, s{tT16}, s{tX}")
    setup_dma128(g, 3584, nat=False); setup_tr128(g, nat=False)
    g(f"s_mul_i32 s{sWB}, s{sWAVE}, {16*3584}", f"s_lshl_b32 s{tX}, s{tCB4}, 7", f"s_add_u32 s{sWB}, s{sWB}, s{tX}", f"s_lshl_b32 s{sM0B}, s{sWAVE}, 11")
    g("s_waitcnt lgkmcnt(0)"); finish_srd(g, S_A, 'wg'); finish_srd(g, S_B, 'wu')
    def dma4(c):
        j, q = c >> 2, c & 3
        srd = S_A if j == 0 else S_B
        return [f"s_add_u32 s{tX}, s{sWB}, {hex(q*128*3584)}", f"s_add_u32 m0, s{sM0B}, {hex(c*16384)}",
                (f"buffer_load_dwordx4 v{V_W0}, s[{srd}:{srd+3}], s{tX} offen lds", ('W', c)),
                (f"buffer_load_dwordx4 v{V_W1}, s[{srd}:{srd+3}], s{tX} offen offset:1024 lds", ('W', c))]
    g.wait_vm('h2st'); g("s_barrier")
    cnt_off(g, tX, C_H2, 44); signal(g, S_WS, ('s', tX), 1, tY)
    g("s_cmp_ge_u32 s2, 224", f"s_cbranch_scc1 {LK5}")
    for c in (0, 4, 1, 5): emit(g, dma4(c))
    for cb in range(4): g(f"v_add_u32 v{10+cb}, 0x10000, v{V_TR+cb}")
    cnt_off(g, tZ, C_H2, tRB4); spin(g, 1, S_WS, tZ, 32, tX, tY)
    g("s_barrier")
    g.stamp("h2_ok")
    g.vm = [('W', c) for c in (0, 4, 1, 5) for _ in range(2)]
    def hload4(s4):
        out = []
        for t in range(2):
            out.append(f"s_lshl_b32 s{tX}, s{tT16}, 14"); out.append(f"s_add_u32 s{tX}, s{tX}, {hex(WS_H2 + t*16384 + s4*4096)}")
            for k in range(4):
                s = s4*4 + k
                out.append((f"buffer_load_dwordx4 a[{(s*2+t)*4}:{(s*2+t)*4+3}], v{V_L16}, s[{S_WS}:{S_WS+3}], s{tX} offen offset:{k*1024} sc1", ('H', s4)))
        return out
    def rd4(ks):
        j, s_ = ks >> 4, ks & 15
        q, kk = s_ >> 2, s_ & 3
        fb = V_FR + (ks % 3)*16
        out = []
        for c in range(4):
            a_ = (V_TR if c < 2 else 10) + 2*j + (c & 1)
            off = q*16384 + kk*4096
            out.append(f"ds_read_b64_tr_b16 v[{fb+4*c}:{fb+4*c+1}], v{a_} offset:{off}")
            out.append(f"ds_read_b64_tr_b16 v[{fb+4*c+2}:{fb+4*c+3}], v{a_} offset:{off+2048}")
        return out
    def silu_items(j):
        it = []
        buf = 64 + 32*j
        T = (1, 2, 14, 15)
        for t in range(2):
            for c in range(2):
                G, U = buf + (t*4 + c)*4, buf + (t*4 + 2 + c)*4
                it += [f"v_mul_f32 v{T[k]}, s{tZ}, v{G+k}" for k in range(4)]
                it += [f"v_exp_f32 v{T[k]}, -v{T[k]}" for k in range(4)]
                it += [f"v_mul_f32 v{G+k}, v{G+k}, v{U+k}" for k in range(4)]
                it += [f"v_add_f32 v{T[k]}, 1.0, v{T[k]}" for k in range(4)]
                it += [f"v_rcp_f32 v{T[k]}, v{T[k]}" for k in range(4)] + ["s_nop 0"]
                it += [f"v_mul_f32 v{G+k}, v{G+k}, v{T[k]}" for k in range(4)]
            G0, G1 = buf + (t*4)*4, buf + (t*4 + 1)*4
            it += [f"v_cvt_pk_bf16_f32 v{G0}, v{G0}, v{G0+1}", f"v_cvt_pk_bf16_f32 v{G0+1}, v{G0+2}, v{G0+3}", f"v_cvt_pk_bf16_f32 v{G0+2}, v{G1}, v{G1+1}", f"v_cvt_pk_bf16_f32 v{G0+3}, v{G1+2}, v{G1+3}"]
            it += [('ST', t, j)]
        return it
    def act_store(t, j):
        a_ = 64 + 32*j + (t*4)*4
        g(f"s_add_u32 s{tX}, s{kAO}, {t*56*1024 + j*1024}")
        g.vmem(f"buffer_store_dwordx4 v[{a_}:{a_+3}], v{V_L16}, s[{S_WS}:{S_WS+3}], s{tX} offen sc1", 'actst')
    g(f"s_mul_i32 s{kAO}, s{tT16}, {56*1024}", f"s_lshl_b32 s{tY}, s{tCB4}, 11", f"s_add_u32 s{kAO}, s{kAO}, s{tY}", f"s_add_u32 s{kAO}, s{kAO}, {hex(WS_ACT)}")
    emit(g, hload4(0)); emit(g, hload4(1))
    g.wait_vm(('W', 4)); g("s_barrier")
    g(rd4(0)); r1 = rd4(1); g(r1[:7]); g("s_waitcnt lgkmcnt(7)"); g(r1[7])
    fq4, dq4 = [], []
    for ks in range(32):
        j, s_ = ks >> 4, ks & 15
        if ks in (2, 6, 10):
            q = ks // 4 + 1
            g.wait_vm(('W', 4 + q)); g("s_barrier")
            if q + 1 < 4: dq4 = [dma4(q + 1), dma4(4 + q + 1)]
        if ks == 0: emit(g, hload4(2))
        if ks == 2: emit(g, hload4(3))
        if ks < 16 and ks % 4 == 0: g.wait_vm(('H', ks // 4))
        if ks == 17:
            g(f"s_mov_b32 s{tZ}, {hex(LOG2E)}"); fq4 = silu_items(0)
        reads = rd4(ks + 2) if ks + 2 < 32 else []
        fb = V_FR + (ks % 3)*16
        for m in range(8):
            c, t = m >> 1, m & 1
            d = 64 + 32*j + (t*4 + c)*4
            cin = "0" if s_ == 0 else f"v[{d}:{d+3}]"
            g(f"v_mfma_f32_16x16x32_bf16 v[{d}:{d+3}], v[{fb+4*c}:{fb+4*c+3}], a[{(s_*2+t)*4}:{(s_*2+t)*4+3}], {cin}")
            if m == 7 and reads: g("s_waitcnt lgkmcnt(7)")
            if reads: g(reads[m])
            elif m == 7 and ks + 1 < 32: g("s_waitcnt lgkmcnt(0)")
            if m == 2 and dq4: emit(g, dq4.pop(0))
            for _ in range(2):
                if fq4:
                    x = fq4.pop(0)
                    if isinstance(x, tuple): act_store(x[1], x[2])
                    else: g(x)
    assert not fq4
    g.stamp("k4_loop")
    g("s_nop 7")
    for x in silu_items(1):
        if isinstance(x, tuple): act_store(x[1], x[2])
        else: g(x)
    g("s_waitcnt vmcnt(0)", "s_barrier")
    cnt_off(g, tX, C_ACT, tRB4); signal(g, S_WS, ('s', tX), 1, tY)
    g.label(LK5)
    g.vm = []
    g.stamp("k5_entry")
    wsplit_setup(g, 7, WS_ACT, 56, 'wd')
    for j in range(DEPTH): emit(g, ws_wdma(j))
    if OPT.get('twd'):
        g(f"s_and_b32 s{tX}, s{tRB}, 3", f"s_mul_i32 s{tX}, s{tX}, 7", f"s_add_u32 s{tX}, s{tX}, s{sWAVE}", f"s_lshl_b32 s{tX}, s{tX}, 16", f"s_lshl_b32 s{tY}, s{tCB}, 7",
          f"s_add_u32 s{tX}, s{tX}, s{tY}", f"s_cmp_lt_u32 s{sWAVE}, 7", f"s_cselect_b32 s{tX}, s{tX}, s{sOOB}", "v_lshlrev_b32 v1, 10, v0")
        g.vmem(f"buffer_load_dword v2, v1, s[{S_A}:{S_A+3}], s{tX} offen", 'tch')
    X1LOAD = True
    g(f"s_lshl_b32 s{tX}, s{tCB}, 6", f"s_lshl_b32 s{tY}, s{tU}, 5", f"s_add_u32 s{tX}, s{tX}, s{tY}", "v_lshrrev_b32 v15, 4, v0", "v_lshlrev_b32 v15, 2, v15", f"v_add_u32 v15, s{tX}, v15")
    g("v_lshlrev_b32 v13, 2, v15", f"s_mov_b32 s{tX}, {hex(WS_MOD + 2560*4)}")
    g.vmem(f"buffer_load_dwordx4 v[60:63], v13, s[{S_WS}:{S_WS+3}], s{tX} offen sc1", 'gb'); g.vmem(f"buffer_load_dwordx4 v[12:15], v13, s[{S_WS}:{S_WS+3}], s{tX} offen offset:64 sc1", 'gb')
    g(f"s_load_dwordx2 s[{S_B}:{S_B+1}], s[0:1], {KA['out']}")
    g(f"s_lshr_b32 s{tX}, s{tRB}, 2"); cnt_off(g, tZ, C_ACT, tX); spin(g, 1, S_WS, tZ, 28, tX, tY)
    g("s_waitcnt lgkmcnt(0)"); finish_srd(g, S_B, 'out')
    g("s_barrier")
    g.stamp("act_ok")
    g(f"s_lshl_b32 s{tX}, s{tRB}, 2", f"s_add_u32 s{tX}, s{tX}, s{tR}", f"s_lshl_b32 s{tX}, s{tX}, 4", f"s_lshl_b32 s{tY}, s{tCB}, 1", f"s_add_u32 s{tX}, s{tX}, s{tY}",
      f"s_add_u32 s{tX}, s{tX}, s{tU}", f"s_lshl_b32 s{tX}, s{tX}, 11", f"s_add_u32 s{tX}, s{tX}, {hex(WS_X1)}")
    g.vmem(f"buffer_load_dwordx4 v[52:55], v{V_L16}, s[{S_WS}:{S_WS+3}], s{tX} offen sc1", 'x1l'); g.vmem(f"buffer_load_dwordx4 v[56:59], v{V_L16}, s[{S_WS}:{S_WS+3}], s{tX} offen offset:1024 sc1", 'x1l')
    wsplit_main(g, 7, 56, "k5")
    for k in range(4): g(f"v_fma_f32 v{64+k}, v{64+k}, v{60+k}, v{52+k}")
    for k in range(4): g(f"v_fma_f32 v{68+k}, v{68+k}, v{12+k}, v{56+k}")
    for k in range(4): g(f"v_cvt_pk_bf16_f32 v{16+k}, v{64+2*k}, v{65+2*k}")
    om = OPT.get('outmode', 0)
    if om < 2:
        g(f"s_lshl_b32 s{tX}, s{tRB}, 6", f"s_lshl_b32 s{tY}, s{tR}, 4", f"s_add_u32 s{tX}, s{tX}, s{tY}", "v_and_b32 v20, 15, v0", f"v_add_u32 v20, s{tX}, v20")
        g(f"s_lshl_b32 s{tX}, s{tCB}, 6", f"s_lshl_b32 s{tY}, s{tU}, 5", f"s_add_u32 s{tX}, s{tX}, s{tY}", "v_lshrrev_b32 v21, 4, v0", "v_lshlrev_b32 v21, 2, v21", f"v_add_u32 v21, s{tX}, v21")
        g("v_lshlrev_b32 v20, 10, v20", "v_lshl_add_u32 v20, v21, 1, v20")
        g(f"buffer_store_dwordx2 v[16:17], v20, s[{S_B}:{S_B+3}], 0 offen{' sc1' if om == 1 else ''}", f"buffer_store_dwordx2 v[18:19], v20, s[{S_B}:{S_B+3}], 0 offen offset:32{' sc1' if om == 1 else ''}")
    else:
        g("s_barrier")
        g("v_and_b32 v20, 15, v0", f"s_lshl_b32 s{tX}, s{tR}, 4", f"v_add_u32 v20, s{tX}, v20", "v_mul_u32_u24 v20, 144, v20", "v_lshrrev_b32 v21, 4, v0",
          "v_lshl_add_u32 v20, v21, 3, v20", f"s_lshl_b32 s{tX}, s{tU}, 6", f"v_add_u32 v20, s{tX}, v20")
        g("ds_write_b64 v20, v[16:17]", "ds_write_b64 v20, v[18:19] offset:32", "s_waitcnt lgkmcnt(0)", "s_barrier")
        g("v_lshrrev_b32 v20, 3, v0", f"s_lshl_b32 s{tX}, s{sWAVE}, 3", f"v_add_u32 v20, s{tX}, v20", "v_and_b32 v21, 7, v0", "v_mul_u32_u24 v22, 144, v20", "v_lshl_add_u32 v22, v21, 4, v22",
          "ds_read_b128 v[24:27], v22")
        g(f"s_lshl_b32 s{tX}, s{tRB}, 6", f"v_add_u32 v20, s{tX}, v20", "v_lshlrev_b32 v20, 10, v20", "v_lshl_add_u32 v20, v21, 4, v20", f"s_lshl_b32 s{tX}, s{tCB}, 7", "s_waitcnt lgkmcnt(0)")
        g(f"buffer_store_dwordx4 v[24:27], v20, s[{S_B}:{S_B+3}], s{tX} offen{' sc1' if om == 3 else ''}")
    if Gen.STAMP:
        g("s_waitcnt vmcnt(0)"); g.stamp("end"); g.dump_stamps(sWAVE, 2)

def tail_code_touch(g):
    lsk = g.newlabel("noct2")
    g(f"s_cmp_lg_u32 s{sWAVE}, 0", f"s_cbranch_scc1 {lsk}", f"s_lshr_b32 s{sT1}, s2, 3", "v_mbcnt_lo_u32_b32 v0, -1, 0", "v_mbcnt_hi_u32_b32 v0, -1, v0")
    code_touch(g, KNAME, sT1, 2, 3, 16, 18, 56)
    g.label(lsk)

def all_signal(g):
    signal(g, S_DBG, C_ALL*4, 6, sT1)

def mega(g):
    if not OPT.get('all_early'): OPT['hook_bstart'] = all_signal
    if OPT.get('ctouch2'): OPT['hook_fin'] = tail_code_touch
    front(g, fused=True)
    tail(g)
```

```python
from core import *
import p_kv, p_att, p_mod
from p_kv import emit, V_W0, V_W1, V_L16, V_TR, V_FR, V_ACC, V_C0, V_C1, V_SR, setup_dma128, setup_tr128, tr_reads
from p_att import *
from p_mod import LOG2E, QSCALE

S_WS, S_DBG, S_A, S_B, S_C2 = 4, 8, 12, 16, 56
p_att.S_WS = S_WS
sCROW, sSTB, sSTG = 43, 54, 55
sHKV, sKB, sWBKV = 84, 87, 85
OOB = 0x7ff00000
KNAME = 'mega_kernel'
sOOB = 86
C_START, C_MOD2 = 0, 32
C_H, C_KV, C_CTX, C_H2, C_ACT = 0, 8, 40, 48, 56

SLOT = [0,1,2,3, 0,1, 2,4,5,6,7,8,9, 3, 0, 1,   2,4,5,3,6,7,8,9]
HSCHED = {52 + k: [k] for k in range(16)}
ISSUE = {1:[3, 4], 2:[5], 3:[6, 7], 4:[8, 9], 5:[10, 11], 6:[12, 13], 7:[14, 15], 8:[16], 9:[17], 10:[18], 11:[20], 12:[21], 13:[22], 14:[19], 15:[23]}

def poll_issue(g, vdst, srd, soff, tag, st):
    g(f"s_cmp_eq_u32 s{sWAVE}, 0", f"s_cselect_b32 s{st}, s{soff}, s{sOOB}")
    g.vmem(f"buffer_load_dword v{vdst}, off, s[{srd}:{srd+3}], s{st} sc1", tag)
def poll_check(g, vdst, srd, tag, soff, target, t1, t2):
    ok, loop = g.newlabel("pok"), g.newlabel("ploop")
    g.wait_vm(tag)
    g(f"s_cmp_lg_u32 s{sWAVE}, 0", f"s_cbranch_scc1 {ok}")
    g(f"v_readfirstlane_b32 s{t1}, v{vdst}", "s_nop 3", f"s_cmp_ge_u32 s{t1}, {target}")
    g(f"s_cbranch_scc1 {ok}", f"s_mov_b32 s{t2}, 0x40000")
    g.label(loop)
    g(f"s_sleep {OPT.get('psleep', 4)}", f"buffer_load_dword v{vdst}, off, s[{srd}:{srd+3}], s{soff} sc1", "s_waitcnt vmcnt(0)")
    g(f"v_readfirstlane_b32 s{t1}, v{vdst}", "s_nop 3", f"s_cmp_ge_u32 s{t1}, {target}")
    g(f"s_cbranch_scc1 {ok}", f"s_sub_u32 s{t2}, s{t2}, 1", f"s_cmp_lg_u32 s{t2}, 0", f"s_cbranch_scc1 {loop}")
    g.label(ok)
def signal(g, srd, soff, vt, st, lo=None, hi=None):
    g(f"s_cmp_eq_u32 s{sWAVE}, 0", f"s_cselect_b32 s{st}, {('s%d' % soff[1]) if isinstance(soff, tuple) else soff}, s{sOOB}")
    if lo is not None:
        g(f"s_cmp_ge_u32 s3, {lo}", f"s_cselect_b32 s{st}, s{st}, s{sOOB}", f"s_cmp_lt_u32 s3, {hi}", f"s_cselect_b32 s{st}, s{st}, s{sOOB}")
    g(f"v_mov_b32 v{vt}, 1", "s_mov_b64 exec, 1")
    g.vmem(f"buffer_atomic_add v{vt}, off, s[{srd}:{srd+3}], s{st} sc1", 'sig')
    g("s_mov_b64 exec, -1")
def cnt_off(g, dst, base, idx_s):
    g(f"s_lshl_b32 s{dst}, s{idx_s}, 7", f"s_add_u32 s{dst}, s{dst}, {hex(WS_CNT + base*128)}")

def code_touch(g, kname, seg_s, nseg_bits, first_seg, vt, vdst, st):
    lab = g.newlabel("pc")
    g(f"s_getpc_b64 s[{st}:{st+1}]")
    g.label(lab)
    g(f"s_sub_u32 s{st}, s{st}, {lab}-{kname}", f"s_subb_u32 s{st+1}, s{st+1}, 0")
    g(f"s_and_b32 s{st+2}, s{seg_s}, {(1 << nseg_bits) - 1}", f"s_add_u32 s{st+2}, s{st+2}, {first_seg}", f"s_lshl_b32 s{st+2}, s{st+2}, 13")
    g(f"v_lshlrev_b32 v{vt}, 7, v0", f"v_add_u32 v{vt}, s{st+2}, v{vt}", f"v_min_u32 v{vt}, L_end_{kname}-{kname}, v{vt}")
    g(f"v_mov_b32 v{vt+1}, s{st+1}", f"v_add_co_u32 v{vt}, vcc, s{st}, v{vt}", "s_nop 1", f"v_addc_co_u32 v{vt+1}, vcc, 0, v{vt+1}, vcc")
    g(f"global_load_dword v{vdst}, v[{vt}:{vt+1}], off")

def front(g, fused=False):
    g(f"s_load_dwordx2 s[4:5], s[0:1], {KA['ws']}", f"s_load_dwordx2 s[8:9], s[0:1], {KA['dbg']}",
      f"s_load_dwordx2 s[12:13], s[0:1], {KA['ckv']}", f"s_load_dwordx2 s[16:17], s[0:1], {KA['wuk']}",
      f"s_load_dwordx2 s[56:57], s[0:1], {KA['wuv']}", f"s_load_dwordx2 s[88:89], s[0:1], {KA['x']}",
      f"s_load_dwordx2 s[92:93], s[0:1], {KA['wmod']}", f"s_load_dwordx2 s[96:97], s[0:1], {KA['c']}")
    g.stamp("entry")
    g(f"s_sub_u32 s3, s2, {OPT.get('modbase', 64)}", "s_min_u32 s3, s3, 96")
    g("v_lshrrev_b32 v14, 6, v0", "v_and_b32 v0, 63, v0", "s_nop 0", f"v_readfirstlane_b32 s{sWAVE}, v14")
    g(f"s_and_b32 s{sHEAD}, s2, 7", f"s_lshl_b32 s{sHEAD}, s{sHEAD}, 2", f"s_bfe_u32 s{sT1}, s2, 0x20003", f"s_add_u32 s{sHEAD}, s{sHEAD}, s{sT1}")
    g(f"s_lshr_b32 s{sI}, s2, 5", f"s_lshr_b32 s{sISA}, s{sWAVE}, 2")
    g(f"s_sub_u32 s{sT1}, 7, s{sWAVE}", f"s_sub_u32 s{sT2}, 15, s{sI}", f"s_cmp_eq_u32 s{sISA}, 0",
      f"s_cselect_b32 s{sSUB}, s{sWAVE}, s{sT1}", f"s_cselect_b32 s{sT3}, s{sT2}, s{sI}")
    g(f"s_lshl_b32 s{sT16}, s{sT3}, 3", f"s_lshl_b32 s{sT1}, s{sSUB}, 1", f"s_add_u32 s{sT16}, s{sT16}, s{sT1}")
    g(f"s_lshl_b32 s{sNB2}, s{sT2}, 1", f"s_lshl_b32 s{sNA2}, s{sI}, 1", f"s_lshl_b32 s{sNBo}, s{sT2}, 15", f"s_lshl_b32 s{sNAo}, s{sI}, 15")
    g(f"s_and_b32 s{sA4}, s{sWAVE}, 3", f"s_lshl_b32 s{sA4}, s{sA4}, 12")
    g(f"s_mul_i32 s{sT1}, s{sHEAD}, {HST}", f"s_add_u32 s{sT1}, s{sT1}, s{sA4}",
      f"s_add_u32 s{sKF}, s{sT1}, {hex(WS_KF)}", f"s_add_u32 s{sVF}, s{sT1}, {hex(WS_VF)}")
    g(f"s_and_b32 s{sKB}, s2, 1", f"s_lshl_b32 s{sKB}, s{sKB}, 2", f"s_bfe_u32 s{sT1}, s2, 0x20003", f"s_add_u32 s{sKB}, s{sKB}, s{sT1}")
    g(f"s_bfe_u32 s{sHKV}, s2, 0x20001", f"s_lshl_b32 s{sHKV}, s{sHKV}, 3", f"s_lshr_b32 s{sT1}, s2, 5", f"s_xor_b32 s{sT1}, s{sT1}, {OPT.get('hx', 0)}", f"s_add_u32 s{sHKV}, s{sHKV}, s{sT1}")
    g("v_lshrrev_b32 v14, 3, v0", "v_lshlrev_b32 v1, 10, v14", "v_lshrrev_b32 v14, 4, v0", "v_and_b32 v15, 7, v0", "v_xor_b32 v14, v14, v15",
      "v_xor_b32 v15, 4, v14", "v_lshl_add_u32 v2, v15, 4, v1", "v_lshl_add_u32 v1, v14, 4, v1", f"v_add_u32 v2, {8*1024-1024}, v2")
    setup_dma128(g, 8192); setup_tr128(g)
    g(f"s_mul_i32 s{sSTG}, s{sWAVE}, 12288", f"s_add_u32 s{sSTG}, s{sSTG}, {4*16384}",
      "v_and_b32 v14, 15, v0", "v_lshlrev_b32 v10, 7, v14", "v_lshrrev_b32 v14, 1, v14", "v_lshrrev_b32 v15, 4, v0", "v_xor_b32 v14, v14, v15",
      "v_lshl_add_u32 v10, v14, 4, v10", f"v_add_u32 v10, s{sSTG}, v10", "v_xor_b32 v11, 64, v10")
    g(f"v_lshlrev_b32 v{V_L16}, 4, v0")
    g(f"s_lshl_b32 s{sT1}, s{sKB}, 8", f"s_lshl_b32 s{sCROW}, s{sWAVE}, 5", f"s_add_u32 s{sCROW}, s{sT1}, s{sCROW}", f"s_lshl_b32 s{sCROW}, s{sCROW}, 10")
    g(f"s_lshl_b32 s{sWB}, s{sWAVE}, 17", f"s_lshl_b32 s{sT1}, s{sHEAD}, 8", f"s_add_u32 s{sWB}, s{sWB}, s{sT1}", f"s_lshl_b32 s{sM0B}, s{sWAVE}, 11")
    g(f"s_lshl_b32 s{sWBKV}, s{sWAVE}, 17", f"s_lshl_b32 s{sT1}, s{sHKV}, 8", f"s_add_u32 s{sWBKV}, s{sWBKV}, s{sT1}")
    g(f"s_mul_i32 s{sSTB}, s{sHKV}, {HST}", f"s_lshl_b32 s{sT1}, s{sKB}, 3", f"s_add_u32 s{sT1}, s{sT1}, s{sWAVE}", f"s_lshl_b32 s{sT1}, s{sT1}, 13", f"s_add_u32 s{sSTB}, s{sSTB}, s{sT1}")
    g("v_lshrrev_b32 v14, 4, v0", "v_lshlrev_b32 v14, 2, v14", "v_and_b32 v15, 15, v0")
    for r in range(4):
        g(f"v_cmp_le_u32 s[{sMASK+2*r}:{sMASK+2*r+1}], v14, v15")
        if r < 3: g("v_add_u32 v14, 1, v14")
    g(f"s_mov_b32 s{sRESTART}, 0", f"s_mov_b32 s{sOOB}, {hex(OOB)}")
    g.stamp("pre_karg")
    g("s_waitcnt lgkmcnt(0)")
    g.stamp("karg")
    for s, n in ((S_WS, 'ws'), (S_DBG, 'dbg'), (S_A, 'ckv'), (S_B, 'wuk'), (S_C2, 'wuv'), (88, 'x'), (92, 'wmod'), (96, 'c')):
        finish_srd(g, s, n)
    def dma(c):
        if c < 16:
            j, q = c >> 2, c & 3
            srd = S_B if j < 2 else S_C2
            off = q*0x100000 + (j & 1)*128
        else:
            j, q = (c - 16) >> 2, c & 3
            srd = S_B; off = q*0x100000 + j*128
        base = sWBKV if c < 16 else sWB
        if OPT.get('bdma_hack'):
            lab = g.newlabel("nodma")
            return [f"s_cmp_lg_u32 s{sISA}, 0", f"s_cbranch_scc1 {lab}",
                    f"s_add_u32 s{sT1}, s{base}, {hex(off)}", f"s_add_u32 m0, s{sM0B}, {hex(SLOT[c]*16384)}",
                    (f"buffer_load_dwordx4 v{V_W0}, s[{srd}:{srd+3}], s{sT1} offen lds", ('W', c)),
                    (f"buffer_load_dwordx4 v{V_W1}, s[{srd}:{srd+3}], s{sT1} offen offset:1024 lds", ('W', c)),
                    f"s_add_u32 s{sT1}, s{sT1}, {4*16*8192}", f"s_add_u32 m0, m0, {4*2048}", "s_nop 0",
                    f"buffer_load_dwordx4 v{V_W0}, s[{srd}:{srd+3}], s{sT1} offen lds",
                    f"buffer_load_dwordx4 v{V_W1}, s[{srd}:{srd+3}], s{sT1} offen offset:1024 lds", lab + ":"]
        return [f"s_add_u32 s{sT1}, s{base}, {hex(off)}", f"s_add_u32 m0, s{sM0B}, {hex(SLOT[c]*16384)}",
                (f"buffer_load_dwordx4 v{V_W0}, s[{srd}:{srd+3}], s{sT1} offen lds", ('W', c)),
                (f"buffer_load_dwordx4 v{V_W1}, s[{srd}:{srd+3}], s{sT1} offen offset:1024 lds", ('W', c))]
    def stage(p):
        out = []
        for hf in range(2):
            out += [f"s_add_u32 s{sT1}, s{sCROW}, {p*128 + hf*16384}", f"s_add_u32 m0, s{sSTG}, {(p%3)*4096 + hf*2048}",
                    (f"buffer_load_dwordx4 v{V_C0}, s[{S_A}:{S_A+3}], s{sT1} offen lds", ('P', p)),
                    (f"buffer_load_dwordx4 v{V_C1}, s[{S_A}:{S_A+3}], s{sT1} offen offset:1024 lds", ('P', p))]
        return out
    def stage_reads(p):
        return [f"ds_read_b128 a[{(s*2+t)*4}:{(s*2+t)*4+3}], v{V_SR+(s&1)} offset:{(p%3)*4096 + t*2048}" for s in (2*p, 2*p+1) for t in range(2)]
    MC, MW, MT, MA = 96, 100, 116, 120
    def mod_loads(lo, hi):
        g(f"s_cmp_ge_u32 s3, {lo}", f"s_cselect_b32 s{sT2}, 0, s{sOOB}", f"s_cmp_lt_u32 s3, {hi}", f"s_cselect_b32 s{sT2}, s{sT2}, s{sOOB}")
        g(f"v_and_b32 v{MT}, 3, v0", f"v_lshrrev_b32 v{MT+1}, 2, v0", f"s_lshl_b32 s{sT1}, s{sWAVE}, 4", f"v_add_u32 v{MT+1}, s{sT1}, v{MT+1}")
        g(f"s_movk_i32 s{sT1}, 6144", f"v_mul_lo_u32 v{MT+2}, v{MT+1}, s{sT1}", f"v_lshl_add_u32 v{MT+2}, v{MT}, 4, v{MT+2}", f"s_lshl_b32 s{sT1}, s3, 6", f"v_add_u32 v{MT+2}, s{sT1}, v{MT+2}")
        g(f"v_lshlrev_b32 v{MT+3}, 1, v{MT+1}")
        for t in range(4):
            g.vmem(f"buffer_load_ushort v{MC+t}, v{MT+3}, s[96:99], s{sT2} offen offset:{t*256}", 'mc')
        for t in range(4):
            g(f"s_add_u32 s{sT1}, s{sT2}, {hex(t*128*6144)}")
            g.vmem(f"buffer_load_dwordx4 v[{MW+4*t}:{MW+3+4*t}], v{MT+2}, s[92:95], s{sT1} offen", ('mw', t))
    def mod_partial(lo, hi, lds):
        skip = g.newlabel("modp")
        g.stamp("mo_pre"); g.wait_vm(('mw', 3)); g.stamp("mo_w")
        g(f"s_cmp_ge_u32 s3, {lo}", f"s_cbranch_scc0 {skip}", f"s_cmp_lt_u32 s3, {hi}", f"s_cbranch_scc0 {skip}")
        g(f"s_mov_b32 s{sT1}, {hex(LOG2E)}")
        for t in range(4): g(f"v_lshlrev_b32 v{MC+t}, 16, v{MC+t}")
        for t in range(4): g(f"v_mul_f32 v{MT+t}, s{sT1}, v{MC+t}")
        for t in range(4): g(f"v_exp_f32 v{MT+t}, -v{MT+t}")
        g("s_nop 0")
        for t in range(4): g(f"v_add_f32 v{MT+t}, 1.0, v{MT+t}")
        for t in range(4): g(f"v_rcp_f32 v{MT+t}, v{MT+t}")
        g("s_nop 0")
        for t in range(4): g(f"v_mul_f32 v{MC+t}, v{MC+t}, v{MT+t}")
        g(f"s_mov_b32 s{sT2}, 0xffff0000")
        for t in range(4):
            for d in range(4):
                w = MW + 4*t + d
                g(f"v_lshlrev_b32 v{MT}, 16, v{w}", f"v_and_b32 v{MT+1}, s{sT2}, v{w}")
                if t == 0: g(f"v_mul_f32 v{MA+2*d}, v{MC}, v{MT}", f"v_mul_f32 v{MA+1+2*d}, v{MC}, v{MT+1}")
                else: g(f"v_fmac_f32 v{MA+2*d}, v{MC+t}, v{MT}", f"v_fmac_f32 v{MA+1+2*d}, v{MC+t}, v{MT+1}")
        for r in (8, 4):
            g("s_nop 1")
            for e in range(8): g(f"v_add_f32_dpp v{MA+e}, v{MA+e}, v{MA+e} row_ror:{r} row_mask:0xf bank_mask:0xf")
        g(f"v_lshrrev_b32 v{MT+1}, 4, v0", f"s_lshl_b32 s{sT1}, s{sWAVE}, 2", f"v_add_u32 v{MT+1}, s{sT1}, v{MT+1}", f"v_lshlrev_b32 v{MT+1}, 7, v{MT+1}",
          f"v_and_b32 v{MT}, 3, v0", f"v_lshl_add_u32 v{MT+1}, v{MT}, 5, v{MT+1}", f"v_add_u32 v{MT+1}, {lds}, v{MT+1}")
        g(f"v_and_b32 v{MT}, 15, v0", f"v_cmp_gt_u32 vcc, 4, v{MT}", "s_nop 1", "s_mov_b64 exec, vcc")
        g(f"ds_write_b128 v{MT+1}, v[{MA}:{MA+3}]", f"ds_write_b128 v{MT+1}, v[{MA+4}:{MA+7}] offset:16")
        g("s_mov_b64 exec, -1", "s_waitcnt lgkmcnt(0)")
        g.label(skip)
        g.stamp("mo_p")
    def mod_final(lo, hi, lds):
        lskip = g.newlabel("modfin")
        g(f"s_cmp_ge_u32 s3, {lo}", f"s_cselect_b32 s{sT2}, 0, s{sOOB}", f"s_cmp_lt_u32 s3, {hi}", f"s_cselect_b32 s{sT2}, s{sT2}, s{sOOB}",
          f"s_cmp_eq_u32 s{sWAVE}, 0", f"s_cselect_b32 s{sT2}, s{sT2}, s{sOOB}")
        g(f"s_cmp_lg_u32 s{sT2}, 0", f"s_cbranch_scc1 {lskip}")
        g(f"v_and_b32 v{MT}, 31, v0", f"v_lshlrev_b32 v{MT}, 2, v{MT}", f"v_lshrrev_b32 v{MT+1}, 5, v0", f"v_lshl_add_u32 v{MT}, v{MT+1}, 11, v{MT}", f"v_add_u32 v{MT}, {lds}, v{MT}")
        g("s_waitcnt lgkmcnt(0)")
        for r in range(16):
            if r == 15: g("s_waitcnt lgkmcnt(7)")
            g(f"ds_read_b32 v{MW+r}, v{MT} offset:{r*128}")
        g("s_waitcnt lgkmcnt(0)")
        for st in (8, 4, 2, 1):
            for k in range(st): g(f"v_add_f32 v{MW+k}, v{MW+k}, v{MW+k+st}")
        g(f"v_mov_b32 v{MW+1}, v{MW}", "s_nop 1", f"v_permlane32_swap_b32 v{MW}, v{MW+1}", f"v_add_f32 v{MW}, v{MW}, v{MW+1}")
        g.label(lskip)
        g(f"v_lshlrev_b32 v{MT}, 2, v0", "v_cmp_gt_u32 vcc, 32, v0", f"v_mov_b32 v{MT+1}, {hex(OOB)}", "s_nop 0", f"v_cndmask_b32 v{MT}, v{MT+1}, v{MT}, vcc")
        g(f"s_lshl_b32 s{sT1}, s3, 7", f"s_add_u32 s{sT1}, s{sT1}, {hex(WS_MOD)}", f"s_add_u32 s{sT1}, s{sT1}, s{sT2}")
        g.vmem(f"buffer_store_dword v{MW}, v{MT}, s[{S_WS}:{S_WS+3}], s{sT1} offen sc1", 'modst')
        g.stamp("mo_f")
        g(f"s_lshl_b32 s{sT1}, s3, 7", f"s_add_u32 s{sT1}, s{sT1}, {hex(WS_CNT)}", "s_cmp_lt_u32 s3, 32", f"s_cselect_b32 s{sT1}, s{sT1}, s{sOOB}",
          f"s_cmp_eq_u32 s{sWAVE}, 0", f"s_cselect_b32 s{sT1}, s{sT1}, s{sOOB}", f"v_mov_b32 v{MT+2}, 0", f"v_lshlrev_b32 v{MT+3}, 12, v0", "s_mov_b64 exec, 15")
        g.vmem(f"buffer_store_dword v{MT+2}, v{MT+3}, s[{S_WS}:{S_WS+3}], s{sT1} offen sc1", 'modst')
        g("s_mov_b64 exec, -1")
    def c_touch():
        g(f"s_lshr_b32 s{sT1}, s2, 5", f"s_mul_i32 s{sT1}, s{sT1}, 160", f"s_lshl_b32 s{sT2}, s{sWAVE}, 6", f"s_add_u32 s{sT1}, s{sT1}, s{sT2}", f"v_add_u32 v56, s{sT1}, v0")
        g(f"v_add_u32 v57, s{sT2}, v0", "v_mov_b32 v58, 0xcccd", "v_mul_u32_u24 v58, v56, v58", "v_lshrrev_b32 v58, 18, v58")
        g("v_mul_u32_u24 v59, 5, v58", "v_sub_u32 v59, v56, v59", "v_add_u32 v59, 3, v59", "v_lshlrev_b32 v59, 7, v59", "v_lshl_add_u32 v59, v58, 10, v59")
        g(f"s_lshl_b32 s{sT1}, s{sKB}, 18", f"v_add_u32 v59, s{sT1}, v59", "v_cmp_gt_u32 vcc, 160, v57", f"v_mov_b32 v58, {hex(OOB)}", "s_nop 0", "v_cndmask_b32 v59, v58, v59, vcc")
        g.vmem(f"buffer_load_dword v12, v59, s[{S_A}:{S_A+3}], 0 offen", 'tc')
    def w_touch_lin():
        g(f"s_lshl_b32 s{sT1}, s2, 2", f"s_and_b32 s{sT2}, s{sWAVE}, 3", f"s_add_u32 s{sT1}, s{sT1}, s{sT2}")
        g(f"s_and_b32 s{sT2}, s{sT1}, 511", f"s_lshl_b32 s{sT2}, s{sT2}, 13", f"s_cmp_lt_u32 s{sWAVE}, 4", f"s_cselect_b32 s{sT2}, s{sT2}, s{sOOB}")
        g("v_lshlrev_b32 v15, 7, v0", f"s_cmp_lt_u32 s{sT1}, 512", f"s_cselect_b32 s{sT3}, s{sT2}, s{sOOB}")
        g.vmem(f"buffer_load_dword v13, v15, s[{S_B}:{S_B+3}], s{sT3} offen", 'tw')
        g(f"s_cmp_lt_u32 s{sT1}, 512", f"s_cselect_b32 s{sT3}, s{sOOB}, s{sT2}")
        g.vmem(f"buffer_load_dword v14, v15, s[{S_C2}:{S_C2+3}], s{sT3} offen", 'tw')
    def w_touch():
        g(f"s_and_b32 s{sT1}, s{sKB}, 3", f"s_lshl_b32 s{sT1}, s{sT1}, 9", f"s_lshl_b32 s{sT2}, s{sWAVE}, 6", f"s_add_u32 s{sT1}, s{sT1}, s{sT2}", f"v_add_u32 v14, s{sT1}, v0")
        g("v_bfe_u32 v15, v14, 1, 9", "v_lshlrev_b32 v15, 13, v15", "v_and_b32 v14, 1, v14", "v_lshl_add_u32 v15, v14, 7, v15", f"s_lshl_b32 s{sT2}, s{sHKV}, 8", f"v_add_u32 v15, s{sT2}, v15")
        g(f"s_bitcmp1_b32 s{sKB}, 1", f"s_cselect_b32 s{sT2}, s{sOOB}, 0")
        g.vmem(f"buffer_load_dword v13, v15, s[{S_B}:{S_B+3}], s{sT2} offen", 'tw')
        g(f"s_cselect_b32 s{sT2}, 0, s{sOOB}")
        g.vmem(f"buffer_load_dword v14, v15, s[{S_C2}:{S_C2+3}], s{sT2} offen", 'tw')
    if OPT.get('fprio'):
        lp = g.newlabel("fp")
        g(f"s_cmp_eq_u32 s{sISA}, {0 if OPT['fprio'] == 1 else 1}", f"s_cbranch_scc1 {lp}", "s_setprio 1"); g.label(lp)
    if OPT.get('ctouch', 1) and not Gen.STAMP:
        lsk = g.newlabel("noct")
        g(f"s_cmp_lg_u32 s{sWAVE}, 7", f"s_cbranch_scc1 {lsk}", f"s_lshr_b32 s{sT1}, s2, 3")
        code_touch(g, KNAME, sT1, 3, 0, 16, 18, 60 if not Gen.STAMP else 96)
        g.label(lsk)
    pv = OPT.get('pro', 4)
    bar = (lambda: g("s_barrier")) if pv in (0, 2, 3, 5) else (lambda: None)
    if pv == 10: mod_loads(0, 96)
    emit(g, dma(0)); emit(g, stage(0)); g.stamp("iss0"); bar()
    if pv == 10:
        emit(g, stage(1)); emit(g, dma(1)); emit(g, stage(2)); emit(g, dma(2))
    elif pv == 3:
        emit(g, stage(1)); emit(g, dma(1)); bar(); emit(g, stage(2)); c_touch(); emit(g, dma(2)); mod_loads(0, 96)
    elif pv == 6:
        emit(g, stage(1)); emit(g, dma(1)); emit(g, stage(2)); emit(g, dma(2)); mod_loads(0, 96)
    elif pv == 7:
        emit(g, stage(1)); emit(g, dma(1)); emit(g, stage(2)); c_touch(); emit(g, dma(2)); mod_loads(0, 96)
    elif pv == 8:
        emit(g, stage(1)); mod_loads(0, 96); emit(g, dma(1)); emit(g, stage(2)); emit(g, dma(2))
    elif pv == 5:
        emit(g, stage(1)); emit(g, dma(1)); emit(g, stage(2)); bar(); emit(g, dma(2)); mod_loads(0, 96)
    else:
        if pv != 2: c_touch()
        emit(g, stage(1)); mod_loads(0, 96); g.stamp("iss1"); bar()
        emit(g, dma(1)); emit(g, stage(2)); emit(g, dma(2)); g.stamp("iss2")
    g(f"s_lshl_b32 s{sT1}, s{sHEAD}, 3", f"s_add_u32 s{sT1}, s{sT1}, s{sWAVE}", f"s_lshl_b32 s{sT2}, s{sI}, 7", f"s_add_u32 s{sT2}, s{sT2}, s{sT1}",
      f"s_sub_u32 s{sT3}, 14, s{sI}", f"s_lshl_b32 s{sT3}, s{sT3}, 7", f"s_add_u32 s{sT3}, s{sT3}, s{sT1}",
      f"s_cmp_lt_u32 s{sT1}, 128", f"s_cselect_b32 s{sCNT}, s{sT2}, s{sT3}")
    if pv == 10: mod_partial(0, 96, 3*16384)
    g.wait_vm(('P', 0)); g.stamp("p0"); g(stage_reads(0))
    g.wait_vm(('W', 0)); g("s_waitcnt lgkmcnt(0)", "s_barrier")
    g.stamp("w0_landed")
    emit(g, stage(3))
    if pv == 10: mod_final(0, 96, 3*16384)
    second = 512
    g(tr_reads(0, 0, second)); r1 = tr_reads(1, 1, second)
    g(r1[:7]); g("s_waitcnt lgkmcnt(7)"); g(r1[7])
    NKS, NCH = 96, 24
    def epilogue(j):
        buf = V_ACC + (j & 1) * 32
        A = lambda t, cb: buf + (t * 4 + cb) * 4
        groups = []
        for i in range(4):
            if j < 2:
                t, u = i >> 1, i & 1
                a, b = A(t, 2*u), A(t, 2*u+1); off = WS_KF + (t * 4 + 2*j + u) * 1024
            else:
                a, b = A(0, i), A(1, i); off = WS_VF + (4*(j-2) + i) * 1024
            grp = [f"v_cvt_pk_bf16_f32 v{a}, v{a}, v{a+1}", f"v_cvt_pk_bf16_f32 v{a+1}, v{a+2}, v{a+3}",
                   f"v_cvt_pk_bf16_f32 v{a+2}, v{b}, v{b+1}", f"v_cvt_pk_bf16_f32 v{a+3}, v{b+2}, v{b+3}"]
            st = [f"s_add_u32 s{sT1}, s{sSTB}, {hex(off)}", (f"buffer_store_dwordx4 v[{a}:{a+3}], v{V_L16}, s[{S_WS}:{S_WS+3}], s{sT1} offen{'' if OPT.get('kvplain') else ' sc1'}", ('st', j))]
            groups.append((grp, st))
        return groups
    def hload(s):
        out = []
        for t in range(2):
            out += [f"s_lshl_b32 s{sT1}, s{sT16}, 14", f"s_add_u32 s{sT1}, s{sT1}, {hex(WS_H + t*16384 + s*1024)}",
                    (f"buffer_load_dwordx4 a[{(s*2+t)*4}:{(s*2+t)*4+3}], v{V_L16}, s[{S_WS}:{S_WS+3}], s{sT1} offen sc1", ('H', s))]
        return out
    def ln1_loads():
        g(f"v_lshlrev_b32 v1, 5, v0", f"s_mov_b32 s{sT1}, {hex(WS_MOD)}")
        for k, off in enumerate((0, 16, 2048, 2064)):
            g.vmem(f"buffer_load_dwordx4 v[{72+4*k}:{75+4*k}], v1, s[{S_WS}:{S_WS+3}], s{sT1} offen offset:{off} sc1", 'lnm')
    def wsum_items(v, t):
        out = []
        for r in (8, 4, 2, 1): out += ["s_nop 1", f"v_add_f32_dpp v{v}, v{v}, v{v} row_ror:{r} row_mask:0xf bank_mask:0xf"]
        out += [f"v_mov_b32 v{t}, v{v}", "s_nop 1", f"v_permlane16_swap_b32 v{v}, v{t}", f"v_add_f32 v{v}, v{v}, v{t}"]
        out += [f"v_mov_b32 v{t}, v{v}", "s_nop 1", f"v_permlane32_swap_b32 v{v}, v{t}", f"v_add_f32 v{v}, v{v}, v{t}"]
        return out
    def ln1_stats_items():
        it = []
        for d in range(4): it += [f"v_lshlrev_b32 v{64+2*d}, 16, v{12+d}", f"v_and_b32 v{65+2*d}, 0xffff0000, v{12+d}"]
        it += ["v_add_f32 v10, v64, v65", "v_add_f32 v11, v66, v67", "v_add_f32 v10, v10, v11", "v_add_f32 v11, v68, v69", "v_add_f32 v10, v10, v11", "v_add_f32 v11, v70, v71", "v_add_f32 v10, v10, v11"]
        it += wsum_items(10, 11) + ["v_mul_f32 v10, 0x3b000000, v10"]
        it += [f"v_sub_f32 v{64+e}, v{64+e}, v10" for e in range(8)]
        it += ["v_mul_f32 v11, v64, v64"] + [f"v_fmac_f32 v11, v{64+e}, v{64+e}" for e in range(1, 8)]
        it += wsum_items(11, 10)
        it += ["v_mov_b32 v10, 0x3727c5ac", "v_fmac_f32 v10, 0x3b000000, v11", "v_rsq_f32 v10, v10", "s_nop 0", f"v_mul_f32 v10, {hex(QSCALE)}, v10"]
        it += [f"v_mul_f32 v{64+e}, v{64+e}, v10" for e in range(8)]
        return it
    def ln1_mod_items():
        it = [f"v_add_f32 v{80+e}, 1.0, v{80+e}" for e in range(8)] + [f"v_mul_f32 v{72+e}, {hex(QSCALE)}, v{72+e}" for e in range(8)]
        it += [f"v_fma_f32 v{64+e}, v{64+e}, v{80+e}, v{72+e}" for e in range(8)]
        it += [f"v_cvt_pk_bf16_f32 v{88+d}, v{64+2*d}, v{65+2*d}" for d in range(4)]
        it += ["v_lshrrev_b32 v1, 2, v0", "v_lshlrev_b32 v1, 10, v1", "v_and_b32 v2, 3, v0", "v_lshl_add_u32 v1, v2, 8, v1"]
        return it
    def ln1_to_lds():
        g(f"v_mul_u32_u24 v1, 144, v0", f"s_lshl_b32 s{sT1}, s{sWAVE}, 4", f"s_add_u32 s{sT1}, s{sT1}, {2*16384}", f"v_add_u32 v1, s{sT1}, v1", "ds_write_b128 v1, v[88:91]", "s_waitcnt lgkmcnt(0)")
    def ln1_from_lds():
        g("v_lshrrev_b32 v1, 3, v0", f"s_lshl_b32 s{sT1}, s{sWAVE}, 3", f"v_add_u32 v1, s{sT1}, v1", "v_mul_u32_u24 v1, 144, v1", "v_and_b32 v2, 7, v0", "v_lshl_add_u32 v1, v2, 4, v1",
          f"v_add_u32 v1, {2*16384}, v1", "ds_read_b128 v[12:15], v1")
        g("v_lshrrev_b32 v1, 5, v0", "v_lshlrev_b32 v1, 10, v1", "v_bfe_u32 v10, v0, 3, 2", "v_lshl_add_u32 v1, v10, 8, v1", "v_lshl_add_u32 v1, v2, 4, v1")
        g(f"s_lshr_b32 s{sT1}, s{sCNT}, 4", f"s_lshl_b32 s{sT1}, s{sT1}, 14", f"s_and_b32 s{sT2}, s{sCNT}, 8", f"s_lshl_b32 s{sT2}, s{sT2}, 4", f"s_add_u32 s{sT1}, s{sT1}, s{sT2}",
          f"s_lshl_b32 s{sT2}, s{sWAVE}, 11", f"s_add_u32 s{sT1}, s{sT1}, s{sT2}", f"s_add_u32 s{sT1}, s{sT1}, {hex(WS_H)}", "s_waitcnt lgkmcnt(0)")
        g.vmem(f"buffer_store_dwordx4 v[12:15], v1, s[{S_WS}:{S_WS+3}], s{sT1} offen sc1", 'hst')
    def ln1_store():
        g(f"s_lshr_b32 s{sT1}, s{sCNT}, 4", f"s_lshl_b32 s{sT1}, s{sT1}, 14", f"s_and_b32 s{sT2}, s{sCNT}, 15", f"s_lshl_b32 s{sT2}, s{sT2}, 4",
          f"s_add_u32 s{sT1}, s{sT1}, s{sT2}", f"s_add_u32 s{sT1}, s{sT1}, {hex(WS_H)}")
        g.vmem(f"buffer_store_dwordx4 v[88:91], v1, s[{S_WS}:{S_WS+3}], s{sT1} offen{'' if OPT.get('hplain') else ' sc1'}", 'hst')
    fq = []
    pend = []
    HSIG = 10 if OPT.get('hlds', 1) else 9
    if OPT.get('hlds', 1):
        ISSUE.pop(8); ISSUE[9] = [16]; ISSUE[10] = [17, 18]
    KVSIG, KVCHK = (17, 20) if OPT.get('nospread') or OPT.get('q_nospread') else (20, 22)
    dq = []
    for ks in range(NKS):
        c, kk = ks >> 2, ks & 3
        j = c >> 2; s = ks % 16
        if kk == 2 and c + 1 < NCH:
            if c == 0 and OPT.get('pro', 4) != 10: mod_partial(0, 96, 3*16384)
            if c == 1: g.wait_vm('modst')
            if c == 5 and not OPT.get('noln'): g.stamp("b_5p"); poll_check(g, 2, S_DBG, 'pl0', sKO, 32, sT1, sT2)
            if c == HSIG and not OPT.get('noln'): g.stamp("hst_pre"); g.wait_vm('hst'); g.stamp("hst_post")
            if c == 12 and not OPT.get('noln'): g.stamp("h_pre"); poll_check(g, 2, S_WS, 'plh', sKO, 32, sT1, sT2); g.stamp("h_chk")
            if c == KVSIG and not OPT.get('nost'): g.wait_vm(('st', 3))
            if c == KVCHK: g.stamp("kv_pre"); poll_check(g, 2, S_WS, 'plk', sM0K, 8, sT1, sT2); g.stamp("kv_chk")
            g.stamp(f"b_{c}a"); g.wait_vm(('W', c + 1)); g("s_barrier"); g.stamp(f"b_{c}")
            if c == 6:
                g(f"s_load_dwordx2 s[16:17], s[0:1], {KA['wq']}", "s_waitcnt lgkmcnt(0)"); finish_srd(g, S_B, 'wq')
            for cc in ISSUE.get(c, []): dq.append(dma(cc))
            g.stamp(f"b_{c}i")
            if c == 0 and OPT.get('pro', 4) != 10:
                mod_final(0, 96, 3*16384)
                if OPT.get("wtouch"): w_touch()
            if c == 1:
                signal(g, S_DBG, C_START*4, 96, sT1, 0, 32)
                if OPT.get('all_early'): signal(g, S_DBG, 32*4, 96, sT1)
            if c == 2:
                g(f"s_lshl_b32 s{sT1}, s{sCNT}, 10")
                g.vmem(f"buffer_load_dwordx4 v[12:15], v{V_L16}, s[88:91], s{sT1} offen", 'lnx')
            if c == 4 and not OPT.get('noln'):
                g(f"s_mov_b32 s{sKO}, {C_START*4}"); poll_issue(g, 2, S_DBG, sKO, 'pl0', sT1)
            if c == 5 and not OPT.get('noln'): ln1_loads()
            if c == 8 and OPT.get('hlds', 1) and not OPT.get('noln'): ln1_from_lds()
            if c == HSIG and not OPT.get('noln'):
                cnt_off(g, sT3, C_H, sI); signal(g, S_WS, ('s', sT3), 1, sT1)
            if c == 11 and not OPT.get('noln'):
                cnt_off(g, sKO, C_H, sI); poll_issue(g, 2, S_WS, sKO, 'plh', sT1)
            if c == 12 and not OPT.get('noln') and OPT.get('th'):
                g(f"s_lshl_b32 s{sT1}, s{sT16}, 14", f"s_and_b32 s{sT2}, s{sHEAD}, 3", f"s_lshl_b32 s{sT2}, s{sT2}, 13", f"s_add_u32 s{sT1}, s{sT1}, s{sT2}",
                  f"s_add_u32 s{sT1}, s{sT1}, {hex(WS_H)}", "v_lshlrev_b32 v1, 7, v0")
                g.vmem(f"buffer_load_dword v2, v1, s[{S_WS}:{S_WS+3}], s{sT1} offen sc1", 'th')
            if c == KVSIG:
                cnt_off(g, sT3, C_KV, sHKV); signal(g, S_WS, ('s', sT3), 1, sT1)
            if c == KVCHK - 1:
                cnt_off(g, sM0K, C_KV, sHEAD); poll_issue(g, 2, S_WS, sM0K, 'plk', sT1)
            if c == KVCHK:
                emit(g, unit_sc1(0)); emit(g, unit_sc1(1))
                if KVCHK == 22: emit(g, unit_sc1(2))
            if c == KVCHK + 1 and KVCHK < 22: emit(g, unit_sc1(2))
            d = (SLOT[c + 1] - SLOT[c]) * 16384
            for cb in range(4): g(f"v_add_u32 v{V_TR+cb}, {hex(d & 0xffffffff)}, v{V_TR+cb}")
        extra = False
        if ks < 16:
            if ks % 2 == 1 and (ks + 1) // 2 <= 7:
                p = (ks + 1) // 2
                g.wait_vm(('P', p)); g(stage_reads(p)); extra = True
            if ks % 2 == 0 and ks >= 2 and ks // 2 + 3 <= 7: emit(g, stage(ks // 2 + 3))
        if 64 <= ks < 80 and not OPT.get('nohl'): g.wait_vm(('H', s))
        nxt = ks + 2
        reads = tr_reads(nxt, nxt & 3, second) if nxt < NKS else []
        buf = V_ACC + (j & 1) * 32
        if ks == 84 and not OPT.get('qlate'):
            for qs in range(2):
                for s_ in range(2):
                    a_ = V_ACC + (qs*4 + 2*s_)*4; b_ = a_ + 4
                    fq += [f"v_cvt_pk_bf16_f32 v{12+k}, v{x}, v{y}" for k, (x, y) in enumerate(((a_, a_+1), (a_+2, a_+3), (b_, b_+1), (b_+2, b_+3)))]
                    fq += [f"v_accvgpr_write_b32 a{A_Q+(qs*4+s_)*4+k}, v{12+k}" for k in range(4)]
        sv = OPT.get('stv', 1)
        if not OPT.get('noln'):
            if ks == (18 if sv == 0 else 17): g.wait_vm('lnx'); fq += ln1_stats_items()
            if ks == 28: assert not fq; g.wait_vm('lnm'); fq += ln1_mod_items()
            if ks == 31:
                assert not fq
                if OPT.get('hlds', 1): ln1_to_lds()
                else: ln1_store()
        if sv == 0:
            if j == 1: take = s in (1, 3, 5, 7)
            elif j == 4 and KVCHK == 20: take = s >= 1
            else: take = s % 4 == 1
        else:
            if j == 1: take = s in (0, 3, 4, 7)
            elif j == 3 and sv == 2: take = s in (0, 1, 2, 3)
            elif j == 3 and sv == 3: take = s in (0, 1, 3, 4)
            else: take = s % 4 == 3
        if OPT.get('nospread'): take = s >= 1 if j != 1 else take
        epi = pend.pop(0) if (pend and take) else None
        fb = ks % 3
        wfirst = j < 2 or j >= 4
        for m in range(8):
            cb, t = m >> 1, m & 1
            d = buf + (t * 4 + cb) * 4
            wf = f"v[{V_FR + fb*16 + cb*4}:{V_FR + fb*16 + cb*4 + 3}]"
            cf = f"a[{(s*2+t)*4}:{(s*2+t)*4+3}]"
            cin = "0" if s == 0 else f"v[{d}:{d+3}]"
            g(f"v_mfma_f32_16x16x32_bf16 v[{d}:{d+3}], {wf}, {cf}, {cin}" if wfirst else f"v_mfma_f32_16x16x32_bf16 v[{d}:{d+3}], {cf}, {wf}, {cin}")
            if m == 3 and extra: g("s_waitcnt lgkmcnt(3)")
            if m == 7 and reads: g("s_waitcnt lgkmcnt(7)")
            if reads: g(reads[m])
            elif m == 7 and ks + 1 < NKS: g("s_waitcnt lgkmcnt(0)")
            if epi and 1 <= m <= 4: g(epi[0][m-1])
            if epi and m == 5 and not OPT.get('nost'):
                g.stamp(f"st{ks}a"); emit(g, epi[1]); g.stamp(f"st{ks}b")
            if m == 2 and dq:
                g.stamp(f"dm{ks}a"); emit(g, dq.pop(0)); g.stamp(f"dm{ks}b")
            for _ in range(2 if not epi else 1):
                if fq: g(fq.pop(0))
        g.stamp(f"ke{ks}")
        for sh in HSCHED.get(ks, []):
            if not OPT.get('nohl'): emit(g, hload(sh))
        if s == 15:
            if j < 4: pend = epilogue(j)
            g.stamp(f"sub{j}_done")
    if OPT.get('fprio'): g("s_setprio 0")
    if OPT.get('endq'):
        g("s_waitcnt vmcnt(0)", "s_endpgm")
    g("s_nop 7")
    assert not fq
    for qs in range(2):
        for s in range(4):
            if s < 2 and not OPT.get('qlate'): continue
            j, u = s >> 1, s & 1
            a = V_ACC + j*32 + (qs*4 + 2*u)*4; b = a + 4
            for k, (x, y) in enumerate(((a, a+1), (a+2, a+3), (b, b+1), (b+2, b+3))): g(f"v_cvt_pk_bf16_f32 v{16+k}, v{x}, v{y}")
            for k in range(4): g(f"v_accvgpr_write_b32 a{A_Q+(qs*4+s)*4+k}, v{16+k}")
    p_att.attention_body(g, unit_sc1, sc1=True, fused=fused)

def unit_sc1(u):
    its = uniform_unit(u)
    return [((x[0].replace(" lds", " sc1 lds"), x[1]) if isinstance(x, tuple) else x) for x in its]

tRB, tCB, tAO, tWO, tM0W, tR, tU, tX, tY, tZ, tRB4, tCB4, tT16 = 23, 24, 25, 26, 27, 28, 29, 30, 31, 32, 33, 34, 35
WS_ST = WS_STAT + 0x100000 * 0 + 0x40000
TAG = 0x3f800000
A_ACC, A_AF, V_WF, V_WV, RING, DEPTH = 0, 64, 16, 48, 5, 4
C_ALL = 32
C_PART = 64
C_CTX2 = 80
WS_PART = 0x1200000

def stat_slot(g, dst, t):
    g(f"s_and_b32 s{dst}, s2, 7", f"s_lshl_b32 s{dst}, s{dst}, 2", f"s_bfe_u32 s{t}, s2, 0x20003", f"s_add_u32 s{dst}, s{dst}, s{t}",
      f"s_lshl_b32 s{dst}, s{dst}, 2", f"s_and_b32 s{t}, s{sWAVE}, 3", f"s_add_u32 s{dst}, s{dst}, s{t}", f"s_lshl_b32 s{dst}, s{dst}, 4",
      f"s_lshr_b32 s{t}, s2, 5", f"s_lshl_b32 s{t}, s{t}, 1", f"s_add_u32 s{dst}, s{dst}, s{t}",
      f"s_lshr_b32 s{t}, s{sWAVE}, 2", f"s_add_u32 s{dst}, s{dst}, s{t}", f"s_lshl_b32 s{dst}, s{dst}, 8", f"s_add_u32 s{dst}, s{dst}, {hex(WS_ST)}")

def spin(g, vdst, srd, soff, target, t1, t2, sleep=None):
    ok, loop = g.newlabel("sok"), g.newlabel("sloop")
    sleep = OPT.get('sleep', 4) if sleep is None else min(sleep, OPT.get('sleep', 4))
    g(f"s_cmp_lg_u32 s{sWAVE}, 0", f"s_cbranch_scc1 {ok}", f"s_mov_b32 s{t2}, 0x40000")
    g.label(loop)
    g(f"buffer_load_dword v{vdst}, off, s[{srd}:{srd+3}], s{soff} sc1", "s_waitcnt vmcnt(0)")
    g(f"v_readfirstlane_b32 s{t1}, v{vdst}", "s_nop 3", f"s_cmp_ge_u32 s{t1}, {target}", f"s_cbranch_scc1 {ok}")
    g(f"s_sleep {sleep}", f"s_sub_u32 s{t2}, s{t2}, 1", f"s_cmp_lg_u32 s{t2}, 0", f"s_cbranch_scc1 {loop}")
    g.label(ok)

def wsplit_setup(g, nks, a_off, a_nks, wname):
    g(f"s_load_dwordx2 s[{S_A}:{S_A+1}], s[0:1], {KA[wname]}")
    setup_dma128(g, 1024, nat=False, v0=V_WV, v1=V_WV+1); setup_tr128(g, nat=False)
    for p in range(1, 4): g(f"v_add_u32 v{V_WV+p}, {p*7168}, v{V_WV}")
    g(f"s_mul_i32 s{tM0W}, s{sWAVE}, {RING*4096}")
    for c in range(4): g(f"v_add_u32 v{V_TR+c}, s{tM0W}, v{V_TR+c}")
    g(f"s_mul_i32 s{tAO}, s{tRB}, {4*a_nks*1024}", f"s_mul_i32 s{tX}, s{sWAVE}, {nks*1024}", f"s_add_u32 s{tAO}, s{tAO}, s{tX}", f"s_add_u32 s{tAO}, s{tAO}, {hex(a_off)}")
    g(f"s_mul_i32 s{tWO}, s{sWAVE}, {nks*32*1024}", f"s_lshl_b32 s{tX}, s{tCB}, 7", f"s_add_u32 s{tWO}, s{tWO}, s{tX}")
    g("s_waitcnt lgkmcnt(0)"); finish_srd(g, S_A, wname)
def ws_wdma(j):
    out = [f"s_add_u32 m0, s{tM0W}, {(j % RING)*4096}", f"s_add_u32 s{tX}, s{tWO}, {j*32*1024}"]
    for p in range(4): out.append((f"buffer_load_dwordx4 v{V_WV+p}, s[{S_A}:{S_A+3}], s{tX} offen offset:{p*1024} lds", ('tW', j)))
    return out
def ws_aload(j, a_nks):
    out = []
    for r in range(4):
        b = A_AF + (j % DEPTH)*16 + r*4
        out += [f"s_add_u32 s{tY}, s{tAO}, {(r*a_nks + j)*1024}", (f"buffer_load_dwordx4 a[{b}:{b+3}], v{V_L16}, s[{S_WS}:{S_WS+3}], s{tY} offen sc1", ('tA', j))]
    return out
def ws_reads(j):
    fb = V_WF + (j & 1)*16
    out = []
    for c in range(4):
        out.append(f"ds_read_b64_tr_b16 v[{fb+4*c}:{fb+4*c+1}], v{V_TR+c} offset:{(j % RING)*4096}")
        out.append(f"ds_read_b64_tr_b16 v[{fb+4*c+2}:{fb+4*c+3}], v{V_TR+c} offset:{(j % RING)*4096+2048}")
    return out
def wsplit_main(g, nks, a_nks, tag, a_off=None):
    for j in range(min(DEPTH, nks)): emit(g, ws_aload(j, a_nks))
    if OPT.get('tact'):
        per = 2 if nks == 16 else 1
        if per == 2:
            g("v_lshrrev_b32 v1, 4, v0", f"v_mul_u32_u24 v1, {a_nks*1024}, v1", "v_bfe_u32 v10, v0, 3, 1", "v_lshl_add_u32 v1, v10, 10, v1", "v_and_b32 v10, 7, v0", "v_lshl_add_u32 v1, v10, 7, v1")
            g(f"s_lshl_b32 s{tX}, s{tCB}, 11", f"s_add_u32 s{tX}, s{tX}, s{tAO}")
        else:
            g("v_lshrrev_b32 v1, 3, v0", f"v_mul_u32_u24 v1, {a_nks*1024}, v1", "v_and_b32 v10, 7, v0", "v_lshl_add_u32 v1, v10, 7, v1",
              f"v_mov_b32 v10, {hex(OOB)}", "v_cmp_gt_u32 vcc, 32, v0", "s_nop 1", "v_cndmask_b32 v1, v10, v1, vcc")
            g(f"s_lshl_b32 s{tX}, s{tCB}, 10", f"s_add_u32 s{tX}, s{tX}, s{tAO}", f"s_cmp_lt_u32 s{tCB}, 7", f"s_cselect_b32 s{tX}, s{tX}, s{sOOB}")
        g.vmem(f"buffer_load_dword v2, v1, s[{S_WS}:{S_WS+3}], s{tX} offen sc1", 'tch')
    g.wait_vm(('tW', 0)); g(ws_reads(0))
    g.stamp(tag + "_first")
    for j in range(nks):
        rd = []
        if j + 1 < nks:
            g.wait_vm(('tW', j + 1)); rd = ws_reads(j + 1)
        g("s_waitcnt lgkmcnt(0)")
        g.wait_vm(('tA', j))
        fb = V_WF + (j & 1)*16
        for m in range(16):
            c, r = m >> 2, m & 3
            d = A_ACC + (c*4 + r)*4; b = A_AF + (j % DEPTH)*16 + r*4
            cin = "0" if j == 0 else f"a[{d}:{d+3}]"
            g(f"v_mfma_f32_16x16x32_bf16 a[{d}:{d+3}], v[{fb+4*c}:{fb+4*c+3}], a[{b}:{b+3}], {cin}")
            if rd and m < 8: g(rd[m])
            if m == 8 and j + DEPTH < nks: emit(g, ws_wdma(j + DEPTH))
        if j + DEPTH < nks: emit(g, ws_aload(j + DEPTH, a_nks))
    g.stamp(tag + "_loop")
    g("s_nop 7", "s_barrier")
    g(f"s_lshl_b32 s{tX}, s{sWAVE}, 14", f"v_add_u32 v10, s{tX}, v{V_L16}")
    for q in range(16): g(f"ds_write_b128 v10, a[{A_ACC+4*q}:{A_ACC+4*q+3}] offset:{q*1024}")
    g(f"s_lshl_b32 s{tX}, s{tU}, 3", f"s_add_u32 s{tX}, s{tX}, s{tR}", f"s_lshl_b32 s{tX}, s{tX}, 10", f"v_add_u32 v10, s{tX}, v{V_L16}", "v_add_u32 v11, 0x10000, v10",
      "s_waitcnt lgkmcnt(0)", "s_barrier")
    for p in range(8):
        a = 10 if p < 4 else 11
        for c in range(2):
            if p == 7 and c == 1: g("s_waitcnt lgkmcnt(8)")
            g(f"ds_read_b128 v[{64+(p*2+c)*4}:{64+(p*2+c)*4+3}], v{a} offset:{(p%4)*16384 + c*4096}")
    g("s_waitcnt lgkmcnt(0)")
    for st in (32, 16, 8):
        for k in range(st): g(f"v_add_f32 v{64+k}, v{64+k}, v{64+k+st}")
    g.stamp(tag + "_red")

def tail(g):
    g("v_mbcnt_lo_u32_b32 v0, -1, 0", "v_mbcnt_hi_u32_b32 v0, -1, v0", f"v_lshlrev_b32 v{V_L16}, 4, v0")
    g(f"s_and_b32 s{tRB}, s2, 7", f"s_lshl_b32 s{tRB}, s{tRB}, 2", f"s_bfe_u32 s{tX}, s2, 0x20003", f"s_add_u32 s{tRB}, s{tRB}, s{tX}", f"s_lshr_b32 s{tCB}, s2, 5")
    g(f"s_and_b32 s{tR}, s{sWAVE}, 3", f"s_lshr_b32 s{tU}, s{sWAVE}, 2")
    if OPT.get('tprio'):
        lp = g.newlabel("tp")
        g(f"s_cmp_lt_u32 s{sWAVE}, 4", f"s_cbranch_scc1 {lp}", "s_setprio 1"); g.label(lp)
    kKQ, kRB, kCB, kWR, kWC, kAO, kWO, kM0, kO = 36, 37, 38, 39, 40, 41, 42, 43, 44
    NS3 = 5
    g(f"s_bfe_u32 s{kKQ}, s2, 0x20001", f"s_and_b32 s{kRB}, s2, 1", f"s_lshl_b32 s{kRB}, s{kRB}, 3", f"s_bfe_u32 s{tX}, s2, 0x30003", f"s_add_u32 s{kRB}, s{kRB}, s{tX}", f"s_lshr_b32 s{kCB}, s2, 6")
    g(f"s_and_b32 s{kWR}, s{sWAVE}, 3", f"s_lshr_b32 s{kWC}, s{sWAVE}, 2")
    g(f"s_load_dwordx2 s[{S_A}:{S_A+1}], s[0:1], {KA['wo']}", f"s_load_dwordx2 s[{S_B}:{S_B+1}], s[0:1], {KA['x']}")
    g("v_lshrrev_b32 v14, 4, v0", "v_lshlrev_b32 v3, 10, v14", "v_bfe_u32 v15, v0, 1, 3", "v_xor_b32 v15, v15, v14", "v_and_b32 v10, 1, v0", "v_lshlrev_b32 v10, 4, v10",
      "v_add_u32 v3, v3, v10", "v_xor_b32 v11, 4, v15", "v_lshl_add_u32 v4, v11, 5, v3", "v_lshl_add_u32 v3, v15, 5, v3", f"v_add_u32 v4, {4*1024 - 1024}, v4")
    g("v_lshrrev_b32 v14, 4, v0", "v_bfe_u32 v15, v0, 2, 2", "v_lshl_add_u32 v14, v14, 2, v15", "v_lshlrev_b32 v6, 8, v14", "v_and_b32 v14, 7, v14", "v_lshl_add_u32 v6, v14, 5, v6",
      "v_and_b32 v15, 3, v0", "v_lshl_add_u32 v6, v15, 3, v6", f"s_lshl_b32 s{tX}, s{kWC}, 7", f"v_xor_b32 v6, s{tX}, v6", "v_add_u32 v6, 16384, v6")
    for c in range(1, 4): g(f"v_xor_b32 v{6+c}, {c << 5}, v6")
    g(f"s_lshl_b32 s{tX}, s{kWR}, 12", f"v_add_u32 v10, s{tX}, v{V_L16}")
    g(f"s_lshl_b32 s{kAO}, s{kRB}, 3", f"s_add_u32 s{kAO}, s{kAO}, s{sWAVE}", f"s_lshl_b32 s{kAO}, s{kAO}, 17", f"s_lshl_b32 s{tX}, s{kKQ}, 15", f"s_add_u32 s{kAO}, s{kAO}, s{tX}", f"s_add_u32 s{kAO}, s{kAO}, {hex(WS_CTX)}")
    g(f"s_lshl_b32 s{kWO}, s{kKQ}, 20", f"s_lshl_b32 s{tX}, s{sWAVE}, 13", f"s_add_u32 s{kWO}, s{kWO}, s{tX}", f"s_lshl_b32 s{tX}, s{kCB}, 8", f"s_add_u32 s{kWO}, s{kWO}, s{tX}")
    g(f"s_lshl_b32 s{kM0}, s{sWAVE}, 11")
    g("s_waitcnt lgkmcnt(0)"); finish_srd(g, S_A, 'wo'); finish_srd(g, S_B, 'x')
    def w3(st):
        return [f"s_add_u32 m0, s{kM0}, {(st % NS3)*32768 + 16384}", f"s_add_u32 s{tX}, s{kWO}, {st*64*1024}",
                (f"buffer_load_dwordx4 v3, s[{S_A}:{S_A+3}], s{tX} offen lds", ('3W', st)), (f"buffer_load_dwordx4 v4, s[{S_A}:{S_A+3}], s{tX} offen offset:1024 lds", ('3W', st))]
    def a3(st):
        return [f"s_add_u32 m0, s{kM0}, {(st % NS3)*32768}", f"s_add_u32 s{tX}, s{kAO}, {st*2048}",
                (f"buffer_load_dwordx4 v{V_L16}, s[{S_WS}:{S_WS+3}], s{tX} offen sc1 lds", ('3A', st)), (f"buffer_load_dwordx4 v{V_L16}, s[{S_WS}:{S_WS+3}], s{tX} offen offset:1024 sc1 lds", ('3A', st))]
    g.wait_vm('ctxst'); g("s_barrier")
    g(f"s_lshl_b32 s{tZ}, s{sI}, 2", f"s_lshr_b32 s{tY}, s{sHEAD}, 3", f"s_add_u32 s{tZ}, s{tZ}, s{tY}")
    cnt_off(g, tX, C_CTX2, tZ); signal(g, S_WS, ('s', tX), 1, tY)
    g(f"s_sub_u32 s{tY}, 15, s{kRB}", f"s_min_u32 s{tX}, s{kRB}, s{tY}", f"s_lshl_b32 s{tX}, s{tX}, 2", f"s_add_u32 s{tX}, s{tX}, s{kKQ}"); cnt_off(g, tZ, C_CTX2, tX)
    g(f"s_mov_b32 s45, {C_ALL*4}")
    if not OPT.get('syncpoll'):
        poll_issue(g, 2, S_DBG, 45, 'pall', tX); poll_issue(g, 1, S_WS, tZ, 'pctx', tX)
    for st in range(NS3 - 1): emit(g, w3(st))
    if not OPT.get('syncpoll'):
        poll_check(g, 2, S_DBG, 'pall', 45, 256, tX, tY); poll_check(g, 1, S_WS, 'pctx', tZ, 8, tX, tY)
    else:
        spin(g, 1, S_DBG, 45, 256, tX, tY); spin(g, 1, S_WS, tZ, 8, tX, tY)
    g("s_barrier")
    g.stamp("ctx_ok")
    for st in range(NS3 - 1): emit(g, a3(st))
    g(f"s_lshl_b32 s{kO}, s{kCB}, 2", f"s_add_u32 s{kO}, s{kO}, s{kKQ}")
    g("v_and_b32 v12, 7, v0", "v_bfe_u32 v13, v0, 3, 2", "v_lshrrev_b32 v14, 5, v0")
    g(f"s_lshr_b32 s{tX}, s{kO}, 1", f"s_lshl_b32 s{tY}, s{kRB}, 3", f"s_add_u32 s{tT16}, s{tX}, s{tY}", f"s_and_b32 s{tZ}, s{kO}, 1")
    g(f"s_lshl_b32 s{tX}, s{tT16}, 4", f"s_lshl_b32 s{tY}, s{tZ}, 3", f"s_add_u32 s{tX}, s{tX}, s{tY}", f"v_add_u32 v15, s{tX}, v12")
    g(f"s_lshl_b32 s{tX}, s{sWAVE}, 1", f"v_add_u32 v11, s{tX}, v14", "v_lshlrev_b32 v11, 5, v11", "v_lshl_add_u32 v11, v13, 2, v11")
    g("v_lshlrev_b32 v15, 10, v15", "v_lshl_add_u32 v15, v11, 1, v15", "v_lshlrev_b32 v11, 2, v11")
    g(f"s_lshl_b32 s{tY}, s{tZ}, 7", "v_lshlrev_b32 v12, 4, v12", "v_lshl_add_u32 v12, v13, 8, v12", f"v_add_u32 v12, s{tY}, v12")
    g("v_lshl_add_u32 v13, v14, 11, v12", "v_lshl_add_u32 v12, v14, 10, v12")
    g.vmem(f"buffer_load_dwordx2 v[120:121], v15, s[{S_B}:{S_B+3}], 0 offen", 'xr'); g.vmem(f"buffer_load_dwordx2 v[122:123], v15, s[{S_B}:{S_B+3}], 0 offen offset:32", 'xr')
    g(f"s_mov_b32 s{tX}, {hex(WS_MOD + 1024*4)}")
    for k, off in enumerate((0, 64, 2048, 2048+64, 4096, 4096+64)):
        if off >= 4096: g(f"s_mov_b32 s{tX}, {hex(WS_MOD + 2048*4)}"); off -= 4096
        g.vmem(f"buffer_load_dwordx4 v[{96+4*k}:{99+4*k}], v11, s[{S_WS}:{S_WS+3}], s{tX} offen offset:{off} sc1", 'mods')
    def r3(ks):
        kk = ks & 1; fb = 16 + (ks & 1)*24
        out = [f"ds_read_b128 v[{fb+16+4*r}:{fb+16+4*r+3}], v10 offset:{r*2048+kk*1024}" for r in range(2)]
        for c in range(4):
            out.append(f"ds_read_b64_tr_b16 v[{fb+4*c}:{fb+4*c+1}], v{6+c} offset:{kk*8192}")
            out.append(f"ds_read_b64_tr_b16 v[{fb+4*c+2}:{fb+4*c+3}], v{6+c} offset:{kk*8192+4096}")
        return out
    g.wait_vm(('3A', 0)); g("s_barrier")
    g.stamp("k3_first")
    g(r3(0))
    NST = 16
    dq3 = []
    for ks in range(2*NST):
        st, kk = ks >> 1, ks & 1
        if kk == 1 and st + 1 < NST:
            if not OPT.get('k3nodma') or st + 1 < NS3 - 1: g.wait_vm(('3A', st + 1)); g.wait_vm(('3W', st + 1))
            if not OPT.get('k3nobar'): g("s_barrier")
            if st + NS3 - 1 < NST and not OPT.get('k3nodma'): dq3 = [w3(st + NS3 - 1), a3(st + NS3 - 1)]
            d = (((st + 1) % NS3) - (st % NS3)) * 32768
            for v in (6, 7, 8, 9, 10): g(f"v_add_u32 v{v}, {hex(d & 0xffffffff)}, v{v}")
        rd = r3(ks + 1) if ks + 1 < 2*NST else []
        last = not rd
        fb = 16 + (ks & 1)*24
        for m in range(8):
            c, r = m >> 1, m & 1
            if r == 0: g(f"s_waitcnt lgkmcnt({6 if not last else 6 - 2*c - 0 if False else (6 if not last else max(0, 6 - 2*c))})")
            d = 64 + (c*2 + r)*4
            cin = "0" if ks == 0 else f"v[{d}:{d+3}]"
            g(f"v_mfma_f32_16x16x32_bf16 v[{d}:{d+3}], v[{fb+4*c}:{fb+4*c+3}], v[{fb+16+4*r}:{fb+16+4*r+3}], {cin}")
            if rd:
                g(rd.pop(0))
                if m >= 6 and rd: g(rd.pop(0))
            if m in (3, 5) and dq3: emit(g, dq3.pop(0))
    g.stamp("k3_loop")
    g("s_nop 7")
    g(f"s_lshl_b32 s{tX}, s{kKQ}, 7", f"s_lshl_b32 s{tY}, s{kRB}, 3", f"s_add_u32 s{tX}, s{tX}, s{tY}", f"s_lshl_b32 s{tY}, s{kWR}, 1", f"s_add_u32 s{tX}, s{tX}, s{tY}",
      f"s_lshl_b32 s{tX}, s{tX}, 4", f"s_lshl_b32 s{tY}, s{kCB}, 2", f"s_add_u32 s{tX}, s{tX}, s{tY}", f"s_lshl_b32 s{tY}, s{kWC}, 1", f"s_add_u32 s{tX}, s{tX}, s{tY}",
      f"s_lshl_b32 s{tX}, s{tX}, 10", f"s_add_u32 s{tX}, s{tX}, {hex(WS_PART)}")
    for r in range(2):
        for cp in range(2):
            qa, qb = 64 + ((2*cp)*2 + r)*4, 64 + ((2*cp+1)*2 + r)*4
            t = 16 + (r*2 + cp)*4
            g(f"v_cvt_pk_bf16_f32 v{t}, v{qa}, v{qa+1}", f"v_cvt_pk_bf16_f32 v{t+1}, v{qa+2}, v{qa+3}", f"v_cvt_pk_bf16_f32 v{t+2}, v{qb}, v{qb+1}", f"v_cvt_pk_bf16_f32 v{t+3}, v{qb+2}, v{qb+3}")
            g.vmem(f"buffer_store_dwordx4 v[{t}:{t+3}], v{V_L16}, s[{S_WS}:{S_WS+3}], s{tX} offen offset:{cp*1024} sc1", 'pst')
        if r == 0: g(f"s_add_u32 s{tX}, s{tX}, 16384")
    g.wait_vm('pst'); g("s_barrier")
    cnt_off(g, tX, C_PART, kRB); signal(g, S_WS, ('s', tX), 1, tY)
    cnt_off(g, tY, C_PART, kRB); g(f"s_mov_b32 s{kAO}, s{tY}"); spin(g, 1, S_WS, kAO, 16, tX, tY, sleep=2)
    g("s_barrier")
    g.stamp("part_ok")
    g(f"s_lshl_b32 s{tX}, s{tT16}, 14", f"s_lshl_b32 s{tY}, s{sWAVE}, 11", f"s_add_u32 s{tX}, s{tX}, s{tY}", f"s_add_u32 s{tX}, s{tX}, {hex(WS_PART)}")
    for q in range(4):
        g.vmem(f"buffer_load_dwordx4 v[{16+4*q}:{19+4*q}], v12, s[{S_WS}:{S_WS+3}], s{tX} offen sc1", ('pl', q))
        if q < 3: g(f"s_add_u32 s{tX}, s{tX}, {128*16384}")
    for q in range(4):
        g.wait_vm(('pl', q))
        for d in range(4):
            if q == 0: g(f"v_lshlrev_b32 v{64+2*d}, 16, v{16+d}", f"v_and_b32 v{65+2*d}, 0xffff0000, v{16+d}")
            else: g(f"v_lshlrev_b32 v72, 16, v{16+4*q+d}", f"v_and_b32 v73, 0xffff0000, v{16+4*q+d}", f"v_add_f32 v{64+2*d}, v{64+2*d}, v72", f"v_add_f32 v{65+2*d}, v{65+2*d}, v73")
    for c in range(2):
        g(f"v_lshlrev_b32 v72, 16, v{120+2*c}", f"v_and_b32 v73, 0xffff0000, v{120+2*c}", f"v_lshlrev_b32 v74, 16, v{121+2*c}", f"v_and_b32 v75, 0xffff0000, v{121+2*c}")
        for k in range(4): g(f"v_fma_f32 v{64+4*c+k}, v{64+4*c+k}, v{96+4*c+k}, v{72+k}")
    g(f"s_lshl_b32 s{tX}, s{tT16}, 15", f"s_lshl_b32 s{tY}, s{sWAVE}, 12", f"s_add_u32 s{tX}, s{tX}, s{tY}", f"s_add_u32 s{tX}, s{tX}, {hex(WS_X1)}")
    g.vmem(f"buffer_store_dwordx4 v[64:67], v13, s[{S_WS}:{S_WS+3}], s{tX} offen sc1", 'x1st'); g.vmem(f"buffer_store_dwordx4 v[68:71], v13, s[{S_WS}:{S_WS+3}], s{tX} offen offset:1024 sc1", 'x1st')
    def red8(v, t):
        g("s_nop 1", f"v_add_f32_dpp v{v}, v{v}, v{v} row_ror:8 row_mask:0xf bank_mask:0xf")
        cross_g(g, v, t, "v_add_f32")
    g("v_add_f32 v72, v64, v65", "v_add_f32 v73, v66, v67", "v_add_f32 v74, v68, v69", "v_add_f32 v75, v70, v71", "v_add_f32 v72, v72, v73", "v_add_f32 v74, v74, v75", "v_add_f32 v72, v72, v74")
    red8(72, 73)
    g("v_mul_f32 v72, 0x3c800000, v72")
    g("v_sub_f32 v74, v64, v72", "v_mul_f32 v73, v74, v74")
    for k in range(1, 8): g(f"v_sub_f32 v74, v{64+k}, v72", "v_fmac_f32 v73, v74, v74")
    red8(73, 74)
    g("v_and_b32 v74, 7, v0", "v_lshlrev_b32 v74, 6, v74", f"s_lshl_b32 s{tX}, s{sWAVE}, 3", f"v_add_u32 v75, s{tX}, v74", "ds_write_b64 v75, v[72:73]", "s_waitcnt lgkmcnt(0)", "s_barrier")
    for q in range(4): g(f"ds_read_b128 v[{76+4*q}:{79+4*q}], v74 offset:{q*16}")
    g("s_waitcnt lgkmcnt(0)")
    g("v_add_f32 v72, v76, v78", "v_add_f32 v73, v80, v82", "v_add_f32 v72, v72, v73", "v_add_f32 v73, v84, v86", "v_add_f32 v72, v72, v73", "v_add_f32 v73, v88, v90", "v_add_f32 v72, v72, v73")
    g("v_mul_f32 v72, 0.125, v72" if False else "v_mul_f32 v72, 0x3e000000, v72")
    g("v_add_f32 v73, v77, v79")
    for q in range(2, 8): g(f"v_add_f32 v73, v73, v{77+2*q}")
    for q in range(8): g(f"v_sub_f32 v74, v{76+2*q}, v72", "v_mul_f32 v75, v74, v74", "v_fmac_f32 v73, 0x42800000, v75")
    g("v_mov_b32 v74, 0x3727c5ac", "v_fmac_f32 v74, 0x3b000000, v73", "v_rsq_f32 v74, v74", "s_nop 0")
    for k in range(8): g(f"v_sub_f32 v{64+k}, v{64+k}, v72")
    for k in range(8): g(f"v_mul_f32 v{64+k}, v{64+k}, v74")
    for k in range(8): g(f"v_add_f32 v{112+k}, 1.0, v{112+k}")
    for k in range(8): g(f"v_fma_f32 v{64+k}, v{64+k}, v{112+k}, v{104+k}")
    for k in range(4): g(f"v_cvt_pk_bf16_f32 v{72+k}, v{64+2*k}, v{65+2*k}")
    g(f"s_lshl_b32 s{tX}, s{tT16}, 14", f"s_lshl_b32 s{tY}, s{sWAVE}, 11", f"s_add_u32 s{tX}, s{tX}, s{tY}", f"s_add_u32 s{tX}, s{tX}, {hex(WS_H2)}")
    g.vmem(f"buffer_store_dwordx4 v[72:75], v12, s[{S_WS}:{S_WS+3}], s{tX} offen sc1", 'h2st')
    g(f"s_lshr_b32 s{kO}, s{kRB}, 1")
    g.stamp("stats_ok")
    LK5 = g.newlabel("k5")
    g(f"s_load_dwordx2 s[{S_A}:{S_A+1}], s[0:1], {KA['wg']}", f"s_load_dwordx2 s[{S_B}:{S_B+1}], s[0:1], {KA['wu']}")
    g(f"s_and_b32 s{tRB4}, s2, 1", f"s_lshl_b32 s{tRB4}, s{tRB4}, 2", f"s_bfe_u32 s{tX}, s2, 0x20003", f"s_add_u32 s{tRB4}, s{tRB4}, s{tX}",
      f"s_bfe_u32 s{tCB4}, s2, 0x20001", f"s_mul_i32 s{tCB4}, s{tCB4}, 7", f"s_lshr_b32 s{tX}, s2, 5", f"s_add_u32 s{tCB4}, s{tCB4}, s{tX}")
    g(f"s_lshl_b32 s{tT16}, s{tRB4}, 4", f"s_lshl_b32 s{tX}, s{sWAVE}, 1", f"s_add_u32 s{tT16}, s{tT16}, s{tX}")
    setup_dma128(g, 3584, nat=False); setup_tr128(g, nat=False)
    g(f"s_mul_i32 s{sWB}, s{sWAVE}, {16*3584}", f"s_lshl_b32 s{tX}, s{tCB4}, 7", f"s_add_u32 s{sWB}, s{sWB}, s{tX}", f"s_lshl_b32 s{sM0B}, s{sWAVE}, 11")
    g("s_waitcnt lgkmcnt(0)"); finish_srd(g, S_A, 'wg'); finish_srd(g, S_B, 'wu')
    def dma4(c):
        j, q = c >> 2, c & 3
        srd = S_A if j == 0 else S_B
        return [f"s_add_u32 s{tX}, s{sWB}, {hex(q*128*3584)}", f"s_add_u32 m0, s{sM0B}, {hex(c*16384)}",
                (f"buffer_load_dwordx4 v{V_W0}, s[{srd}:{srd+3}], s{tX} offen lds", ('W', c)),
                (f"buffer_load_dwordx4 v{V_W1}, s[{srd}:{srd+3}], s{tX} offen offset:1024 lds", ('W', c))]
    g.wait_vm('h2st'); g("s_barrier")
    cnt_off(g, tX, C_H2, 44); signal(g, S_WS, ('s', tX), 1, tY)
    g("s_cmp_ge_u32 s2, 224", f"s_cbranch_scc1 {LK5}")
    cnt_off(g, tZ, C_H2, tRB4)
    if not OPT.get('syncpoll'): poll_issue(g, 1, S_WS, tZ, 'ph2', tX)
    for c in (0, 4, 1, 5): emit(g, dma4(c))
    for cb in range(4): g(f"v_add_u32 v{10+cb}, 0x10000, v{V_TR+cb}")
    if not OPT.get('syncpoll'): poll_check(g, 1, S_WS, 'ph2', tZ, 32, tX, tY)
    else: spin(g, 1, S_WS, tZ, 32, tX, tY)
    g("s_barrier")
    g.stamp("h2_ok")
    g.vm = [('W', c) for c in (0, 4, 1, 5) for _ in range(2)]
    def hload4(s4):
        out = []
        for t in range(2):
            out.append(f"s_lshl_b32 s{tX}, s{tT16}, 14"); out.append(f"s_add_u32 s{tX}, s{tX}, {hex(WS_H2 + t*16384 + s4*4096)}")
            for k in range(4):
                s = s4*4 + k
                out.append((f"buffer_load_dwordx4 a[{(s*2+t)*4}:{(s*2+t)*4+3}], v{V_L16}, s[{S_WS}:{S_WS+3}], s{tX} offen offset:{k*1024} sc1", ('H', s4)))
        return out
    def rd4(ks):
        j, s_ = ks >> 4, ks & 15
        q, kk = s_ >> 2, s_ & 3
        fb = V_FR + (ks % 3)*16
        out = []
        for c in range(4):
            a_ = (V_TR if c < 2 else 10) + 2*j + (c & 1)
            off = q*16384 + kk*4096
            out.append(f"ds_read_b64_tr_b16 v[{fb+4*c}:{fb+4*c+1}], v{a_} offset:{off}")
            out.append(f"ds_read_b64_tr_b16 v[{fb+4*c+2}:{fb+4*c+3}], v{a_} offset:{off+2048}")
        return out
    def silu_items(j):
        it = []
        buf = 64 + 32*j
        T = (1, 2, 14, 15)
        for t in range(2):
            for c in range(2):
                G, U = buf + (t*4 + c)*4, buf + (t*4 + 2 + c)*4
                it += [f"v_mul_f32 v{T[k]}, s{tZ}, v{G+k}" for k in range(4)]
                it += [f"v_exp_f32 v{T[k]}, -v{T[k]}" for k in range(4)]
                it += [f"v_mul_f32 v{G+k}, v{G+k}, v{U+k}" for k in range(4)]
                it += [f"v_add_f32 v{T[k]}, 1.0, v{T[k]}" for k in range(4)]
                it += [f"v_rcp_f32 v{T[k]}, v{T[k]}" for k in range(4)] + ["s_nop 0"]
                it += [f"v_mul_f32 v{G+k}, v{G+k}, v{T[k]}" for k in range(4)]
            G0, G1 = buf + (t*4)*4, buf + (t*4 + 1)*4
            it += [f"v_cvt_pk_bf16_f32 v{G0}, v{G0}, v{G0+1}", f"v_cvt_pk_bf16_f32 v{G0+1}, v{G0+2}, v{G0+3}", f"v_cvt_pk_bf16_f32 v{G0+2}, v{G1}, v{G1+1}", f"v_cvt_pk_bf16_f32 v{G0+3}, v{G1+2}, v{G1+3}"]
            it += [('ST', t, j)]
        return it
    def act_store(t, j):
        a_ = 64 + 32*j + (t*4)*4
        g(f"s_add_u32 s{tX}, s{kAO}, {t*56*1024 + j*1024}")
        g.vmem(f"buffer_store_dwordx4 v[{a_}:{a_+3}], v{V_L16}, s[{S_WS}:{S_WS+3}], s{tX} offen sc1", 'actst')
    g(f"s_mul_i32 s{kAO}, s{tT16}, {56*1024}", f"s_lshl_b32 s{tY}, s{tCB4}, 11", f"s_add_u32 s{kAO}, s{kAO}, s{tY}", f"s_add_u32 s{kAO}, s{kAO}, {hex(WS_ACT)}")
    emit(g, hload4(0)); emit(g, hload4(1))
    g.wait_vm(('W', 4)); g("s_barrier")
    g(rd4(0)); r1 = rd4(1); g(r1[:7]); g("s_waitcnt lgkmcnt(7)"); g(r1[7])
    fq4, dq4 = [], []
    for ks in range(32):
        j, s_ = ks >> 4, ks & 15
        if ks in (2, 6, 10):
            q = ks // 4 + 1
            g.wait_vm(('W', 4 + q)); g("s_barrier")
            if q + 1 < 4: dq4 = [dma4(q + 1), dma4(4 + q + 1)]
        if ks == 0: emit(g, hload4(2))
        if ks == 2: emit(g, hload4(3))
        if ks < 16 and ks % 4 == 0: g.wait_vm(('H', ks // 4))
        if ks == 17:
            g(f"s_mov_b32 s{tZ}, {hex(LOG2E)}"); fq4 = silu_items(0)
        reads = rd4(ks + 2) if ks + 2 < 32 else []
        fb = V_FR + (ks % 3)*16
        for m in range(8):
            c, t = m >> 1, m & 1
            d = 64 + 32*j + (t*4 + c)*4
            cin = "0" if s_ == 0 else f"v[{d}:{d+3}]"
            g(f"v_mfma_f32_16x16x32_bf16 v[{d}:{d+3}], v[{fb+4*c}:{fb+4*c+3}], a[{(s_*2+t)*4}:{(s_*2+t)*4+3}], {cin}")
            if m == 7 and reads: g("s_waitcnt lgkmcnt(7)")
            if reads: g(reads[m])
            elif m == 7 and ks + 1 < 32: g("s_waitcnt lgkmcnt(0)")
            if m == 2 and dq4: emit(g, dq4.pop(0))
            for _ in range(2):
                if fq4:
                    x = fq4.pop(0)
                    if isinstance(x, tuple): act_store(x[1], x[2])
                    else: g(x)
    assert not fq4
    g.stamp("k4_loop")
    g("s_nop 7")
    for x in silu_items(1):
        if isinstance(x, tuple): act_store(x[1], x[2])
        else: g(x)
    g("s_waitcnt vmcnt(0)", "s_barrier")
    cnt_off(g, tX, C_ACT, tRB4); signal(g, S_WS, ('s', tX), 1, tY)
    g.label(LK5)
    g.vm = []
    g.stamp("k5_entry")
    wsplit_setup(g, 7, WS_ACT, 56, 'wd')
    g(f"s_lshr_b32 s{tX}, s{tRB}, 2"); cnt_off(g, tZ, C_ACT, tX)
    if not OPT.get('syncpoll'): poll_issue(g, 1, S_WS, tZ, 'pact', tX)
    for j in range(DEPTH): emit(g, ws_wdma(j))
    if OPT.get('twd'):
        g(f"s_and_b32 s{tX}, s{tRB}, 3", f"s_mul_i32 s{tX}, s{tX}, 7", f"s_add_u32 s{tX}, s{tX}, s{sWAVE}", f"s_lshl_b32 s{tX}, s{tX}, 16", f"s_lshl_b32 s{tY}, s{tCB}, 7",
          f"s_add_u32 s{tX}, s{tX}, s{tY}", f"s_cmp_lt_u32 s{sWAVE}, 7", f"s_cselect_b32 s{tX}, s{tX}, s{sOOB}", "v_lshlrev_b32 v1, 10, v0")
        g.vmem(f"buffer_load_dword v2, v1, s[{S_A}:{S_A+3}], s{tX} offen", 'tch')
    X1LOAD = True
    g(f"s_lshl_b32 s{tX}, s{tCB}, 6", f"s_lshl_b32 s{tY}, s{tU}, 5", f"s_add_u32 s{tX}, s{tX}, s{tY}", "v_lshrrev_b32 v15, 4, v0", "v_lshlrev_b32 v15, 2, v15", f"v_add_u32 v15, s{tX}, v15")
    g("v_lshlrev_b32 v13, 2, v15", f"s_mov_b32 s{tX}, {hex(WS_MOD + 2560*4)}")
    g.vmem(f"buffer_load_dwordx4 v[60:63], v13, s[{S_WS}:{S_WS+3}], s{tX} offen sc1", 'gb'); g.vmem(f"buffer_load_dwordx4 v[12:15], v13, s[{S_WS}:{S_WS+3}], s{tX} offen offset:64 sc1", 'gb')
    g(f"s_load_dwordx2 s[{S_B}:{S_B+1}], s[0:1], {KA['out']}")
    if not OPT.get('syncpoll'): poll_check(g, 1, S_WS, 'pact', tZ, 28, tX, tY)
    else: spin(g, 1, S_WS, tZ, 28, tX, tY)
    g("s_waitcnt lgkmcnt(0)"); finish_srd(g, S_B, 'out')
    g("s_barrier")
    g.stamp("act_ok")
    g(f"s_lshl_b32 s{tX}, s{tRB}, 2", f"s_add_u32 s{tX}, s{tX}, s{tR}", f"s_lshl_b32 s{tX}, s{tX}, 4", f"s_lshl_b32 s{tY}, s{tCB}, 1", f"s_add_u32 s{tX}, s{tX}, s{tY}",
      f"s_add_u32 s{tX}, s{tX}, s{tU}", f"s_lshl_b32 s{tX}, s{tX}, 11", f"s_add_u32 s{tX}, s{tX}, {hex(WS_X1)}")
    g.vmem(f"buffer_load_dwordx4 v[52:55], v{V_L16}, s[{S_WS}:{S_WS+3}], s{tX} offen sc1", 'x1l'); g.vmem(f"buffer_load_dwordx4 v[56:59], v{V_L16}, s[{S_WS}:{S_WS+3}], s{tX} offen offset:1024 sc1", 'x1l')
    wsplit_main(g, 7, 56, "k5")
    for k in range(4): g(f"v_fma_f32 v{64+k}, v{64+k}, v{60+k}, v{52+k}")
    for k in range(4): g(f"v_fma_f32 v{68+k}, v{68+k}, v{12+k}, v{56+k}")
    for k in range(4): g(f"v_cvt_pk_bf16_f32 v{16+k}, v{64+2*k}, v{65+2*k}")
    om = OPT.get('outmode', 2)
    if om < 2:
        g(f"s_lshl_b32 s{tX}, s{tRB}, 6", f"s_lshl_b32 s{tY}, s{tR}, 4", f"s_add_u32 s{tX}, s{tX}, s{tY}", "v_and_b32 v20, 15, v0", f"v_add_u32 v20, s{tX}, v20")
        g(f"s_lshl_b32 s{tX}, s{tCB}, 6", f"s_lshl_b32 s{tY}, s{tU}, 5", f"s_add_u32 s{tX}, s{tX}, s{tY}", "v_lshrrev_b32 v21, 4, v0", "v_lshlrev_b32 v21, 2, v21", f"v_add_u32 v21, s{tX}, v21")
        g("v_lshlrev_b32 v20, 10, v20", "v_lshl_add_u32 v20, v21, 1, v20")
        g(f"buffer_store_dwordx2 v[16:17], v20, s[{S_B}:{S_B+3}], 0 offen{' sc1' if om == 1 else ''}", f"buffer_store_dwordx2 v[18:19], v20, s[{S_B}:{S_B+3}], 0 offen offset:32{' sc1' if om == 1 else ''}")
    else:
        g("s_barrier")
        g("v_and_b32 v20, 15, v0", f"s_lshl_b32 s{tX}, s{tR}, 4", f"v_add_u32 v20, s{tX}, v20", "v_mul_u32_u24 v20, 144, v20", "v_lshrrev_b32 v21, 4, v0",
          "v_lshl_add_u32 v20, v21, 3, v20", f"s_lshl_b32 s{tX}, s{tU}, 6", f"v_add_u32 v20, s{tX}, v20")
        g("ds_write_b64 v20, v[16:17]", "ds_write_b64 v20, v[18:19] offset:32", "s_waitcnt lgkmcnt(0)", "s_barrier")
        g("v_lshrrev_b32 v20, 3, v0", f"s_lshl_b32 s{tX}, s{sWAVE}, 3", f"v_add_u32 v20, s{tX}, v20", "v_and_b32 v21, 7, v0", "v_mul_u32_u24 v22, 144, v20", "v_lshl_add_u32 v22, v21, 4, v22",
          "ds_read_b128 v[24:27], v22")
        g(f"s_lshl_b32 s{tX}, s{tRB}, 6", f"v_add_u32 v20, s{tX}, v20", "v_lshlrev_b32 v20, 10, v20", "v_lshl_add_u32 v20, v21, 4, v20", f"s_lshl_b32 s{tX}, s{tCB}, 7", "s_waitcnt lgkmcnt(0)")
        g(f"buffer_store_dwordx4 v[24:27], v20, s[{S_B}:{S_B+3}], s{tX} offen{' sc1' if om == 3 else ''}")
    if Gen.STAMP:
        g("s_waitcnt vmcnt(0)"); g.stamp("end"); g.dump_stamps(sWAVE, 2)

def tail_code_touch(g):
    lsk = g.newlabel("noct2")
    g(f"s_cmp_lg_u32 s{sWAVE}, 0", f"s_cbranch_scc1 {lsk}", f"s_lshr_b32 s{sT1}, s2, 3", "v_mbcnt_lo_u32_b32 v0, -1, 0", "v_mbcnt_hi_u32_b32 v0, -1, v0")
    code_touch(g, KNAME, sT1, 2, 3, 16, 18, 56)
    g.label(lsk)

def all_signal(g):
    signal(g, S_DBG, C_ALL*4, 6, sT1)

def mega(g):
    if not OPT.get('all_early'): OPT['hook_bstart'] = all_signal
    if OPT.get('ctouch2'): OPT['hook_fin'] = tail_code_touch
    front(g, fused=True)
    tail(g)
```

```python
from core import *
import p_kv
from p_kv import emit, V_W0, V_W1, V_L16, V_TR, V_FR, V_ACC, setup_dma128, setup_tr128, gemm_res_loop

V_CUR, V_NXT, V_L0, V_L1 = 1, 2, 3, 4
V_NEG = 8
V_S = 16
V_P = 48
V_O = 64
A_Q = 0
A_F = 32
S_WQ, S_WS = 4, 8
sWAVE, sHEAD, sI, sISA, sSUB, sT16, sNB2, sNA2, sT, sCNT = 20, 21, 22, 23, 24, 25, 26, 27, 28, 29
sKF, sVF, sNAo, sNBo, sA4, sKO, sVO, sM0K, sT1, sT2, sT3, sSLOT, sRESTART = 30, 31, 32, 33, 34, 35, 36, 37, 38, 39, 40, 41, 42
sFLAG = 52
sMASK = 44
sWB, sM0B = 52, 53
LDS_FLAG = 0x20000
OPT = {}
SC1 = ''

def fr(i, n=8): return f"a[{A_F+4*(i%n)}:{A_F+4*(i%n)+3}]"
def Sreg(buf, qs, kb): return V_S + buf*16 + (qs*2+kb)*4
def v4(b): return f"v[{b}:{b+3}]"

def reads_for(gi):
    a = V_CUR if (gi < 16 or OPT.get('oneaddr', 1)) else V_NXT
    gg = gi % 16
    it, t = gg >> 3, gg & 7
    return (f"ds_read_b128 {fr(2*gi)}, v{a} offset:{it*8192 + t*1024}",
            f"ds_read_b128 {fr(2*gi+1)}, v{a} offset:{16384 + it*8192 + t*1024}")

def gen_iter(g, it, qk, sm, pv, prev_sm, czero=False, dmas=None, lookahead=True, loopctl=False, pvzero=False):
    dmas = dmas or {}
    Sc = V_S + (1-it)*16
    Sp = V_S + it*16
    Pn = V_P + (1-it)*8; Pp = V_P + it*8
    for t in range(8):
        gi = it*8 + t
        kb, s = t >> 2, t & 3
        kf, vf = fr(2*gi), fr(2*gi+1)
        M = [None]*4
        if qk:
            for qs in range(2):
                d = Sreg(it, qs, kb)
                c = ("0" if czero else v4(V_NEG+4*qs)) if s == 0 else v4(d)
                M[qs] = f"v_mfma_f32_16x16x32_bf16 {v4(d)}, {kf}, a[{A_Q+(qs*4+s)*4}:{A_Q+(qs*4+s)*4+3}], {c}"
        if pv:
            for qs in range(2):
                d = V_O + (qs*8+t)*4
                M[2+qs] = f"v_mfma_f32_16x16x32_bf16 {v4(d)}, {vf}, {v4(Pp+4*qs)}, {'0' if pvzero else v4(d)}"
        E0 = E1 = C = A0 = A1 = None
        if sm:
            E0, E1 = f"v_exp_f32 v{Sc+2*t}, v{Sc+2*t}", f"v_exp_f32 v{Sc+2*t+1}, v{Sc+2*t+1}"
        if t > 0 and sm:
            p0 = Sc + 2*(t-1); lq = V_L0 + ((t-1) >> 2); dst = Pn + t-1
        elif t == 0 and prev_sm:
            p0 = Sp + 14; lq = V_L1; dst = Pp + 7
        else:
            p0 = None
        if p0 is not None:
            C = f"v_cvt_pk_bf16_f32 v{dst}, v{p0}, v{p0+1}"
            A0, A1 = f"v_add_f32 v{lq}, v{lq}, v{p0}", f"v_add_f32 v{lq}, v{lq}, v{p0+1}"
        R0 = R1 = None
        pre = []
        if lookahead or gi + 2 < 16:
            R0, R1 = reads_for(gi + 2)
        if OPT.get('oneaddr', 1) and lookahead:
            if gi == 12: pre = [f"s_add_u32 s{sSLOT}, s{sSLOT}, 32768"]
            if gi == 13:
                pre = [f"s_and_b32 s{sSLOT}, s{sSLOT}, 0x1ffff"] if not OPT.get('five', 1) else [f"s_cmp_eq_u32 s{sSLOT}, 0x28000", f"s_cselect_b32 s{sSLOT}, 0, s{sSLOT}"]
        if loopctl and gi == 10: pre = pre + [f"s_sub_u32 s{sCNT}, s{sCNT}, 1"]
        D = dmas.get(gi, [])
        W = "s_waitcnt lgkmcnt(2)" if (R0 is not None) else "s_waitcnt lgkmcnt(0)"
        if OPT.get('oneaddr', 1) and lookahead and gi == 14:
            g(f"v_add_u32 v{V_CUR}, s{sSLOT}, v{V_L16}")
        seq = [M[0], R0, E0, M[1], R1, C, M[2]] + pre
        g([x for x in seq if x])
        emit(g, D)
        if t == 0 and prev_sm and E1 is None and not D: g("s_nop 1")
        g([x for x in [E1, M[3]] if x])
        g(W)
        g([x for x in [A0, A1] if x])
        if not pv and t == 0 and prev_sm: pass

def unit_addr(g):
    g(f"s_add_u32 s{sT1}, s{sT}, 3", f"s_lshl_b32 s{sKO}, s{sT1}, 14", f"s_sub_u32 s{sVO}, s{sKO}, 16384",
      f"s_sub_u32 s{sT2}, s{sT1}, s{sNB2}", f"s_sub_u32 s{sT2}, s{sT2}, 1",
      f"s_bitcmp1_b32 s{sT2}, 0", f"s_cselect_b32 s{sT3}, s{sNAo}, s{sNBo}",
      f"s_and_b32 s{sT2}, s{sT2}, 2", f"s_lshl_b32 s{sT2}, s{sT2}, 13", f"s_add_u32 s{sT3}, s{sT3}, s{sT2}",
      f"s_cmp_le_u32 s{sT1}, s{sNB2}", f"s_cselect_b32 s{sKO}, s{sKO}, s{sT3}", f"s_cselect_b32 s{sVO}, s{sVO}, s{sT3}",
      f"s_add_u32 s{sKO}, s{sKO}, s{sKF}", f"s_add_u32 s{sVO}, s{sVO}, s{sVF}",
      f"s_and_b32 s{sT1}, s{sT1}, 3", f"s_lshl_b32 s{sT1}, s{sT1}, 15", f"s_add_u32 s{sM0K}, s{sT1}, s{sA4}")

sUS = 53
def unit_addr5(g, off):
    g(f"s_add_u32 s{sT1}, s{sT}, {off}", f"s_lshl_b32 s{sKO}, s{sT1}, 14", f"s_sub_u32 s{sVO}, s{sKO}, 16384",
      f"s_sub_u32 s{sT2}, s{sT1}, s{sNB2}", f"s_sub_u32 s{sT2}, s{sT2}, 1",
      f"s_bitcmp1_b32 s{sT2}, 0", f"s_cselect_b32 s{sT3}, s{sNAo}, s{sNBo}",
      f"s_and_b32 s{sT2}, s{sT2}, 2", f"s_lshl_b32 s{sT2}, s{sT2}, 13", f"s_add_u32 s{sT3}, s{sT3}, s{sT2}",
      f"s_cmp_le_u32 s{sT1}, s{sNB2}", f"s_cselect_b32 s{sKO}, s{sKO}, s{sT3}", f"s_cselect_b32 s{sVO}, s{sVO}, s{sT3}",
      f"s_add_u32 s{sKO}, s{sKO}, s{sKF}", f"s_add_u32 s{sVO}, s{sVO}, s{sVF}",
      f"s_add_u32 s{sM0K}, s{sUS}, s{sA4}",
      f"s_add_u32 s{sUS}, s{sUS}, 32768", f"s_cmp_eq_u32 s{sUS}, 0x28000", f"s_cselect_b32 s{sUS}, 0, s{sUS}")

def unit_dma_list():
    d = {}
    for k in range(4):
        d[k] = ([f"s_mov_b32 m0, s{sM0K}", "s_nop 0"] if k == 0 else []) + [(f"buffer_load_dwordx4 v{V_L16}, s[{S_WS}:{S_WS+3}], s{sKO} offen offset:{k*1024}{SC1} lds", 'U')]
        d[4+k] = ([f"s_add_u32 m0, s{sM0K}, 16384", "s_nop 0"] if k == 0 else []) + [(f"buffer_load_dwordx4 v{V_L16}, s[{S_WS}:{S_WS+3}], s{sVO} offen offset:{k*1024}{SC1} lds", 'U')]
    return d

def step_begin(g, isA):
    if isA: g("s_waitcnt vmcnt(8)")
    g("s_barrier")
    if isA: unit_addr(g)

def step_addr_advance(g):
    if OPT.get('oneaddr', 1): return
    g(f"v_mov_b32 v{V_CUR}, v{V_NXT}", f"s_add_u32 s{sSLOT}, s{sSLOT}, 32768", f"s_and_b32 s{sSLOT}, s{sSLOT}, 0x1ffff",
      f"v_add_u32 v{V_NXT}, s{sSLOT}, v{V_L16}")

def uniform_unit(u):
    kblk, vblk = 2*u, max(2*u-2, 0)
    items = [f"s_add_u32 s{sKO}, s{sKF}, {kblk*8192}", f"s_add_u32 s{sVO}, s{sVF}, {vblk*8192}",
             f"s_cmp_eq_u32 s{sISA}, 0", f"s_cselect_b32 s{sKO}, s{sKO}, s{sVO}",
             f"s_lshl_b32 s{sT1}, s{sISA}, 14", f"s_add_u32 s{sT1}, s{sT1}, s{sA4}", f"s_add_u32 m0, s{sT1}, {u*32768}", "s_nop 0"]
    for k in range(4):
        items.append((f"buffer_load_dwordx4 v{V_L16}, s[{S_WS}:{S_WS+3}], s{sKO} offen offset:{k*1024} lds", ('U', u)))
    return items

def cross_g(g, v, t, op):
    g(f"v_mov_b32 v{t}, v{v}", "s_nop 1", f"v_permlane16_swap_b32 v{v}, v{t}", f"{op} v{v}, v{v}, v{t}")
    g(f"v_mov_b32 v{t}, v{v}", "s_nop 1", f"v_permlane32_swap_b32 v{v}, v{t}", f"{op} v{v}, v{v}, v{t}")

def diag_block(g, masked, maxonly=False, addr=V_CUR, noV=False):
    for t in range(8):
        g(f"ds_read_b128 {fr(t,16)}, v{addr} offset:{t*1024}")
    if not maxonly:
        for t in range(7):
            g(f"ds_read_b128 {fr(8+t,16)}, v{addr} offset:{16384+t*1024}")
        g("s_waitcnt lgkmcnt(7)")
    else:
        g("s_waitcnt lgkmcnt(0)")
    for t in range(8):
        kb, s = t >> 2, t & 3
        for qs in range(2):
            if masked and qs == 0 and kb == 1: continue
            d = Sreg(0, qs, kb)
            c = ("0" if maxonly else v4(V_NEG+4*qs)) if s == 0 else v4(d)
            g(f"v_mfma_f32_16x16x32_bf16 {v4(d)}, {fr(t,16)}, a[{A_Q+(qs*4+s)*4}:{A_Q+(qs*4+s)*4+3}], {c}")
    if not maxonly: g(f"ds_read_b128 {fr(15,16)}, v{addr} offset:{16384+7*1024}")
    g("s_nop 7")
    regs = [(qs, kb, r) for qs in range(2) for kb in range(2) for r in range(4)]
    if maxonly:
        for qs, kb, r in regs:
            if masked and qs == 0 and kb == 1: continue
            x = Sreg(0, qs, kb) + r
            if masked and qs == kb:
                g(f"v_cndmask_b32 v{x}, v{V_L0}, v{x}, s[{sMASK+2*r}:{sMASK+2*r+1}]")
            g(f"v_max_f32 v{6+qs}, v{6+qs}, v{x}")
        return
    for qs, kb, r in regs:
        x = Sreg(0, qs, kb) + r
        if masked and qs == 0 and kb == 1: continue
        g(f"v_exp_f32 v{x}, v{x}")
    g("s_nop 0")
    for qs, kb, r in regs:
        x = Sreg(0, qs, kb) + r
        if masked and qs == 0 and kb == 1: continue
        if masked and qs == kb:
            g(f"v_cndmask_b32 v{x}, 0, v{x}, s[{sMASK+2*r}:{sMASK+2*r+1}]")
        g(f"v_add_f32 v{V_L0+qs}, v{V_L0+qs}, v{x}")
    for x in range(8):
        if masked and x in (2, 3): g(f"v_mov_b32 v{V_P+x}, 0")
        else: g(f"v_cvt_pk_bf16_f32 v{V_P+x}, v{V_S+2*x}, v{V_S+2*x+1}")
    g("s_waitcnt lgkmcnt(0)", "s_nop 0")
    for t in range(8):
        for qs in range(2):
            d = V_O + (qs*8+t)*4
            g(f"v_mfma_f32_16x16x32_bf16 {v4(d)}, {fr(8+t,16)}, {v4(V_P+4*qs)}, {v4(d)}")

def phase_att(g):
    g(f"s_load_dwordx2 s[4:5], s[0:1], {KA['wq']}", f"s_load_dwordx2 s[8:9], s[0:1], {KA['ws']}")
    g("v_lshrrev_b32 v14, 6, v0", "v_and_b32 v0, 63, v0", "s_nop 0", f"v_readfirstlane_b32 s{sWAVE}, v14")
    g(f"s_and_b32 s{sHEAD}, s2, 7", f"s_lshl_b32 s{sHEAD}, s{sHEAD}, 2", f"s_bfe_u32 s{sT1}, s2, 0x20003", f"s_add_u32 s{sHEAD}, s{sHEAD}, s{sT1}")
    g(f"s_lshr_b32 s{sI}, s2, 5", f"s_lshr_b32 s{sISA}, s{sWAVE}, 2")
    g(f"s_sub_u32 s{sT1}, 7, s{sWAVE}", f"s_sub_u32 s{sT2}, 15, s{sI}", f"s_cmp_eq_u32 s{sISA}, 0",
      f"s_cselect_b32 s{sSUB}, s{sWAVE}, s{sT1}", f"s_cselect_b32 s{sT3}, s{sT2}, s{sI}")
    g(f"s_lshl_b32 s{sT16}, s{sT3}, 3", f"s_lshl_b32 s{sT1}, s{sSUB}, 1", f"s_add_u32 s{sT16}, s{sT16}, s{sT1}")
    g(f"s_lshl_b32 s{sNB2}, s{sT2}, 1", f"s_lshl_b32 s{sNA2}, s{sI}, 1",
      f"s_lshl_b32 s{sNBo}, s{sT2}, 15", f"s_lshl_b32 s{sNAo}, s{sI}, 15")
    g(f"s_and_b32 s{sA4}, s{sWAVE}, 3", f"s_lshl_b32 s{sA4}, s{sA4}, 12")
    g(f"s_lshl_b32 s{sT1}, s{sHEAD}, 19", f"s_add_u32 s{sT1}, s{sT1}, s{sA4}",
      f"s_add_u32 s{sKF}, s{sT1}, {hex(WS_KF)}", f"s_add_u32 s{sVF}, s{sT1}, {hex(WS_VF)}")
    setup_dma128(g, 8192); setup_tr128(g)
    g(f"v_lshlrev_b32 v{V_L16}, 4, v0")
    g(f"s_lshl_b32 s{sWB}, s{sWAVE}, 17", f"s_lshl_b32 s{sT1}, s{sHEAD}, 8", f"s_add_u32 s{sWB}, s{sWB}, s{sT1}", f"s_lshl_b32 s{sM0B}, s{sWAVE}, 11")
    g("v_lshrrev_b32 v14, 4, v0", "v_lshlrev_b32 v14, 2, v14", "v_and_b32 v15, 15, v0")
    for r in range(4):
        g(f"v_cmp_le_u32 s[{sMASK+2*r}:{sMASK+2*r+1}], v14, v15")
        if r < 3: g("v_add_u32 v14, 1, v14")
    g(f"s_mov_b32 s{sRESTART}, 0")
    g("s_waitcnt lgkmcnt(0)")
    p_kv.finish_srd(g, S_WQ, 'wq'); p_kv.finish_srd(g, S_WS, 'ws')
    def dma(c):
        j, q = c >> 2, c & 3
        return [f"s_add_u32 s{sT1}, s{sWB}, {hex(q*0x100000 + j*128)}", f"s_add_u32 m0, s{sM0B}, {hex(c*16384)}",
                (f"buffer_load_dwordx4 v{V_W0}, s[{S_WQ}:{S_WQ+3}], s{sT1} offen lds", ('W', c)),
                (f"buffer_load_dwordx4 v{V_W1}, s[{S_WQ}:{S_WQ+3}], s{sT1} offen offset:1024 lds", ('W', c))]
    def hload(s4):
        out = []
        for t in range(2):
            out.append(f"s_lshl_b32 s{sT1}, s{sT16}, 14")
            out.append(f"s_add_u32 s{sT1}, s{sT1}, {hex(WS_H + t*16384 + s4*4096)}")
            for k in range(4):
                s = s4*4 + k
                out.append((f"buffer_load_dwordx4 a[{(s*2+t)*4}:{(s*2+t)*4+3}], v{V_L16}, s[{S_WS}:{S_WS+3}], s{sT1} offen offset:{k*1024}", ('H', s4)))
        return out
    g.stamp("att_entry")
    emit(g, dma(0)); emit(g, hload(0)); emit(g, dma(1)); emit(g, hload(1)); emit(g, dma(2)); emit(g, hload(2)); emit(g, hload(3))
    for c in range(3, 8): emit(g, dma(c))
    g.wait_vm(('W', 0)); g("s_waitcnt lgkmcnt(0)", "s_barrier")
    g.stamp("q_w0")
    def hook(ks, where):
        if where == 'pre' and ks < 16 and ks % 4 == 0: g.wait_vm(('H', ks // 4))
        if where == 'barrier':
            if ks == 10: emit(g, uniform_unit(0))
            if ks == 18: emit(g, uniform_unit(1))
            if ks == 26: emit(g, uniform_unit(2))
        return False
    gemm_res_loop(g, 2, list(range(8)), {}, dma, lambda j: True, None, hook)
    g.stamp("q_done")
    g("s_nop 7")
    for qs in range(2):
        for s in range(4):
            j, u = s >> 1, s & 1
            a = V_ACC + j*32 + (qs*4 + 2*u)*4; b = a + 4
            for k, (x, y) in enumerate(((a, a+1), (a+2, a+3), (b, b+1), (b+2, b+3))):
                g(f"v_cvt_pk_bf16_f32 v{16+k}, v{x}, v{y}")
            for k in range(4):
                g(f"v_accvgpr_write_b32 a{A_Q+(qs*4+s)*4+k}, v{16+k}")
    attention_body(g, uniform_unit)

def dma_all(g, lst):
    for k, items in sorted(lst.items()): emit(g, items)

def main_five(g, first_part, LA, LDIAG):
    def dmas2():
        return unit_dma_list()
    g(f"s_cmp_lg_u32 s{sISA}, 0", f"s_cbranch_scc1 {LA}")
    if OPT.get('prioB'): g(f"s_setprio {OPT['prioB']}")
    first_part(False)
    gen_iter(g, 1, True, True, False, False)
    if not OPT.get('nopf'):
        skip_pf = g.newlabel("nopf")
        g(f"s_cmp_lg_u32 s{sRESTART}, 0", f"s_cbranch_scc1 {skip_pf}")
        g(f"s_lshl_b32 s{sT1}, s2, 2", f"s_add_u32 s{sT1}, s{sT1}, s{sWAVE}", f"v_lshlrev_b32 v6, 3, v{V_L16}")
        for k, (n, st) in enumerate((('wo', 0), ('wg', 512), ('wu', 736), ('wd', 288))):
            g(prefetch_lines(g, 88+2*k, n, sT1, st, 7, 0, 6, sT2))
        if OPT.get('hook_bstart'): OPT['hook_bstart'](g)
        g.label(skip_pf)
    gen_iter(g, 0, True, True, True, True, pvzero=not OPT.get('ozero')); gen_iter(g, 1, True, True, True, True)
    g(f"s_lshr_b32 s{sCNT}, s{sNB2}, 1", f"s_sub_u32 s{sCNT}, s{sCNT}, 1")
    lb = g.newlabel("Bloop"); g.label(lb)
    g("s_barrier")
    gen_iter(g, 0, True, True, True, True); gen_iter(g, 1, True, True, True, True)
    gen_iter(g, 0, True, True, True, True); gen_iter(g, 1, True, True, True, True, loopctl=True)
    g(f"s_cmp_lg_u32 s{sCNT}, 0", f"s_cbranch_scc1 {lb}")
    g("s_barrier")
    gen_iter(g, 0, False, True, True, True); gen_iter(g, 1, False, False, True, True, lookahead=False)
    g.stamp("B_main_done"); g.stamp("Bdone_c", True)
    g(f"s_branch {LDIAG}")
    g.label(LA)
    if OPT.get('prioA', 1): g(f"s_setprio {OPT.get('prioA', 1)}")
    lidle_chk, lidle, ldrain, la = g.newlabel("Aidlechk"), g.newlabel("Aidle"), g.newlabel("Adrain"), g.newlabel("Aloop")
    lz = g.newlabel("Azero")
    g(f"s_cmp_eq_u32 s{sNA2}, 0", f"s_cbranch_scc1 {lz}")
    first_part(True, unit_off=3)
    unit_addr5(g, 4)
    gen_iter(g, 1, True, True, False, False, dmas={8+k: v for k, v in unit_dma_list().items()})
    gen_iter(g, 0, True, True, True, True, pvzero=not OPT.get('ozero')); gen_iter(g, 1, True, True, True, True)
    g(f"s_lshr_b32 s{sCNT}, s{sNA2}, 1", f"s_sub_u32 s{sCNT}, s{sCNT}, 1", f"s_cmp_eq_u32 s{sCNT}, 0", f"s_cbranch_scc1 {ldrain}")
    g.label(la)
    g(f"s_add_u32 s{sT}, s{sT}, 2", "s_waitcnt vmcnt(0)", "s_barrier")
    unit_addr5(g, 3)
    gen_iter(g, 0, True, True, True, True, dmas=unit_dma_list())
    unit_addr5(g, 4)
    gen_iter(g, 1, True, True, True, True, dmas={8+k: v for k, v in unit_dma_list().items()})
    gen_iter(g, 0, True, True, True, True); gen_iter(g, 1, True, True, True, True, loopctl=True)
    g(f"s_cmp_lg_u32 s{sCNT}, 0", f"s_cbranch_scc1 {la}")
    g.label(ldrain)
    g(f"s_add_u32 s{sT}, s{sT}, 2", "s_waitcnt vmcnt(0)", "s_barrier")
    unit_addr5(g, 3)
    gen_iter(g, 0, False, True, True, True, dmas=unit_dma_list())
    unit_addr5(g, 4)
    gen_iter(g, 1, False, False, True, True, dmas={8+k: v for k, v in unit_dma_list().items()}, lookahead=False)
    g(f"s_branch {lidle_chk}")
    g.label(lz)
    if not OPT.get('ozero'):
        for r in range(64): g(f"v_mov_b32 v{V_O+r}, 0")
    first_part(True, unit_off=3)
    unit_addr5(g, 4); dma_all(g, unit_dma_list())
    g.label(lidle_chk)
    g("s_waitcnt lgkmcnt(0)")
    ld5 = g.newlabel("d5")
    g(f"s_cmp_ge_u32 s{sT}, s{sNB2}", f"s_cbranch_scc1 {ld5}")
    g.label(lidle)
    g(f"s_add_u32 s{sT}, s{sT}, 2", "s_waitcnt vmcnt(0)", "s_barrier")
    unit_addr5(g, 3); dma_all(g, unit_dma_list())
    unit_addr5(g, 4); dma_all(g, unit_dma_list())
    g(f"s_cmp_lt_u32 s{sT}, s{sNB2}", f"s_cbranch_scc1 {lidle}")
    g.label(ld5)
    g.label(LDIAG)
    g("s_barrier")

def attention_body(g, unit_fn, sc1=False, fused=False):
    global SC1
    SC1 = ' sc1' if (sc1 and not OPT.get('unit_nosc1')) else ''
    L_START = g.newlabel("att_start")
    g.label(L_START)
    g.vm = [('U', 0)]*4 + [('U', 1)]*4 + [('U', 2)]*4
    if not OPT.get('nopf'):
        for k, n in enumerate(('wo', 'wg', 'wu', 'wd')): g(f"s_load_dwordx2 s[{88+2*k}:{89+2*k}], s[0:1], {KA[n]}")
    if not OPT.get('five', 1) or OPT.get('ozero'):
        for r in range(64): g(f"v_mov_b32 v{V_O+r}, 0")
    g(f"v_mov_b32 v{V_L0}, 0", f"v_mov_b32 v{V_L1}, 0")
    if OPT.get('oneaddr', 1): g(f"v_mov_b32 v{V_CUR}, v{V_L16}", f"s_mov_b32 s{sSLOT}, 0", f"s_mov_b32 s{sT}, 0")
    else: g(f"v_mov_b32 v{V_CUR}, v{V_L16}", f"v_add_u32 v{V_NXT}, 0x8000, v{V_L16}", f"s_mov_b32 s{sSLOT}, 0x8000", f"s_mov_b32 s{sT}, 0")
    if OPT.get('five', 1):
        g(f"s_mov_b32 s{sUS}, {3*32768}", "s_waitcnt vmcnt(0) lgkmcnt(0)", "s_barrier")
    else:
        g.wait_vm(('U', 1)); g("s_waitcnt lgkmcnt(0)", "s_barrier")
        g(f"v_mov_b32 v6, {hex(LDS_FLAG)}", "v_mov_b32 v7, 0", "ds_write_b32 v6, v7", "s_waitcnt lgkmcnt(0)")
    g.stamp("step0"); g.stamp("step0_c", True)
    LA, LB = g.newlabel("pathA"), g.newlabel("pathB")
    LDIAG = g.newlabel("diag")
    def first_part(isA, unit_off=None):
        dm = None
        if isA:
            if unit_off is None: unit_addr(g)
            else: unit_addr5(g, unit_off)
            dm = unit_dma_list()
        r0, r1 = reads_for(0), reads_for(1)
        g(r0[0], r0[1], r1[0], r1[1], "s_waitcnt lgkmcnt(2)")
        gen_iter(g, 0, True, False, False, False, czero=True, dmas=dm)
        g("s_nop 7")
        skip = g.newlabel("nomax")
        g(f"s_cmp_lg_u32 s{sRESTART}, 0", f"s_cbranch_scc1 {skip}")
        for qs in range(2):
            b = V_S + qs*8
            g(f"v_max3_f32 v6, v{b}, v{b+1}, v{b+2}", f"v_max3_f32 v6, v6, v{b+3}, v{b+4}", f"v_max3_f32 v6, v6, v{b+5}, v{b+6}", f"v_max_f32 v6, v6, v{b+7}")
            cross_g(g, 6, 7, "v_max_f32")
            for k in range(4): g(f"v_sub_f32 v{V_NEG+4*qs+k}, 0, v6")
        g.label(skip)
        for qs in range(2):
            for k in range(8): g(f"v_add_f32 v{V_S+qs*8+k}, v{V_S+qs*8+k}, v{V_NEG+4*qs}")
        g("s_nop 1")
    if OPT.get('five', 1):
        main_five(g, first_part, LA, LDIAG)
    else:
        g(f"s_cmp_lg_u32 s{sISA}, 0", f"s_cbranch_scc1 {LA}")
        if OPT.get('prioB'): g(f"s_setprio {OPT['prioB']}")
        first_part(False)
        gen_iter(g, 1, True, True, False, False)
        g("s_waitcnt vmcnt(0)")
        if not OPT.get('nopf'):
            skip_pf = g.newlabel("nopf")
            g(f"s_cmp_lg_u32 s{sRESTART}, 0", f"s_cbranch_scc1 {skip_pf}")
            g(f"s_lshl_b32 s{sT1}, s2, 2", f"s_add_u32 s{sT1}, s{sT1}, s{sWAVE}", f"v_lshlrev_b32 v6, 3, v{V_L16}")
            for k, (n, st) in enumerate((('wo', 0), ('wg', 512), ('wu', 736), ('wd', 288))):
                ins = prefetch_lines(g, 88+2*k, n, sT1, st, 7, 0, 6, sT2)
                g(ins)
            g.label(skip_pf)
        g(f"s_sub_u32 s{sCNT}, s{sNB2}, 1")
        lb = g.newlabel("Bloop"); g.label(lb)
        step_begin(g, False); step_addr_advance(g)
        gen_iter(g, 0, True, True, True, True); gen_iter(g, 1, True, True, True, True, loopctl=True)
        g(f"s_cmp_lg_u32 s{sCNT}, 0", f"s_cbranch_scc1 {lb}")
        step_begin(g, False); step_addr_advance(g)
        gen_iter(g, 0, False, True, True, True); gen_iter(g, 1, False, False, True, True, lookahead=False)
        g.stamp("B_main_done"); g.stamp("Bdone_c", True)
        g(f"s_branch {LDIAG}")
        g.label(LA)
        if OPT.get('prioA', 1): g(f"s_setprio {OPT.get('prioA', 1)}")
        first_part(True)
        lidle = g.newlabel("Aidle"); lidle_chk = g.newlabel("Aidlechk")
        g(f"s_cmp_eq_u32 s{sNA2}, 0", f"s_cbranch_scc1 {lidle_chk}")
        gen_iter(g, 1, True, True, False, False)
        g(f"s_sub_u32 s{sCNT}, s{sNA2}, 1")
        la = g.newlabel("Aloop"); g.label(la)
        g(f"s_add_u32 s{sT}, s{sT}, 1")
        step_begin(g, True); step_addr_advance(g)
        gen_iter(g, 0, True, True, True, True, dmas=unit_dma_list()); gen_iter(g, 1, True, True, True, True, loopctl=True)
        g(f"s_cmp_lg_u32 s{sCNT}, 0", f"s_cbranch_scc1 {la}")
        g(f"s_add_u32 s{sT}, s{sT}, 1")
        step_begin(g, True); step_addr_advance(g)
        gen_iter(g, 0, False, True, True, True, dmas=unit_dma_list()); gen_iter(g, 1, False, False, True, True, lookahead=False)
        g.label(lidle_chk)
        g("s_waitcnt lgkmcnt(0)")
        g(f"s_cmp_ge_u32 s{sT}, s{sNB2}", f"s_cbranch_scc1 {LDIAG}")
        g.label(lidle)
        g(f"s_add_u32 s{sT}, s{sT}, 1")
        step_begin(g, True)
        for k, items in sorted(unit_dma_list().items()): emit(g, items)
        g(f"s_cmp_lt_u32 s{sT}, s{sNB2}", f"s_cbranch_scc1 {lidle}")
        g.label(LDIAG)
        LD_B = g.newlabel("d0B"); LD_go = g.newlabel("d0go")
        g(f"s_cmp_eq_u32 s{sISA}, 0", f"s_cbranch_scc1 {LD_B}")
        g(f"s_add_u32 s{sT}, s{sT}, 1")
        step_begin(g, True)
        for k, items in sorted(unit_dma_list().items()): emit(g, items)
        g(f"s_branch {LD_go}")
        g.label(LD_B); g("s_barrier")
        g.label(LD_go)
    g.stamp("diag_start")
    if OPT.get('five', 1):
        def mod5(dst, src):
            g(f"s_mul_i32 s{dst}, s{src}, 0xcccd", f"s_lshr_b32 s{dst}, s{dst}, 18", f"s_mul_i32 s{dst}, s{dst}, 5", f"s_sub_u32 s{dst}, s{src}, s{dst}", f"s_lshl_b32 s{dst}, s{dst}, 15")
        g(f"s_add_u32 s{sT1}, s{sNB2}, s{sISA}", f"s_add_u32 s{sT1}, s{sT1}, 1"); mod5(sT2, sT1)
        g(f"s_add_u32 s{sT1}, s{sT1}, 2"); mod5(sT3, sT1)
        g(f"v_add_u32 v{V_CUR}, s{sT2}, v{V_L16}", f"v_add_u32 v{V_NXT}, s{sT3}, v{V_L16}")
        mod5(sFLAG, sNB2)
        g(f"v_mov_b32 v6, s{sFLAG}", "v_mov_b32 v7, 0", "ds_write_b32 v6, v7", "s_waitcnt lgkmcnt(0)")
    else:
        g(f"s_add_u32 s{sT1}, s{sNB2}, s{sISA}", f"s_add_u32 s{sT2}, s{sT1}, 1", f"s_and_b32 s{sT2}, s{sT2}, 3", f"s_lshl_b32 s{sT2}, s{sT2}, 15",
          f"s_add_u32 s{sT3}, s{sT1}, 3", f"s_and_b32 s{sT3}, s{sT3}, 3", f"s_lshl_b32 s{sT3}, s{sT3}, 15",
          f"v_add_u32 v{V_CUR}, s{sT2}, v{V_L16}", f"v_add_u32 v{V_NXT}, s{sT3}, v{V_L16}")
    Lm0, Lb1, Lfin = g.newlabel("m0"), g.newlabel("b1"), g.newlabel("fin")
    g(f"s_cmp_eq_u32 s{sSUB}, 0", f"s_cbranch_scc1 {Lm0}")
    diag_block(g, False); g(f"s_branch {Lb1}")
    g.label(Lm0); diag_block(g, True)
    g.label(Lb1)
    g("s_waitcnt vmcnt(0)", "s_barrier")
    g(f"s_cmp_eq_u32 s{sSUB}, 0", f"s_cbranch_scc1 {Lfin}")
    g(f"s_mov_b32 s{sCNT}, 1", f"v_add_u32 v{V_CUR}, 8192, v{V_CUR}")
    Ll, Llast = g.newlabel("dl"), g.newlabel("dlast")
    g.label(Ll)
    g(f"s_cmp_eq_u32 s{sCNT}, s{sSUB}", f"s_cbranch_scc1 {Llast}")
    diag_block(g, False)
    g(f"s_add_u32 s{sCNT}, s{sCNT}, 1", f"v_mov_b32 v{V_CUR}, v{V_NXT}", f"v_add_u32 v{V_NXT}, 8192, v{V_NXT}", f"s_branch {Ll}")
    g.label(Llast); diag_block(g, True)
    g.label(Lfin)
    if OPT.get('hook_fin'): OPT['hook_fin'](g)
    g.stamp("diag_done")
    if OPT.get('prioA', 1) or OPT.get('prioB'): g("s_setprio 0")
    cross_g(g, V_L0, 6, "v_add_f32"); cross_g(g, V_L1, 6, "v_add_f32")
    LFB, LOK = g.newlabel("fallback"), g.newlabel("ok")
    Lpass = g.newlabel("pass")
    g(f"s_cmp_lg_u32 s{sRESTART}, 0", f"s_cbranch_scc1 {Lpass}")
    if OPT.get('nocheck'): g(f"s_branch {Lpass}")
    g(f"s_mov_b32 s{sT1}, 0x21800000", f"s_mov_b32 s{sT2}, 0x5d800000",
      f"v_cmp_le_f32 vcc, s{sT1}, v{V_L0}", f"v_cmp_le_f32 s[56:57], s{sT1}, v{V_L1}", "s_nop 1", "s_and_b64 s[56:57], s[56:57], vcc",
      f"v_cmp_ge_f32 vcc, s{sT2}, v{V_L0}", "s_nop 1", "s_and_b64 s[56:57], s[56:57], vcc",
      f"v_cmp_ge_f32 vcc, s{sT2}, v{V_L1}", "s_nop 1", "s_and_b64 s[56:57], s[56:57], vcc")
    g("s_cmp_eq_u64 s[56:57], exec", f"s_cbranch_scc1 {Lpass}", f"v_mov_b32 v6, {('s%d' % sFLAG) if OPT.get('five', 1) else hex(LDS_FLAG)}", "v_mov_b32 v7, 1", "ds_write_b32 v6, v7")
    g.label(Lpass)
    g.vm = []
    g(f"v_rcp_f32 v{V_L0}, v{V_L0}", f"v_rcp_f32 v{V_L1}, v{V_L1}", "s_nop 7")
    g(f"s_lshl_b32 s{sT1}, s{sT16}, 17", f"s_lshl_b32 s{sT2}, s{sHEAD}, 12", f"s_add_u32 s{sT1}, s{sT1}, s{sT2}", f"s_add_u32 s{sT1}, s{sT1}, {hex(WS_CTX)}")
    for qs in range(2):
        for s in range(4):
            a = V_O + (qs*8 + 2*s)*4
            for k in range(8): g(f"v_mul_f32 v{a+k}, v{a+k}, v{V_L0+qs}")
            for k in range(4): g(f"v_cvt_pk_bf16_f32 v{a+k}, v{a+2*k}, v{a+2*k+1}")
            g.vmem(f"buffer_store_dwordx4 v[{a}:{a+3}], v{V_L16}, s[{S_WS}:{S_WS+3}], s{sT1} offen offset:{s*1024}{SC1 if fused else ''}", 'ctxst')
        if qs == 0: g(f"s_add_u32 s{sT1}, s{sT1}, 0x20000")
    g("s_waitcnt lgkmcnt(0)", "s_barrier", f"v_mov_b32 v6, {('s%d' % sFLAG) if OPT.get('five', 1) else hex(LDS_FLAG)}", "ds_read_b32 v7, v6", "s_waitcnt lgkmcnt(0)", "s_nop 0",
      f"v_readfirstlane_b32 s{sT1}, v7", "s_nop 3", f"s_cmp_lg_u32 s{sRESTART}, 0", f"s_cselect_b32 s{sT1}, 0, s{sT1}", f"s_cmp_lg_u32 s{sT1}, 0", f"s_cbranch_scc1 {LFB}")
    g.stamp("ctx_stored")
    if Gen.STAMP and not fused:
        g("s_waitcnt vmcnt(0)"); g.stamp("att_end"); g.dump_stamps(sWAVE, 2)
    if fused: g.stamp("att_end")
    vm_at_end = list(g.vm)
    LEND = g.newlabel("attend")
    g(f"s_branch {LEND}")
    g.label(LFB)
    g("s_waitcnt vmcnt(0)")
    g(f"s_mov_b32 s{sRESTART}, 1", "v_mov_b32 v6, 0xff800000", "v_mov_b32 v7, 0xff800000", f"v_mov_b32 v{V_L0}, 0xff800000")
    g(f"s_cmp_eq_u32 s{sISA}, 0", f"s_cselect_b32 s{sT3}, s{sNB2}, s{sNA2}", f"s_lshl_b32 s{sT3}, s{sT3}, 1", f"s_add_u32 s{sCNT}, s{sT3}, s{sSUB}")
    g(f"s_mov_b32 s{sT}, 0")
    Lf, Lf2 = g.newlabel("fb"), g.newlabel("fbn")
    g.label(Lf)
    g("s_barrier")
    Lnod = g.newlabel("fbnod")
    g(f"s_cmp_eq_u32 s{sISA}, 0", f"s_cbranch_scc1 {Lnod}")
    g(f"s_lshl_b32 s{sKO}, s{sT}, 14", f"s_add_u32 s{sKO}, s{sKO}, s{sKF}", f"s_mov_b32 m0, s{sA4}", "s_nop 0")
    for k in range(4): g(f"buffer_load_dwordx4 v{V_L16}, s[{S_WS}:{S_WS+3}], s{sKO} offen offset:{k*1024}{SC1} lds")
    g("s_waitcnt vmcnt(0)")
    g.label(Lnod)
    g("s_barrier")
    for jj in range(2):
        Lskip, Lmask, Lnext = g.newlabel("fs"), g.newlabel("fm"), g.newlabel("fx")
        g(f"s_lshl_b32 s{sT1}, s{sT}, 1", f"s_add_u32 s{sT1}, s{sT1}, {jj}", f"v_add_u32 v{V_CUR}, {jj*8192}, v{V_L16}")
        g(f"s_cmp_gt_u32 s{sT1}, s{sCNT}", f"s_cbranch_scc1 {Lnext}", f"s_cmp_eq_u32 s{sT1}, s{sCNT}", f"s_cbranch_scc1 {Lmask}")
        diag_block(g, False, maxonly=True); g(f"s_branch {Lnext}")
        g.label(Lmask); diag_block(g, True, maxonly=True)
        g.label(Lnext)
    g(f"s_add_u32 s{sT}, s{sT}, 1", f"s_add_u32 s{sT1}, s{sNB2}, 2", f"s_cmp_lt_u32 s{sT}, s{sT1}", f"s_cbranch_scc1 {Lf}")
    for qs in range(2):
        cross_g(g, 6+qs, V_L1, "v_max_f32")
        for k in range(4): g(f"v_sub_f32 v{V_NEG+4*qs+k}, 0, v{6+qs}")
    g("s_barrier")
    sv = g.vm; g.vm = []
    for u in range(3): emit(g, unit_fn(u))
    g.vm = sv
    g(f"s_branch {L_START}")
    g.label(LEND)
    g.vm = vm_at_end
```

```python
from core import *
import p_kv, p_att, p_mod
from p_kv import emit, V_W0, V_W1, V_L16, V_TR, V_FR, V_ACC, V_C0, V_C1, V_SR, setup_dma128, setup_tr128, tr_reads
from p_att import *
from p_mod import LOG2E, QSCALE

S_WS, S_DBG, S_A, S_B, S_C2 = 4, 8, 12, 16, 56
p_att.S_WS = S_WS
sCROW, sSTB, sSTG = 43, 54, 55
sHKV, sKB, sWBKV = 84, 87, 85
OOB = 0x7ff00000
KNAME = 'mega_kernel'
sOOB = 86
C_START, C_MOD2 = 0, 32
C_H, C_KV, C_CTX, C_H2, C_ACT = 0, 8, 40, 48, 56

SLOT = [0,1,2,3, 0,1, 2,4,5,6,7,8,9, 3, 0, 1,   2,4,5,3,6,7,8,9]
HSCHED = {52 + k: [k] for k in range(16)}
ISSUE = {1:[3, 4], 2:[5], 3:[6, 7], 4:[8, 9], 5:[10, 11], 6:[12, 13], 7:[14, 15], 8:[16], 9:[17], 10:[18], 11:[20], 12:[21], 13:[22], 14:[19], 15:[23]}

def poll_issue(g, vdst, srd, soff, tag, st):
    g(f"s_cmp_eq_u32 s{sWAVE}, 0", f"s_cselect_b32 s{st}, s{soff}, s{sOOB}")
    g.vmem(f"buffer_load_dword v{vdst}, off, s[{srd}:{srd+3}], s{st} sc1", tag)
def poll_check(g, vdst, srd, tag, soff, target, t1, t2):
    ok, loop = g.newlabel("pok"), g.newlabel("ploop")
    g.wait_vm(tag)
    g(f"s_cmp_lg_u32 s{sWAVE}, 0", f"s_cbranch_scc1 {ok}")
    g(f"v_readfirstlane_b32 s{t1}, v{vdst}", "s_nop 3", f"s_cmp_ge_u32 s{t1}, {target}")
    g(f"s_cbranch_scc1 {ok}", f"s_mov_b32 s{t2}, 0x40000")
    g.label(loop)
    g(f"s_sleep {OPT.get('psleep', 4)}", f"buffer_load_dword v{vdst}, off, s[{srd}:{srd+3}], s{soff} sc1", "s_waitcnt vmcnt(0)")
    g(f"v_readfirstlane_b32 s{t1}, v{vdst}", "s_nop 3", f"s_cmp_ge_u32 s{t1}, {target}")
    g(f"s_cbranch_scc1 {ok}", f"s_sub_u32 s{t2}, s{t2}, 1", f"s_cmp_lg_u32 s{t2}, 0", f"s_cbranch_scc1 {loop}")
    g.label(ok)
def signal(g, srd, soff, vt, st, lo=None, hi=None):
    g(f"s_cmp_eq_u32 s{sWAVE}, 0", f"s_cselect_b32 s{st}, {('s%d' % soff[1]) if isinstance(soff, tuple) else soff}, s{sOOB}")
    if lo is not None:
        g(f"s_cmp_ge_u32 s3, {lo}", f"s_cselect_b32 s{st}, s{st}, s{sOOB}", f"s_cmp_lt_u32 s3, {hi}", f"s_cselect_b32 s{st}, s{st}, s{sOOB}")
    g(f"v_mov_b32 v{vt}, 1", "s_mov_b64 exec, 1")
    g.vmem(f"buffer_atomic_add v{vt}, off, s[{srd}:{srd+3}], s{st} sc1", 'sig')
    g("s_mov_b64 exec, -1")
def cnt_off(g, dst, base, idx_s):
    g(f"s_lshl_b32 s{dst}, s{idx_s}, 7", f"s_add_u32 s{dst}, s{dst}, {hex(WS_CNT + base*128)}")

def code_touch(g, kname, seg_s, nseg_bits, first_seg, vt, vdst, st):
    lab = g.newlabel("pc")
    g(f"s_getpc_b64 s[{st}:{st+1}]")
    g.label(lab)
    g(f"s_sub_u32 s{st}, s{st}, {lab}-{kname}", f"s_subb_u32 s{st+1}, s{st+1}, 0")
    g(f"s_and_b32 s{st+2}, s{seg_s}, {(1 << nseg_bits) - 1}", f"s_add_u32 s{st+2}, s{st+2}, {first_seg}", f"s_lshl_b32 s{st+2}, s{st+2}, 13")
    g(f"v_lshlrev_b32 v{vt}, 7, v0", f"v_add_u32 v{vt}, s{st+2}, v{vt}", f"v_min_u32 v{vt}, L_end_{kname}-{kname}, v{vt}")
    g(f"v_mov_b32 v{vt+1}, s{st+1}", f"v_add_co_u32 v{vt}, vcc, s{st}, v{vt}", "s_nop 1", f"v_addc_co_u32 v{vt+1}, vcc, 0, v{vt+1}, vcc")
    g(f"global_load_dword v{vdst}, v[{vt}:{vt+1}], off")

def front(g, fused=False):
    g(f"s_load_dwordx2 s[4:5], s[0:1], {KA['ws']}", f"s_load_dwordx2 s[8:9], s[0:1], {KA['dbg']}",
      f"s_load_dwordx2 s[12:13], s[0:1], {KA['ckv']}", f"s_load_dwordx2 s[16:17], s[0:1], {KA['wuk']}",
      f"s_load_dwordx2 s[56:57], s[0:1], {KA['wuv']}", f"s_load_dwordx2 s[88:89], s[0:1], {KA['x']}",
      f"s_load_dwordx2 s[92:93], s[0:1], {KA['wmod']}", f"s_load_dwordx2 s[96:97], s[0:1], {KA['c']}")
    g.stamp("entry")
    g(f"s_sub_u32 s3, s2, {OPT.get('modbase', 64)}", "s_min_u32 s3, s3, 96")
    g("v_lshrrev_b32 v14, 6, v0", "v_and_b32 v0, 63, v0", "s_nop 0", f"v_readfirstlane_b32 s{sWAVE}, v14")
    g(f"s_and_b32 s{sHEAD}, s2, 7", f"s_lshl_b32 s{sHEAD}, s{sHEAD}, 2", f"s_bfe_u32 s{sT1}, s2, 0x20003", f"s_add_u32 s{sHEAD}, s{sHEAD}, s{sT1}")
    g(f"s_lshr_b32 s{sI}, s2, 5", f"s_lshr_b32 s{sISA}, s{sWAVE}, 2")
    g(f"s_sub_u32 s{sT1}, 7, s{sWAVE}", f"s_sub_u32 s{sT2}, 15, s{sI}", f"s_cmp_eq_u32 s{sISA}, 0",
      f"s_cselect_b32 s{sSUB}, s{sWAVE}, s{sT1}", f"s_cselect_b32 s{sT3}, s{sT2}, s{sI}")
    g(f"s_lshl_b32 s{sT16}, s{sT3}, 3", f"s_lshl_b32 s{sT1}, s{sSUB}, 1", f"s_add_u32 s{sT16}, s{sT16}, s{sT1}")
    g(f"s_lshl_b32 s{sNB2}, s{sT2}, 1", f"s_lshl_b32 s{sNA2}, s{sI}, 1", f"s_lshl_b32 s{sNBo}, s{sT2}, 15", f"s_lshl_b32 s{sNAo}, s{sI}, 15")
    g(f"s_and_b32 s{sA4}, s{sWAVE}, 3", f"s_lshl_b32 s{sA4}, s{sA4}, 12")
    g(f"s_mul_i32 s{sT1}, s{sHEAD}, {HST}", f"s_add_u32 s{sT1}, s{sT1}, s{sA4}",
      f"s_add_u32 s{sKF}, s{sT1}, {hex(WS_KF)}", f"s_add_u32 s{sVF}, s{sT1}, {hex(WS_VF)}")
    g(f"s_and_b32 s{sKB}, s2, 1", f"s_lshl_b32 s{sKB}, s{sKB}, 2", f"s_bfe_u32 s{sT1}, s2, 0x20003", f"s_add_u32 s{sKB}, s{sKB}, s{sT1}")
    g(f"s_bfe_u32 s{sHKV}, s2, 0x20001", f"s_lshl_b32 s{sHKV}, s{sHKV}, 3", f"s_lshr_b32 s{sT1}, s2, 5", f"s_xor_b32 s{sT1}, s{sT1}, {OPT.get('hx', 0)}", f"s_add_u32 s{sHKV}, s{sHKV}, s{sT1}")
    g("v_lshrrev_b32 v14, 3, v0", "v_lshlrev_b32 v1, 10, v14", "v_lshrrev_b32 v14, 4, v0", "v_and_b32 v15, 7, v0", "v_xor_b32 v14, v14, v15",
      "v_xor_b32 v15, 4, v14", "v_lshl_add_u32 v2, v15, 4, v1", "v_lshl_add_u32 v1, v14, 4, v1", f"v_add_u32 v2, {8*1024-1024}, v2")
    setup_dma128(g, 8192); setup_tr128(g)
    g(f"s_mul_i32 s{sSTG}, s{sWAVE}, 12288", f"s_add_u32 s{sSTG}, s{sSTG}, {4*16384}",
      "v_and_b32 v14, 15, v0", "v_lshlrev_b32 v10, 7, v14", "v_lshrrev_b32 v14, 1, v14", "v_lshrrev_b32 v15, 4, v0", "v_xor_b32 v14, v14, v15",
      "v_lshl_add_u32 v10, v14, 4, v10", f"v_add_u32 v10, s{sSTG}, v10", "v_xor_b32 v11, 64, v10")
    g(f"v_lshlrev_b32 v{V_L16}, 4, v0")
    g(f"s_lshl_b32 s{sT1}, s{sKB}, 8", f"s_lshl_b32 s{sCROW}, s{sWAVE}, 5", f"s_add_u32 s{sCROW}, s{sT1}, s{sCROW}", f"s_lshl_b32 s{sCROW}, s{sCROW}, 10")
    g(f"s_lshl_b32 s{sWB}, s{sWAVE}, 17", f"s_lshl_b32 s{sT1}, s{sHEAD}, 8", f"s_add_u32 s{sWB}, s{sWB}, s{sT1}", f"s_lshl_b32 s{sM0B}, s{sWAVE}, 11")
    g(f"s_lshl_b32 s{sWBKV}, s{sWAVE}, 17", f"s_lshl_b32 s{sT1}, s{sHKV}, 8", f"s_add_u32 s{sWBKV}, s{sWBKV}, s{sT1}")
    g(f"s_mul_i32 s{sSTB}, s{sHKV}, {HST}", f"s_lshl_b32 s{sT1}, s{sKB}, 3", f"s_add_u32 s{sT1}, s{sT1}, s{sWAVE}", f"s_lshl_b32 s{sT1}, s{sT1}, 13", f"s_add_u32 s{sSTB}, s{sSTB}, s{sT1}")
    g("v_lshrrev_b32 v14, 4, v0", "v_lshlrev_b32 v14, 2, v14", "v_and_b32 v15, 15, v0")
    for r in range(4):
        g(f"v_cmp_le_u32 s[{sMASK+2*r}:{sMASK+2*r+1}], v14, v15")
        if r < 3: g("v_add_u32 v14, 1, v14")
    g(f"s_mov_b32 s{sRESTART}, 0", f"s_mov_b32 s{sOOB}, {hex(OOB)}")
    g.stamp("pre_karg")
    g("s_waitcnt lgkmcnt(0)")
    g.stamp("karg")
    for s, n in ((S_WS, 'ws'), (S_DBG, 'dbg'), (S_A, 'ckv'), (S_B, 'wuk'), (S_C2, 'wuv'), (88, 'x'), (92, 'wmod'), (96, 'c')):
        finish_srd(g, s, n)
    def dma(c):
        if c < 16:
            j, q = c >> 2, c & 3
            srd = S_B if j < 2 else S_C2
            off = q*0x100000 + (j & 1)*128
        else:
            j, q = (c - 16) >> 2, c & 3
            srd = S_B; off = q*0x100000 + j*128
        base = sWBKV if c < 16 else sWB
        if OPT.get('bdma_hack'):
            lab = g.newlabel("nodma")
            return [f"s_cmp_lg_u32 s{sISA}, 0", f"s_cbranch_scc1 {lab}",
                    f"s_add_u32 s{sT1}, s{base}, {hex(off)}", f"s_add_u32 m0, s{sM0B}, {hex(SLOT[c]*16384)}",
                    (f"buffer_load_dwordx4 v{V_W0}, s[{srd}:{srd+3}], s{sT1} offen lds", ('W', c)),
                    (f"buffer_load_dwordx4 v{V_W1}, s[{srd}:{srd+3}], s{sT1} offen offset:1024 lds", ('W', c)),
                    f"s_add_u32 s{sT1}, s{sT1}, {4*16*8192}", f"s_add_u32 m0, m0, {4*2048}", "s_nop 0",
                    f"buffer_load_dwordx4 v{V_W0}, s[{srd}:{srd+3}], s{sT1} offen lds",
                    f"buffer_load_dwordx4 v{V_W1}, s[{srd}:{srd+3}], s{sT1} offen offset:1024 lds", lab + ":"]
        return [f"s_add_u32 s{sT1}, s{base}, {hex(off)}", f"s_add_u32 m0, s{sM0B}, {hex(SLOT[c]*16384)}",
                (f"buffer_load_dwordx4 v{V_W0}, s[{srd}:{srd+3}], s{sT1} offen lds", ('W', c)),
                (f"buffer_load_dwordx4 v{V_W1}, s[{srd}:{srd+3}], s{sT1} offen offset:1024 lds", ('W', c))]
    def stage(p):
        out = []
        for hf in range(2):
            out += [f"s_add_u32 s{sT1}, s{sCROW}, {p*128 + hf*16384}", f"s_add_u32 m0, s{sSTG}, {(p%3)*4096 + hf*2048}",
                    (f"buffer_load_dwordx4 v{V_C0}, s[{S_A}:{S_A+3}], s{sT1} offen lds", ('P', p)),
                    (f"buffer_load_dwordx4 v{V_C1}, s[{S_A}:{S_A+3}], s{sT1} offen offset:1024 lds", ('P', p))]
        return out
    def stage_reads(p):
        return [f"ds_read_b128 a[{(s*2+t)*4}:{(s*2+t)*4+3}], v{V_SR+(s&1)} offset:{(p%3)*4096 + t*2048}" for s in (2*p, 2*p+1) for t in range(2)]
    MC, MW, MT, MA = 96, 100, 116, 120
    def mod_loads(lo, hi):
        g(f"s_cmp_ge_u32 s3, {lo}", f"s_cselect_b32 s{sT2}, 0, s{sOOB}", f"s_cmp_lt_u32 s3, {hi}", f"s_cselect_b32 s{sT2}, s{sT2}, s{sOOB}")
        g(f"v_and_b32 v{MT}, 3, v0", f"v_lshrrev_b32 v{MT+1}, 2, v0", f"s_lshl_b32 s{sT1}, s{sWAVE}, 4", f"v_add_u32 v{MT+1}, s{sT1}, v{MT+1}")
        g(f"s_movk_i32 s{sT1}, 6144", f"v_mul_lo_u32 v{MT+2}, v{MT+1}, s{sT1}", f"v_lshl_add_u32 v{MT+2}, v{MT}, 4, v{MT+2}", f"s_lshl_b32 s{sT1}, s3, 6", f"v_add_u32 v{MT+2}, s{sT1}, v{MT+2}")
        g(f"v_lshlrev_b32 v{MT+3}, 1, v{MT+1}")
        for t in range(4):
            g.vmem(f"buffer_load_ushort v{MC+t}, v{MT+3}, s[96:99], s{sT2} offen offset:{t*256}", 'mc')
        for t in range(4):
            g(f"s_add_u32 s{sT1}, s{sT2}, {hex(t*128*6144)}")
            g.vmem(f"buffer_load_dwordx4 v[{MW+4*t}:{MW+3+4*t}], v{MT+2}, s[92:95], s{sT1} offen", ('mw', t))
    def mod_partial(lo, hi, lds):
        skip = g.newlabel("modp")
        g.stamp("mo_pre"); g.wait_vm(('mw', 3)); g.stamp("mo_w")
        g(f"s_cmp_ge_u32 s3, {lo}", f"s_cbranch_scc0 {skip}", f"s_cmp_lt_u32 s3, {hi}", f"s_cbranch_scc0 {skip}")
        g(f"s_mov_b32 s{sT1}, {hex(LOG2E)}")
        for t in range(4): g(f"v_lshlrev_b32 v{MC+t}, 16, v{MC+t}")
        for t in range(4): g(f"v_mul_f32 v{MT+t}, s{sT1}, v{MC+t}")
        for t in range(4): g(f"v_exp_f32 v{MT+t}, -v{MT+t}")
        g("s_nop 0")
        for t in range(4): g(f"v_add_f32 v{MT+t}, 1.0, v{MT+t}")
        for t in range(4): g(f"v_rcp_f32 v{MT+t}, v{MT+t}")
        g("s_nop 0")
        for t in range(4): g(f"v_mul_f32 v{MC+t}, v{MC+t}, v{MT+t}")
        g(f"s_mov_b32 s{sT2}, 0xffff0000")
        for t in range(4):
            for d in range(4):
                w = MW + 4*t + d
                g(f"v_lshlrev_b32 v{MT}, 16, v{w}", f"v_and_b32 v{MT+1}, s{sT2}, v{w}")
                if t == 0: g(f"v_mul_f32 v{MA+2*d}, v{MC}, v{MT}", f"v_mul_f32 v{MA+1+2*d}, v{MC}, v{MT+1}")
                else: g(f"v_fmac_f32 v{MA+2*d}, v{MC+t}, v{MT}", f"v_fmac_f32 v{MA+1+2*d}, v{MC+t}, v{MT+1}")
        for r in (8, 4):
            g("s_nop 1")
            for e in range(8): g(f"v_add_f32_dpp v{MA+e}, v{MA+e}, v{MA+e} row_ror:{r} row_mask:0xf bank_mask:0xf")
        g(f"v_lshrrev_b32 v{MT+1}, 4, v0", f"s_lshl_b32 s{sT1}, s{sWAVE}, 2", f"v_add_u32 v{MT+1}, s{sT1}, v{MT+1}", f"v_lshlrev_b32 v{MT+1}, 7, v{MT+1}",
          f"v_and_b32 v{MT}, 3, v0", f"v_lshl_add_u32 v{MT+1}, v{MT}, 5, v{MT+1}", f"v_add_u32 v{MT+1}, {lds}, v{MT+1}")
        g(f"v_and_b32 v{MT}, 15, v0", f"v_cmp_gt_u32 vcc, 4, v{MT}", "s_nop 1", "s_mov_b64 exec, vcc")
        g(f"ds_write_b128 v{MT+1}, v[{MA}:{MA+3}]", f"ds_write_b128 v{MT+1}, v[{MA+4}:{MA+7}] offset:16")
        g("s_mov_b64 exec, -1", "s_waitcnt lgkmcnt(0)")
        g.label(skip)
        g.stamp("mo_p")
    def mod_final(lo, hi, lds):
        lskip = g.newlabel("modfin")
        g(f"s_cmp_ge_u32 s3, {lo}", f"s_cselect_b32 s{sT2}, 0, s{sOOB}", f"s_cmp_lt_u32 s3, {hi}", f"s_cselect_b32 s{sT2}, s{sT2}, s{sOOB}",
          f"s_cmp_eq_u32 s{sWAVE}, 0", f"s_cselect_b32 s{sT2}, s{sT2}, s{sOOB}")
        g(f"s_cmp_lg_u32 s{sT2}, 0", f"s_cbranch_scc1 {lskip}")
        g(f"v_and_b32 v{MT}, 31, v0", f"v_lshlrev_b32 v{MT}, 2, v{MT}", f"v_lshrrev_b32 v{MT+1}, 5, v0", f"v_lshl_add_u32 v{MT}, v{MT+1}, 11, v{MT}", f"v_add_u32 v{MT}, {lds}, v{MT}")
        g("s_waitcnt lgkmcnt(0)")
        for r in range(16):
            if r == 15: g("s_waitcnt lgkmcnt(7)")
            g(f"ds_read_b32 v{MW+r}, v{MT} offset:{r*128}")
        g("s_waitcnt lgkmcnt(0)")
        for st in (8, 4, 2, 1):
            for k in range(st): g(f"v_add_f32 v{MW+k}, v{MW+k}, v{MW+k+st}")
        g(f"v_mov_b32 v{MW+1}, v{MW}", "s_nop 1", f"v_permlane32_swap_b32 v{MW}, v{MW+1}", f"v_add_f32 v{MW}, v{MW}, v{MW+1}")
        g.label(lskip)
        g(f"v_lshlrev_b32 v{MT}, 2, v0", "v_cmp_gt_u32 vcc, 32, v0", f"v_mov_b32 v{MT+1}, {hex(OOB)}", "s_nop 0", f"v_cndmask_b32 v{MT}, v{MT+1}, v{MT}, vcc")
        g(f"s_lshl_b32 s{sT1}, s3, 7", f"s_add_u32 s{sT1}, s{sT1}, {hex(WS_MOD)}", f"s_add_u32 s{sT1}, s{sT1}, s{sT2}")
        g.vmem(f"buffer_store_dword v{MW}, v{MT}, s[{S_WS}:{S_WS+3}], s{sT1} offen sc1", 'modst')
        g.stamp("mo_f")
        g(f"s_lshl_b32 s{sT1}, s3, 7", f"s_add_u32 s{sT1}, s{sT1}, {hex(WS_CNT)}", "s_cmp_lt_u32 s3, 32", f"s_cselect_b32 s{sT1}, s{sT1}, s{sOOB}",
          f"s_cmp_eq_u32 s{sWAVE}, 0", f"s_cselect_b32 s{sT1}, s{sT1}, s{sOOB}", f"v_mov_b32 v{MT+2}, 0", f"v_lshlrev_b32 v{MT+3}, 12, v0", "s_mov_b64 exec, 15")
        g.vmem(f"buffer_store_dword v{MT+2}, v{MT+3}, s[{S_WS}:{S_WS+3}], s{sT1} offen sc1", 'modst')
        g("s_mov_b64 exec, -1")
    def c_touch():
        g(f"s_lshr_b32 s{sT1}, s2, 5", f"s_mul_i32 s{sT1}, s{sT1}, 160", f"s_lshl_b32 s{sT2}, s{sWAVE}, 6", f"s_add_u32 s{sT1}, s{sT1}, s{sT2}", f"v_add_u32 v56, s{sT1}, v0")
        g(f"v_add_u32 v57, s{sT2}, v0", "v_mov_b32 v58, 0xcccd", "v_mul_u32_u24 v58, v56, v58", "v_lshrrev_b32 v58, 18, v58")
        g("v_mul_u32_u24 v59, 5, v58", "v_sub_u32 v59, v56, v59", "v_add_u32 v59, 3, v59", "v_lshlrev_b32 v59, 7, v59", "v_lshl_add_u32 v59, v58, 10, v59")
        g(f"s_lshl_b32 s{sT1}, s{sKB}, 18", f"v_add_u32 v59, s{sT1}, v59", "v_cmp_gt_u32 vcc, 160, v57", f"v_mov_b32 v58, {hex(OOB)}", "s_nop 0", "v_cndmask_b32 v59, v58, v59, vcc")
        g.vmem(f"buffer_load_dword v12, v59, s[{S_A}:{S_A+3}], 0 offen", 'tc')
    def w_touch_lin():
        g(f"s_lshl_b32 s{sT1}, s2, 2", f"s_and_b32 s{sT2}, s{sWAVE}, 3", f"s_add_u32 s{sT1}, s{sT1}, s{sT2}")
        g(f"s_and_b32 s{sT2}, s{sT1}, 511", f"s_lshl_b32 s{sT2}, s{sT2}, 13", f"s_cmp_lt_u32 s{sWAVE}, 4", f"s_cselect_b32 s{sT2}, s{sT2}, s{sOOB}")
        g("v_lshlrev_b32 v15, 7, v0", f"s_cmp_lt_u32 s{sT1}, 512", f"s_cselect_b32 s{sT3}, s{sT2}, s{sOOB}")
        g.vmem(f"buffer_load_dword v13, v15, s[{S_B}:{S_B+3}], s{sT3} offen", 'tw')
        g(f"s_cmp_lt_u32 s{sT1}, 512", f"s_cselect_b32 s{sT3}, s{sOOB}, s{sT2}")
        g.vmem(f"buffer_load_dword v14, v15, s[{S_C2}:{S_C2+3}], s{sT3} offen", 'tw')
    def w_touch():
        g(f"s_and_b32 s{sT1}, s{sKB}, 3", f"s_lshl_b32 s{sT1}, s{sT1}, 9", f"s_lshl_b32 s{sT2}, s{sWAVE}, 6", f"s_add_u32 s{sT1}, s{sT1}, s{sT2}", f"v_add_u32 v14, s{sT1}, v0")
        g("v_bfe_u32 v15, v14, 1, 9", "v_lshlrev_b32 v15, 13, v15", "v_and_b32 v14, 1, v14", "v_lshl_add_u32 v15, v14, 7, v15", f"s_lshl_b32 s{sT2}, s{sHKV}, 8", f"v_add_u32 v15, s{sT2}, v15")
        g(f"s_bitcmp1_b32 s{sKB}, 1", f"s_cselect_b32 s{sT2}, s{sOOB}, 0")
        g.vmem(f"buffer_load_dword v13, v15, s[{S_B}:{S_B+3}], s{sT2} offen", 'tw')
        g(f"s_cselect_b32 s{sT2}, 0, s{sOOB}")
        g.vmem(f"buffer_load_dword v14, v15, s[{S_C2}:{S_C2+3}], s{sT2} offen", 'tw')
    if OPT.get('fprio'):
        lp = g.newlabel("fp")
        g(f"s_cmp_eq_u32 s{sISA}, {0 if OPT['fprio'] == 1 else 1}", f"s_cbranch_scc1 {lp}", "s_setprio 1"); g.label(lp)
    if OPT.get('ctouch', 1) and not Gen.STAMP:
        lsk = g.newlabel("noct")
        g(f"s_cmp_lg_u32 s{sWAVE}, 7", f"s_cbranch_scc1 {lsk}", f"s_lshr_b32 s{sT1}, s2, 3")
        code_touch(g, KNAME, sT1, 3, 0, 16, 18, 60 if not Gen.STAMP else 96)
        g.label(lsk)
    pv = OPT.get('pro', 4)
    bar = (lambda: g("s_barrier")) if pv in (0, 2, 3, 5) else (lambda: None)
    if pv == 10: mod_loads(0, 96)
    emit(g, dma(0)); emit(g, stage(0)); g.stamp("iss0"); bar()
    if pv == 10:
        emit(g, stage(1)); emit(g, dma(1)); emit(g, stage(2)); emit(g, dma(2))
    elif pv == 3:
        emit(g, stage(1)); emit(g, dma(1)); bar(); emit(g, stage(2)); c_touch(); emit(g, dma(2)); mod_loads(0, 96)
    elif pv == 6:
        emit(g, stage(1)); emit(g, dma(1)); emit(g, stage(2)); emit(g, dma(2)); mod_loads(0, 96)
    elif pv == 7:
        emit(g, stage(1)); emit(g, dma(1)); emit(g, stage(2)); c_touch(); emit(g, dma(2)); mod_loads(0, 96)
    elif pv == 8:
        emit(g, stage(1)); mod_loads(0, 96); emit(g, dma(1)); emit(g, stage(2)); emit(g, dma(2))
    elif pv == 5:
        emit(g, stage(1)); emit(g, dma(1)); emit(g, stage(2)); bar(); emit(g, dma(2)); mod_loads(0, 96)
    else:
        if pv != 2: c_touch()
        emit(g, stage(1)); mod_loads(0, 96); g.stamp("iss1"); bar()
        emit(g, dma(1)); emit(g, stage(2)); emit(g, dma(2)); g.stamp("iss2")
    g(f"s_lshl_b32 s{sT1}, s{sHEAD}, 3", f"s_add_u32 s{sT1}, s{sT1}, s{sWAVE}", f"s_lshl_b32 s{sT2}, s{sI}, 7", f"s_add_u32 s{sT2}, s{sT2}, s{sT1}",
      f"s_sub_u32 s{sT3}, 14, s{sI}", f"s_lshl_b32 s{sT3}, s{sT3}, 7", f"s_add_u32 s{sT3}, s{sT3}, s{sT1}",
      f"s_cmp_lt_u32 s{sT1}, 128", f"s_cselect_b32 s{sCNT}, s{sT2}, s{sT3}")
    if pv == 10: mod_partial(0, 96, 3*16384)
    g.wait_vm(('P', 0)); g.stamp("p0"); g(stage_reads(0))
    g.wait_vm(('W', 0)); g("s_waitcnt lgkmcnt(0)", "s_barrier")
    g.stamp("w0_landed")
    emit(g, stage(3))
    if pv == 10: mod_final(0, 96, 3*16384)
    second = 512
    g(tr_reads(0, 0, second)); r1 = tr_reads(1, 1, second)
    g(r1[:7]); g("s_waitcnt lgkmcnt(7)"); g(r1[7])
    NKS, NCH = 96, 24
    def epilogue(j):
        buf = V_ACC + (j & 1) * 32
        A = lambda t, cb: buf + (t * 4 + cb) * 4
        groups = []
        for i in range(4):
            if j < 2:
                t, u = i >> 1, i & 1
                a, b = A(t, 2*u), A(t, 2*u+1); off = WS_KF + (t * 4 + 2*j + u) * 1024
            else:
                a, b = A(0, i), A(1, i); off = WS_VF + (4*(j-2) + i) * 1024
            grp = [f"v_cvt_pk_bf16_f32 v{a}, v{a}, v{a+1}", f"v_cvt_pk_bf16_f32 v{a+1}, v{a+2}, v{a+3}",
                   f"v_cvt_pk_bf16_f32 v{a+2}, v{b}, v{b+1}", f"v_cvt_pk_bf16_f32 v{a+3}, v{b+2}, v{b+3}"]
            st = [f"s_add_u32 s{sT1}, s{sSTB}, {hex(off)}", (f"buffer_store_dwordx4 v[{a}:{a+3}], v{V_L16}, s[{S_WS}:{S_WS+3}], s{sT1} offen{'' if OPT.get('kvplain') else ' sc1'}", ('st', j))]
            groups.append((grp, st))
        return groups
    def hload(s):
        out = []
        for t in range(2):
            out += [f"s_lshl_b32 s{sT1}, s{sT16}, 14", f"s_add_u32 s{sT1}, s{sT1}, {hex(WS_H + t*16384 + s*1024)}",
                    (f"buffer_load_dwordx4 a[{(s*2+t)*4}:{(s*2+t)*4+3}], v{V_L16}, s[{S_WS}:{S_WS+3}], s{sT1} offen sc1", ('H', s))]
        return out
    def ln1_loads():
        g(f"v_lshlrev_b32 v1, 5, v0", f"s_mov_b32 s{sT1}, {hex(WS_MOD)}")
        for k, off in enumerate((0, 16, 2048, 2064)):
            g.vmem(f"buffer_load_dwordx4 v[{72+4*k}:{75+4*k}], v1, s[{S_WS}:{S_WS+3}], s{sT1} offen offset:{off} sc1", 'lnm')
    def wsum_items(v, t):
        out = []
        for r in (8, 4, 2, 1): out += ["s_nop 1", f"v_add_f32_dpp v{v}, v{v}, v{v} row_ror:{r} row_mask:0xf bank_mask:0xf"]
        out += [f"v_mov_b32 v{t}, v{v}", "s_nop 1", f"v_permlane16_swap_b32 v{v}, v{t}", f"v_add_f32 v{v}, v{v}, v{t}"]
        out += [f"v_mov_b32 v{t}, v{v}", "s_nop 1", f"v_permlane32_swap_b32 v{v}, v{t}", f"v_add_f32 v{v}, v{v}, v{t}"]
        return out
    def ln1_stats_items():
        it = []
        for d in range(4): it += [f"v_lshlrev_b32 v{64+2*d}, 16, v{12+d}", f"v_and_b32 v{65+2*d}, 0xffff0000, v{12+d}"]
        it += ["v_add_f32 v10, v64, v65", "v_add_f32 v11, v66, v67", "v_add_f32 v10, v10, v11", "v_add_f32 v11, v68, v69", "v_add_f32 v10, v10, v11", "v_add_f32 v11, v70, v71", "v_add_f32 v10, v10, v11"]
        it += wsum_items(10, 11) + ["v_mul_f32 v10, 0x3b000000, v10"]
        it += [f"v_sub_f32 v{64+e}, v{64+e}, v10" for e in range(8)]
        it += ["v_mul_f32 v11, v64, v64"] + [f"v_fmac_f32 v11, v{64+e}, v{64+e}" for e in range(1, 8)]
        it += wsum_items(11, 10)
        it += ["v_mov_b32 v10, 0x3727c5ac", "v_fmac_f32 v10, 0x3b000000, v11", "v_rsq_f32 v10, v10", "s_nop 0", f"v_mul_f32 v10, {hex(QSCALE)}, v10"]
        it += [f"v_mul_f32 v{64+e}, v{64+e}, v10" for e in range(8)]
        return it
    def ln1_mod_items():
        it = [f"v_add_f32 v{80+e}, 1.0, v{80+e}" for e in range(8)] + [f"v_mul_f32 v{72+e}, {hex(QSCALE)}, v{72+e}" for e in range(8)]
        it += [f"v_fma_f32 v{64+e}, v{64+e}, v{80+e}, v{72+e}" for e in range(8)]
        it += [f"v_cvt_pk_bf16_f32 v{88+d}, v{64+2*d}, v{65+2*d}" for d in range(4)]
        it += ["v_lshrrev_b32 v1, 2, v0", "v_lshlrev_b32 v1, 10, v1", "v_and_b32 v2, 3, v0", "v_lshl_add_u32 v1, v2, 8, v1"]
        return it
    def ln1_to_lds():
        g(f"v_mul_u32_u24 v1, 144, v0", f"s_lshl_b32 s{sT1}, s{sWAVE}, 4", f"s_add_u32 s{sT1}, s{sT1}, {2*16384}", f"v_add_u32 v1, s{sT1}, v1", "ds_write_b128 v1, v[88:91]", "s_waitcnt lgkmcnt(0)")
    def ln1_from_lds():
        g("v_lshrrev_b32 v1, 3, v0", f"s_lshl_b32 s{sT1}, s{sWAVE}, 3", f"v_add_u32 v1, s{sT1}, v1", "v_mul_u32_u24 v1, 144, v1", "v_and_b32 v2, 7, v0", "v_lshl_add_u32 v1, v2, 4, v1",
          f"v_add_u32 v1, {2*16384}, v1", "ds_read_b128 v[12:15], v1")
        g("v_lshrrev_b32 v1, 5, v0", "v_lshlrev_b32 v1, 10, v1", "v_bfe_u32 v10, v0, 3, 2", "v_lshl_add_u32 v1, v10, 8, v1", "v_lshl_add_u32 v1, v2, 4, v1")
        g(f"s_lshr_b32 s{sT1}, s{sCNT}, 4", f"s_lshl_b32 s{sT1}, s{sT1}, 14", f"s_and_b32 s{sT2}, s{sCNT}, 8", f"s_lshl_b32 s{sT2}, s{sT2}, 4", f"s_add_u32 s{sT1}, s{sT1}, s{sT2}",
          f"s_lshl_b32 s{sT2}, s{sWAVE}, 11", f"s_add_u32 s{sT1}, s{sT1}, s{sT2}", f"s_add_u32 s{sT1}, s{sT1}, {hex(WS_H)}", "s_waitcnt lgkmcnt(0)")
        g.vmem(f"buffer_store_dwordx4 v[12:15], v1, s[{S_WS}:{S_WS+3}], s{sT1} offen sc1", 'hst')
    def ln1_store():
        g(f"s_lshr_b32 s{sT1}, s{sCNT}, 4", f"s_lshl_b32 s{sT1}, s{sT1}, 14", f"s_and_b32 s{sT2}, s{sCNT}, 15", f"s_lshl_b32 s{sT2}, s{sT2}, 4",
          f"s_add_u32 s{sT1}, s{sT1}, s{sT2}", f"s_add_u32 s{sT1}, s{sT1}, {hex(WS_H)}")
        g.vmem(f"buffer_store_dwordx4 v[88:91], v1, s[{S_WS}:{S_WS+3}], s{sT1} offen{'' if OPT.get('hplain') else ' sc1'}", 'hst')
    fq = []
    pend = []
    HSIG = 10 if OPT.get('hlds', 1) else 9
    if OPT.get('hlds', 1):
        ISSUE.pop(8); ISSUE[9] = [16]; ISSUE[10] = [17, 18]
    KVSIG, KVCHK = (17, 20) if OPT.get('nospread') or OPT.get('q_nospread') else (20, 22)
    dq = []
    for ks in range(NKS):
        c, kk = ks >> 2, ks & 3
        j = c >> 2; s = ks % 16
        if kk == 2 and c + 1 < NCH:
            if c == 0 and OPT.get('pro', 4) != 10: mod_partial(0, 96, 3*16384)
            if c == 1: g.wait_vm('modst')
            if c == 5 and not OPT.get('noln'): g.stamp("b_5p"); poll_check(g, 2, S_DBG, 'pl0', sKO, 32, sT1, sT2)
            if c == HSIG and not OPT.get('noln'): g.stamp("hst_pre"); g.wait_vm('hst'); g.stamp("hst_post")
            if c == 12 and not OPT.get('noln'): g.stamp("h_pre"); poll_check(g, 2, S_WS, 'plh', sKO, 32, sT1, sT2); g.stamp("h_chk")
            if c == KVSIG and not OPT.get('nost'): g.wait_vm(('st', 3))
            if c == KVCHK: g.stamp("kv_pre"); poll_check(g, 2, S_WS, 'plk', sM0K, 8, sT1, sT2); g.stamp("kv_chk")
            g.stamp(f"b_{c}a"); g.wait_vm(('W', c + 1)); g("s_barrier"); g.stamp(f"b_{c}")
            if c == 6:
                g(f"s_load_dwordx2 s[16:17], s[0:1], {KA['wq']}", "s_waitcnt lgkmcnt(0)"); finish_srd(g, S_B, 'wq')
            for cc in ISSUE.get(c, []): dq.append(dma(cc))
            g.stamp(f"b_{c}i")
            if c == 0 and OPT.get('pro', 4) != 10:
                mod_final(0, 96, 3*16384)
                if OPT.get("wtouch"): w_touch()
            if c == 1:
                signal(g, S_DBG, C_START*4, 96, sT1, 0, 32)
                if OPT.get('all_early'): signal(g, S_DBG, 32*4, 96, sT1)
            if c == 2:
                g(f"s_lshl_b32 s{sT1}, s{sCNT}, 10")
                g.vmem(f"buffer_load_dwordx4 v[12:15], v{V_L16}, s[88:91], s{sT1} offen", 'lnx')
            if c == 4 and not OPT.get('noln'):
                g(f"s_mov_b32 s{sKO}, {C_START*4}"); poll_issue(g, 2, S_DBG, sKO, 'pl0', sT1)
            if c == 5 and not OPT.get('noln'): ln1_loads()
            if c == 8 and OPT.get('hlds', 1) and not OPT.get('noln'): ln1_from_lds()
            if c == HSIG and not OPT.get('noln'):
                cnt_off(g, sT3, C_H, sI); signal(g, S_WS, ('s', sT3), 1, sT1)
            if c == 11 and not OPT.get('noln'):
                cnt_off(g, sKO, C_H, sI); poll_issue(g, 2, S_WS, sKO, 'plh', sT1)
            if c == 12 and not OPT.get('noln') and OPT.get('th'):
                g(f"s_lshl_b32 s{sT1}, s{sT16}, 14", f"s_and_b32 s{sT2}, s{sHEAD}, 3", f"s_lshl_b32 s{sT2}, s{sT2}, 13", f"s_add_u32 s{sT1}, s{sT1}, s{sT2}",
                  f"s_add_u32 s{sT1}, s{sT1}, {hex(WS_H)}", "v_lshlrev_b32 v1, 7, v0")
                g.vmem(f"buffer_load_dword v2, v1, s[{S_WS}:{S_WS+3}], s{sT1} offen sc1", 'th')
            if c == KVSIG:
                cnt_off(g, sT3, C_KV, sHKV); signal(g, S_WS, ('s', sT3), 1, sT1)
            if c == KVCHK - 1:
                cnt_off(g, sM0K, C_KV, sHEAD); poll_issue(g, 2, S_WS, sM0K, 'plk', sT1)
            if c == KVCHK:
                emit(g, unit_sc1(0)); emit(g, unit_sc1(1))
                if KVCHK == 22: emit(g, unit_sc1(2))
            if c == KVCHK + 1 and KVCHK < 22: emit(g, unit_sc1(2))
            d = (SLOT[c + 1] - SLOT[c]) * 16384
            for cb in range(4): g(f"v_add_u32 v{V_TR+cb}, {hex(d & 0xffffffff)}, v{V_TR+cb}")
        extra = False
        if ks < 16:
            if ks % 2 == 1 and (ks + 1) // 2 <= 7:
                p = (ks + 1) // 2
                g.wait_vm(('P', p)); g(stage_reads(p)); extra = True
            if ks % 2 == 0 and ks >= 2 and ks // 2 + 3 <= 7: emit(g, stage(ks // 2 + 3))
        if 64 <= ks < 80 and not OPT.get('nohl'): g.wait_vm(('H', s))
        nxt = ks + 2
        reads = tr_reads(nxt, nxt & 3, second) if nxt < NKS else []
        buf = V_ACC + (j & 1) * 32
        if ks == 84 and not OPT.get('qlate'):
            for qs in range(2):
                for s_ in range(2):
                    a_ = V_ACC + (qs*4 + 2*s_)*4; b_ = a_ + 4
                    fq += [f"v_cvt_pk_bf16_f32 v{12+k}, v{x}, v{y}" for k, (x, y) in enumerate(((a_, a_+1), (a_+2, a_+3), (b_, b_+1), (b_+2, b_+3)))]
                    fq += [f"v_accvgpr_write_b32 a{A_Q+(qs*4+s_)*4+k}, v{12+k}" for k in range(4)]
        sv = OPT.get('stv', 1)
        if not OPT.get('noln'):
            if ks == (18 if sv == 0 else 17): g.wait_vm('lnx'); fq += ln1_stats_items()
            if ks == 28: assert not fq; g.wait_vm('lnm'); fq += ln1_mod_items()
            if ks == 31:
                assert not fq
                if OPT.get('hlds', 1): ln1_to_lds()
                else: ln1_store()
        if sv == 0:
            if j == 1: take = s in (1, 3, 5, 7)
            elif j == 4 and KVCHK == 20: take = s >= 1
            else: take = s % 4 == 1
        else:
            if j == 1: take = s in (0, 3, 4, 7)
            elif j == 3 and sv == 2: take = s in (0, 1, 2, 3)
            elif j == 3 and sv == 3: take = s in (0, 1, 3, 4)
            else: take = s % 4 == 3
        if OPT.get('nospread'): take = s >= 1 if j != 1 else take
        epi = pend.pop(0) if (pend and take) else None
        fb = ks % 3
        wfirst = j < 2 or j >= 4
        for m in range(8):
            cb, t = m >> 1, m & 1
            d = buf + (t * 4 + cb) * 4
            wf = f"v[{V_FR + fb*16 + cb*4}:{V_FR + fb*16 + cb*4 + 3}]"
            cf = f"a[{(s*2+t)*4}:{(s*2+t)*4+3}]"
            cin = "0" if s == 0 else f"v[{d}:{d+3}]"
            g(f"v_mfma_f32_16x16x32_bf16 v[{d}:{d+3}], {wf}, {cf}, {cin}" if wfirst else f"v_mfma_f32_16x16x32_bf16 v[{d}:{d+3}], {cf}, {wf}, {cin}")
            if m == 3 and extra: g("s_waitcnt lgkmcnt(3)")
            if m == 7 and reads: g("s_waitcnt lgkmcnt(7)")
            if reads: g(reads[m])
            elif m == 7 and ks + 1 < NKS: g("s_waitcnt lgkmcnt(0)")
            if epi and 1 <= m <= 4: g(epi[0][m-1])
            if epi and m == 5 and not OPT.get('nost'):
                g.stamp(f"st{ks}a"); emit(g, epi[1]); g.stamp(f"st{ks}b")
            if m == 2 and dq:
                g.stamp(f"dm{ks}a"); emit(g, dq.pop(0)); g.stamp(f"dm{ks}b")
            for _ in range(2 if not epi else 1):
                if fq: g(fq.pop(0))
        g.stamp(f"ke{ks}")
        for sh in HSCHED.get(ks, []):
            if not OPT.get('nohl'): emit(g, hload(sh))
        if s == 15:
            if j < 4: pend = epilogue(j)
            g.stamp(f"sub{j}_done")
    if OPT.get('fprio'): g("s_setprio 0")
    if OPT.get('endq'):
        g("s_waitcnt vmcnt(0)", "s_endpgm")
    g("s_nop 7")
    assert not fq
    for qs in range(2):
        for s in range(4):
            if s < 2 and not OPT.get('qlate'): continue
            j, u = s >> 1, s & 1
            a = V_ACC + j*32 + (qs*4 + 2*u)*4; b = a + 4
            for k, (x, y) in enumerate(((a, a+1), (a+2, a+3), (b, b+1), (b+2, b+3))): g(f"v_cvt_pk_bf16_f32 v{16+k}, v{x}, v{y}")
            for k in range(4): g(f"v_accvgpr_write_b32 a{A_Q+(qs*4+s)*4+k}, v{16+k}")
    p_att.attention_body(g, unit_sc1, sc1=True, fused=fused)

def unit_sc1(u):
    its = uniform_unit(u)
    return [((x[0].replace(" lds", " sc1 lds"), x[1]) if isinstance(x, tuple) else x) for x in its]

tRB, tCB, tAO, tWO, tM0W, tR, tU, tX, tY, tZ, tRB4, tCB4, tT16 = 23, 24, 25, 26, 27, 28, 29, 30, 31, 32, 33, 34, 35
WS_ST = WS_STAT + 0x100000 * 0 + 0x40000
TAG = 0x3f800000
A_ACC, A_AF, V_WF, V_WV, RING, DEPTH = 0, 64, 16, 48, 5, 4
C_ALL = 32
C_PART = 64
C_CTX2 = 80
WS_PART = 0x1200000

def stat_slot(g, dst, t):
    g(f"s_and_b32 s{dst}, s2, 7", f"s_lshl_b32 s{dst}, s{dst}, 2", f"s_bfe_u32 s{t}, s2, 0x20003", f"s_add_u32 s{dst}, s{dst}, s{t}",
      f"s_lshl_b32 s{dst}, s{dst}, 2", f"s_and_b32 s{t}, s{sWAVE}, 3", f"s_add_u32 s{dst}, s{dst}, s{t}", f"s_lshl_b32 s{dst}, s{dst}, 4",
      f"s_lshr_b32 s{t}, s2, 5", f"s_lshl_b32 s{t}, s{t}, 1", f"s_add_u32 s{dst}, s{dst}, s{t}",
      f"s_lshr_b32 s{t}, s{sWAVE}, 2", f"s_add_u32 s{dst}, s{dst}, s{t}", f"s_lshl_b32 s{dst}, s{dst}, 8", f"s_add_u32 s{dst}, s{dst}, {hex(WS_ST)}")

def spin(g, vdst, srd, soff, target, t1, t2, sleep=None):
    ok, loop = g.newlabel("sok"), g.newlabel("sloop")
    sleep = OPT.get('sleep', 4) if (sleep is None or OPT.get('sleep')) else sleep
    g(f"s_cmp_lg_u32 s{sWAVE}, 0", f"s_cbranch_scc1 {ok}", f"s_mov_b32 s{t2}, 0x40000")
    g.label(loop)
    g(f"buffer_load_dword v{vdst}, off, s[{srd}:{srd+3}], s{soff} sc1", "s_waitcnt vmcnt(0)")
    g(f"v_readfirstlane_b32 s{t1}, v{vdst}", "s_nop 3", f"s_cmp_ge_u32 s{t1}, {target}", f"s_cbranch_scc1 {ok}")
    g(f"s_sleep {sleep}", f"s_sub_u32 s{t2}, s{t2}, 1", f"s_cmp_lg_u32 s{t2}, 0", f"s_cbranch_scc1 {loop}")
    g.label(ok)

def wsplit_setup(g, nks, a_off, a_nks, wname):
    g(f"s_load_dwordx2 s[{S_A}:{S_A+1}], s[0:1], {KA[wname]}")
    setup_dma128(g, 1024, nat=False, v0=V_WV, v1=V_WV+1); setup_tr128(g, nat=False)
    for p in range(1, 4): g(f"v_add_u32 v{V_WV+p}, {p*7168}, v{V_WV}")
    g(f"s_mul_i32 s{tM0W}, s{sWAVE}, {RING*4096}")
    for c in range(4): g(f"v_add_u32 v{V_TR+c}, s{tM0W}, v{V_TR+c}")
    g(f"s_mul_i32 s{tAO}, s{tRB}, {4*a_nks*1024}", f"s_mul_i32 s{tX}, s{sWAVE}, {nks*1024}", f"s_add_u32 s{tAO}, s{tAO}, s{tX}", f"s_add_u32 s{tAO}, s{tAO}, {hex(a_off)}")
    g(f"s_mul_i32 s{tWO}, s{sWAVE}, {nks*32*1024}", f"s_lshl_b32 s{tX}, s{tCB}, 7", f"s_add_u32 s{tWO}, s{tWO}, s{tX}")
    g("s_waitcnt lgkmcnt(0)"); finish_srd(g, S_A, wname)
def ws_wdma(j):
    out = [f"s_add_u32 m0, s{tM0W}, {(j % RING)*4096}", f"s_add_u32 s{tX}, s{tWO}, {j*32*1024}"]
    for p in range(4): out.append((f"buffer_load_dwordx4 v{V_WV+p}, s[{S_A}:{S_A+3}], s{tX} offen offset:{p*1024} lds", ('tW', j)))
    return out
def ws_aload(j, a_nks):
    out = []
    for r in range(4):
        b = A_AF + (j % DEPTH)*16 + r*4
        out += [f"s_add_u32 s{tY}, s{tAO}, {(r*a_nks + j)*1024}", (f"buffer_load_dwordx4 a[{b}:{b+3}], v{V_L16}, s[{S_WS}:{S_WS+3}], s{tY} offen sc1", ('tA', j))]
    return out
def ws_reads(j):
    fb = V_WF + (j & 1)*16
    out = []
    for c in range(4):
        out.append(f"ds_read_b64_tr_b16 v[{fb+4*c}:{fb+4*c+1}], v{V_TR+c} offset:{(j % RING)*4096}")
        out.append(f"ds_read_b64_tr_b16 v[{fb+4*c+2}:{fb+4*c+3}], v{V_TR+c} offset:{(j % RING)*4096+2048}")
    return out
def wsplit_main(g, nks, a_nks, tag, a_off=None):
    for j in range(min(DEPTH, nks)): emit(g, ws_aload(j, a_nks))
    if OPT.get('tact'):
        per = 2 if nks == 16 else 1
        if per == 2:
            g("v_lshrrev_b32 v1, 4, v0", f"v_mul_u32_u24 v1, {a_nks*1024}, v1", "v_bfe_u32 v10, v0, 3, 1", "v_lshl_add_u32 v1, v10, 10, v1", "v_and_b32 v10, 7, v0", "v_lshl_add_u32 v1, v10, 7, v1")
            g(f"s_lshl_b32 s{tX}, s{tCB}, 11", f"s_add_u32 s{tX}, s{tX}, s{tAO}")
        else:
            g("v_lshrrev_b32 v1, 3, v0", f"v_mul_u32_u24 v1, {a_nks*1024}, v1", "v_and_b32 v10, 7, v0", "v_lshl_add_u32 v1, v10, 7, v1",
              f"v_mov_b32 v10, {hex(OOB)}", "v_cmp_gt_u32 vcc, 32, v0", "s_nop 1", "v_cndmask_b32 v1, v10, v1, vcc")
            g(f"s_lshl_b32 s{tX}, s{tCB}, 10", f"s_add_u32 s{tX}, s{tX}, s{tAO}", f"s_cmp_lt_u32 s{tCB}, 7", f"s_cselect_b32 s{tX}, s{tX}, s{sOOB}")
        g.vmem(f"buffer_load_dword v2, v1, s[{S_WS}:{S_WS+3}], s{tX} offen sc1", 'tch')
    g.wait_vm(('tW', 0)); g(ws_reads(0))
    g.stamp(tag + "_first")
    for j in range(nks):
        rd = []
        if j + 1 < nks:
            g.wait_vm(('tW', j + 1)); rd = ws_reads(j + 1)
        g("s_waitcnt lgkmcnt(0)")
        g.wait_vm(('tA', j))
        fb = V_WF + (j & 1)*16
        for m in range(16):
            c, r = m >> 2, m & 3
            d = A_ACC + (c*4 + r)*4; b = A_AF + (j % DEPTH)*16 + r*4
            cin = "0" if j == 0 else f"a[{d}:{d+3}]"
            g(f"v_mfma_f32_16x16x32_bf16 a[{d}:{d+3}], v[{fb+4*c}:{fb+4*c+3}], a[{b}:{b+3}], {cin}")
            if rd and m < 8: g(rd[m])
            if m == 8 and j + DEPTH < nks: emit(g, ws_wdma(j + DEPTH))
        if j + DEPTH < nks: emit(g, ws_aload(j + DEPTH, a_nks))
    g.stamp(tag + "_loop")
    g("s_nop 7", "s_barrier")
    g(f"s_lshl_b32 s{tX}, s{sWAVE}, 14", f"v_add_u32 v10, s{tX}, v{V_L16}")
    for q in range(16): g(f"ds_write_b128 v10, a[{A_ACC+4*q}:{A_ACC+4*q+3}] offset:{q*1024}")
    g(f"s_lshl_b32 s{tX}, s{tU}, 3", f"s_add_u32 s{tX}, s{tX}, s{tR}", f"s_lshl_b32 s{tX}, s{tX}, 10", f"v_add_u32 v10, s{tX}, v{V_L16}", "v_add_u32 v11, 0x10000, v10",
      "s_waitcnt lgkmcnt(0)", "s_barrier")
    for p in range(8):
        a = 10 if p < 4 else 11
        for c in range(2):
            if p == 7 and c == 1: g("s_waitcnt lgkmcnt(8)")
            g(f"ds_read_b128 v[{64+(p*2+c)*4}:{64+(p*2+c)*4+3}], v{a} offset:{(p%4)*16384 + c*4096}")
    g("s_waitcnt lgkmcnt(0)")
    for st in (32, 16, 8):
        for k in range(st): g(f"v_add_f32 v{64+k}, v{64+k}, v{64+k+st}")
    g.stamp(tag + "_red")

def tail(g):
    g("v_mbcnt_lo_u32_b32 v0, -1, 0", "v_mbcnt_hi_u32_b32 v0, -1, v0", f"v_lshlrev_b32 v{V_L16}, 4, v0")
    g(f"s_and_b32 s{tRB}, s2, 7", f"s_lshl_b32 s{tRB}, s{tRB}, 2", f"s_bfe_u32 s{tX}, s2, 0x20003", f"s_add_u32 s{tRB}, s{tRB}, s{tX}", f"s_lshr_b32 s{tCB}, s2, 5")
    g(f"s_and_b32 s{tR}, s{sWAVE}, 3", f"s_lshr_b32 s{tU}, s{sWAVE}, 2")
    if OPT.get('tprio'):
        lp = g.newlabel("tp")
        g(f"s_cmp_lt_u32 s{sWAVE}, 4", f"s_cbranch_scc1 {lp}", "s_setprio 1"); g.label(lp)
    kKQ, kRB, kCB, kWR, kWC, kAO, kWO, kM0, kO = 36, 37, 38, 39, 40, 41, 42, 43, 44
    NS3 = 5
    g(f"s_bfe_u32 s{kKQ}, s2, 0x20001", f"s_and_b32 s{kRB}, s2, 1", f"s_lshl_b32 s{kRB}, s{kRB}, 3", f"s_bfe_u32 s{tX}, s2, 0x30003", f"s_add_u32 s{kRB}, s{kRB}, s{tX}", f"s_lshr_b32 s{kCB}, s2, 6")
    g(f"s_and_b32 s{kWR}, s{sWAVE}, 3", f"s_lshr_b32 s{kWC}, s{sWAVE}, 2")
    g(f"s_load_dwordx2 s[{S_A}:{S_A+1}], s[0:1], {KA['wo']}", f"s_load_dwordx2 s[{S_B}:{S_B+1}], s[0:1], {KA['x']}")
    g("v_lshrrev_b32 v14, 4, v0", "v_lshlrev_b32 v3, 10, v14", "v_bfe_u32 v15, v0, 1, 3", "v_xor_b32 v15, v15, v14", "v_and_b32 v10, 1, v0", "v_lshlrev_b32 v10, 4, v10",
      "v_add_u32 v3, v3, v10", "v_xor_b32 v11, 4, v15", "v_lshl_add_u32 v4, v11, 5, v3", "v_lshl_add_u32 v3, v15, 5, v3", f"v_add_u32 v4, {4*1024 - 1024}, v4")
    g("v_lshrrev_b32 v14, 4, v0", "v_bfe_u32 v15, v0, 2, 2", "v_lshl_add_u32 v14, v14, 2, v15", "v_lshlrev_b32 v6, 8, v14", "v_and_b32 v14, 7, v14", "v_lshl_add_u32 v6, v14, 5, v6",
      "v_and_b32 v15, 3, v0", "v_lshl_add_u32 v6, v15, 3, v6", f"s_lshl_b32 s{tX}, s{kWC}, 7", f"v_xor_b32 v6, s{tX}, v6", "v_add_u32 v6, 16384, v6")
    for c in range(1, 4): g(f"v_xor_b32 v{6+c}, {c << 5}, v6")
    g(f"s_lshl_b32 s{tX}, s{kWR}, 12", f"v_add_u32 v10, s{tX}, v{V_L16}")
    g(f"s_lshl_b32 s{kAO}, s{kRB}, 3", f"s_add_u32 s{kAO}, s{kAO}, s{sWAVE}", f"s_lshl_b32 s{kAO}, s{kAO}, 17", f"s_lshl_b32 s{tX}, s{kKQ}, 15", f"s_add_u32 s{kAO}, s{kAO}, s{tX}", f"s_add_u32 s{kAO}, s{kAO}, {hex(WS_CTX)}")
    g(f"s_lshl_b32 s{kWO}, s{kKQ}, 20", f"s_lshl_b32 s{tX}, s{sWAVE}, 13", f"s_add_u32 s{kWO}, s{kWO}, s{tX}", f"s_lshl_b32 s{tX}, s{kCB}, 8", f"s_add_u32 s{kWO}, s{kWO}, s{tX}")
    g(f"s_lshl_b32 s{kM0}, s{sWAVE}, 11")
    g("s_waitcnt lgkmcnt(0)"); finish_srd(g, S_A, 'wo'); finish_srd(g, S_B, 'x')
    def w3(st):
        return [f"s_add_u32 m0, s{kM0}, {(st % NS3)*32768 + 16384}", f"s_add_u32 s{tX}, s{kWO}, {st*64*1024}",
                (f"buffer_load_dwordx4 v3, s[{S_A}:{S_A+3}], s{tX} offen lds", ('3W', st)), (f"buffer_load_dwordx4 v4, s[{S_A}:{S_A+3}], s{tX} offen offset:1024 lds", ('3W', st))]
    def a3(st):
        return [f"s_add_u32 m0, s{kM0}, {(st % NS3)*32768}", f"s_add_u32 s{tX}, s{kAO}, {st*2048}",
                (f"buffer_load_dwordx4 v{V_L16}, s[{S_WS}:{S_WS+3}], s{tX} offen sc1 lds", ('3A', st)), (f"buffer_load_dwordx4 v{V_L16}, s[{S_WS}:{S_WS+3}], s{tX} offen offset:1024 sc1 lds", ('3A', st))]
    g.wait_vm('ctxst'); g("s_barrier")
    g(f"s_lshl_b32 s{tZ}, s{sI}, 2", f"s_lshr_b32 s{tY}, s{sHEAD}, 3", f"s_add_u32 s{tZ}, s{tZ}, s{tY}")
    cnt_off(g, tX, C_CTX2, tZ); signal(g, S_WS, ('s', tX), 1, tY)
    g(f"s_sub_u32 s{tY}, 15, s{kRB}", f"s_min_u32 s{tX}, s{kRB}, s{tY}", f"s_lshl_b32 s{tX}, s{tX}, 2", f"s_add_u32 s{tX}, s{tX}, s{kKQ}"); cnt_off(g, tZ, C_CTX2, tX)
    g(f"s_mov_b32 s45, {C_ALL*4}")
    if not OPT.get('syncpoll', 1):
        poll_issue(g, 2, S_DBG, 45, 'pall', tX); poll_issue(g, 1, S_WS, tZ, 'pctx', tX)
    for st in range(NS3 - 1): emit(g, w3(st))
    if not OPT.get('syncpoll', 1):
        poll_check(g, 2, S_DBG, 'pall', 45, 256, tX, tY); poll_check(g, 1, S_WS, 'pctx', tZ, 8, tX, tY)
    else:
        spin(g, 1, S_DBG, 45, 256, tX, tY); spin(g, 1, S_WS, tZ, 8, tX, tY)
    g("s_barrier")
    g.stamp("ctx_ok")
    for st in range(NS3 - 1): emit(g, a3(st))
    g(f"s_lshl_b32 s{kO}, s{kCB}, 2", f"s_add_u32 s{kO}, s{kO}, s{kKQ}")
    g("v_and_b32 v12, 7, v0", "v_bfe_u32 v13, v0, 3, 2", "v_lshrrev_b32 v14, 5, v0")
    g(f"s_lshr_b32 s{tX}, s{kO}, 1", f"s_lshl_b32 s{tY}, s{kRB}, 3", f"s_add_u32 s{tT16}, s{tX}, s{tY}", f"s_and_b32 s{tZ}, s{kO}, 1")
    g(f"s_lshl_b32 s{tX}, s{tT16}, 4", f"s_lshl_b32 s{tY}, s{tZ}, 3", f"s_add_u32 s{tX}, s{tX}, s{tY}", f"v_add_u32 v15, s{tX}, v12")
    g(f"s_lshl_b32 s{tX}, s{sWAVE}, 1", f"v_add_u32 v11, s{tX}, v14", "v_lshlrev_b32 v11, 5, v11", "v_lshl_add_u32 v11, v13, 2, v11")
    g("v_lshlrev_b32 v15, 10, v15", "v_lshl_add_u32 v15, v11, 1, v15", "v_lshlrev_b32 v11, 2, v11")
    g(f"s_lshl_b32 s{tY}, s{tZ}, 7", "v_lshlrev_b32 v12, 4, v12", "v_lshl_add_u32 v12, v13, 8, v12", f"v_add_u32 v12, s{tY}, v12")
    g("v_lshl_add_u32 v13, v14, 11, v12", "v_lshl_add_u32 v12, v14, 10, v12")
    g.vmem(f"buffer_load_dwordx2 v[120:121], v15, s[{S_B}:{S_B+3}], 0 offen", 'xr'); g.vmem(f"buffer_load_dwordx2 v[122:123], v15, s[{S_B}:{S_B+3}], 0 offen offset:32", 'xr')
    g(f"s_mov_b32 s{tX}, {hex(WS_MOD + 1024*4)}")
    for k, off in enumerate((0, 64, 2048, 2048+64, 4096, 4096+64)):
        if off >= 4096: g(f"s_mov_b32 s{tX}, {hex(WS_MOD + 2048*4)}"); off -= 4096
        g.vmem(f"buffer_load_dwordx4 v[{96+4*k}:{99+4*k}], v11, s[{S_WS}:{S_WS+3}], s{tX} offen offset:{off} sc1", 'mods')
    def r3(ks):
        kk = ks & 1; fb = 16 + (ks & 1)*24
        out = [f"ds_read_b128 v[{fb+16+4*r}:{fb+16+4*r+3}], v10 offset:{r*2048+kk*1024}" for r in range(2)]
        for c in range(4):
            out.append(f"ds_read_b64_tr_b16 v[{fb+4*c}:{fb+4*c+1}], v{6+c} offset:{kk*8192}")
            out.append(f"ds_read_b64_tr_b16 v[{fb+4*c+2}:{fb+4*c+3}], v{6+c} offset:{kk*8192+4096}")
        return out
    g.wait_vm(('3A', 0)); g("s_barrier")
    g.stamp("k3_first")
    g(r3(0))
    NST = 16
    dq3 = []
    for ks in range(2*NST):
        st, kk = ks >> 1, ks & 1
        if kk == 1 and st + 1 < NST:
            if not OPT.get('k3nodma') or st + 1 < NS3 - 1: g.wait_vm(('3A', st + 1)); g.wait_vm(('3W', st + 1))
            if not OPT.get('k3nobar'): g("s_barrier")
            if st + NS3 - 1 < NST and not OPT.get('k3nodma'): dq3 = [w3(st + NS3 - 1), a3(st + NS3 - 1)]
            d = (((st + 1) % NS3) - (st % NS3)) * 32768
            for v in (6, 7, 8, 9, 10): g(f"v_add_u32 v{v}, {hex(d & 0xffffffff)}, v{v}")
        rd = r3(ks + 1) if ks + 1 < 2*NST else []
        last = not rd
        fb = 16 + (ks & 1)*24
        for m in range(8):
            c, r = m >> 1, m & 1
            if r == 0: g(f"s_waitcnt lgkmcnt({6 if not last else 6 - 2*c - 0 if False else (6 if not last else max(0, 6 - 2*c))})")
            d = 64 + (c*2 + r)*4
            cin = "0" if ks == 0 else f"v[{d}:{d+3}]"
            g(f"v_mfma_f32_16x16x32_bf16 v[{d}:{d+3}], v[{fb+4*c}:{fb+4*c+3}], v[{fb+16+4*r}:{fb+16+4*r+3}], {cin}")
            if rd:
                g(rd.pop(0))
                if m >= 6 and rd: g(rd.pop(0))
            if m in (3, 5) and dq3: emit(g, dq3.pop(0))
    g.stamp("k3_loop")
    g("s_nop 7")
    g(f"s_lshl_b32 s{tX}, s{kKQ}, 7", f"s_lshl_b32 s{tY}, s{kRB}, 3", f"s_add_u32 s{tX}, s{tX}, s{tY}", f"s_lshl_b32 s{tY}, s{kWR}, 1", f"s_add_u32 s{tX}, s{tX}, s{tY}",
      f"s_lshl_b32 s{tX}, s{tX}, 4", f"s_lshl_b32 s{tY}, s{kCB}, 2", f"s_add_u32 s{tX}, s{tX}, s{tY}", f"s_lshl_b32 s{tY}, s{kWC}, 1", f"s_add_u32 s{tX}, s{tX}, s{tY}",
      f"s_lshl_b32 s{tX}, s{tX}, 10", f"s_add_u32 s{tX}, s{tX}, {hex(WS_PART)}")
    for r in range(2):
        for cp in range(2):
            qa, qb = 64 + ((2*cp)*2 + r)*4, 64 + ((2*cp+1)*2 + r)*4
            t = 16 + (r*2 + cp)*4
            g(f"v_cvt_pk_bf16_f32 v{t}, v{qa}, v{qa+1}", f"v_cvt_pk_bf16_f32 v{t+1}, v{qa+2}, v{qa+3}", f"v_cvt_pk_bf16_f32 v{t+2}, v{qb}, v{qb+1}", f"v_cvt_pk_bf16_f32 v{t+3}, v{qb+2}, v{qb+3}")
            g.vmem(f"buffer_store_dwordx4 v[{t}:{t+3}], v{V_L16}, s[{S_WS}:{S_WS+3}], s{tX} offen offset:{cp*1024} sc1", 'pst')
        if r == 0: g(f"s_add_u32 s{tX}, s{tX}, 16384")
    g.wait_vm('pst'); g("s_barrier")
    cnt_off(g, tX, C_PART, kRB); signal(g, S_WS, ('s', tX), 1, tY)
    cnt_off(g, tY, C_PART, kRB); g(f"s_mov_b32 s{kAO}, s{tY}"); spin(g, 1, S_WS, kAO, 16, tX, tY, sleep=2)
    g("s_barrier")
    g.stamp("part_ok")
    g(f"s_lshl_b32 s{tX}, s{tT16}, 14", f"s_lshl_b32 s{tY}, s{sWAVE}, 11", f"s_add_u32 s{tX}, s{tX}, s{tY}", f"s_add_u32 s{tX}, s{tX}, {hex(WS_PART)}")
    for q in range(4):
        g.vmem(f"buffer_load_dwordx4 v[{16+4*q}:{19+4*q}], v12, s[{S_WS}:{S_WS+3}], s{tX} offen sc1", ('pl', q))
        if q < 3: g(f"s_add_u32 s{tX}, s{tX}, {128*16384}")
    for q in range(4):
        g.wait_vm(('pl', q))
        for d in range(4):
            if q == 0: g(f"v_lshlrev_b32 v{64+2*d}, 16, v{16+d}", f"v_and_b32 v{65+2*d}, 0xffff0000, v{16+d}")
            else: g(f"v_lshlrev_b32 v72, 16, v{16+4*q+d}", f"v_and_b32 v73, 0xffff0000, v{16+4*q+d}", f"v_add_f32 v{64+2*d}, v{64+2*d}, v72", f"v_add_f32 v{65+2*d}, v{65+2*d}, v73")
    for c in range(2):
        g(f"v_lshlrev_b32 v72, 16, v{120+2*c}", f"v_and_b32 v73, 0xffff0000, v{120+2*c}", f"v_lshlrev_b32 v74, 16, v{121+2*c}", f"v_and_b32 v75, 0xffff0000, v{121+2*c}")
        for k in range(4): g(f"v_fma_f32 v{64+4*c+k}, v{64+4*c+k}, v{96+4*c+k}, v{72+k}")
    g(f"s_lshl_b32 s{tX}, s{tT16}, 15", f"s_lshl_b32 s{tY}, s{sWAVE}, 12", f"s_add_u32 s{tX}, s{tX}, s{tY}", f"s_add_u32 s{tX}, s{tX}, {hex(WS_X1)}")
    g.vmem(f"buffer_store_dwordx4 v[64:67], v13, s[{S_WS}:{S_WS+3}], s{tX} offen sc1", 'x1st'); g.vmem(f"buffer_store_dwordx4 v[68:71], v13, s[{S_WS}:{S_WS+3}], s{tX} offen offset:1024 sc1", 'x1st')
    def red8(v, t):
        g("s_nop 1", f"v_add_f32_dpp v{v}, v{v}, v{v} row_ror:8 row_mask:0xf bank_mask:0xf")
        cross_g(g, v, t, "v_add_f32")
    g("v_add_f32 v72, v64, v65", "v_add_f32 v73, v66, v67", "v_add_f32 v74, v68, v69", "v_add_f32 v75, v70, v71", "v_add_f32 v72, v72, v73", "v_add_f32 v74, v74, v75", "v_add_f32 v72, v72, v74")
    red8(72, 73)
    g("v_mul_f32 v72, 0x3c800000, v72")
    g("v_sub_f32 v74, v64, v72", "v_mul_f32 v73, v74, v74")
    for k in range(1, 8): g(f"v_sub_f32 v74, v{64+k}, v72", "v_fmac_f32 v73, v74, v74")
    red8(73, 74)
    g("v_and_b32 v74, 7, v0", "v_lshlrev_b32 v74, 6, v74", f"s_lshl_b32 s{tX}, s{sWAVE}, 3", f"v_add_u32 v75, s{tX}, v74", "ds_write_b64 v75, v[72:73]", "s_waitcnt lgkmcnt(0)", "s_barrier")
    for q in range(4): g(f"ds_read_b128 v[{76+4*q}:{79+4*q}], v74 offset:{q*16}")
    g("s_waitcnt lgkmcnt(0)")
    g("v_add_f32 v72, v76, v78", "v_add_f32 v73, v80, v82", "v_add_f32 v72, v72, v73", "v_add_f32 v73, v84, v86", "v_add_f32 v72, v72, v73", "v_add_f32 v73, v88, v90", "v_add_f32 v72, v72, v73")
    g("v_mul_f32 v72, 0.125, v72" if False else "v_mul_f32 v72, 0x3e000000, v72")
    g("v_add_f32 v73, v77, v79")
    for q in range(2, 8): g(f"v_add_f32 v73, v73, v{77+2*q}")
    for q in range(8): g(f"v_sub_f32 v74, v{76+2*q}, v72", "v_mul_f32 v75, v74, v74", "v_fmac_f32 v73, 0x42800000, v75")
    g("v_mov_b32 v74, 0x3727c5ac", "v_fmac_f32 v74, 0x3b000000, v73", "v_rsq_f32 v74, v74", "s_nop 0")
    for k in range(8): g(f"v_sub_f32 v{64+k}, v{64+k}, v72")
    for k in range(8): g(f"v_mul_f32 v{64+k}, v{64+k}, v74")
    for k in range(8): g(f"v_add_f32 v{112+k}, 1.0, v{112+k}")
    for k in range(8): g(f"v_fma_f32 v{64+k}, v{64+k}, v{112+k}, v{104+k}")
    for k in range(4): g(f"v_cvt_pk_bf16_f32 v{72+k}, v{64+2*k}, v{65+2*k}")
    g(f"s_lshl_b32 s{tX}, s{tT16}, 14", f"s_lshl_b32 s{tY}, s{sWAVE}, 11", f"s_add_u32 s{tX}, s{tX}, s{tY}", f"s_add_u32 s{tX}, s{tX}, {hex(WS_H2)}")
    g.vmem(f"buffer_store_dwordx4 v[72:75], v12, s[{S_WS}:{S_WS+3}], s{tX} offen sc1", 'h2st')
    g(f"s_lshr_b32 s{kO}, s{kRB}, 1")
    g.stamp("stats_ok")
    LK5 = g.newlabel("k5")
    g(f"s_load_dwordx2 s[{S_A}:{S_A+1}], s[0:1], {KA['wg']}", f"s_load_dwordx2 s[{S_B}:{S_B+1}], s[0:1], {KA['wu']}")
    g(f"s_and_b32 s{tRB4}, s2, 1", f"s_lshl_b32 s{tRB4}, s{tRB4}, 2", f"s_bfe_u32 s{tX}, s2, 0x20003", f"s_add_u32 s{tRB4}, s{tRB4}, s{tX}",
      f"s_bfe_u32 s{tCB4}, s2, 0x20001", f"s_mul_i32 s{tCB4}, s{tCB4}, 7", f"s_lshr_b32 s{tX}, s2, 5", f"s_add_u32 s{tCB4}, s{tCB4}, s{tX}")
    g(f"s_lshl_b32 s{tT16}, s{tRB4}, 4", f"s_lshl_b32 s{tX}, s{sWAVE}, 1", f"s_add_u32 s{tT16}, s{tT16}, s{tX}")
    setup_dma128(g, 3584, nat=False); setup_tr128(g, nat=False)
    g(f"s_mul_i32 s{sWB}, s{sWAVE}, {16*3584}", f"s_lshl_b32 s{tX}, s{tCB4}, 7", f"s_add_u32 s{sWB}, s{sWB}, s{tX}", f"s_lshl_b32 s{sM0B}, s{sWAVE}, 11")
    g("s_waitcnt lgkmcnt(0)"); finish_srd(g, S_A, 'wg'); finish_srd(g, S_B, 'wu')
    def dma4(c):
        j, q = c >> 2, c & 3
        srd = S_A if j == 0 else S_B
        return [f"s_add_u32 s{tX}, s{sWB}, {hex(q*128*3584)}", f"s_add_u32 m0, s{sM0B}, {hex(c*16384)}",
                (f"buffer_load_dwordx4 v{V_W0}, s[{srd}:{srd+3}], s{tX} offen lds", ('W', c)),
                (f"buffer_load_dwordx4 v{V_W1}, s[{srd}:{srd+3}], s{tX} offen offset:1024 lds", ('W', c))]
    g.wait_vm('h2st'); g("s_barrier")
    cnt_off(g, tX, C_H2, 44); signal(g, S_WS, ('s', tX), 1, tY)
    g("s_cmp_ge_u32 s2, 224", f"s_cbranch_scc1 {LK5}")
    cnt_off(g, tZ, C_H2, tRB4)
    if not OPT.get('syncpoll', 1): poll_issue(g, 1, S_WS, tZ, 'ph2', tX)
    for c in (0, 4, 1, 5): emit(g, dma4(c))
    for cb in range(4): g(f"v_add_u32 v{10+cb}, 0x10000, v{V_TR+cb}")
    if not OPT.get('syncpoll', 1): poll_check(g, 1, S_WS, 'ph2', tZ, 32, tX, tY)
    else: spin(g, 1, S_WS, tZ, 32, tX, tY)
    g("s_barrier")
    g.stamp("h2_ok")
    g.vm = [('W', c) for c in (0, 4, 1, 5) for _ in range(2)]
    def hload4(s4):
        out = []
        for t in range(2):
            out.append(f"s_lshl_b32 s{tX}, s{tT16}, 14"); out.append(f"s_add_u32 s{tX}, s{tX}, {hex(WS_H2 + t*16384 + s4*4096)}")
            for k in range(4):
                s = s4*4 + k
                out.append((f"buffer_load_dwordx4 a[{(s*2+t)*4}:{(s*2+t)*4+3}], v{V_L16}, s[{S_WS}:{S_WS+3}], s{tX} offen offset:{k*1024} sc1", ('H', s4)))
        return out
    def rd4(ks):
        j, s_ = ks >> 4, ks & 15
        q, kk = s_ >> 2, s_ & 3
        fb = V_FR + (ks % 3)*16
        out = []
        for c in range(4):
            a_ = (V_TR if c < 2 else 10) + 2*j + (c & 1)
            off = q*16384 + kk*4096
            out.append(f"ds_read_b64_tr_b16 v[{fb+4*c}:{fb+4*c+1}], v{a_} offset:{off}")
            out.append(f"ds_read_b64_tr_b16 v[{fb+4*c+2}:{fb+4*c+3}], v{a_} offset:{off+2048}")
        return out
    def silu_items(j):
        it = []
        buf = 64 + 32*j
        T = (1, 2, 14, 15)
        for t in range(2):
            for c in range(2):
                G, U = buf + (t*4 + c)*4, buf + (t*4 + 2 + c)*4
                it += [f"v_mul_f32 v{T[k]}, s{tZ}, v{G+k}" for k in range(4)]
                it += [f"v_exp_f32 v{T[k]}, -v{T[k]}" for k in range(4)]
                it += [f"v_mul_f32 v{G+k}, v{G+k}, v{U+k}" for k in range(4)]
                it += [f"v_add_f32 v{T[k]}, 1.0, v{T[k]}" for k in range(4)]
                it += [f"v_rcp_f32 v{T[k]}, v{T[k]}" for k in range(4)] + ["s_nop 0"]
                it += [f"v_mul_f32 v{G+k}, v{G+k}, v{T[k]}" for k in range(4)]
            G0, G1 = buf + (t*4)*4, buf + (t*4 + 1)*4
            it += [f"v_cvt_pk_bf16_f32 v{G0}, v{G0}, v{G0+1}", f"v_cvt_pk_bf16_f32 v{G0+1}, v{G0+2}, v{G0+3}", f"v_cvt_pk_bf16_f32 v{G0+2}, v{G1}, v{G1+1}", f"v_cvt_pk_bf16_f32 v{G0+3}, v{G1+2}, v{G1+3}"]
            it += [('ST', t, j)]
        return it
    def act_store(t, j):
        a_ = 64 + 32*j + (t*4)*4
        g(f"s_add_u32 s{tX}, s{kAO}, {t*56*1024 + j*1024}")
        g.vmem(f"buffer_store_dwordx4 v[{a_}:{a_+3}], v{V_L16}, s[{S_WS}:{S_WS+3}], s{tX} offen sc1", 'actst')
    g(f"s_mul_i32 s{kAO}, s{tT16}, {56*1024}", f"s_lshl_b32 s{tY}, s{tCB4}, 11", f"s_add_u32 s{kAO}, s{kAO}, s{tY}", f"s_add_u32 s{kAO}, s{kAO}, {hex(WS_ACT)}")
    emit(g, hload4(0)); emit(g, hload4(1))
    g.wait_vm(('W', 4)); g("s_barrier")
    g(rd4(0)); r1 = rd4(1); g(r1[:7]); g("s_waitcnt lgkmcnt(7)"); g(r1[7])
    fq4, dq4 = [], []
    for ks in range(32):
        j, s_ = ks >> 4, ks & 15
        if ks in (2, 6, 10):
            q = ks // 4 + 1
            g.wait_vm(('W', 4 + q)); g("s_barrier")
            if q + 1 < 4: dq4 = [dma4(q + 1), dma4(4 + q + 1)]
        if ks == 0: emit(g, hload4(2))
        if ks == 2: emit(g, hload4(3))
        if ks < 16 and ks % 4 == 0: g.wait_vm(('H', ks // 4))
        if ks == 17:
            g(f"s_mov_b32 s{tZ}, {hex(LOG2E)}"); fq4 = silu_items(0)
        reads = rd4(ks + 2) if ks + 2 < 32 else []
        fb = V_FR + (ks % 3)*16
        for m in range(8):
            c, t = m >> 1, m & 1
            d = 64 + 32*j + (t*4 + c)*4
            cin = "0" if s_ == 0 else f"v[{d}:{d+3}]"
            g(f"v_mfma_f32_16x16x32_bf16 v[{d}:{d+3}], v[{fb+4*c}:{fb+4*c+3}], a[{(s_*2+t)*4}:{(s_*2+t)*4+3}], {cin}")
            if m == 7 and reads: g("s_waitcnt lgkmcnt(7)")
            if reads: g(reads[m])
            elif m == 7 and ks + 1 < 32: g("s_waitcnt lgkmcnt(0)")
            if m == 2 and dq4: emit(g, dq4.pop(0))
            for _ in range(2):
                if fq4:
                    x = fq4.pop(0)
                    if isinstance(x, tuple): act_store(x[1], x[2])
                    else: g(x)
    assert not fq4
    g.stamp("k4_loop")
    g("s_nop 7")
    for x in silu_items(1):
        if isinstance(x, tuple): act_store(x[1], x[2])
        else: g(x)
    g("s_waitcnt vmcnt(0)", "s_barrier")
    cnt_off(g, tX, C_ACT, tRB4); signal(g, S_WS, ('s', tX), 1, tY)
    g.label(LK5)
    g.vm = []
    g.stamp("k5_entry")
    wsplit_setup(g, 7, WS_ACT, 56, 'wd')
    g(f"s_lshr_b32 s{tX}, s{tRB}, 2"); cnt_off(g, tZ, C_ACT, tX)
    if not OPT.get('syncpoll', 1): poll_issue(g, 1, S_WS, tZ, 'pact', tX)
    for j in range(DEPTH): emit(g, ws_wdma(j))
    if OPT.get('twd'):
        g(f"s_and_b32 s{tX}, s{tRB}, 3", f"s_mul_i32 s{tX}, s{tX}, 7", f"s_add_u32 s{tX}, s{tX}, s{sWAVE}", f"s_lshl_b32 s{tX}, s{tX}, 16", f"s_lshl_b32 s{tY}, s{tCB}, 7",
          f"s_add_u32 s{tX}, s{tX}, s{tY}", f"s_cmp_lt_u32 s{sWAVE}, 7", f"s_cselect_b32 s{tX}, s{tX}, s{sOOB}", "v_lshlrev_b32 v1, 10, v0")
        g.vmem(f"buffer_load_dword v2, v1, s[{S_A}:{S_A+3}], s{tX} offen", 'tch')
    X1LOAD = True
    g(f"s_lshl_b32 s{tX}, s{tCB}, 6", f"s_lshl_b32 s{tY}, s{tU}, 5", f"s_add_u32 s{tX}, s{tX}, s{tY}", "v_lshrrev_b32 v15, 4, v0", "v_lshlrev_b32 v15, 2, v15", f"v_add_u32 v15, s{tX}, v15")
    g("v_lshlrev_b32 v13, 2, v15", f"s_mov_b32 s{tX}, {hex(WS_MOD + 2560*4)}")
    g.vmem(f"buffer_load_dwordx4 v[60:63], v13, s[{S_WS}:{S_WS+3}], s{tX} offen sc1", 'gb'); g.vmem(f"buffer_load_dwordx4 v[12:15], v13, s[{S_WS}:{S_WS+3}], s{tX} offen offset:64 sc1", 'gb')
    g(f"s_load_dwordx2 s[{S_B}:{S_B+1}], s[0:1], {KA['out']}")
    if not OPT.get('syncpoll', 1): poll_check(g, 1, S_WS, 'pact', tZ, 28, tX, tY)
    else: spin(g, 1, S_WS, tZ, 28, tX, tY)
    g("s_waitcnt lgkmcnt(0)"); finish_srd(g, S_B, 'out')
    g("s_barrier")
    g.stamp("act_ok")
    g(f"s_lshl_b32 s{tX}, s{tRB}, 2", f"s_add_u32 s{tX}, s{tX}, s{tR}", f"s_lshl_b32 s{tX}, s{tX}, 4", f"s_lshl_b32 s{tY}, s{tCB}, 1", f"s_add_u32 s{tX}, s{tX}, s{tY}",
      f"s_add_u32 s{tX}, s{tX}, s{tU}", f"s_lshl_b32 s{tX}, s{tX}, 11", f"s_add_u32 s{tX}, s{tX}, {hex(WS_X1)}")
    g.vmem(f"buffer_load_dwordx4 v[52:55], v{V_L16}, s[{S_WS}:{S_WS+3}], s{tX} offen sc1", 'x1l'); g.vmem(f"buffer_load_dwordx4 v[56:59], v{V_L16}, s[{S_WS}:{S_WS+3}], s{tX} offen offset:1024 sc1", 'x1l')
    wsplit_main(g, 7, 56, "k5")
    for k in range(4): g(f"v_fma_f32 v{64+k}, v{64+k}, v{60+k}, v{52+k}")
    for k in range(4): g(f"v_fma_f32 v{68+k}, v{68+k}, v{12+k}, v{56+k}")
    for k in range(4): g(f"v_cvt_pk_bf16_f32 v{16+k}, v{64+2*k}, v{65+2*k}")
    om = OPT.get('outmode', 2)
    if om < 2:
        g(f"s_lshl_b32 s{tX}, s{tRB}, 6", f"s_lshl_b32 s{tY}, s{tR}, 4", f"s_add_u32 s{tX}, s{tX}, s{tY}", "v_and_b32 v20, 15, v0", f"v_add_u32 v20, s{tX}, v20")
        g(f"s_lshl_b32 s{tX}, s{tCB}, 6", f"s_lshl_b32 s{tY}, s{tU}, 5", f"s_add_u32 s{tX}, s{tX}, s{tY}", "v_lshrrev_b32 v21, 4, v0", "v_lshlrev_b32 v21, 2, v21", f"v_add_u32 v21, s{tX}, v21")
        g("v_lshlrev_b32 v20, 10, v20", "v_lshl_add_u32 v20, v21, 1, v20")
        g(f"buffer_store_dwordx2 v[16:17], v20, s[{S_B}:{S_B+3}], 0 offen{' sc1' if om == 1 else ''}", f"buffer_store_dwordx2 v[18:19], v20, s[{S_B}:{S_B+3}], 0 offen offset:32{' sc1' if om == 1 else ''}")
    else:
        g("s_barrier")
        g("v_and_b32 v20, 15, v0", f"s_lshl_b32 s{tX}, s{tR}, 4", f"v_add_u32 v20, s{tX}, v20", "v_mul_u32_u24 v20, 144, v20", "v_lshrrev_b32 v21, 4, v0",
          "v_lshl_add_u32 v20, v21, 3, v20", f"s_lshl_b32 s{tX}, s{tU}, 6", f"v_add_u32 v20, s{tX}, v20")
        g("ds_write_b64 v20, v[16:17]", "ds_write_b64 v20, v[18:19] offset:32", "s_waitcnt lgkmcnt(0)", "s_barrier")
        g("v_lshrrev_b32 v20, 3, v0", f"s_lshl_b32 s{tX}, s{sWAVE}, 3", f"v_add_u32 v20, s{tX}, v20", "v_and_b32 v21, 7, v0", "v_mul_u32_u24 v22, 144, v20", "v_lshl_add_u32 v22, v21, 4, v22",
          "ds_read_b128 v[24:27], v22")
        g(f"s_lshl_b32 s{tX}, s{tRB}, 6", f"v_add_u32 v20, s{tX}, v20", "v_lshlrev_b32 v20, 10, v20", "v_lshl_add_u32 v20, v21, 4, v20", f"s_lshl_b32 s{tX}, s{tCB}, 7", "s_waitcnt lgkmcnt(0)")
        g(f"buffer_store_dwordx4 v[24:27], v20, s[{S_B}:{S_B+3}], s{tX} offen{' sc1' if om == 3 else ''}")
    if Gen.STAMP:
        g("s_waitcnt vmcnt(0)"); g.stamp("end"); g.dump_stamps(sWAVE, 2)

def tail_code_touch(g):
    lsk = g.newlabel("noct2")
    g(f"s_cmp_lg_u32 s{sWAVE}, 0", f"s_cbranch_scc1 {lsk}", f"s_lshr_b32 s{sT1}, s2, 3", "v_mbcnt_lo_u32_b32 v0, -1, 0", "v_mbcnt_hi_u32_b32 v0, -1, v0")
    code_touch(g, KNAME, sT1, 2, 3, 16, 18, 56)
    g.label(lsk)

def all_signal(g):
    signal(g, S_DBG, C_ALL*4, 6, sT1)

def mega(g):
    if not OPT.get('all_early'): OPT['hook_bstart'] = all_signal
    if OPT.get('ctouch2'): OPT['hook_fin'] = tail_code_touch
    front(g, fused=True)
    tail(g)
```

```python
from core import *
import p_kv, p_att, p_mod
from p_kv import emit, V_W0, V_W1, V_L16, V_TR, V_FR, V_ACC, V_C0, V_C1, V_SR, setup_dma128, setup_tr128, tr_reads
from p_att import *
from p_mod import LOG2E, QSCALE

S_WS, S_DBG, S_A, S_B, S_C2 = 4, 8, 12, 16, 56
p_att.S_WS = S_WS
sCROW, sSTB, sSTG = 43, 54, 55
sHKV, sKB, sWBKV = 84, 87, 85
OOB = 0x7ff00000
KNAME = 'mega_kernel'
sOOB = 86
C_START, C_MOD2 = 0, 32
C_H, C_KV, C_CTX, C_H2, C_ACT = 0, 8, 40, 48, 56

SLOT = [0,1,2,3, 0,1, 2,4,5,6,7,8,9, 3, 0, 1,   2,4,5,3,6,7,8,9]
HSCHED = {52 + k: [k] for k in range(16)}
ISSUE = {1:[3, 4], 2:[5], 3:[6, 7], 4:[8, 9], 5:[10, 11], 6:[12, 13], 7:[14, 15], 8:[16], 9:[17], 10:[18], 11:[20], 12:[21], 13:[22], 14:[19], 15:[23]}

def poll_issue(g, vdst, srd, soff, tag, st):
    g(f"s_cmp_eq_u32 s{sWAVE}, 0", f"s_cselect_b32 s{st}, s{soff}, s{sOOB}")
    g.vmem(f"buffer_load_dword v{vdst}, off, s[{srd}:{srd+3}], s{st} sc1", tag)
def poll_check(g, vdst, srd, tag, soff, target, t1, t2):
    ok, loop = g.newlabel("pok"), g.newlabel("ploop")
    g.wait_vm(tag)
    g(f"s_cmp_lg_u32 s{sWAVE}, 0", f"s_cbranch_scc1 {ok}")
    g(f"v_readfirstlane_b32 s{t1}, v{vdst}", "s_nop 3", f"s_cmp_ge_u32 s{t1}, {target}")
    g(f"s_cbranch_scc1 {ok}", f"s_mov_b32 s{t2}, 0x40000")
    g.label(loop)
    g(f"s_sleep {OPT.get('psleep', 4)}", f"buffer_load_dword v{vdst}, off, s[{srd}:{srd+3}], s{soff} sc1", "s_waitcnt vmcnt(0)")
    g(f"v_readfirstlane_b32 s{t1}, v{vdst}", "s_nop 3", f"s_cmp_ge_u32 s{t1}, {target}")
    g(f"s_cbranch_scc1 {ok}", f"s_sub_u32 s{t2}, s{t2}, 1", f"s_cmp_lg_u32 s{t2}, 0", f"s_cbranch_scc1 {loop}")
    g.label(ok)
def signal(g, srd, soff, vt, st, lo=None, hi=None):
    g(f"s_cmp_eq_u32 s{sWAVE}, 0", f"s_cselect_b32 s{st}, {('s%d' % soff[1]) if isinstance(soff, tuple) else soff}, s{sOOB}")
    if lo is not None:
        g(f"s_cmp_ge_u32 s3, {lo}", f"s_cselect_b32 s{st}, s{st}, s{sOOB}", f"s_cmp_lt_u32 s3, {hi}", f"s_cselect_b32 s{st}, s{st}, s{sOOB}")
    g(f"v_mov_b32 v{vt}, 1", "s_mov_b64 exec, 1")
    g.vmem(f"buffer_atomic_add v{vt}, off, s[{srd}:{srd+3}], s{st} sc1", 'sig')
    g("s_mov_b64 exec, -1")
def cnt_off(g, dst, base, idx_s):
    g(f"s_lshl_b32 s{dst}, s{idx_s}, 7", f"s_add_u32 s{dst}, s{dst}, {hex(WS_CNT + base*128)}")

def code_touch(g, kname, seg_s, nseg_bits, first_seg, vt, vdst, st):
    lab = g.newlabel("pc")
    g(f"s_getpc_b64 s[{st}:{st+1}]")
    g.label(lab)
    g(f"s_sub_u32 s{st}, s{st}, {lab}-{kname}", f"s_subb_u32 s{st+1}, s{st+1}, 0")
    g(f"s_and_b32 s{st+2}, s{seg_s}, {(1 << nseg_bits) - 1}", f"s_add_u32 s{st+2}, s{st+2}, {first_seg}", f"s_lshl_b32 s{st+2}, s{st+2}, 13")
    g(f"v_lshlrev_b32 v{vt}, 7, v0", f"v_add_u32 v{vt}, s{st+2}, v{vt}", f"v_min_u32 v{vt}, L_end_{kname}-{kname}, v{vt}")
    g(f"v_mov_b32 v{vt+1}, s{st+1}", f"v_add_co_u32 v{vt}, vcc, s{st}, v{vt}", "s_nop 1", f"v_addc_co_u32 v{vt+1}, vcc, 0, v{vt+1}, vcc")
    g(f"global_load_dword v{vdst}, v[{vt}:{vt+1}], off")

def front(g, fused=False):
    g(f"s_load_dwordx2 s[4:5], s[0:1], {KA['ws']}", f"s_load_dwordx2 s[8:9], s[0:1], {KA['dbg']}",
      f"s_load_dwordx2 s[12:13], s[0:1], {KA['ckv']}", f"s_load_dwordx2 s[16:17], s[0:1], {KA['wuk']}",
      f"s_load_dwordx2 s[56:57], s[0:1], {KA['wuv']}", f"s_load_dwordx2 s[88:89], s[0:1], {KA['x']}",
      f"s_load_dwordx2 s[92:93], s[0:1], {KA['wmod']}", f"s_load_dwordx2 s[96:97], s[0:1], {KA['c']}")
    g.stamp("entry")
    g(f"s_sub_u32 s3, s2, {OPT.get('modbase', 64)}", "s_min_u32 s3, s3, 96")
    g("v_lshrrev_b32 v14, 6, v0", "v_and_b32 v0, 63, v0", "s_nop 0", f"v_readfirstlane_b32 s{sWAVE}, v14")
    g(f"s_and_b32 s{sHEAD}, s2, 7", f"s_lshl_b32 s{sHEAD}, s{sHEAD}, 2", f"s_bfe_u32 s{sT1}, s2, 0x20003", f"s_add_u32 s{sHEAD}, s{sHEAD}, s{sT1}")
    g(f"s_lshr_b32 s{sI}, s2, 5", f"s_lshr_b32 s{sISA}, s{sWAVE}, 2")
    g(f"s_sub_u32 s{sT1}, 7, s{sWAVE}", f"s_sub_u32 s{sT2}, 15, s{sI}", f"s_cmp_eq_u32 s{sISA}, 0",
      f"s_cselect_b32 s{sSUB}, s{sWAVE}, s{sT1}", f"s_cselect_b32 s{sT3}, s{sT2}, s{sI}")
    g(f"s_lshl_b32 s{sT16}, s{sT3}, 3", f"s_lshl_b32 s{sT1}, s{sSUB}, 1", f"s_add_u32 s{sT16}, s{sT16}, s{sT1}")
    g(f"s_lshl_b32 s{sNB2}, s{sT2}, 1", f"s_lshl_b32 s{sNA2}, s{sI}, 1", f"s_lshl_b32 s{sNBo}, s{sT2}, 15", f"s_lshl_b32 s{sNAo}, s{sI}, 15")
    g(f"s_and_b32 s{sA4}, s{sWAVE}, 3", f"s_lshl_b32 s{sA4}, s{sA4}, 12")
    g(f"s_mul_i32 s{sT1}, s{sHEAD}, {HST}", f"s_add_u32 s{sT1}, s{sT1}, s{sA4}",
      f"s_add_u32 s{sKF}, s{sT1}, {hex(WS_KF)}", f"s_add_u32 s{sVF}, s{sT1}, {hex(WS_VF)}")
    g(f"s_and_b32 s{sKB}, s2, 1", f"s_lshl_b32 s{sKB}, s{sKB}, 2", f"s_bfe_u32 s{sT1}, s2, 0x20003", f"s_add_u32 s{sKB}, s{sKB}, s{sT1}")
    g(f"s_bfe_u32 s{sHKV}, s2, 0x20001", f"s_lshl_b32 s{sHKV}, s{sHKV}, 3", f"s_lshr_b32 s{sT1}, s2, 5", f"s_xor_b32 s{sT1}, s{sT1}, {OPT.get('hx', 0)}", f"s_add_u32 s{sHKV}, s{sHKV}, s{sT1}")
    g("v_lshrrev_b32 v14, 3, v0", "v_lshlrev_b32 v1, 10, v14", "v_lshrrev_b32 v14, 4, v0", "v_and_b32 v15, 7, v0", "v_xor_b32 v14, v14, v15",
      "v_xor_b32 v15, 4, v14", "v_lshl_add_u32 v2, v15, 4, v1", "v_lshl_add_u32 v1, v14, 4, v1", f"v_add_u32 v2, {8*1024-1024}, v2")
    setup_dma128(g, 8192); setup_tr128(g)
    g(f"s_mul_i32 s{sSTG}, s{sWAVE}, 12288", f"s_add_u32 s{sSTG}, s{sSTG}, {4*16384}",
      "v_and_b32 v14, 15, v0", "v_lshlrev_b32 v10, 7, v14", "v_lshrrev_b32 v14, 1, v14", "v_lshrrev_b32 v15, 4, v0", "v_xor_b32 v14, v14, v15",
      "v_lshl_add_u32 v10, v14, 4, v10", f"v_add_u32 v10, s{sSTG}, v10", "v_xor_b32 v11, 64, v10")
    g(f"v_lshlrev_b32 v{V_L16}, 4, v0")
    g(f"s_lshl_b32 s{sT1}, s{sKB}, 8", f"s_lshl_b32 s{sCROW}, s{sWAVE}, 5", f"s_add_u32 s{sCROW}, s{sT1}, s{sCROW}", f"s_lshl_b32 s{sCROW}, s{sCROW}, 10")
    g(f"s_lshl_b32 s{sWB}, s{sWAVE}, 17", f"s_lshl_b32 s{sT1}, s{sHEAD}, 8", f"s_add_u32 s{sWB}, s{sWB}, s{sT1}", f"s_lshl_b32 s{sM0B}, s{sWAVE}, 11")
    g(f"s_lshl_b32 s{sWBKV}, s{sWAVE}, 17", f"s_lshl_b32 s{sT1}, s{sHKV}, 8", f"s_add_u32 s{sWBKV}, s{sWBKV}, s{sT1}")
    g(f"s_mul_i32 s{sSTB}, s{sHKV}, {HST}", f"s_lshl_b32 s{sT1}, s{sKB}, 3", f"s_add_u32 s{sT1}, s{sT1}, s{sWAVE}", f"s_lshl_b32 s{sT1}, s{sT1}, 13", f"s_add_u32 s{sSTB}, s{sSTB}, s{sT1}")
    g("v_lshrrev_b32 v14, 4, v0", "v_lshlrev_b32 v14, 2, v14", "v_and_b32 v15, 15, v0")
    for r in range(4):
        g(f"v_cmp_le_u32 s[{sMASK+2*r}:{sMASK+2*r+1}], v14, v15")
        if r < 3: g("v_add_u32 v14, 1, v14")
    g(f"s_mov_b32 s{sRESTART}, 0", f"s_mov_b32 s{sOOB}, {hex(OOB)}")
    g.stamp("pre_karg")
    g("s_waitcnt lgkmcnt(0)")
    g.stamp("karg")
    for s, n in ((S_WS, 'ws'), (S_DBG, 'dbg'), (S_A, 'ckv'), (S_B, 'wuk'), (S_C2, 'wuv'), (88, 'x'), (92, 'wmod'), (96, 'c')):
        finish_srd(g, s, n)
    def dma(c):
        if c < 16:
            j, q = c >> 2, c & 3
            srd = S_B if j < 2 else S_C2
            off = q*0x100000 + (j & 1)*128
        else:
            j, q = (c - 16) >> 2, c & 3
            srd = S_B; off = q*0x100000 + j*128
        base = sWBKV if c < 16 else sWB
        if OPT.get('bdma_hack'):
            lab = g.newlabel("nodma")
            return [f"s_cmp_lg_u32 s{sISA}, 0", f"s_cbranch_scc1 {lab}",
                    f"s_add_u32 s{sT1}, s{base}, {hex(off)}", f"s_add_u32 m0, s{sM0B}, {hex(SLOT[c]*16384)}",
                    (f"buffer_load_dwordx4 v{V_W0}, s[{srd}:{srd+3}], s{sT1} offen lds", ('W', c)),
                    (f"buffer_load_dwordx4 v{V_W1}, s[{srd}:{srd+3}], s{sT1} offen offset:1024 lds", ('W', c)),
                    f"s_add_u32 s{sT1}, s{sT1}, {4*16*8192}", f"s_add_u32 m0, m0, {4*2048}", "s_nop 0",
                    f"buffer_load_dwordx4 v{V_W0}, s[{srd}:{srd+3}], s{sT1} offen lds",
                    f"buffer_load_dwordx4 v{V_W1}, s[{srd}:{srd+3}], s{sT1} offen offset:1024 lds", lab + ":"]
        return [f"s_add_u32 m0, s{sM0B}, {hex(SLOT[c]*16384)}", f"s_add_u32 s{sT1}, s{base}, {hex(off)}",
                (f"buffer_load_dwordx4 v{V_W0}, s[{srd}:{srd+3}], s{sT1} offen lds", ('W', c)),
                (f"buffer_load_dwordx4 v{V_W1}, s[{srd}:{srd+3}], s{sT1} offen offset:1024 lds", ('W', c))]
    def stage(p):
        out = []
        for hf in range(2):
            out += [f"s_add_u32 m0, s{sSTG}, {(p%3)*4096 + hf*2048}", f"s_add_u32 s{sT1}, s{sCROW}, {p*128 + hf*16384}",
                    (f"buffer_load_dwordx4 v{V_C0}, s[{S_A}:{S_A+3}], s{sT1} offen lds", ('P', p)),
                    (f"buffer_load_dwordx4 v{V_C1}, s[{S_A}:{S_A+3}], s{sT1} offen offset:1024 lds", ('P', p))]
        return out
    def stage_reads(p):
        return [f"ds_read_b128 a[{(s*2+t)*4}:{(s*2+t)*4+3}], v{V_SR+(s&1)} offset:{(p%3)*4096 + t*2048}" for s in (2*p, 2*p+1) for t in range(2)]
    MC, MW, MT, MA = 96, 100, 116, 120
    def mod_loads(lo, hi):
        g(f"s_cmp_ge_u32 s3, {lo}", f"s_cselect_b32 s{sT2}, 0, s{sOOB}", f"s_cmp_lt_u32 s3, {hi}", f"s_cselect_b32 s{sT2}, s{sT2}, s{sOOB}")
        g(f"v_and_b32 v{MT}, 3, v0", f"v_lshrrev_b32 v{MT+1}, 2, v0", f"s_lshl_b32 s{sT1}, s{sWAVE}, 4", f"v_add_u32 v{MT+1}, s{sT1}, v{MT+1}")
        g(f"s_movk_i32 s{sT1}, 6144", f"v_mul_lo_u32 v{MT+2}, v{MT+1}, s{sT1}", f"v_lshl_add_u32 v{MT+2}, v{MT}, 4, v{MT+2}", f"s_lshl_b32 s{sT1}, s3, 6", f"v_add_u32 v{MT+2}, s{sT1}, v{MT+2}")
        g(f"v_lshlrev_b32 v{MT+3}, 1, v{MT+1}")
        for t in range(4):
            g.vmem(f"buffer_load_ushort v{MC+t}, v{MT+3}, s[96:99], s{sT2} offen offset:{t*256}", 'mc')
        for t in range(4):
            g(f"s_add_u32 s{sT1}, s{sT2}, {hex(t*128*6144)}")
            g.vmem(f"buffer_load_dwordx4 v[{MW+4*t}:{MW+3+4*t}], v{MT+2}, s[92:95], s{sT1} offen", ('mw', t))
    def mod_partial(lo, hi, lds):
        skip = g.newlabel("modp")
        g.stamp("mo_pre"); g.wait_vm(('mw', 3)); g.stamp("mo_w")
        g(f"s_cmp_ge_u32 s3, {lo}", f"s_cbranch_scc0 {skip}", f"s_cmp_lt_u32 s3, {hi}", f"s_cbranch_scc0 {skip}")
        g(f"s_mov_b32 s{sT1}, {hex(LOG2E)}")
        for t in range(4): g(f"v_lshlrev_b32 v{MC+t}, 16, v{MC+t}")
        for t in range(4): g(f"v_mul_f32 v{MT+t}, s{sT1}, v{MC+t}")
        for t in range(4): g(f"v_exp_f32 v{MT+t}, -v{MT+t}")
        g("s_nop 0")
        for t in range(4): g(f"v_add_f32 v{MT+t}, 1.0, v{MT+t}")
        for t in range(4): g(f"v_rcp_f32 v{MT+t}, v{MT+t}")
        g("s_nop 0")
        for t in range(4): g(f"v_mul_f32 v{MC+t}, v{MC+t}, v{MT+t}")
        g(f"s_mov_b32 s{sT2}, 0xffff0000")
        for t in range(4):
            for d in range(4):
                w = MW + 4*t + d
                g(f"v_lshlrev_b32 v{MT}, 16, v{w}", f"v_and_b32 v{MT+1}, s{sT2}, v{w}")
                if t == 0: g(f"v_mul_f32 v{MA+2*d}, v{MC}, v{MT}", f"v_mul_f32 v{MA+1+2*d}, v{MC}, v{MT+1}")
                else: g(f"v_fmac_f32 v{MA+2*d}, v{MC+t}, v{MT}", f"v_fmac_f32 v{MA+1+2*d}, v{MC+t}, v{MT+1}")
        for r in (8, 4):
            g("s_nop 1")
            for e in range(8): g(f"v_add_f32_dpp v{MA+e}, v{MA+e}, v{MA+e} row_ror:{r} row_mask:0xf bank_mask:0xf")
        g(f"v_lshrrev_b32 v{MT+1}, 4, v0", f"s_lshl_b32 s{sT1}, s{sWAVE}, 2", f"v_add_u32 v{MT+1}, s{sT1}, v{MT+1}", f"v_lshlrev_b32 v{MT+1}, 7, v{MT+1}",
          f"v_and_b32 v{MT}, 3, v0", f"v_lshl_add_u32 v{MT+1}, v{MT}, 5, v{MT+1}", f"v_add_u32 v{MT+1}, {lds}, v{MT+1}")
        g(f"v_and_b32 v{MT}, 15, v0", f"v_cmp_gt_u32 vcc, 4, v{MT}", "s_nop 1", "s_mov_b64 exec, vcc")
        g(f"ds_write_b128 v{MT+1}, v[{MA}:{MA+3}]", f"ds_write_b128 v{MT+1}, v[{MA+4}:{MA+7}] offset:16")
        g("s_mov_b64 exec, -1", "s_waitcnt lgkmcnt(0)")
        g.label(skip)
        g.stamp("mo_p")
    def mod_final(lo, hi, lds):
        lskip = g.newlabel("modfin")
        g(f"s_cmp_ge_u32 s3, {lo}", f"s_cselect_b32 s{sT2}, 0, s{sOOB}", f"s_cmp_lt_u32 s3, {hi}", f"s_cselect_b32 s{sT2}, s{sT2}, s{sOOB}",
          f"s_cmp_eq_u32 s{sWAVE}, 0", f"s_cselect_b32 s{sT2}, s{sT2}, s{sOOB}")
        g(f"s_cmp_lg_u32 s{sT2}, 0", f"s_cbranch_scc1 {lskip}")
        g(f"v_and_b32 v{MT}, 31, v0", f"v_lshlrev_b32 v{MT}, 2, v{MT}", f"v_lshrrev_b32 v{MT+1}, 5, v0", f"v_lshl_add_u32 v{MT}, v{MT+1}, 11, v{MT}", f"v_add_u32 v{MT}, {lds}, v{MT}")
        g("s_waitcnt lgkmcnt(0)")
        for r in range(16):
            if r == 15: g("s_waitcnt lgkmcnt(7)")
            g(f"ds_read_b32 v{MW+r}, v{MT} offset:{r*128}")
        g("s_waitcnt lgkmcnt(0)")
        for st in (8, 4, 2, 1):
            for k in range(st): g(f"v_add_f32 v{MW+k}, v{MW+k}, v{MW+k+st}")
        g(f"v_mov_b32 v{MW+1}, v{MW}", "s_nop 1", f"v_permlane32_swap_b32 v{MW}, v{MW+1}", f"v_add_f32 v{MW}, v{MW}, v{MW+1}")
        g.label(lskip)
        g(f"v_lshlrev_b32 v{MT}, 2, v0", "v_cmp_gt_u32 vcc, 32, v0", f"v_mov_b32 v{MT+1}, {hex(OOB)}", "s_nop 0", f"v_cndmask_b32 v{MT}, v{MT+1}, v{MT}, vcc")
        g(f"s_lshl_b32 s{sT1}, s3, 7", f"s_add_u32 s{sT1}, s{sT1}, {hex(WS_MOD)}", f"s_add_u32 s{sT1}, s{sT1}, s{sT2}")
        g.vmem(f"buffer_store_dword v{MW}, v{MT}, s[{S_WS}:{S_WS+3}], s{sT1} offen sc1", 'modst')
        g.stamp("mo_f")
        g(f"s_lshl_b32 s{sT1}, s3, 7", f"s_add_u32 s{sT1}, s{sT1}, {hex(WS_CNT)}", "s_cmp_lt_u32 s3, 32", f"s_cselect_b32 s{sT1}, s{sT1}, s{sOOB}",
          f"s_cmp_eq_u32 s{sWAVE}, 0", f"s_cselect_b32 s{sT1}, s{sT1}, s{sOOB}", f"v_mov_b32 v{MT+2}, 0", f"v_lshlrev_b32 v{MT+3}, 12, v0", "s_mov_b64 exec, 15")
        g.vmem(f"buffer_store_dword v{MT+2}, v{MT+3}, s[{S_WS}:{S_WS+3}], s{sT1} offen sc1", 'modst')
        g("s_mov_b64 exec, -1")
    def c_touch():
        g(f"s_lshr_b32 s{sT1}, s2, 5", f"s_mul_i32 s{sT1}, s{sT1}, 160", f"s_lshl_b32 s{sT2}, s{sWAVE}, 6", f"s_add_u32 s{sT1}, s{sT1}, s{sT2}", f"v_add_u32 v56, s{sT1}, v0")
        g(f"v_add_u32 v57, s{sT2}, v0", "v_mov_b32 v58, 0xcccd", "v_mul_u32_u24 v58, v56, v58", "v_lshrrev_b32 v58, 18, v58")
        g("v_mul_u32_u24 v59, 5, v58", "v_sub_u32 v59, v56, v59", "v_add_u32 v59, 3, v59", "v_lshlrev_b32 v59, 7, v59", "v_lshl_add_u32 v59, v58, 10, v59")
        g(f"s_lshl_b32 s{sT1}, s{sKB}, 18", f"v_add_u32 v59, s{sT1}, v59", "v_cmp_gt_u32 vcc, 160, v57", f"v_mov_b32 v58, {hex(OOB)}", "s_nop 0", "v_cndmask_b32 v59, v58, v59, vcc")
        g.vmem(f"buffer_load_dword v12, v59, s[{S_A}:{S_A+3}], 0 offen", 'tc')
    def w_touch_lin():
        g(f"s_lshl_b32 s{sT1}, s2, 2", f"s_and_b32 s{sT2}, s{sWAVE}, 3", f"s_add_u32 s{sT1}, s{sT1}, s{sT2}")
        g(f"s_and_b32 s{sT2}, s{sT1}, 511", f"s_lshl_b32 s{sT2}, s{sT2}, 13", f"s_cmp_lt_u32 s{sWAVE}, 4", f"s_cselect_b32 s{sT2}, s{sT2}, s{sOOB}")
        g("v_lshlrev_b32 v15, 7, v0", f"s_cmp_lt_u32 s{sT1}, 512", f"s_cselect_b32 s{sT3}, s{sT2}, s{sOOB}")
        g.vmem(f"buffer_load_dword v13, v15, s[{S_B}:{S_B+3}], s{sT3} offen", 'tw')
        g(f"s_cmp_lt_u32 s{sT1}, 512", f"s_cselect_b32 s{sT3}, s{sOOB}, s{sT2}")
        g.vmem(f"buffer_load_dword v14, v15, s[{S_C2}:{S_C2+3}], s{sT3} offen", 'tw')
    def w_touch():
        g(f"s_and_b32 s{sT1}, s{sKB}, 3", f"s_lshl_b32 s{sT1}, s{sT1}, 9", f"s_lshl_b32 s{sT2}, s{sWAVE}, 6", f"s_add_u32 s{sT1}, s{sT1}, s{sT2}", f"v_add_u32 v14, s{sT1}, v0")
        g("v_bfe_u32 v15, v14, 1, 9", "v_lshlrev_b32 v15, 13, v15", "v_and_b32 v14, 1, v14", "v_lshl_add_u32 v15, v14, 7, v15", f"s_lshl_b32 s{sT2}, s{sHKV}, 8", f"v_add_u32 v15, s{sT2}, v15")
        g(f"s_bitcmp1_b32 s{sKB}, 1", f"s_cselect_b32 s{sT2}, s{sOOB}, 0")
        g.vmem(f"buffer_load_dword v13, v15, s[{S_B}:{S_B+3}], s{sT2} offen", 'tw')
        g(f"s_cselect_b32 s{sT2}, 0, s{sOOB}")
        g.vmem(f"buffer_load_dword v14, v15, s[{S_C2}:{S_C2+3}], s{sT2} offen", 'tw')
    if OPT.get('fprio'):
        lp = g.newlabel("fp")
        g(f"s_cmp_eq_u32 s{sISA}, {0 if OPT['fprio'] == 1 else 1}", f"s_cbranch_scc1 {lp}", "s_setprio 1"); g.label(lp)
    if OPT.get('ctouch', 1) and not Gen.STAMP:
        lsk = g.newlabel("noct")
        g(f"s_cmp_lg_u32 s{sWAVE}, 7", f"s_cbranch_scc1 {lsk}", f"s_lshr_b32 s{sT1}, s2, 3")
        code_touch(g, KNAME, sT1, 3, 0, 16, 18, 60 if not Gen.STAMP else 96)
        g.label(lsk)
    pv = OPT.get('pro', 4)
    bar = (lambda: g("s_barrier")) if pv in (0, 2, 3, 5) else (lambda: None)
    if pv == 10: mod_loads(0, 96)
    emit(g, dma(0)); emit(g, stage(0)); g.stamp("iss0"); bar()
    if pv in (11, 12):
        emit(g, stage(1))
    elif pv == 10:
        emit(g, stage(1)); emit(g, dma(1)); emit(g, stage(2)); emit(g, dma(2))
    elif pv == 3:
        emit(g, stage(1)); emit(g, dma(1)); bar(); emit(g, stage(2)); c_touch(); emit(g, dma(2)); mod_loads(0, 96)
    elif pv == 6:
        emit(g, stage(1)); emit(g, dma(1)); emit(g, stage(2)); emit(g, dma(2)); mod_loads(0, 96)
    elif pv == 7:
        emit(g, stage(1)); emit(g, dma(1)); emit(g, stage(2)); c_touch(); emit(g, dma(2)); mod_loads(0, 96)
    elif pv == 8:
        emit(g, stage(1)); mod_loads(0, 96); emit(g, dma(1)); emit(g, stage(2)); emit(g, dma(2))
    elif pv == 5:
        emit(g, stage(1)); emit(g, dma(1)); emit(g, stage(2)); bar(); emit(g, dma(2)); mod_loads(0, 96)
    else:
        if pv != 2: c_touch()
        emit(g, stage(1)); mod_loads(0, 96); g.stamp("iss1"); bar()
        emit(g, dma(1)); emit(g, stage(2)); emit(g, dma(2)); g.stamp("iss2")
    g(f"s_lshl_b32 s{sT1}, s{sHEAD}, 3", f"s_add_u32 s{sT1}, s{sT1}, s{sWAVE}", f"s_lshl_b32 s{sT2}, s{sI}, 7", f"s_add_u32 s{sT2}, s{sT2}, s{sT1}",
      f"s_sub_u32 s{sT3}, 14, s{sI}", f"s_lshl_b32 s{sT3}, s{sT3}, 7", f"s_add_u32 s{sT3}, s{sT3}, s{sT1}",
      f"s_cmp_lt_u32 s{sT1}, 128", f"s_cselect_b32 s{sCNT}, s{sT2}, s{sT3}")
    if pv == 10: mod_partial(0, 96, 3*16384)
    g.wait_vm(('P', 0)); g.stamp("p0"); g(stage_reads(0))
    g.wait_vm(('W', 0)); g("s_waitcnt lgkmcnt(0)", "s_barrier")
    g.stamp("w0_landed")
    if pv == 11:
        emit(g, dma(1)); emit(g, stage(2)); mod_loads(0, 96); emit(g, dma(2))
    if pv == 12:
        emit(g, dma(1)); emit(g, stage(2)); emit(g, dma(2)); mod_loads(0, 96)
    emit(g, stage(3))
    if pv == 10: mod_final(0, 96, 3*16384)
    second = 512
    g(tr_reads(0, 0, second)); r1 = tr_reads(1, 1, second)
    g(r1[:7]); g("s_waitcnt lgkmcnt(7)"); g(r1[7])
    NKS, NCH = 96, 24
    def epilogue(j):
        buf = V_ACC + (j & 1) * 32
        A = lambda t, cb: buf + (t * 4 + cb) * 4
        groups = []
        for i in range(4):
            if j < 2:
                t, u = i >> 1, i & 1
                a, b = A(t, 2*u), A(t, 2*u+1); off = WS_KF + (t * 4 + 2*j + u) * 1024
            else:
                a, b = A(0, i), A(1, i); off = WS_VF + (4*(j-2) + i) * 1024
            grp = [f"v_cvt_pk_bf16_f32 v{a}, v{a}, v{a+1}", f"v_cvt_pk_bf16_f32 v{a+1}, v{a+2}, v{a+3}",
                   f"v_cvt_pk_bf16_f32 v{a+2}, v{b}, v{b+1}", f"v_cvt_pk_bf16_f32 v{a+3}, v{b+2}, v{b+3}"]
            st = [f"s_add_u32 s{sT1}, s{sSTB}, {hex(off)}", (f"buffer_store_dwordx4 v[{a}:{a+3}], v{V_L16}, s[{S_WS}:{S_WS+3}], s{sT1} offen{'' if OPT.get('kvplain') else ' sc1'}", ('st', j))]
            groups.append((grp, st))
        return groups
    def hload(s):
        out = []
        for t in range(2):
            out += [f"s_lshl_b32 s{sT1}, s{sT16}, 14", f"s_add_u32 s{sT1}, s{sT1}, {hex(WS_H + t*16384 + s*1024)}",
                    (f"buffer_load_dwordx4 a[{(s*2+t)*4}:{(s*2+t)*4+3}], v{V_L16}, s[{S_WS}:{S_WS+3}], s{sT1} offen sc1", ('H', s))]
        return out
    def ln1_loads():
        g(f"v_lshlrev_b32 v1, 5, v0", f"s_mov_b32 s{sT1}, {hex(WS_MOD)}")
        for k, off in enumerate((0, 16, 2048, 2064)):
            g.vmem(f"buffer_load_dwordx4 v[{72+4*k}:{75+4*k}], v1, s[{S_WS}:{S_WS+3}], s{sT1} offen offset:{off} sc1", 'lnm')
    def wsum_items(v, t):
        out = []
        for r in (8, 4, 2, 1): out += ["s_nop 1", f"v_add_f32_dpp v{v}, v{v}, v{v} row_ror:{r} row_mask:0xf bank_mask:0xf"]
        out += [f"v_mov_b32 v{t}, v{v}", "s_nop 1", f"v_permlane16_swap_b32 v{v}, v{t}", f"v_add_f32 v{v}, v{v}, v{t}"]
        out += [f"v_mov_b32 v{t}, v{v}", "s_nop 1", f"v_permlane32_swap_b32 v{v}, v{t}", f"v_add_f32 v{v}, v{v}, v{t}"]
        return out
    def ln1_stats_items():
        it = []
        for d in range(4): it += [f"v_lshlrev_b32 v{64+2*d}, 16, v{12+d}", f"v_and_b32 v{65+2*d}, 0xffff0000, v{12+d}"]
        it += ["v_add_f32 v10, v64, v65", "v_add_f32 v11, v66, v67", "v_add_f32 v10, v10, v11", "v_add_f32 v11, v68, v69", "v_add_f32 v10, v10, v11", "v_add_f32 v11, v70, v71", "v_add_f32 v10, v10, v11"]
        it += wsum_items(10, 11) + ["v_mul_f32 v10, 0x3b000000, v10"]
        it += [f"v_sub_f32 v{64+e}, v{64+e}, v10" for e in range(8)]
        it += ["v_mul_f32 v11, v64, v64"] + [f"v_fmac_f32 v11, v{64+e}, v{64+e}" for e in range(1, 8)]
        it += wsum_items(11, 10)
        it += ["v_mov_b32 v10, 0x3727c5ac", "v_fmac_f32 v10, 0x3b000000, v11", "v_rsq_f32 v10, v10", "s_nop 0", f"v_mul_f32 v10, {hex(QSCALE)}, v10"]
        it += [f"v_mul_f32 v{64+e}, v{64+e}, v10" for e in range(8)]
        return it
    def ln1_mod_items():
        it = [f"v_add_f32 v{80+e}, 1.0, v{80+e}" for e in range(8)] + [f"v_mul_f32 v{72+e}, {hex(QSCALE)}, v{72+e}" for e in range(8)]
        it += [f"v_fma_f32 v{64+e}, v{64+e}, v{80+e}, v{72+e}" for e in range(8)]
        it += [f"v_cvt_pk_bf16_f32 v{88+d}, v{64+2*d}, v{65+2*d}" for d in range(4)]
        it += ["v_lshrrev_b32 v1, 2, v0", "v_lshlrev_b32 v1, 10, v1", "v_and_b32 v2, 3, v0", "v_lshl_add_u32 v1, v2, 8, v1"]
        return it
    def ln1_to_lds():
        g(f"v_mul_u32_u24 v1, 144, v0", f"s_lshl_b32 s{sT1}, s{sWAVE}, 4", f"s_add_u32 s{sT1}, s{sT1}, {2*16384}", f"v_add_u32 v1, s{sT1}, v1", "ds_write_b128 v1, v[88:91]", "s_waitcnt lgkmcnt(0)")
    def ln1_from_lds():
        g("v_lshrrev_b32 v1, 3, v0", f"s_lshl_b32 s{sT1}, s{sWAVE}, 3", f"v_add_u32 v1, s{sT1}, v1", "v_mul_u32_u24 v1, 144, v1", "v_and_b32 v2, 7, v0", "v_lshl_add_u32 v1, v2, 4, v1",
          f"v_add_u32 v1, {2*16384}, v1", "ds_read_b128 v[12:15], v1")
        g("v_lshrrev_b32 v1, 5, v0", "v_lshlrev_b32 v1, 10, v1", "v_bfe_u32 v10, v0, 3, 2", "v_lshl_add_u32 v1, v10, 8, v1", "v_lshl_add_u32 v1, v2, 4, v1")
        g(f"s_lshr_b32 s{sT1}, s{sCNT}, 4", f"s_lshl_b32 s{sT1}, s{sT1}, 14", f"s_and_b32 s{sT2}, s{sCNT}, 8", f"s_lshl_b32 s{sT2}, s{sT2}, 4", f"s_add_u32 s{sT1}, s{sT1}, s{sT2}",
          f"s_lshl_b32 s{sT2}, s{sWAVE}, 11", f"s_add_u32 s{sT1}, s{sT1}, s{sT2}", f"s_add_u32 s{sT1}, s{sT1}, {hex(WS_H)}", "s_waitcnt lgkmcnt(0)")
        g.vmem(f"buffer_store_dwordx4 v[12:15], v1, s[{S_WS}:{S_WS+3}], s{sT1} offen sc1", 'hst')
    def ln1_store():
        g(f"s_lshr_b32 s{sT1}, s{sCNT}, 4", f"s_lshl_b32 s{sT1}, s{sT1}, 14", f"s_and_b32 s{sT2}, s{sCNT}, 15", f"s_lshl_b32 s{sT2}, s{sT2}, 4",
          f"s_add_u32 s{sT1}, s{sT1}, s{sT2}", f"s_add_u32 s{sT1}, s{sT1}, {hex(WS_H)}")
        g.vmem(f"buffer_store_dwordx4 v[88:91], v1, s[{S_WS}:{S_WS+3}], s{sT1} offen{'' if OPT.get('hplain') else ' sc1'}", 'hst')
    fq = []
    pend = []
    HSIG = 10 if OPT.get('hlds', 1) else 9
    if OPT.get('hlds', 1):
        ISSUE.pop(8); ISSUE[9] = [16]; ISSUE[10] = [17, 18]
    KVSIG, KVCHK = (17, 20) if OPT.get('nospread') or OPT.get('q_nospread') else (20, 22)
    dq = []
    for ks in range(NKS):
        c, kk = ks >> 2, ks & 3
        j = c >> 2; s = ks % 16
        if kk == 2 and c + 1 < NCH:
            if c == 0 and OPT.get('pro', 4) != 10: mod_partial(0, 96, 3*16384)
            if c == 1: g.wait_vm('modst')
            if c == 5 and not OPT.get('noln'): g.stamp("b_5p"); poll_check(g, 2, S_DBG, 'pl0', sKO, 32, sT1, sT2)
            if c == HSIG and not OPT.get('noln'): g.stamp("hst_pre"); g.wait_vm('hst'); g.stamp("hst_post")
            if c == 12 and not OPT.get('noln'): g.stamp("h_pre"); poll_check(g, 2, S_WS, 'plh', sKO, 32, sT1, sT2); g.stamp("h_chk")
            if c == KVSIG and not OPT.get('nost'): g.wait_vm(('st', 3))
            if c == KVCHK: g.stamp("kv_pre"); poll_check(g, 2, S_WS, 'plk', sM0K, 8, sT1, sT2); g.stamp("kv_chk")
            g.stamp(f"b_{c}a"); g.wait_vm(('W', c + 1)); g("s_barrier"); g.stamp(f"b_{c}")
            if c == 6:
                g(f"s_load_dwordx2 s[16:17], s[0:1], {KA['wq']}", "s_waitcnt lgkmcnt(0)"); finish_srd(g, S_B, 'wq')
            for cc in ISSUE.get(c, []): dq.append(dma(cc))
            g.stamp(f"b_{c}i")
            if c == 0 and OPT.get('pro', 4) != 10:
                mod_final(0, 96, 3*16384)
                if OPT.get("wtouch"): w_touch()
            if c == 1:
                signal(g, S_DBG, C_START*4, 96, sT1, 0, 32)
                if OPT.get('all_early'): signal(g, S_DBG, 32*4, 96, sT1)
            if c == 2:
                g(f"s_lshl_b32 s{sT1}, s{sCNT}, 10")
                g.vmem(f"buffer_load_dwordx4 v[12:15], v{V_L16}, s[88:91], s{sT1} offen", 'lnx')
            if c == 4 and not OPT.get('noln'):
                g(f"s_mov_b32 s{sKO}, {C_START*4}"); poll_issue(g, 2, S_DBG, sKO, 'pl0', sT1)
            if c == 5 and not OPT.get('noln'): ln1_loads()
            if c == 8 and OPT.get('hlds', 1) and not OPT.get('noln'): ln1_from_lds()
            if c == HSIG and not OPT.get('noln'):
                cnt_off(g, sT3, C_H, sI); signal(g, S_WS, ('s', sT3), 1, sT1)
            if c == 11 and not OPT.get('noln'):
                cnt_off(g, sKO, C_H, sI); poll_issue(g, 2, S_WS, sKO, 'plh', sT1)
            if c == 12 and not OPT.get('noln') and OPT.get('th'):
                g(f"s_lshl_b32 s{sT1}, s{sT16}, 14", f"s_and_b32 s{sT2}, s{sHEAD}, 3", f"s_lshl_b32 s{sT2}, s{sT2}, 13", f"s_add_u32 s{sT1}, s{sT1}, s{sT2}",
                  f"s_add_u32 s{sT1}, s{sT1}, {hex(WS_H)}", "v_lshlrev_b32 v1, 7, v0")
                g.vmem(f"buffer_load_dword v2, v1, s[{S_WS}:{S_WS+3}], s{sT1} offen sc1", 'th')
            if c == KVSIG:
                cnt_off(g, sT3, C_KV, sHKV); signal(g, S_WS, ('s', sT3), 1, sT1)
            if c == KVCHK - 1:
                cnt_off(g, sM0K, C_KV, sHEAD); poll_issue(g, 2, S_WS, sM0K, 'plk', sT1)
            if c == KVCHK:
                emit(g, unit_sc1(0)); emit(g, unit_sc1(1))
                if KVCHK == 22: emit(g, unit_sc1(2))
            if c == KVCHK + 1 and KVCHK < 22: emit(g, unit_sc1(2))
            d = (SLOT[c + 1] - SLOT[c]) * 16384
            for cb in range(4): g(f"v_add_u32 v{V_TR+cb}, {hex(d & 0xffffffff)}, v{V_TR+cb}")
        extra = False
        if ks < 16:
            if ks % 2 == 1 and (ks + 1) // 2 <= 7:
                p = (ks + 1) // 2
                g.wait_vm(('P', p)); g(stage_reads(p)); extra = True
            if ks % 2 == 0 and ks >= 2 and ks // 2 + 3 <= 7: emit(g, stage(ks // 2 + 3))
        if 64 <= ks < 80 and not OPT.get('nohl'): g.wait_vm(('H', s))
        nxt = ks + 2
        reads = tr_reads(nxt, nxt & 3, second) if nxt < NKS else []
        buf = V_ACC + (j & 1) * 32
        if ks == 84 and not OPT.get('qlate'):
            for qs in range(2):
                for s_ in range(2):
                    a_ = V_ACC + (qs*4 + 2*s_)*4; b_ = a_ + 4
                    fq += [f"v_cvt_pk_bf16_f32 v{12+k}, v{x}, v{y}" for k, (x, y) in enumerate(((a_, a_+1), (a_+2, a_+3), (b_, b_+1), (b_+2, b_+3)))]
                    fq += [f"v_accvgpr_write_b32 a{A_Q+(qs*4+s_)*4+k}, v{12+k}" for k in range(4)]
        sv = OPT.get('stv', 1)
        if not OPT.get('noln'):
            if ks == (18 if sv == 0 else 17): g.wait_vm('lnx'); fq += ln1_stats_items()
            if ks == 28: assert not fq; g.wait_vm('lnm'); fq += ln1_mod_items()
            if ks == 31:
                assert not fq
                if OPT.get('hlds', 1): ln1_to_lds()
                else: ln1_store()
        if sv == 0:
            if j == 1: take = s in (1, 3, 5, 7)
            elif j == 4 and KVCHK == 20: take = s >= 1
            else: take = s % 4 == 1
        else:
            if j == 1: take = s in (0, 3, 4, 7)
            elif j == 3 and sv == 2: take = s in (0, 1, 2, 3)
            elif j == 3 and sv == 3: take = s in (0, 1, 3, 4)
            else: take = s % 4 == 3
        if OPT.get('nospread'): take = s >= 1 if j != 1 else take
        epi = pend.pop(0) if (pend and take) else None
        fb = ks % 3
        wfirst = j < 2 or j >= 4
        for m in range(8):
            cb, t = m >> 1, m & 1
            d = buf + (t * 4 + cb) * 4
            wf = f"v[{V_FR + fb*16 + cb*4}:{V_FR + fb*16 + cb*4 + 3}]"
            cf = f"a[{(s*2+t)*4}:{(s*2+t)*4+3}]"
            cin = "0" if s == 0 else f"v[{d}:{d+3}]"
            g(f"v_mfma_f32_16x16x32_bf16 v[{d}:{d+3}], {wf}, {cf}, {cin}" if wfirst else f"v_mfma_f32_16x16x32_bf16 v[{d}:{d+3}], {cf}, {wf}, {cin}")
            if m == 3 and extra: g("s_waitcnt lgkmcnt(3)")
            if m == 7 and reads: g("s_waitcnt lgkmcnt(7)")
            if reads: g(reads[m])
            elif m == 7 and ks + 1 < NKS: g("s_waitcnt lgkmcnt(0)")
            if epi and 1 <= m <= 4: g(epi[0][m-1])
            if epi and m == 5 and not OPT.get('nost'):
                g.stamp(f"st{ks}a"); emit(g, epi[1]); g.stamp(f"st{ks}b")
            if m == 2 and dq:
                g.stamp(f"dm{ks}a"); emit(g, dq.pop(0)); g.stamp(f"dm{ks}b")
            for _ in range(2 if not epi else 1):
                if fq: g(fq.pop(0))
        g.stamp(f"ke{ks}")
        for sh in HSCHED.get(ks, []):
            if not OPT.get('nohl'): emit(g, hload(sh))
        if s == 15:
            if j < 4: pend = epilogue(j)
            g.stamp(f"sub{j}_done")
    if OPT.get('fprio'): g("s_setprio 0")
    if OPT.get('endq'):
        g("s_waitcnt vmcnt(0)", "s_endpgm")
    g("s_nop 7")
    assert not fq
    for qs in range(2):
        for s in range(4):
            if s < 2 and not OPT.get('qlate'): continue
            j, u = s >> 1, s & 1
            a = V_ACC + j*32 + (qs*4 + 2*u)*4; b = a + 4
            for k, (x, y) in enumerate(((a, a+1), (a+2, a+3), (b, b+1), (b+2, b+3))): g(f"v_cvt_pk_bf16_f32 v{16+k}, v{x}, v{y}")
            for k in range(4): g(f"v_accvgpr_write_b32 a{A_Q+(qs*4+s)*4+k}, v{16+k}")
    p_att.attention_body(g, unit_sc1, sc1=True, fused=fused)

def unit_sc1(u):
    its = uniform_unit(u)
    return [((x[0].replace(" lds", " sc1 lds"), x[1]) if isinstance(x, tuple) else x) for x in its]

tRB, tCB, tAO, tWO, tM0W, tR, tU, tX, tY, tZ, tRB4, tCB4, tT16 = 23, 24, 25, 26, 27, 28, 29, 30, 31, 32, 33, 34, 35
WS_ST = WS_STAT + 0x100000 * 0 + 0x40000
TAG = 0x3f800000
A_ACC, A_AF, V_WF, V_WV, RING, DEPTH = 0, 64, 16, 48, 5, 4
C_ALL = 32
C_PART = 64
C_CTX2 = 80
WS_PART = 0x1200000

def stat_slot(g, dst, t):
    g(f"s_and_b32 s{dst}, s2, 7", f"s_lshl_b32 s{dst}, s{dst}, 2", f"s_bfe_u32 s{t}, s2, 0x20003", f"s_add_u32 s{dst}, s{dst}, s{t}",
      f"s_lshl_b32 s{dst}, s{dst}, 2", f"s_and_b32 s{t}, s{sWAVE}, 3", f"s_add_u32 s{dst}, s{dst}, s{t}", f"s_lshl_b32 s{dst}, s{dst}, 4",
      f"s_lshr_b32 s{t}, s2, 5", f"s_lshl_b32 s{t}, s{t}, 1", f"s_add_u32 s{dst}, s{dst}, s{t}",
      f"s_lshr_b32 s{t}, s{sWAVE}, 2", f"s_add_u32 s{dst}, s{dst}, s{t}", f"s_lshl_b32 s{dst}, s{dst}, 8", f"s_add_u32 s{dst}, s{dst}, {hex(WS_ST)}")

def spin(g, vdst, srd, soff, target, t1, t2, sleep=None):
    ok, loop = g.newlabel("sok"), g.newlabel("sloop")
    sleep = OPT.get('sleep', 16)
    g(f"s_cmp_lg_u32 s{sWAVE}, 0", f"s_cbranch_scc1 {ok}", f"s_mov_b32 s{t2}, 0x40000")
    g.label(loop)
    g(f"buffer_load_dword v{vdst}, off, s[{srd}:{srd+3}], s{soff} sc1", "s_waitcnt vmcnt(0)")
    g(f"v_readfirstlane_b32 s{t1}, v{vdst}", "s_nop 3", f"s_cmp_ge_u32 s{t1}, {target}", f"s_cbranch_scc1 {ok}")
    g(f"s_sleep {sleep}", f"s_sub_u32 s{t2}, s{t2}, 1", f"s_cmp_lg_u32 s{t2}, 0", f"s_cbranch_scc1 {loop}")
    g.label(ok)

def wsplit_setup(g, nks, a_off, a_nks, wname):
    g(f"s_load_dwordx2 s[{S_A}:{S_A+1}], s[0:1], {KA[wname]}")
    setup_dma128(g, 1024, nat=False, v0=V_WV, v1=V_WV+1); setup_tr128(g, nat=False)
    for p in range(1, 4): g(f"v_add_u32 v{V_WV+p}, {p*7168}, v{V_WV}")
    g(f"s_mul_i32 s{tM0W}, s{sWAVE}, {RING*4096}")
    for c in range(4): g(f"v_add_u32 v{V_TR+c}, s{tM0W}, v{V_TR+c}")
    g(f"s_mul_i32 s{tAO}, s{tRB}, {4*a_nks*1024}", f"s_mul_i32 s{tX}, s{sWAVE}, {nks*1024}", f"s_add_u32 s{tAO}, s{tAO}, s{tX}", f"s_add_u32 s{tAO}, s{tAO}, {hex(a_off)}")
    g(f"s_mul_i32 s{tWO}, s{sWAVE}, {nks*32*1024}", f"s_lshl_b32 s{tX}, s{tCB}, 7", f"s_add_u32 s{tWO}, s{tWO}, s{tX}")
    g("s_waitcnt lgkmcnt(0)"); finish_srd(g, S_A, wname)
def ws_wdma(j):
    out = [f"s_add_u32 m0, s{tM0W}, {(j % RING)*4096}", f"s_add_u32 s{tX}, s{tWO}, {j*32*1024}"]
    for p in range(4): out.append((f"buffer_load_dwordx4 v{V_WV+p}, s[{S_A}:{S_A+3}], s{tX} offen offset:{p*1024} lds", ('tW', j)))
    return out
def ws_aload(j, a_nks):
    out = []
    for r in range(4):
        b = A_AF + (j % DEPTH)*16 + r*4
        out += [f"s_add_u32 s{tY}, s{tAO}, {(r*a_nks + j)*1024}", (f"buffer_load_dwordx4 a[{b}:{b+3}], v{V_L16}, s[{S_WS}:{S_WS+3}], s{tY} offen sc1", ('tA', j))]
    return out
def ws_reads(j):
    fb = V_WF + (j & 1)*16
    out = []
    for c in range(4):
        out.append(f"ds_read_b64_tr_b16 v[{fb+4*c}:{fb+4*c+1}], v{V_TR+c} offset:{(j % RING)*4096}")
        out.append(f"ds_read_b64_tr_b16 v[{fb+4*c+2}:{fb+4*c+3}], v{V_TR+c} offset:{(j % RING)*4096+2048}")
    return out
def wsplit_main(g, nks, a_nks, tag, a_off=None):
    for j in range(min(DEPTH, nks)): emit(g, ws_aload(j, a_nks))
    if OPT.get('tact'):
        per = 2 if nks == 16 else 1
        if per == 2:
            g("v_lshrrev_b32 v1, 4, v0", f"v_mul_u32_u24 v1, {a_nks*1024}, v1", "v_bfe_u32 v10, v0, 3, 1", "v_lshl_add_u32 v1, v10, 10, v1", "v_and_b32 v10, 7, v0", "v_lshl_add_u32 v1, v10, 7, v1")
            g(f"s_lshl_b32 s{tX}, s{tCB}, 11", f"s_add_u32 s{tX}, s{tX}, s{tAO}")
        else:
            g("v_lshrrev_b32 v1, 3, v0", f"v_mul_u32_u24 v1, {a_nks*1024}, v1", "v_and_b32 v10, 7, v0", "v_lshl_add_u32 v1, v10, 7, v1",
              f"v_mov_b32 v10, {hex(OOB)}", "v_cmp_gt_u32 vcc, 32, v0", "s_nop 1", "v_cndmask_b32 v1, v10, v1, vcc")
            g(f"s_lshl_b32 s{tX}, s{tCB}, 10", f"s_add_u32 s{tX}, s{tX}, s{tAO}", f"s_cmp_lt_u32 s{tCB}, 7", f"s_cselect_b32 s{tX}, s{tX}, s{sOOB}")
        g.vmem(f"buffer_load_dword v2, v1, s[{S_WS}:{S_WS+3}], s{tX} offen sc1", 'tch')
    g.wait_vm(('tW', 0)); g(ws_reads(0))
    g.stamp(tag + "_first")
    for j in range(nks):
        rd = []
        if j + 1 < nks:
            g.wait_vm(('tW', j + 1)); rd = ws_reads(j + 1)
        g("s_waitcnt lgkmcnt(0)")
        g.wait_vm(('tA', j))
        fb = V_WF + (j & 1)*16
        for m in range(16):
            c, r = m >> 2, m & 3
            d = A_ACC + (c*4 + r)*4; b = A_AF + (j % DEPTH)*16 + r*4
            cin = "0" if j == 0 else f"a[{d}:{d+3}]"
            g(f"v_mfma_f32_16x16x32_bf16 a[{d}:{d+3}], v[{fb+4*c}:{fb+4*c+3}], a[{b}:{b+3}], {cin}")
            if rd and m < 8: g(rd[m])
            if m == 8 and j + DEPTH < nks: emit(g, ws_wdma(j + DEPTH))
        if j + DEPTH < nks: emit(g, ws_aload(j + DEPTH, a_nks))
    g.stamp(tag + "_loop")
    g("s_nop 7", "s_barrier")
    g(f"s_lshl_b32 s{tX}, s{sWAVE}, 14", f"v_add_u32 v10, s{tX}, v{V_L16}")
    for q in range(16): g(f"ds_write_b128 v10, a[{A_ACC+4*q}:{A_ACC+4*q+3}] offset:{q*1024}")
    g(f"s_lshl_b32 s{tX}, s{tU}, 3", f"s_add_u32 s{tX}, s{tX}, s{tR}", f"s_lshl_b32 s{tX}, s{tX}, 10", f"v_add_u32 v10, s{tX}, v{V_L16}", "v_add_u32 v11, 0x10000, v10",
      "s_waitcnt lgkmcnt(0)", "s_barrier")
    for p in range(8):
        a = 10 if p < 4 else 11
        for c in range(2):
            if p == 7 and c == 1: g("s_waitcnt lgkmcnt(8)")
            g(f"ds_read_b128 v[{64+(p*2+c)*4}:{64+(p*2+c)*4+3}], v{a} offset:{(p%4)*16384 + c*4096}")
    g("s_waitcnt lgkmcnt(0)")
    for st in (32, 16, 8):
        for k in range(st): g(f"v_add_f32 v{64+k}, v{64+k}, v{64+k+st}")
    g.stamp(tag + "_red")

def tail(g):
    g("v_mbcnt_lo_u32_b32 v0, -1, 0", "v_mbcnt_hi_u32_b32 v0, -1, v0", f"v_lshlrev_b32 v{V_L16}, 4, v0")
    g(f"s_and_b32 s{tRB}, s2, 7", f"s_lshl_b32 s{tRB}, s{tRB}, 2", f"s_bfe_u32 s{tX}, s2, 0x20003", f"s_add_u32 s{tRB}, s{tRB}, s{tX}", f"s_lshr_b32 s{tCB}, s2, 5")
    g(f"s_and_b32 s{tR}, s{sWAVE}, 3", f"s_lshr_b32 s{tU}, s{sWAVE}, 2")
    if OPT.get('tprio'):
        lp = g.newlabel("tp")
        g(f"s_cmp_lt_u32 s{sWAVE}, 4", f"s_cbranch_scc1 {lp}", "s_setprio 1"); g.label(lp)
    kKQ, kRB, kCB, kWR, kWC, kAO, kWO, kM0, kO = 36, 37, 38, 39, 40, 41, 42, 43, 44
    NS3 = 5
    g(f"s_bfe_u32 s{kKQ}, s2, 0x20001", f"s_and_b32 s{kRB}, s2, 1", f"s_lshl_b32 s{kRB}, s{kRB}, 3", f"s_bfe_u32 s{tX}, s2, 0x30003", f"s_add_u32 s{kRB}, s{kRB}, s{tX}", f"s_lshr_b32 s{kCB}, s2, 6")
    g(f"s_and_b32 s{kWR}, s{sWAVE}, 3", f"s_lshr_b32 s{kWC}, s{sWAVE}, 2")
    g(f"s_load_dwordx2 s[{S_A}:{S_A+1}], s[0:1], {KA['wo']}", f"s_load_dwordx2 s[{S_B}:{S_B+1}], s[0:1], {KA['x']}")
    g("v_lshrrev_b32 v14, 4, v0", "v_lshlrev_b32 v3, 10, v14", "v_bfe_u32 v15, v0, 1, 3", "v_xor_b32 v15, v15, v14", "v_and_b32 v10, 1, v0", "v_lshlrev_b32 v10, 4, v10",
      "v_add_u32 v3, v3, v10", "v_xor_b32 v11, 4, v15", "v_lshl_add_u32 v4, v11, 5, v3", "v_lshl_add_u32 v3, v15, 5, v3", f"v_add_u32 v4, {4*1024 - 1024}, v4")
    g("v_lshrrev_b32 v14, 4, v0", "v_bfe_u32 v15, v0, 2, 2", "v_lshl_add_u32 v14, v14, 2, v15", "v_lshlrev_b32 v6, 8, v14", "v_and_b32 v14, 7, v14", "v_lshl_add_u32 v6, v14, 5, v6",
      "v_and_b32 v15, 3, v0", "v_lshl_add_u32 v6, v15, 3, v6", f"s_lshl_b32 s{tX}, s{kWC}, 7", f"v_xor_b32 v6, s{tX}, v6", "v_add_u32 v6, 16384, v6")
    for c in range(1, 4): g(f"v_xor_b32 v{6+c}, {c << 5}, v6")
    g(f"s_lshl_b32 s{tX}, s{kWR}, 12", f"v_add_u32 v10, s{tX}, v{V_L16}")
    g(f"s_lshl_b32 s{kAO}, s{kRB}, 3", f"s_add_u32 s{kAO}, s{kAO}, s{sWAVE}", f"s_lshl_b32 s{kAO}, s{kAO}, 17", f"s_lshl_b32 s{tX}, s{kKQ}, 15", f"s_add_u32 s{kAO}, s{kAO}, s{tX}", f"s_add_u32 s{kAO}, s{kAO}, {hex(WS_CTX)}")
    g(f"s_lshl_b32 s{kWO}, s{kKQ}, 20", f"s_lshl_b32 s{tX}, s{sWAVE}, 13", f"s_add_u32 s{kWO}, s{kWO}, s{tX}", f"s_lshl_b32 s{tX}, s{kCB}, 8", f"s_add_u32 s{kWO}, s{kWO}, s{tX}")
    g(f"s_lshl_b32 s{kM0}, s{sWAVE}, 11")
    g("s_waitcnt lgkmcnt(0)"); finish_srd(g, S_A, 'wo'); finish_srd(g, S_B, 'x')
    def w3(st):
        return [f"s_add_u32 m0, s{kM0}, {(st % NS3)*32768 + 16384}", f"s_add_u32 s{tX}, s{kWO}, {st*64*1024}",
                (f"buffer_load_dwordx4 v3, s[{S_A}:{S_A+3}], s{tX} offen lds", ('3W', st)), (f"buffer_load_dwordx4 v4, s[{S_A}:{S_A+3}], s{tX} offen offset:1024 lds", ('3W', st))]
    def a3(st):
        return [f"s_add_u32 m0, s{kM0}, {(st % NS3)*32768}", f"s_add_u32 s{tX}, s{kAO}, {st*2048}",
                (f"buffer_load_dwordx4 v{V_L16}, s[{S_WS}:{S_WS+3}], s{tX} offen sc1 lds", ('3A', st)), (f"buffer_load_dwordx4 v{V_L16}, s[{S_WS}:{S_WS+3}], s{tX} offen offset:1024 sc1 lds", ('3A', st))]
    g.wait_vm('ctxst'); g("s_barrier")
    g(f"s_lshl_b32 s{tZ}, s{sI}, 2", f"s_lshr_b32 s{tY}, s{sHEAD}, 3", f"s_add_u32 s{tZ}, s{tZ}, s{tY}")
    cnt_off(g, tX, C_CTX2, tZ); signal(g, S_WS, ('s', tX), 1, tY)
    g(f"s_sub_u32 s{tY}, 15, s{kRB}", f"s_min_u32 s{tX}, s{kRB}, s{tY}", f"s_lshl_b32 s{tX}, s{tX}, 2", f"s_add_u32 s{tX}, s{tX}, s{kKQ}"); cnt_off(g, tZ, C_CTX2, tX)
    g(f"s_mov_b32 s45, {C_ALL*4}")
    if not OPT.get('syncpoll', 1):
        poll_issue(g, 2, S_DBG, 45, 'pall', tX); poll_issue(g, 1, S_WS, tZ, 'pctx', tX)
    for st in range(NS3 - 1): emit(g, w3(st))
    if not OPT.get('syncpoll', 1):
        poll_check(g, 2, S_DBG, 'pall', 45, 256, tX, tY); poll_check(g, 1, S_WS, 'pctx', tZ, 8, tX, tY)
    else:
        spin(g, 1, S_DBG, 45, 256, tX, tY); spin(g, 1, S_WS, tZ, 8, tX, tY)
    g("s_barrier")
    g.stamp("ctx_ok")
    for st in range(NS3 - 1): emit(g, a3(st))
    g(f"s_lshl_b32 s{kO}, s{kCB}, 2", f"s_add_u32 s{kO}, s{kO}, s{kKQ}")
    g("v_and_b32 v12, 7, v0", "v_bfe_u32 v13, v0, 3, 2", "v_lshrrev_b32 v14, 5, v0")
    g(f"s_lshr_b32 s{tX}, s{kO}, 1", f"s_lshl_b32 s{tY}, s{kRB}, 3", f"s_add_u32 s{tT16}, s{tX}, s{tY}", f"s_and_b32 s{tZ}, s{kO}, 1")
    g(f"s_lshl_b32 s{tX}, s{tT16}, 4", f"s_lshl_b32 s{tY}, s{tZ}, 3", f"s_add_u32 s{tX}, s{tX}, s{tY}", f"v_add_u32 v15, s{tX}, v12")
    g(f"s_lshl_b32 s{tX}, s{sWAVE}, 1", f"v_add_u32 v11, s{tX}, v14", "v_lshlrev_b32 v11, 5, v11", "v_lshl_add_u32 v11, v13, 2, v11")
    g("v_lshlrev_b32 v15, 10, v15", "v_lshl_add_u32 v15, v11, 1, v15", "v_lshlrev_b32 v11, 2, v11")
    g(f"s_lshl_b32 s{tY}, s{tZ}, 7", "v_lshlrev_b32 v12, 4, v12", "v_lshl_add_u32 v12, v13, 8, v12", f"v_add_u32 v12, s{tY}, v12")
    g("v_lshl_add_u32 v13, v14, 11, v12", "v_lshl_add_u32 v12, v14, 10, v12")
    g.vmem(f"buffer_load_dwordx2 v[120:121], v15, s[{S_B}:{S_B+3}], 0 offen", 'xr'); g.vmem(f"buffer_load_dwordx2 v[122:123], v15, s[{S_B}:{S_B+3}], 0 offen offset:32", 'xr')
    g(f"s_mov_b32 s{tX}, {hex(WS_MOD + 1024*4)}")
    for k, off in enumerate((0, 64, 2048, 2048+64, 4096, 4096+64)):
        if off >= 4096: g(f"s_mov_b32 s{tX}, {hex(WS_MOD + 2048*4)}"); off -= 4096
        g.vmem(f"buffer_load_dwordx4 v[{96+4*k}:{99+4*k}], v11, s[{S_WS}:{S_WS+3}], s{tX} offen offset:{off} sc1", 'mods')
    def r3(ks):
        kk = ks & 1; fb = 16 + (ks & 1)*24
        out = [f"ds_read_b128 v[{fb+16+4*r}:{fb+16+4*r+3}], v10 offset:{r*2048+kk*1024}" for r in range(2)]
        for c in range(4):
            out.append(f"ds_read_b64_tr_b16 v[{fb+4*c}:{fb+4*c+1}], v{6+c} offset:{kk*8192}")
            out.append(f"ds_read_b64_tr_b16 v[{fb+4*c+2}:{fb+4*c+3}], v{6+c} offset:{kk*8192+4096}")
        return out
    g.wait_vm(('3A', 0)); g("s_barrier")
    g.stamp("k3_first")
    g(r3(0))
    NST = 16
    dq3 = []
    for ks in range(2*NST):
        st, kk = ks >> 1, ks & 1
        if kk == 1 and st + 1 < NST:
            if not OPT.get('k3nodma') or st + 1 < NS3 - 1: g.wait_vm(('3A', st + 1)); g.wait_vm(('3W', st + 1))
            if not OPT.get('k3nobar'): g("s_barrier")
            if st + NS3 - 1 < NST and not OPT.get('k3nodma'): dq3 = [w3(st + NS3 - 1), a3(st + NS3 - 1)]
            d = (((st + 1) % NS3) - (st % NS3)) * 32768
            for v in (6, 7, 8, 9, 10): g(f"v_add_u32 v{v}, {hex(d & 0xffffffff)}, v{v}")
        rd = r3(ks + 1) if ks + 1 < 2*NST else []
        last = not rd
        fb = 16 + (ks & 1)*24
        for m in range(8):
            c, r = m >> 1, m & 1
            if r == 0: g(f"s_waitcnt lgkmcnt({6 if not last else 6 - 2*c - 0 if False else (6 if not last else max(0, 6 - 2*c))})")
            d = 64 + (c*2 + r)*4
            cin = "0" if ks == 0 else f"v[{d}:{d+3}]"
            g(f"v_mfma_f32_16x16x32_bf16 v[{d}:{d+3}], v[{fb+4*c}:{fb+4*c+3}], v[{fb+16+4*r}:{fb+16+4*r+3}], {cin}")
            if rd:
                g(rd.pop(0))
                if m >= 6 and rd: g(rd.pop(0))
            if m in (3, 5) and dq3: emit(g, dq3.pop(0))
    g.stamp("k3_loop")
    g("s_nop 7")
    g(f"s_lshl_b32 s{tX}, s{kKQ}, 7", f"s_lshl_b32 s{tY}, s{kRB}, 3", f"s_add_u32 s{tX}, s{tX}, s{tY}", f"s_lshl_b32 s{tY}, s{kWR}, 1", f"s_add_u32 s{tX}, s{tX}, s{tY}",
      f"s_lshl_b32 s{tX}, s{tX}, 4", f"s_lshl_b32 s{tY}, s{kCB}, 2", f"s_add_u32 s{tX}, s{tX}, s{tY}", f"s_lshl_b32 s{tY}, s{kWC}, 1", f"s_add_u32 s{tX}, s{tX}, s{tY}",
      f"s_lshl_b32 s{tX}, s{tX}, 10", f"s_add_u32 s{tX}, s{tX}, {hex(WS_PART)}")
    for r in range(2):
        for cp in range(2):
            qa, qb = 64 + ((2*cp)*2 + r)*4, 64 + ((2*cp+1)*2 + r)*4
            t = 16 + (r*2 + cp)*4
            g(f"v_cvt_pk_bf16_f32 v{t}, v{qa}, v{qa+1}", f"v_cvt_pk_bf16_f32 v{t+1}, v{qa+2}, v{qa+3}", f"v_cvt_pk_bf16_f32 v{t+2}, v{qb}, v{qb+1}", f"v_cvt_pk_bf16_f32 v{t+3}, v{qb+2}, v{qb+3}")
            g.vmem(f"buffer_store_dwordx4 v[{t}:{t+3}], v{V_L16}, s[{S_WS}:{S_WS+3}], s{tX} offen offset:{cp*1024} sc1", 'pst')
        if r == 0: g(f"s_add_u32 s{tX}, s{tX}, 16384")
    g.wait_vm('pst'); g("s_barrier")
    cnt_off(g, tX, C_PART, kRB); signal(g, S_WS, ('s', tX), 1, tY)
    cnt_off(g, tY, C_PART, kRB); g(f"s_mov_b32 s{kAO}, s{tY}"); spin(g, 1, S_WS, kAO, 16, tX, tY, sleep=2)
    g("s_barrier")
    g.stamp("part_ok")
    g(f"s_lshl_b32 s{tX}, s{tT16}, 14", f"s_lshl_b32 s{tY}, s{sWAVE}, 11", f"s_add_u32 s{tX}, s{tX}, s{tY}", f"s_add_u32 s{tX}, s{tX}, {hex(WS_PART)}")
    for q in range(4):
        g.vmem(f"buffer_load_dwordx4 v[{16+4*q}:{19+4*q}], v12, s[{S_WS}:{S_WS+3}], s{tX} offen sc1", ('pl', q))
        if q < 3: g(f"s_add_u32 s{tX}, s{tX}, {128*16384}")
    for q in range(4):
        g.wait_vm(('pl', q))
        for d in range(4):
            if q == 0: g(f"v_lshlrev_b32 v{64+2*d}, 16, v{16+d}", f"v_and_b32 v{65+2*d}, 0xffff0000, v{16+d}")
            else: g(f"v_lshlrev_b32 v72, 16, v{16+4*q+d}", f"v_and_b32 v73, 0xffff0000, v{16+4*q+d}", f"v_add_f32 v{64+2*d}, v{64+2*d}, v72", f"v_add_f32 v{65+2*d}, v{65+2*d}, v73")
    for c in range(2):
        g(f"v_lshlrev_b32 v72, 16, v{120+2*c}", f"v_and_b32 v73, 0xffff0000, v{120+2*c}", f"v_lshlrev_b32 v74, 16, v{121+2*c}", f"v_and_b32 v75, 0xffff0000, v{121+2*c}")
        for k in range(4): g(f"v_fma_f32 v{64+4*c+k}, v{64+4*c+k}, v{96+4*c+k}, v{72+k}")
    g(f"s_lshl_b32 s{tX}, s{tT16}, 15", f"s_lshl_b32 s{tY}, s{sWAVE}, 12", f"s_add_u32 s{tX}, s{tX}, s{tY}", f"s_add_u32 s{tX}, s{tX}, {hex(WS_X1)}")
    g.vmem(f"buffer_store_dwordx4 v[64:67], v13, s[{S_WS}:{S_WS+3}], s{tX} offen sc1", 'x1st'); g.vmem(f"buffer_store_dwordx4 v[68:71], v13, s[{S_WS}:{S_WS+3}], s{tX} offen offset:1024 sc1", 'x1st')
    def red8(v, t):
        g("s_nop 1", f"v_add_f32_dpp v{v}, v{v}, v{v} row_ror:8 row_mask:0xf bank_mask:0xf")
        cross_g(g, v, t, "v_add_f32")
    g("v_add_f32 v72, v64, v65", "v_add_f32 v73, v66, v67", "v_add_f32 v74, v68, v69", "v_add_f32 v75, v70, v71", "v_add_f32 v72, v72, v73", "v_add_f32 v74, v74, v75", "v_add_f32 v72, v72, v74")
    red8(72, 73)
    g("v_mul_f32 v72, 0x3c800000, v72")
    g("v_sub_f32 v74, v64, v72", "v_mul_f32 v73, v74, v74")
    for k in range(1, 8): g(f"v_sub_f32 v74, v{64+k}, v72", "v_fmac_f32 v73, v74, v74")
    red8(73, 74)
    g("v_and_b32 v74, 7, v0", "v_lshlrev_b32 v74, 6, v74", f"s_lshl_b32 s{tX}, s{sWAVE}, 3", f"v_add_u32 v75, s{tX}, v74", "ds_write_b64 v75, v[72:73]", "s_waitcnt lgkmcnt(0)", "s_barrier")
    for q in range(4): g(f"ds_read_b128 v[{76+4*q}:{79+4*q}], v74 offset:{q*16}")
    g("s_waitcnt lgkmcnt(0)")
    g("v_add_f32 v72, v76, v78", "v_add_f32 v73, v80, v82", "v_add_f32 v72, v72, v73", "v_add_f32 v73, v84, v86", "v_add_f32 v72, v72, v73", "v_add_f32 v73, v88, v90", "v_add_f32 v72, v72, v73")
    g("v_mul_f32 v72, 0.125, v72" if False else "v_mul_f32 v72, 0x3e000000, v72")
    g("v_add_f32 v73, v77, v79")
    for q in range(2, 8): g(f"v_add_f32 v73, v73, v{77+2*q}")
    for q in range(8): g(f"v_sub_f32 v74, v{76+2*q}, v72", "v_mul_f32 v75, v74, v74", "v_fmac_f32 v73, 0x42800000, v75")
    g("v_mov_b32 v74, 0x3727c5ac", "v_fmac_f32 v74, 0x3b000000, v73", "v_rsq_f32 v74, v74", "s_nop 0")
    for k in range(8): g(f"v_sub_f32 v{64+k}, v{64+k}, v72")
    for k in range(8): g(f"v_mul_f32 v{64+k}, v{64+k}, v74")
    for k in range(8): g(f"v_add_f32 v{112+k}, 1.0, v{112+k}")
    for k in range(8): g(f"v_fma_f32 v{64+k}, v{64+k}, v{112+k}, v{104+k}")
    for k in range(4): g(f"v_cvt_pk_bf16_f32 v{72+k}, v{64+2*k}, v{65+2*k}")
    g(f"s_lshl_b32 s{tX}, s{tT16}, 14", f"s_lshl_b32 s{tY}, s{sWAVE}, 11", f"s_add_u32 s{tX}, s{tX}, s{tY}", f"s_add_u32 s{tX}, s{tX}, {hex(WS_H2)}")
    g.vmem(f"buffer_store_dwordx4 v[72:75], v12, s[{S_WS}:{S_WS+3}], s{tX} offen sc1", 'h2st')
    g(f"s_lshr_b32 s{kO}, s{kRB}, 1")
    g.stamp("stats_ok")
    LK5 = g.newlabel("k5")
    g(f"s_load_dwordx2 s[{S_A}:{S_A+1}], s[0:1], {KA['wg']}", f"s_load_dwordx2 s[{S_B}:{S_B+1}], s[0:1], {KA['wu']}")
    g(f"s_and_b32 s{tRB4}, s2, 1", f"s_lshl_b32 s{tRB4}, s{tRB4}, 2", f"s_bfe_u32 s{tX}, s2, 0x20003", f"s_add_u32 s{tRB4}, s{tRB4}, s{tX}",
      f"s_bfe_u32 s{tCB4}, s2, 0x20001", f"s_mul_i32 s{tCB4}, s{tCB4}, 7", f"s_lshr_b32 s{tX}, s2, 5", f"s_add_u32 s{tCB4}, s{tCB4}, s{tX}")
    g(f"s_lshl_b32 s{tT16}, s{tRB4}, 4", f"s_lshl_b32 s{tX}, s{sWAVE}, 1", f"s_add_u32 s{tT16}, s{tT16}, s{tX}")
    setup_dma128(g, 3584, nat=False); setup_tr128(g, nat=False)
    g(f"s_mul_i32 s{sWB}, s{sWAVE}, {16*3584}", f"s_lshl_b32 s{tX}, s{tCB4}, 7", f"s_add_u32 s{sWB}, s{sWB}, s{tX}", f"s_lshl_b32 s{sM0B}, s{sWAVE}, 11")
    g("s_waitcnt lgkmcnt(0)"); finish_srd(g, S_A, 'wg'); finish_srd(g, S_B, 'wu')
    def dma4(c):
        j, q = c >> 2, c & 3
        srd = S_A if j == 0 else S_B
        return [f"s_add_u32 m0, s{sM0B}, {hex(c*16384)}", f"s_add_u32 s{tX}, s{sWB}, {hex(q*128*3584)}",
                (f"buffer_load_dwordx4 v{V_W0}, s[{srd}:{srd+3}], s{tX} offen lds", ('W', c)),
                (f"buffer_load_dwordx4 v{V_W1}, s[{srd}:{srd+3}], s{tX} offen offset:1024 lds", ('W', c))]
    g.wait_vm('h2st'); g("s_barrier")
    cnt_off(g, tX, C_H2, 44); signal(g, S_WS, ('s', tX), 1, tY)
    g("s_cmp_ge_u32 s2, 224", f"s_cbranch_scc1 {LK5}")
    cnt_off(g, tZ, C_H2, tRB4)
    if not OPT.get('syncpoll', 1): poll_issue(g, 1, S_WS, tZ, 'ph2', tX)
    for c in (0, 4, 1, 5): emit(g, dma4(c))
    for cb in range(4): g(f"v_add_u32 v{10+cb}, 0x10000, v{V_TR+cb}")
    if not OPT.get('syncpoll', 1): poll_check(g, 1, S_WS, 'ph2', tZ, 32, tX, tY)
    else: spin(g, 1, S_WS, tZ, 32, tX, tY)
    g("s_barrier")
    g.stamp("h2_ok")
    g.vm = [('W', c) for c in (0, 4, 1, 5) for _ in range(2)]
    def hload4(s4):
        out = []
        for t in range(2):
            out.append(f"s_lshl_b32 s{tX}, s{tT16}, 14"); out.append(f"s_add_u32 s{tX}, s{tX}, {hex(WS_H2 + t*16384 + s4*4096)}")
            for k in range(4):
                s = s4*4 + k
                out.append((f"buffer_load_dwordx4 a[{(s*2+t)*4}:{(s*2+t)*4+3}], v{V_L16}, s[{S_WS}:{S_WS+3}], s{tX} offen offset:{k*1024} sc1", ('H', s4)))
        return out
    def rd4(ks):
        j, s_ = ks >> 4, ks & 15
        q, kk = s_ >> 2, s_ & 3
        fb = V_FR + (ks % 3)*16
        out = []
        for c in range(4):
            a_ = (V_TR if c < 2 else 10) + 2*j + (c & 1)
            off = q*16384 + kk*4096
            out.append(f"ds_read_b64_tr_b16 v[{fb+4*c}:{fb+4*c+1}], v{a_} offset:{off}")
            out.append(f"ds_read_b64_tr_b16 v[{fb+4*c+2}:{fb+4*c+3}], v{a_} offset:{off+2048}")
        return out
    def silu_items(j):
        it = []
        buf = 64 + 32*j
        T = (1, 2, 14, 15)
        for t in range(2):
            for c in range(2):
                G, U = buf + (t*4 + c)*4, buf + (t*4 + 2 + c)*4
                it += [f"v_mul_f32 v{T[k]}, s{tZ}, v{G+k}" for k in range(4)]
                it += [f"v_exp_f32 v{T[k]}, -v{T[k]}" for k in range(4)]
                it += [f"v_mul_f32 v{G+k}, v{G+k}, v{U+k}" for k in range(4)]
                it += [f"v_add_f32 v{T[k]}, 1.0, v{T[k]}" for k in range(4)]
                it += [f"v_rcp_f32 v{T[k]}, v{T[k]}" for k in range(4)] + ["s_nop 0"]
                it += [f"v_mul_f32 v{G+k}, v{G+k}, v{T[k]}" for k in range(4)]
            G0, G1 = buf + (t*4)*4, buf + (t*4 + 1)*4
            it += [f"v_cvt_pk_bf16_f32 v{G0}, v{G0}, v{G0+1}", f"v_cvt_pk_bf16_f32 v{G0+1}, v{G0+2}, v{G0+3}", f"v_cvt_pk_bf16_f32 v{G0+2}, v{G1}, v{G1+1}", f"v_cvt_pk_bf16_f32 v{G0+3}, v{G1+2}, v{G1+3}"]
            it += [('ST', t, j)]
        return it
    def act_store(t, j):
        a_ = 64 + 32*j + (t*4)*4
        g(f"s_add_u32 s{tX}, s{kAO}, {t*56*1024 + j*1024}")
        g.vmem(f"buffer_store_dwordx4 v[{a_}:{a_+3}], v{V_L16}, s[{S_WS}:{S_WS+3}], s{tX} offen sc1", 'actst')
    g(f"s_mul_i32 s{kAO}, s{tT16}, {56*1024}", f"s_lshl_b32 s{tY}, s{tCB4}, 11", f"s_add_u32 s{kAO}, s{kAO}, s{tY}", f"s_add_u32 s{kAO}, s{kAO}, {hex(WS_ACT)}")
    emit(g, hload4(0)); emit(g, hload4(1))
    g.wait_vm(('W', 4)); g("s_barrier")
    g(rd4(0)); r1 = rd4(1); g(r1[:7]); g("s_waitcnt lgkmcnt(7)"); g(r1[7])
    fq4, dq4 = [], []
    for ks in range(32):
        j, s_ = ks >> 4, ks & 15
        if ks in (2, 6, 10):
            q = ks // 4 + 1
            g.wait_vm(('W', 4 + q)); g("s_barrier")
            if q + 1 < 4: dq4 = [dma4(q + 1), dma4(4 + q + 1)]
        if ks == 0: emit(g, hload4(2))
        if ks == 2: emit(g, hload4(3))
        if ks < 16 and ks % 4 == 0: g.wait_vm(('H', ks // 4))
        if ks == 17:
            g(f"s_mov_b32 s{tZ}, {hex(LOG2E)}"); fq4 = silu_items(0)
        reads = rd4(ks + 2) if ks + 2 < 32 else []
        fb = V_FR + (ks % 3)*16
        for m in range(8):
            c, t = m >> 1, m & 1
            d = 64 + 32*j + (t*4 + c)*4
            cin = "0" if s_ == 0 else f"v[{d}:{d+3}]"
            g(f"v_mfma_f32_16x16x32_bf16 v[{d}:{d+3}], v[{fb+4*c}:{fb+4*c+3}], a[{(s_*2+t)*4}:{(s_*2+t)*4+3}], {cin}")
            if m == 7 and reads: g("s_waitcnt lgkmcnt(7)")
            if reads: g(reads[m])
            elif m == 7 and ks + 1 < 32: g("s_waitcnt lgkmcnt(0)")
            if m == 2 and dq4: emit(g, dq4.pop(0))
            for _ in range(2):
                if fq4:
                    x = fq4.pop(0)
                    if isinstance(x, tuple): act_store(x[1], x[2])
                    else: g(x)
    assert not fq4
    g.stamp("k4_loop")
    g("s_nop 7")
    for x in silu_items(1):
        if isinstance(x, tuple): act_store(x[1], x[2])
        else: g(x)
    g("s_waitcnt vmcnt(0)", "s_barrier")
    cnt_off(g, tX, C_ACT, tRB4); signal(g, S_WS, ('s', tX), 1, tY)
    g.label(LK5)
    g.vm = []
    g.stamp("k5_entry")
    wsplit_setup(g, 7, WS_ACT, 56, 'wd')
    g(f"s_lshr_b32 s{tX}, s{tRB}, 2"); cnt_off(g, tZ, C_ACT, tX)
    if not OPT.get('syncpoll', 1): poll_issue(g, 1, S_WS, tZ, 'pact', tX)
    for j in range(DEPTH): emit(g, ws_wdma(j))
    if OPT.get('twd'):
        g(f"s_and_b32 s{tX}, s{tRB}, 3", f"s_mul_i32 s{tX}, s{tX}, 7", f"s_add_u32 s{tX}, s{tX}, s{sWAVE}", f"s_lshl_b32 s{tX}, s{tX}, 16", f"s_lshl_b32 s{tY}, s{tCB}, 7",
          f"s_add_u32 s{tX}, s{tX}, s{tY}", f"s_cmp_lt_u32 s{sWAVE}, 7", f"s_cselect_b32 s{tX}, s{tX}, s{sOOB}", "v_lshlrev_b32 v1, 10, v0")
        g.vmem(f"buffer_load_dword v2, v1, s[{S_A}:{S_A+3}], s{tX} offen", 'tch')
    X1LOAD = True
    g(f"s_lshl_b32 s{tX}, s{tCB}, 6", f"s_lshl_b32 s{tY}, s{tU}, 5", f"s_add_u32 s{tX}, s{tX}, s{tY}", "v_lshrrev_b32 v15, 4, v0", "v_lshlrev_b32 v15, 2, v15", f"v_add_u32 v15, s{tX}, v15")
    g("v_lshlrev_b32 v13, 2, v15", f"s_mov_b32 s{tX}, {hex(WS_MOD + 2560*4)}")
    g.vmem(f"buffer_load_dwordx4 v[60:63], v13, s[{S_WS}:{S_WS+3}], s{tX} offen sc1", 'gb'); g.vmem(f"buffer_load_dwordx4 v[12:15], v13, s[{S_WS}:{S_WS+3}], s{tX} offen offset:64 sc1", 'gb')
    g(f"s_load_dwordx2 s[{S_B}:{S_B+1}], s[0:1], {KA['out']}")
    if not OPT.get('syncpoll', 1): poll_check(g, 1, S_WS, 'pact', tZ, 28, tX, tY)
    else: spin(g, 1, S_WS, tZ, 28, tX, tY)
    g("s_waitcnt lgkmcnt(0)"); finish_srd(g, S_B, 'out')
    g("s_barrier")
    g.stamp("act_ok")
    g(f"s_lshl_b32 s{tX}, s{tRB}, 2", f"s_add_u32 s{tX}, s{tX}, s{tR}", f"s_lshl_b32 s{tX}, s{tX}, 4", f"s_lshl_b32 s{tY}, s{tCB}, 1", f"s_add_u32 s{tX}, s{tX}, s{tY}",
      f"s_add_u32 s{tX}, s{tX}, s{tU}", f"s_lshl_b32 s{tX}, s{tX}, 11", f"s_add_u32 s{tX}, s{tX}, {hex(WS_X1)}")
    g.vmem(f"buffer_load_dwordx4 v[52:55], v{V_L16}, s[{S_WS}:{S_WS+3}], s{tX} offen sc1", 'x1l'); g.vmem(f"buffer_load_dwordx4 v[56:59], v{V_L16}, s[{S_WS}:{S_WS+3}], s{tX} offen offset:1024 sc1", 'x1l')
    wsplit_main(g, 7, 56, "k5")
    for k in range(4): g(f"v_fma_f32 v{64+k}, v{64+k}, v{60+k}, v{52+k}")
    for k in range(4): g(f"v_fma_f32 v{68+k}, v{68+k}, v{12+k}, v{56+k}")
    for k in range(4): g(f"v_cvt_pk_bf16_f32 v{16+k}, v{64+2*k}, v{65+2*k}")
    om = OPT.get('outmode', 2)
    if om < 2:
        g(f"s_lshl_b32 s{tX}, s{tRB}, 6", f"s_lshl_b32 s{tY}, s{tR}, 4", f"s_add_u32 s{tX}, s{tX}, s{tY}", "v_and_b32 v20, 15, v0", f"v_add_u32 v20, s{tX}, v20")
        g(f"s_lshl_b32 s{tX}, s{tCB}, 6", f"s_lshl_b32 s{tY}, s{tU}, 5", f"s_add_u32 s{tX}, s{tX}, s{tY}", "v_lshrrev_b32 v21, 4, v0", "v_lshlrev_b32 v21, 2, v21", f"v_add_u32 v21, s{tX}, v21")
        g("v_lshlrev_b32 v20, 10, v20", "v_lshl_add_u32 v20, v21, 1, v20")
        g(f"buffer_store_dwordx2 v[16:17], v20, s[{S_B}:{S_B+3}], 0 offen{' sc1' if om == 1 else ''}", f"buffer_store_dwordx2 v[18:19], v20, s[{S_B}:{S_B+3}], 0 offen offset:32{' sc1' if om == 1 else ''}")
    else:
        g("s_barrier")
        g("v_and_b32 v20, 15, v0", f"s_lshl_b32 s{tX}, s{tR}, 4", f"v_add_u32 v20, s{tX}, v20", "v_mul_u32_u24 v20, 144, v20", "v_lshrrev_b32 v21, 4, v0",
          "v_lshl_add_u32 v20, v21, 3, v20", f"s_lshl_b32 s{tX}, s{tU}, 6", f"v_add_u32 v20, s{tX}, v20")
        g("ds_write_b64 v20, v[16:17]", "ds_write_b64 v20, v[18:19] offset:32", "s_waitcnt lgkmcnt(0)", "s_barrier")
        g("v_lshrrev_b32 v20, 3, v0", f"s_lshl_b32 s{tX}, s{sWAVE}, 3", f"v_add_u32 v20, s{tX}, v20", "v_and_b32 v21, 7, v0", "v_mul_u32_u24 v22, 144, v20", "v_lshl_add_u32 v22, v21, 4, v22",
          "ds_read_b128 v[24:27], v22")
        g(f"s_lshl_b32 s{tX}, s{tRB}, 6", f"v_add_u32 v20, s{tX}, v20", "v_lshlrev_b32 v20, 10, v20", "v_lshl_add_u32 v20, v21, 4, v20", f"s_lshl_b32 s{tX}, s{tCB}, 7", "s_waitcnt lgkmcnt(0)")
        g(f"buffer_store_dwordx4 v[24:27], v20, s[{S_B}:{S_B+3}], s{tX} offen{' sc1' if om == 3 else ''}")
    if Gen.STAMP:
        g("s_waitcnt vmcnt(0)"); g.stamp("end"); g.dump_stamps(sWAVE, 2)

def tail_code_touch(g):
    lsk = g.newlabel("noct2")
    g(f"s_cmp_lg_u32 s{sWAVE}, 0", f"s_cbranch_scc1 {lsk}", f"s_lshr_b32 s{sT1}, s2, 3", "v_mbcnt_lo_u32_b32 v0, -1, 0", "v_mbcnt_hi_u32_b32 v0, -1, v0")
    code_touch(g, KNAME, sT1, 2, 3, 16, 18, 56)
    g.label(lsk)

def all_signal(g):
    signal(g, S_DBG, C_ALL*4, 6, sT1)

def mega(g):
    if not OPT.get('all_early'): OPT['hook_bstart'] = all_signal
    if OPT.get('ctouch2'): OPT['hook_fin'] = tail_code_touch
    front(g, fused=True)
    tail(g)
```

```python
from core import *
import p_kv, p_att, p_mod
from p_kv import emit, V_W0, V_W1, V_L16, V_TR, V_FR, V_ACC, V_C0, V_C1, V_SR, setup_dma128, setup_tr128, tr_reads
from p_att import *
from p_mod import LOG2E, QSCALE

S_WS, S_DBG, S_A, S_B, S_C2 = 4, 8, 12, 16, 56
p_att.S_WS = S_WS
sCROW, sSTB, sSTG = 43, 54, 55
sHKV, sKB, sWBKV = 84, 87, 85
OOB = 0x7ff00000
KNAME = 'mega_kernel'
sOOB = 86
C_START, C_MOD2 = 0, 32
C_H, C_KV, C_CTX, C_H2, C_ACT = 0, 8, 40, 48, 56

SLOT = [0,1,2,3, 0,1, 2,4,5,6,7,8,9, 3, 0, 1,   2,4,5,3,6,7,8,9]
HSCHED = {52 + k: [k] for k in range(16)}
ISSUE = {1:[3, 4], 2:[5], 3:[6, 7], 4:[8, 9], 5:[10, 11], 6:[12, 13], 7:[14, 15], 8:[16], 9:[17], 10:[18], 11:[20], 12:[21], 13:[22], 14:[19], 15:[23]}

def poll_issue(g, vdst, srd, soff, tag, st):
    g(f"s_cmp_eq_u32 s{sWAVE}, 0", f"s_cselect_b32 s{st}, s{soff}, s{sOOB}")
    g.vmem(f"buffer_load_dword v{vdst}, off, s[{srd}:{srd+3}], s{st} sc1", tag)
def poll_check(g, vdst, srd, tag, soff, target, t1, t2):
    ok, loop = g.newlabel("pok"), g.newlabel("ploop")
    g.wait_vm(tag)
    g(f"s_cmp_lg_u32 s{sWAVE}, 0", f"s_cbranch_scc1 {ok}")
    g(f"v_readfirstlane_b32 s{t1}, v{vdst}", "s_nop 3", f"s_cmp_ge_u32 s{t1}, {target}")
    g(f"s_cbranch_scc1 {ok}", f"s_mov_b32 s{t2}, 0x40000")
    g.label(loop)
    g(f"s_sleep {OPT.get('psleep', 4)}", f"buffer_load_dword v{vdst}, off, s[{srd}:{srd+3}], s{soff} sc1", "s_waitcnt vmcnt(0)")
    g(f"v_readfirstlane_b32 s{t1}, v{vdst}", "s_nop 3", f"s_cmp_ge_u32 s{t1}, {target}")
    g(f"s_cbranch_scc1 {ok}", f"s_sub_u32 s{t2}, s{t2}, 1", f"s_cmp_lg_u32 s{t2}, 0", f"s_cbranch_scc1 {loop}")
    g.label(ok)
def signal(g, srd, soff, vt, st, lo=None, hi=None):
    g(f"s_cmp_eq_u32 s{sWAVE}, 0", f"s_cselect_b32 s{st}, {('s%d' % soff[1]) if isinstance(soff, tuple) else soff}, s{sOOB}")
    if lo is not None:
        g(f"s_cmp_ge_u32 s3, {lo}", f"s_cselect_b32 s{st}, s{st}, s{sOOB}", f"s_cmp_lt_u32 s3, {hi}", f"s_cselect_b32 s{st}, s{st}, s{sOOB}")
    g(f"v_mov_b32 v{vt}, 1", "s_mov_b64 exec, 1")
    g.vmem(f"buffer_atomic_add v{vt}, off, s[{srd}:{srd+3}], s{st} sc1", 'sig')
    g("s_mov_b64 exec, -1")
def cnt_off(g, dst, base, idx_s):
    g(f"s_lshl_b32 s{dst}, s{idx_s}, 7", f"s_add_u32 s{dst}, s{dst}, {hex(WS_CNT + base*128)}")

def code_touch(g, kname, seg_s, nseg_bits, first_seg, vt, vdst, st):
    lab = g.newlabel("pc")
    g(f"s_getpc_b64 s[{st}:{st+1}]")
    g.label(lab)
    g(f"s_sub_u32 s{st}, s{st}, {lab}-{kname}", f"s_subb_u32 s{st+1}, s{st+1}, 0")
    g(f"s_and_b32 s{st+2}, s{seg_s}, {(1 << nseg_bits) - 1}", f"s_add_u32 s{st+2}, s{st+2}, {first_seg}", f"s_lshl_b32 s{st+2}, s{st+2}, 13")
    g(f"v_lshlrev_b32 v{vt}, 7, v0", f"v_add_u32 v{vt}, s{st+2}, v{vt}", f"v_min_u32 v{vt}, L_end_{kname}-{kname}, v{vt}")
    g(f"v_mov_b32 v{vt+1}, s{st+1}", f"v_add_co_u32 v{vt}, vcc, s{st}, v{vt}", "s_nop 1", f"v_addc_co_u32 v{vt+1}, vcc, 0, v{vt+1}, vcc")
    g(f"global_load_dword v{vdst}, v[{vt}:{vt+1}], off")

def front(g, fused=False):
    g(f"s_load_dwordx2 s[4:5], s[0:1], {KA['ws']}", f"s_load_dwordx2 s[8:9], s[0:1], {KA['dbg']}",
      f"s_load_dwordx2 s[12:13], s[0:1], {KA['ckv']}", f"s_load_dwordx2 s[16:17], s[0:1], {KA['wuk']}",
      f"s_load_dwordx2 s[56:57], s[0:1], {KA['wuv']}", f"s_load_dwordx2 s[88:89], s[0:1], {KA['x']}",
      f"s_load_dwordx2 s[92:93], s[0:1], {KA['wmod']}", f"s_load_dwordx2 s[96:97], s[0:1], {KA['c']}")
    g.stamp("entry")
    g(f"s_sub_u32 s3, s2, {OPT.get('modbase', 64)}", "s_min_u32 s3, s3, 96")
    g("v_lshrrev_b32 v14, 6, v0", "v_and_b32 v0, 63, v0", "s_nop 0", f"v_readfirstlane_b32 s{sWAVE}, v14")
    g(f"s_and_b32 s{sHEAD}, s2, 7", f"s_lshl_b32 s{sHEAD}, s{sHEAD}, 2", f"s_bfe_u32 s{sT1}, s2, 0x20003", f"s_add_u32 s{sHEAD}, s{sHEAD}, s{sT1}")
    g(f"s_lshr_b32 s{sI}, s2, 5", f"s_lshr_b32 s{sISA}, s{sWAVE}, 2")
    g(f"s_sub_u32 s{sT1}, 7, s{sWAVE}", f"s_sub_u32 s{sT2}, 15, s{sI}", f"s_cmp_eq_u32 s{sISA}, 0",
      f"s_cselect_b32 s{sSUB}, s{sWAVE}, s{sT1}", f"s_cselect_b32 s{sT3}, s{sT2}, s{sI}")
    g(f"s_lshl_b32 s{sT16}, s{sT3}, 3", f"s_lshl_b32 s{sT1}, s{sSUB}, 1", f"s_add_u32 s{sT16}, s{sT16}, s{sT1}")
    g(f"s_lshl_b32 s{sNB2}, s{sT2}, 1", f"s_lshl_b32 s{sNA2}, s{sI}, 1", f"s_lshl_b32 s{sNBo}, s{sT2}, 15", f"s_lshl_b32 s{sNAo}, s{sI}, 15")
    g(f"s_and_b32 s{sA4}, s{sWAVE}, 3", f"s_lshl_b32 s{sA4}, s{sA4}, 12")
    g(f"s_mul_i32 s{sT1}, s{sHEAD}, {HST}", f"s_add_u32 s{sT1}, s{sT1}, s{sA4}",
      f"s_add_u32 s{sKF}, s{sT1}, {hex(WS_KF)}", f"s_add_u32 s{sVF}, s{sT1}, {hex(WS_VF)}")
    g(f"s_and_b32 s{sKB}, s2, 1", f"s_lshl_b32 s{sKB}, s{sKB}, 2", f"s_bfe_u32 s{sT1}, s2, 0x20003", f"s_add_u32 s{sKB}, s{sKB}, s{sT1}")
    g(f"s_bfe_u32 s{sHKV}, s2, 0x20001", f"s_lshl_b32 s{sHKV}, s{sHKV}, 3", f"s_lshr_b32 s{sT1}, s2, 5", f"s_xor_b32 s{sT1}, s{sT1}, {OPT.get('hx', 0)}", f"s_add_u32 s{sHKV}, s{sHKV}, s{sT1}")
    g("v_lshrrev_b32 v14, 3, v0", "v_lshlrev_b32 v1, 10, v14", "v_lshrrev_b32 v14, 4, v0", "v_and_b32 v15, 7, v0", "v_xor_b32 v14, v14, v15",
      "v_xor_b32 v15, 4, v14", "v_lshl_add_u32 v2, v15, 4, v1", "v_lshl_add_u32 v1, v14, 4, v1", f"v_add_u32 v2, {8*1024-1024}, v2")
    setup_dma128(g, 8192); setup_tr128(g)
    g(f"s_mul_i32 s{sSTG}, s{sWAVE}, 12288", f"s_add_u32 s{sSTG}, s{sSTG}, {4*16384}",
      "v_and_b32 v14, 15, v0", "v_lshlrev_b32 v10, 7, v14", "v_lshrrev_b32 v14, 1, v14", "v_lshrrev_b32 v15, 4, v0", "v_xor_b32 v14, v14, v15",
      "v_lshl_add_u32 v10, v14, 4, v10", f"v_add_u32 v10, s{sSTG}, v10", "v_xor_b32 v11, 64, v10")
    g(f"v_lshlrev_b32 v{V_L16}, 4, v0")
    g(f"s_lshl_b32 s{sT1}, s{sKB}, 8", f"s_lshl_b32 s{sCROW}, s{sWAVE}, 5", f"s_add_u32 s{sCROW}, s{sT1}, s{sCROW}", f"s_lshl_b32 s{sCROW}, s{sCROW}, 10")
    g(f"s_lshl_b32 s{sWB}, s{sWAVE}, 17", f"s_lshl_b32 s{sT1}, s{sHEAD}, 8", f"s_add_u32 s{sWB}, s{sWB}, s{sT1}", f"s_lshl_b32 s{sM0B}, s{sWAVE}, 11")
    g(f"s_lshl_b32 s{sWBKV}, s{sWAVE}, 17", f"s_lshl_b32 s{sT1}, s{sHKV}, 8", f"s_add_u32 s{sWBKV}, s{sWBKV}, s{sT1}")
    g(f"s_mul_i32 s{sSTB}, s{sHKV}, {HST}", f"s_lshl_b32 s{sT1}, s{sKB}, 3", f"s_add_u32 s{sT1}, s{sT1}, s{sWAVE}", f"s_lshl_b32 s{sT1}, s{sT1}, 13", f"s_add_u32 s{sSTB}, s{sSTB}, s{sT1}")
    g("v_lshrrev_b32 v14, 4, v0", "v_lshlrev_b32 v14, 2, v14", "v_and_b32 v15, 15, v0")
    for r in range(4):
        g(f"v_cmp_le_u32 s[{sMASK+2*r}:{sMASK+2*r+1}], v14, v15")
        if r < 3: g("v_add_u32 v14, 1, v14")
    g(f"s_mov_b32 s{sRESTART}, 0", f"s_mov_b32 s{sOOB}, {hex(OOB)}")
    g.stamp("pre_karg")
    g("s_waitcnt lgkmcnt(0)")
    g.stamp("karg")
    for s, n in ((S_WS, 'ws'), (S_DBG, 'dbg'), (S_A, 'ckv'), (S_B, 'wuk'), (S_C2, 'wuv'), (88, 'x'), (92, 'wmod'), (96, 'c')):
        finish_srd(g, s, n)
    if OPT.get('wsoff'):
        off = OPT['wsoff'] << 20
        g(f"s_add_u32 s{S_WS}, s{S_WS}, {hex(off)}", f"s_addc_u32 s{S_WS+1}, s{S_WS+1}, 0", f"s_mov_b32 s{S_WS+2}, {hex(SZ['ws'] - off)}")
    def dma(c):
        if c < 16:
            j, q = c >> 2, c & 3
            srd = S_B if j < 2 else S_C2
            off = q*0x100000 + (j & 1)*128
        else:
            j, q = (c - 16) >> 2, c & 3
            srd = S_B; off = q*0x100000 + j*128
        base = sWBKV if c < 16 else sWB
        if OPT.get('bdma_hack'):
            lab = g.newlabel("nodma")
            return [f"s_cmp_lg_u32 s{sISA}, 0", f"s_cbranch_scc1 {lab}",
                    f"s_add_u32 s{sT1}, s{base}, {hex(off)}", f"s_add_u32 m0, s{sM0B}, {hex(SLOT[c]*16384)}",
                    (f"buffer_load_dwordx4 v{V_W0}, s[{srd}:{srd+3}], s{sT1} offen lds", ('W', c)),
                    (f"buffer_load_dwordx4 v{V_W1}, s[{srd}:{srd+3}], s{sT1} offen offset:1024 lds", ('W', c)),
                    f"s_add_u32 s{sT1}, s{sT1}, {4*16*8192}", f"s_add_u32 m0, m0, {4*2048}", "s_nop 0",
                    f"buffer_load_dwordx4 v{V_W0}, s[{srd}:{srd+3}], s{sT1} offen lds",
                    f"buffer_load_dwordx4 v{V_W1}, s[{srd}:{srd+3}], s{sT1} offen offset:1024 lds", lab + ":"]
        return [f"s_add_u32 m0, s{sM0B}, {hex(SLOT[c]*16384)}", f"s_add_u32 s{sT1}, s{base}, {hex(off)}",
                (f"buffer_load_dwordx4 v{V_W0}, s[{srd}:{srd+3}], s{sT1} offen lds", ('W', c)),
                (f"buffer_load_dwordx4 v{V_W1}, s[{srd}:{srd+3}], s{sT1} offen offset:1024 lds", ('W', c))]
    def stage(p):
        out = []
        for hf in range(2):
            out += [f"s_add_u32 m0, s{sSTG}, {(p%3)*4096 + hf*2048}", f"s_add_u32 s{sT1}, s{sCROW}, {p*128 + hf*16384}",
                    (f"buffer_load_dwordx4 v{V_C0}, s[{S_A}:{S_A+3}], s{sT1} offen lds", ('P', p)),
                    (f"buffer_load_dwordx4 v{V_C1}, s[{S_A}:{S_A+3}], s{sT1} offen offset:1024 lds", ('P', p))]
        return out
    def stage_reads(p):
        return [f"ds_read_b128 a[{(s*2+t)*4}:{(s*2+t)*4+3}], v{V_SR+(s&1)} offset:{(p%3)*4096 + t*2048}" for s in (2*p, 2*p+1) for t in range(2)]
    MC, MW, MT, MA = 96, 100, 116, 120
    def mod_loads(lo, hi):
        if OPT.get('nomod'): hi = 0
        g(f"s_cmp_ge_u32 s3, {lo}", f"s_cselect_b32 s{sT2}, 0, s{sOOB}", f"s_cmp_lt_u32 s3, {hi}", f"s_cselect_b32 s{sT2}, s{sT2}, s{sOOB}")
        g(f"v_and_b32 v{MT}, 3, v0", f"v_lshrrev_b32 v{MT+1}, 2, v0", f"s_lshl_b32 s{sT1}, s{sWAVE}, 4", f"v_add_u32 v{MT+1}, s{sT1}, v{MT+1}")
        g(f"s_movk_i32 s{sT1}, 6144", f"v_mul_lo_u32 v{MT+2}, v{MT+1}, s{sT1}", f"v_lshl_add_u32 v{MT+2}, v{MT}, 4, v{MT+2}", f"s_lshl_b32 s{sT1}, s3, 6", f"v_add_u32 v{MT+2}, s{sT1}, v{MT+2}")
        g(f"v_lshlrev_b32 v{MT+3}, 1, v{MT+1}")
        for t in range(4):
            g.vmem(f"buffer_load_ushort v{MC+t}, v{MT+3}, s[96:99], s{sT2} offen offset:{t*256}", 'mc')
        for t in range(4):
            g(f"s_add_u32 s{sT1}, s{sT2}, {hex(t*128*6144)}")
            g.vmem(f"buffer_load_dwordx4 v[{MW+4*t}:{MW+3+4*t}], v{MT+2}, s[92:95], s{sT1} offen", ('mw', t))
    def mod_partial(lo, hi, lds):
        if OPT.get('nomod'): hi = 0
        skip = g.newlabel("modp")
        g.stamp("mo_pre"); g.wait_vm(('mw', 3)); g.stamp("mo_w")
        g(f"s_cmp_ge_u32 s3, {lo}", f"s_cbranch_scc0 {skip}", f"s_cmp_lt_u32 s3, {hi}", f"s_cbranch_scc0 {skip}")
        g(f"s_mov_b32 s{sT1}, {hex(LOG2E)}")
        for t in range(4): g(f"v_lshlrev_b32 v{MC+t}, 16, v{MC+t}")
        for t in range(4): g(f"v_mul_f32 v{MT+t}, s{sT1}, v{MC+t}")
        for t in range(4): g(f"v_exp_f32 v{MT+t}, -v{MT+t}")
        g("s_nop 0")
        for t in range(4): g(f"v_add_f32 v{MT+t}, 1.0, v{MT+t}")
        for t in range(4): g(f"v_rcp_f32 v{MT+t}, v{MT+t}")
        g("s_nop 0")
        for t in range(4): g(f"v_mul_f32 v{MC+t}, v{MC+t}, v{MT+t}")
        g(f"s_mov_b32 s{sT2}, 0xffff0000")
        for t in range(4):
            for d in range(4):
                w = MW + 4*t + d
                g(f"v_lshlrev_b32 v{MT}, 16, v{w}", f"v_and_b32 v{MT+1}, s{sT2}, v{w}")
                if t == 0: g(f"v_mul_f32 v{MA+2*d}, v{MC}, v{MT}", f"v_mul_f32 v{MA+1+2*d}, v{MC}, v{MT+1}")
                else: g(f"v_fmac_f32 v{MA+2*d}, v{MC+t}, v{MT}", f"v_fmac_f32 v{MA+1+2*d}, v{MC+t}, v{MT+1}")
        for r in (8, 4):
            g("s_nop 1")
            for e in range(8): g(f"v_add_f32_dpp v{MA+e}, v{MA+e}, v{MA+e} row_ror:{r} row_mask:0xf bank_mask:0xf")
        g(f"v_lshrrev_b32 v{MT+1}, 4, v0", f"s_lshl_b32 s{sT1}, s{sWAVE}, 2", f"v_add_u32 v{MT+1}, s{sT1}, v{MT+1}", f"v_lshlrev_b32 v{MT+1}, 7, v{MT+1}",
          f"v_and_b32 v{MT}, 3, v0", f"v_lshl_add_u32 v{MT+1}, v{MT}, 5, v{MT+1}", f"v_add_u32 v{MT+1}, {lds}, v{MT+1}")
        g(f"v_and_b32 v{MT}, 15, v0", f"v_cmp_gt_u32 vcc, 4, v{MT}", "s_nop 1", "s_mov_b64 exec, vcc")
        g(f"ds_write_b128 v{MT+1}, v[{MA}:{MA+3}]", f"ds_write_b128 v{MT+1}, v[{MA+4}:{MA+7}] offset:16")
        g("s_mov_b64 exec, -1", "s_waitcnt lgkmcnt(0)")
        g.label(skip)
        g.stamp("mo_p")
    def mod_final(lo, hi, lds):
        if OPT.get('nomod'): hi = 0
        lskip = g.newlabel("modfin")
        g(f"s_cmp_ge_u32 s3, {lo}", f"s_cselect_b32 s{sT2}, 0, s{sOOB}", f"s_cmp_lt_u32 s3, {hi}", f"s_cselect_b32 s{sT2}, s{sT2}, s{sOOB}",
          f"s_cmp_eq_u32 s{sWAVE}, 0", f"s_cselect_b32 s{sT2}, s{sT2}, s{sOOB}")
        g(f"s_cmp_lg_u32 s{sT2}, 0", f"s_cbranch_scc1 {lskip}")
        g(f"v_and_b32 v{MT}, 31, v0", f"v_lshlrev_b32 v{MT}, 2, v{MT}", f"v_lshrrev_b32 v{MT+1}, 5, v0", f"v_lshl_add_u32 v{MT}, v{MT+1}, 11, v{MT}", f"v_add_u32 v{MT}, {lds}, v{MT}")
        g("s_waitcnt lgkmcnt(0)")
        for r in range(16):
            if r == 15: g("s_waitcnt lgkmcnt(7)")
            g(f"ds_read_b32 v{MW+r}, v{MT} offset:{r*128}")
        g("s_waitcnt lgkmcnt(0)")
        for st in (8, 4, 2, 1):
            for k in range(st): g(f"v_add_f32 v{MW+k}, v{MW+k}, v{MW+k+st}")
        g(f"v_mov_b32 v{MW+1}, v{MW}", "s_nop 1", f"v_permlane32_swap_b32 v{MW}, v{MW+1}", f"v_add_f32 v{MW}, v{MW}, v{MW+1}")
        g.label(lskip)
        g(f"v_lshlrev_b32 v{MT}, 2, v0", "v_cmp_gt_u32 vcc, 32, v0", f"v_mov_b32 v{MT+1}, {hex(OOB)}", "s_nop 0", f"v_cndmask_b32 v{MT}, v{MT+1}, v{MT}, vcc")
        g(f"s_lshl_b32 s{sT1}, s3, 7", f"s_add_u32 s{sT1}, s{sT1}, {hex(WS_MOD)}", f"s_add_u32 s{sT1}, s{sT1}, s{sT2}")
        g.vmem(f"buffer_store_dword v{MW}, v{MT}, s[{S_WS}:{S_WS+3}], s{sT1} offen sc1", 'modst')
        g.stamp("mo_f")
        g(f"s_lshl_b32 s{sT1}, s3, 7", f"s_add_u32 s{sT1}, s{sT1}, {hex(WS_CNT)}", "s_cmp_lt_u32 s3, 32", f"s_cselect_b32 s{sT1}, s{sT1}, s{sOOB}",
          f"s_cmp_eq_u32 s{sWAVE}, 0", f"s_cselect_b32 s{sT1}, s{sT1}, s{sOOB}", f"v_mov_b32 v{MT+2}, 0", f"v_lshlrev_b32 v{MT+3}, 12, v0", "s_mov_b64 exec, 15")
        g.vmem(f"buffer_store_dword v{MT+2}, v{MT+3}, s[{S_WS}:{S_WS+3}], s{sT1} offen sc1", 'modst')
        g("s_mov_b64 exec, -1")
    def c_touch():
        g(f"s_lshr_b32 s{sT1}, s2, 5", f"s_mul_i32 s{sT1}, s{sT1}, 160", f"s_lshl_b32 s{sT2}, s{sWAVE}, 6", f"s_add_u32 s{sT1}, s{sT1}, s{sT2}", f"v_add_u32 v56, s{sT1}, v0")
        g(f"v_add_u32 v57, s{sT2}, v0", "v_mov_b32 v58, 0xcccd", "v_mul_u32_u24 v58, v56, v58", "v_lshrrev_b32 v58, 18, v58")
        g("v_mul_u32_u24 v59, 5, v58", "v_sub_u32 v59, v56, v59", "v_add_u32 v59, 3, v59", "v_lshlrev_b32 v59, 7, v59", "v_lshl_add_u32 v59, v58, 10, v59")
        g(f"s_lshl_b32 s{sT1}, s{sKB}, 18", f"v_add_u32 v59, s{sT1}, v59", "v_cmp_gt_u32 vcc, 160, v57", f"v_mov_b32 v58, {hex(OOB)}", "s_nop 0", "v_cndmask_b32 v59, v58, v59, vcc")
        g.vmem(f"buffer_load_dword v12, v59, s[{S_A}:{S_A+3}], 0 offen", 'tc')
    def w_touch_lin():
        g(f"s_lshl_b32 s{sT1}, s2, 2", f"s_and_b32 s{sT2}, s{sWAVE}, 3", f"s_add_u32 s{sT1}, s{sT1}, s{sT2}")
        g(f"s_and_b32 s{sT2}, s{sT1}, 511", f"s_lshl_b32 s{sT2}, s{sT2}, 13", f"s_cmp_lt_u32 s{sWAVE}, 4", f"s_cselect_b32 s{sT2}, s{sT2}, s{sOOB}")
        g("v_lshlrev_b32 v15, 7, v0", f"s_cmp_lt_u32 s{sT1}, 512", f"s_cselect_b32 s{sT3}, s{sT2}, s{sOOB}")
        g.vmem(f"buffer_load_dword v13, v15, s[{S_B}:{S_B+3}], s{sT3} offen", 'tw')
        g(f"s_cmp_lt_u32 s{sT1}, 512", f"s_cselect_b32 s{sT3}, s{sOOB}, s{sT2}")
        g.vmem(f"buffer_load_dword v14, v15, s[{S_C2}:{S_C2+3}], s{sT3} offen", 'tw')
    def w_touch():
        g(f"s_and_b32 s{sT1}, s{sKB}, 3", f"s_lshl_b32 s{sT1}, s{sT1}, 9", f"s_lshl_b32 s{sT2}, s{sWAVE}, 6", f"s_add_u32 s{sT1}, s{sT1}, s{sT2}", f"v_add_u32 v14, s{sT1}, v0")
        g("v_bfe_u32 v15, v14, 1, 9", "v_lshlrev_b32 v15, 13, v15", "v_and_b32 v14, 1, v14", "v_lshl_add_u32 v15, v14, 7, v15", f"s_lshl_b32 s{sT2}, s{sHKV}, 8", f"v_add_u32 v15, s{sT2}, v15")
        g(f"s_bitcmp1_b32 s{sKB}, 1", f"s_cselect_b32 s{sT2}, s{sOOB}, 0")
        g.vmem(f"buffer_load_dword v13, v15, s[{S_B}:{S_B+3}], s{sT2} offen", 'tw')
        g(f"s_cselect_b32 s{sT2}, 0, s{sOOB}")
        g.vmem(f"buffer_load_dword v14, v15, s[{S_C2}:{S_C2+3}], s{sT2} offen", 'tw')
    if OPT.get('fprio'):
        lp = g.newlabel("fp")
        g(f"s_cmp_eq_u32 s{sISA}, {0 if OPT['fprio'] == 1 else 1}", f"s_cbranch_scc1 {lp}", "s_setprio 1"); g.label(lp)
    if OPT.get('ctouch', 1) and not Gen.STAMP:
        lsk = g.newlabel("noct")
        g(f"s_cmp_lg_u32 s{sWAVE}, 7", f"s_cbranch_scc1 {lsk}", f"s_lshr_b32 s{sT1}, s2, 3")
        code_touch(g, KNAME, sT1, 3, 0, 16, 18, 60 if not Gen.STAMP else 96)
        g.label(lsk)
    pv = OPT.get('pro', 4)
    bar = (lambda: g("s_barrier")) if pv in (0, 2, 3, 5) else (lambda: None)
    if pv == 10: mod_loads(0, 96)
    emit(g, dma(0)); emit(g, stage(0)); g.stamp("iss0"); bar()
    if pv in (11, 12):
        emit(g, stage(1))
    elif pv == 10:
        emit(g, stage(1)); emit(g, dma(1)); emit(g, stage(2)); emit(g, dma(2))
    elif pv == 3:
        emit(g, stage(1)); emit(g, dma(1)); bar(); emit(g, stage(2)); c_touch(); emit(g, dma(2)); mod_loads(0, 96)
    elif pv == 6:
        emit(g, stage(1)); emit(g, dma(1)); emit(g, stage(2)); emit(g, dma(2)); mod_loads(0, 96)
    elif pv == 7:
        emit(g, stage(1)); emit(g, dma(1)); emit(g, stage(2)); c_touch(); emit(g, dma(2)); mod_loads(0, 96)
    elif pv == 8:
        emit(g, stage(1)); mod_loads(0, 96); emit(g, dma(1)); emit(g, stage(2)); emit(g, dma(2))
    elif pv == 5:
        emit(g, stage(1)); emit(g, dma(1)); emit(g, stage(2)); bar(); emit(g, dma(2)); mod_loads(0, 96)
    else:
        if pv != 2: c_touch()
        emit(g, stage(1)); mod_loads(0, 96); g.stamp("iss1"); bar()
        emit(g, dma(1)); emit(g, stage(2)); emit(g, dma(2)); g.stamp("iss2")
    if OPT.get('tlbwarm'):
        g(f"s_load_dwordx2 s[96:97], s[0:1], {KA['wq']}", "s_waitcnt lgkmcnt(0)"); finish_srd(g, 96, 'wq')
        g(f"s_cmp_eq_u32 s{sWAVE}, 7", f"s_cselect_b32 s{sT1}, 0, s{sOOB}", "v_lshlrev_b32 v56, 16, v0")
        g.vmem(f"buffer_load_dword v13, v56, s[{S_C2}:{S_C2+3}], s{sT1} offen", 'tlb')
        g.vmem(f"buffer_load_dword v13, v56, s[96:99], s{sT1} offen", 'tlb')
        g.vmem(f"buffer_load_dword v13, v56, s[88:91], s{sT1} offen", 'tlb')
    g(f"s_lshl_b32 s{sT1}, s{sHEAD}, 3", f"s_add_u32 s{sT1}, s{sT1}, s{sWAVE}", f"s_lshl_b32 s{sT2}, s{sI}, 7", f"s_add_u32 s{sT2}, s{sT2}, s{sT1}",
      f"s_sub_u32 s{sT3}, 14, s{sI}", f"s_lshl_b32 s{sT3}, s{sT3}, 7", f"s_add_u32 s{sT3}, s{sT3}, s{sT1}",
      f"s_cmp_lt_u32 s{sT1}, 128", f"s_cselect_b32 s{sCNT}, s{sT2}, s{sT3}")
    if pv == 10: mod_partial(0, 96, 3*16384)
    g.wait_vm(('P', 0)); g.stamp("p0"); g(stage_reads(0))
    g.wait_vm(('W', 0)); g("s_waitcnt lgkmcnt(0)", "s_barrier")
    g.stamp("w0_landed")
    if pv == 11:
        emit(g, dma(1)); emit(g, stage(2)); mod_loads(0, 96); emit(g, dma(2))
    if pv == 12:
        emit(g, dma(1)); emit(g, stage(2)); emit(g, dma(2)); mod_loads(0, 96)
    emit(g, stage(3))
    if pv == 10: mod_final(0, 96, 3*16384)
    second = 512
    g(tr_reads(0, 0, second)); r1 = tr_reads(1, 1, second)
    g(r1[:7]); g("s_waitcnt lgkmcnt(7)"); g(r1[7])
    NKS, NCH = 96, 24
    def epilogue(j):
        buf = V_ACC + (j & 1) * 32
        A = lambda t, cb: buf + (t * 4 + cb) * 4
        groups = []
        for i in range(4):
            if j < 2:
                t, u = i >> 1, i & 1
                a, b = A(t, 2*u), A(t, 2*u+1); off = WS_KF + (t * 4 + 2*j + u) * 1024
            else:
                a, b = A(0, i), A(1, i); off = WS_VF + (4*(j-2) + i) * 1024
            grp = [f"v_cvt_pk_bf16_f32 v{a}, v{a}, v{a+1}", f"v_cvt_pk_bf16_f32 v{a+1}, v{a+2}, v{a+3}",
                   f"v_cvt_pk_bf16_f32 v{a+2}, v{b}, v{b+1}", f"v_cvt_pk_bf16_f32 v{a+3}, v{b+2}, v{b+3}"]
            st = [f"s_add_u32 s{sT1}, s{sSTB}, {hex(off)}", (f"buffer_store_dwordx4 v[{a}:{a+3}], v{V_L16}, s[{S_WS}:{S_WS+3}], s{sT1} offen{'' if OPT.get('kvplain') else ' sc1'}", ('st', j))]
            groups.append((grp, st))
        return groups
    def hload(s):
        out = []
        for t in range(2):
            out += [f"s_lshl_b32 s{sT1}, s{sT16}, 14", f"s_add_u32 s{sT1}, s{sT1}, {hex(WS_H + t*16384 + s*1024)}",
                    (f"buffer_load_dwordx4 a[{(s*2+t)*4}:{(s*2+t)*4+3}], v{V_L16}, s[{S_WS}:{S_WS+3}], s{sT1} offen sc1", ('H', s))]
        return out
    def ln1_loads():
        g(f"v_lshlrev_b32 v1, 5, v0", f"s_mov_b32 s{sT1}, {hex(WS_MOD)}")
        for k, off in enumerate((0, 16, 2048, 2064)):
            g.vmem(f"buffer_load_dwordx4 v[{72+4*k}:{75+4*k}], v1, s[{S_WS}:{S_WS+3}], s{sT1} offen offset:{off} sc1", 'lnm')
    def wsum_items(v, t):
        out = []
        for r in (8, 4, 2, 1): out += ["s_nop 1", f"v_add_f32_dpp v{v}, v{v}, v{v} row_ror:{r} row_mask:0xf bank_mask:0xf"]
        out += [f"v_mov_b32 v{t}, v{v}", "s_nop 1", f"v_permlane16_swap_b32 v{v}, v{t}", f"v_add_f32 v{v}, v{v}, v{t}"]
        out += [f"v_mov_b32 v{t}, v{v}", "s_nop 1", f"v_permlane32_swap_b32 v{v}, v{t}", f"v_add_f32 v{v}, v{v}, v{t}"]
        return out
    def ln1_stats_items():
        it = []
        for d in range(4): it += [f"v_lshlrev_b32 v{64+2*d}, 16, v{12+d}", f"v_and_b32 v{65+2*d}, 0xffff0000, v{12+d}"]
        it += ["v_add_f32 v10, v64, v65", "v_add_f32 v11, v66, v67", "v_add_f32 v10, v10, v11", "v_add_f32 v11, v68, v69", "v_add_f32 v10, v10, v11", "v_add_f32 v11, v70, v71", "v_add_f32 v10, v10, v11"]
        it += wsum_items(10, 11) + ["v_mul_f32 v10, 0x3b000000, v10"]
        it += [f"v_sub_f32 v{64+e}, v{64+e}, v10" for e in range(8)]
        it += ["v_mul_f32 v11, v64, v64"] + [f"v_fmac_f32 v11, v{64+e}, v{64+e}" for e in range(1, 8)]
        it += wsum_items(11, 10)
        it += ["v_mov_b32 v10, 0x3727c5ac", "v_fmac_f32 v10, 0x3b000000, v11", "v_rsq_f32 v10, v10", "s_nop 0", f"v_mul_f32 v10, {hex(QSCALE)}, v10"]
        it += [f"v_mul_f32 v{64+e}, v{64+e}, v10" for e in range(8)]
        return it
    def ln1_mod_items():
        it = [f"v_add_f32 v{80+e}, 1.0, v{80+e}" for e in range(8)] + [f"v_mul_f32 v{72+e}, {hex(QSCALE)}, v{72+e}" for e in range(8)]
        it += [f"v_fma_f32 v{64+e}, v{64+e}, v{80+e}, v{72+e}" for e in range(8)]
        it += [f"v_cvt_pk_bf16_f32 v{88+d}, v{64+2*d}, v{65+2*d}" for d in range(4)]
        it += ["v_lshrrev_b32 v1, 2, v0", "v_lshlrev_b32 v1, 10, v1", "v_and_b32 v2, 3, v0", "v_lshl_add_u32 v1, v2, 8, v1"]
        return it
    def ln1_to_lds():
        g(f"v_mul_u32_u24 v1, 144, v0", f"s_lshl_b32 s{sT1}, s{sWAVE}, 4", f"s_add_u32 s{sT1}, s{sT1}, {2*16384}", f"v_add_u32 v1, s{sT1}, v1", "ds_write_b128 v1, v[88:91]", "s_waitcnt lgkmcnt(0)")
    def ln1_from_lds():
        g("v_lshrrev_b32 v1, 3, v0", f"s_lshl_b32 s{sT1}, s{sWAVE}, 3", f"v_add_u32 v1, s{sT1}, v1", "v_mul_u32_u24 v1, 144, v1", "v_and_b32 v2, 7, v0", "v_lshl_add_u32 v1, v2, 4, v1",
          f"v_add_u32 v1, {2*16384}, v1", "ds_read_b128 v[12:15], v1")
        g("v_lshrrev_b32 v1, 5, v0", "v_lshlrev_b32 v1, 10, v1", "v_bfe_u32 v10, v0, 3, 2", "v_lshl_add_u32 v1, v10, 8, v1", "v_lshl_add_u32 v1, v2, 4, v1")
        g(f"s_lshr_b32 s{sT1}, s{sCNT}, 4", f"s_lshl_b32 s{sT1}, s{sT1}, 14", f"s_and_b32 s{sT2}, s{sCNT}, 8", f"s_lshl_b32 s{sT2}, s{sT2}, 4", f"s_add_u32 s{sT1}, s{sT1}, s{sT2}",
          f"s_lshl_b32 s{sT2}, s{sWAVE}, 11", f"s_add_u32 s{sT1}, s{sT1}, s{sT2}", f"s_add_u32 s{sT1}, s{sT1}, {hex(WS_H)}", "s_waitcnt lgkmcnt(0)")
        g.vmem(f"buffer_store_dwordx4 v[12:15], v1, s[{S_WS}:{S_WS+3}], s{sT1} offen sc1", 'hst')
    def ln1_store():
        g(f"s_lshr_b32 s{sT1}, s{sCNT}, 4", f"s_lshl_b32 s{sT1}, s{sT1}, 14", f"s_and_b32 s{sT2}, s{sCNT}, 15", f"s_lshl_b32 s{sT2}, s{sT2}, 4",
          f"s_add_u32 s{sT1}, s{sT1}, s{sT2}", f"s_add_u32 s{sT1}, s{sT1}, {hex(WS_H)}")
        g.vmem(f"buffer_store_dwordx4 v[88:91], v1, s[{S_WS}:{S_WS+3}], s{sT1} offen{'' if OPT.get('hplain') else ' sc1'}", 'hst')
    fq = []
    pend = []
    HSIG = 10 if OPT.get('hlds', 1) else 9
    STCHK, HCHK = OPT.get('stchk', 5), OPT.get('hchk', 12)
    if OPT.get('hlds', 1):
        ISSUE.pop(8); ISSUE[9] = [16]; ISSUE[10] = [17, 18]
    KVSIG, KVCHK = (17, 20) if OPT.get('nospread') or OPT.get('q_nospread') else (20, 22)
    dq = []
    for ks in range(NKS):
        c, kk = ks >> 2, ks & 3
        j = c >> 2; s = ks % 16
        if kk == 2 and c + 1 < NCH:
            if c == 0 and OPT.get('pro', 4) != 10: mod_partial(0, 96, 3*16384)
            if c == 1: g.wait_vm('modst')
            if c == STCHK and not OPT.get('noln'): g.stamp("b_5p"); poll_check(g, 2, S_DBG, 'pl0', sKO, 32, sT1, sT2)
            if c == HSIG and not OPT.get('noln'): g.stamp("hst_pre"); g.wait_vm('hst'); g.stamp("hst_post")
            if c == HCHK and not OPT.get('noln'): g.stamp("h_pre"); poll_check(g, 2, S_WS, 'plh', sKO, 32, sT1, sT2); g.stamp("h_chk")
            if c == KVSIG and not OPT.get('nost'): g.wait_vm(('st', 3))
            if c == KVCHK: g.stamp("kv_pre"); poll_check(g, 2, S_WS, 'plk', sM0K, 8, sT1, sT2); g.stamp("kv_chk")
            g.stamp(f"b_{c}a"); g.wait_vm(('W', c + 1)); g("s_barrier"); g.stamp(f"b_{c}")
            if c == 6:
                g(f"s_load_dwordx2 s[16:17], s[0:1], {KA['wq']}", "s_waitcnt lgkmcnt(0)"); finish_srd(g, S_B, 'wq')
            for cc in ISSUE.get(c, []): dq.append(dma(cc))
            g.stamp(f"b_{c}i")
            if c == 0 and OPT.get('pro', 4) != 10:
                mod_final(0, 96, 3*16384)
                if OPT.get("wtouch"): w_touch()
            if c == 1:
                signal(g, S_DBG, C_START*4, 96, sT1, 0, 32)
                if OPT.get('all_early'): signal(g, S_DBG, 32*4, 96, sT1)
            if c == 2:
                g(f"s_lshl_b32 s{sT1}, s{sCNT}, 10")
                g.vmem(f"buffer_load_dwordx4 v[12:15], v{V_L16}, s[88:91], s{sT1} offen", 'lnx')
            if c == 4 and not OPT.get('noln'):
                g(f"s_mov_b32 s{sKO}, {C_START*4}"); poll_issue(g, 2, S_DBG, sKO, 'pl0', sT1)
            if c == STCHK and not OPT.get('noln'): ln1_loads()
            if c == 8 and OPT.get('hlds', 1) and not OPT.get('noln'): ln1_from_lds()
            if c == HSIG and not OPT.get('noln'):
                cnt_off(g, sT3, C_H, sI); signal(g, S_WS, ('s', sT3), 1, sT1)
            if c == 11 and not OPT.get('noln'):
                cnt_off(g, sKO, C_H, sI); poll_issue(g, 2, S_WS, sKO, 'plh', sT1)
            if c == 12 and not OPT.get('noln') and OPT.get('th'):
                g(f"s_lshl_b32 s{sT1}, s{sT16}, 14", f"s_and_b32 s{sT2}, s{sHEAD}, 3", f"s_lshl_b32 s{sT2}, s{sT2}, 13", f"s_add_u32 s{sT1}, s{sT1}, s{sT2}",
                  f"s_add_u32 s{sT1}, s{sT1}, {hex(WS_H)}", "v_lshlrev_b32 v1, 7, v0")
                g.vmem(f"buffer_load_dword v2, v1, s[{S_WS}:{S_WS+3}], s{sT1} offen sc1", 'th')
            if c == KVSIG:
                cnt_off(g, sT3, C_KV, sHKV); signal(g, S_WS, ('s', sT3), 1, sT1)
            if c == KVCHK - 1:
                cnt_off(g, sM0K, C_KV, sHEAD); poll_issue(g, 2, S_WS, sM0K, 'plk', sT1)
            if c == KVCHK:
                emit(g, unit_sc1(0)); emit(g, unit_sc1(1))
                if KVCHK == 22: emit(g, unit_sc1(2))
            if c == KVCHK + 1 and KVCHK < 22: emit(g, unit_sc1(2))
            d = (SLOT[c + 1] - SLOT[c]) * 16384
            for cb in range(4): g(f"v_add_u32 v{V_TR+cb}, {hex(d & 0xffffffff)}, v{V_TR+cb}")
        extra = False
        if ks < 16:
            if ks % 2 == 1 and (ks + 1) // 2 <= 7:
                p = (ks + 1) // 2
                g.wait_vm(('P', p)); g(stage_reads(p)); extra = True
            if ks % 2 == 0 and ks >= 2 and ks // 2 + 3 <= 7: emit(g, stage(ks // 2 + 3))
        if 64 <= ks < 80 and not OPT.get('nohl'): g.wait_vm(('H', s))
        nxt = ks + 2
        reads = tr_reads(nxt, nxt & 3, second) if nxt < NKS else []
        buf = V_ACC + (j & 1) * 32
        if ks == 84 and not OPT.get('qlate'):
            for qs in range(2):
                for s_ in range(2):
                    a_ = V_ACC + (qs*4 + 2*s_)*4; b_ = a_ + 4
                    fq += [f"v_cvt_pk_bf16_f32 v{12+k}, v{x}, v{y}" for k, (x, y) in enumerate(((a_, a_+1), (a_+2, a_+3), (b_, b_+1), (b_+2, b_+3)))]
                    fq += [f"v_accvgpr_write_b32 a{A_Q+(qs*4+s_)*4+k}, v{12+k}" for k in range(4)]
        sv = OPT.get('stv', 1)
        if not OPT.get('noln'):
            if ks == (18 if sv == 0 else 17): g.wait_vm('lnx'); fq += ln1_stats_items()
            if ks == (28 if STCHK == 5 else 29): assert not fq; g.wait_vm('lnm'); fq += ln1_mod_items()
            if ks == 31:
                assert not fq
                if OPT.get('hlds', 1): ln1_to_lds()
                else: ln1_store()
        if sv == 0:
            if j == 1: take = s in (1, 3, 5, 7)
            elif j == 4 and KVCHK == 20: take = s >= 1
            else: take = s % 4 == 1
        else:
            if j == 1: take = s in (0, 3, 4, 7)
            elif j == 3 and sv == 2: take = s in (0, 1, 2, 3)
            elif j == 3 and sv == 3: take = s in (0, 1, 3, 4)
            else: take = s % 4 == 3
        if OPT.get('nospread'): take = s >= 1 if j != 1 else take
        epi = pend.pop(0) if (pend and take) else None
        fb = ks % 3
        wfirst = j < 2 or j >= 4
        for m in range(8):
            cb, t = m >> 1, m & 1
            d = buf + (t * 4 + cb) * 4
            wf = f"v[{V_FR + fb*16 + cb*4}:{V_FR + fb*16 + cb*4 + 3}]"
            cf = f"a[{(s*2+t)*4}:{(s*2+t)*4+3}]"
            cin = "0" if s == 0 else f"v[{d}:{d+3}]"
            g(f"v_mfma_f32_16x16x32_bf16 v[{d}:{d+3}], {wf}, {cf}, {cin}" if wfirst else f"v_mfma_f32_16x16x32_bf16 v[{d}:{d+3}], {cf}, {wf}, {cin}")
            if m == 3 and extra: g("s_waitcnt lgkmcnt(3)")
            if m == 7 and reads: g("s_waitcnt lgkmcnt(7)")
            if reads: g(reads[m])
            elif m == 7 and ks + 1 < NKS: g("s_waitcnt lgkmcnt(0)")
            if epi and 1 <= m <= 4: g(epi[0][m-1])
            if epi and m == 5 and not OPT.get('nost'):
                g.stamp(f"st{ks}a"); emit(g, epi[1]); g.stamp(f"st{ks}b")
            if m == 2 and dq:
                g.stamp(f"dm{ks}a"); emit(g, dq.pop(0)); g.stamp(f"dm{ks}b")
            for _ in range(2 if not epi else 1):
                if fq: g(fq.pop(0))
        g.stamp(f"ke{ks}")
        for sh in ({4*HCHK + 4 + k: [k] for k in range(16)}).get(ks, []):
            if not OPT.get('nohl'): emit(g, hload(sh))
        if s == 15:
            if j < 4: pend = epilogue(j)
            g.stamp(f"sub{j}_done")
    if OPT.get('fprio'): g("s_setprio 0")
    if OPT.get('endq'):
        g("s_waitcnt vmcnt(0)", "s_endpgm")
    g("s_nop 7")
    assert not fq
    for qs in range(2):
        for s in range(4):
            if s < 2 and not OPT.get('qlate'): continue
            j, u = s >> 1, s & 1
            a = V_ACC + j*32 + (qs*4 + 2*u)*4; b = a + 4
            for k, (x, y) in enumerate(((a, a+1), (a+2, a+3), (b, b+1), (b+2, b+3))): g(f"v_cvt_pk_bf16_f32 v{16+k}, v{x}, v{y}")
            for k in range(4): g(f"v_accvgpr_write_b32 a{A_Q+(qs*4+s)*4+k}, v{16+k}")
    p_att.attention_body(g, unit_sc1, sc1=True, fused=fused)

def unit_sc1(u):
    its = uniform_unit(u)
    return [((x[0].replace(" lds", " sc1 lds"), x[1]) if isinstance(x, tuple) else x) for x in its]

tRB, tCB, tAO, tWO, tM0W, tR, tU, tX, tY, tZ, tRB4, tCB4, tT16 = 23, 24, 25, 26, 27, 28, 29, 30, 31, 32, 33, 34, 35
WS_ST = WS_STAT + 0x100000 * 0 + 0x40000
TAG = 0x3f800000
A_ACC, A_AF, V_WF, V_WV, RING, DEPTH = 0, 64, 16, 48, 5, 4
C_ALL = 32
C_PART = 64
C_CTX2 = 80
WS_PART = 0x1200000

def stat_slot(g, dst, t):
    g(f"s_and_b32 s{dst}, s2, 7", f"s_lshl_b32 s{dst}, s{dst}, 2", f"s_bfe_u32 s{t}, s2, 0x20003", f"s_add_u32 s{dst}, s{dst}, s{t}",
      f"s_lshl_b32 s{dst}, s{dst}, 2", f"s_and_b32 s{t}, s{sWAVE}, 3", f"s_add_u32 s{dst}, s{dst}, s{t}", f"s_lshl_b32 s{dst}, s{dst}, 4",
      f"s_lshr_b32 s{t}, s2, 5", f"s_lshl_b32 s{t}, s{t}, 1", f"s_add_u32 s{dst}, s{dst}, s{t}",
      f"s_lshr_b32 s{t}, s{sWAVE}, 2", f"s_add_u32 s{dst}, s{dst}, s{t}", f"s_lshl_b32 s{dst}, s{dst}, 8", f"s_add_u32 s{dst}, s{dst}, {hex(WS_ST)}")

def spin(g, vdst, srd, soff, target, t1, t2, sleep=None):
    ok, loop = g.newlabel("sok"), g.newlabel("sloop")
    sleep = OPT.get('sleep', 16)
    g(f"s_cmp_lg_u32 s{sWAVE}, 0", f"s_cbranch_scc1 {ok}", f"s_mov_b32 s{t2}, 0x40000")
    g.label(loop)
    g(f"buffer_load_dword v{vdst}, off, s[{srd}:{srd+3}], s{soff} sc1", "s_waitcnt vmcnt(0)")
    g(f"v_readfirstlane_b32 s{t1}, v{vdst}", "s_nop 3", f"s_cmp_ge_u32 s{t1}, {target}", f"s_cbranch_scc1 {ok}")
    g(f"s_sleep {sleep}", f"s_sub_u32 s{t2}, s{t2}, 1", f"s_cmp_lg_u32 s{t2}, 0", f"s_cbranch_scc1 {loop}")
    g.label(ok)

def wsplit_setup(g, nks, a_off, a_nks, wname):
    g(f"s_load_dwordx2 s[{S_A}:{S_A+1}], s[0:1], {KA[wname]}")
    setup_dma128(g, 1024, nat=False, v0=V_WV, v1=V_WV+1); setup_tr128(g, nat=False)
    for p in range(1, 4): g(f"v_add_u32 v{V_WV+p}, {p*7168}, v{V_WV}")
    g(f"s_mul_i32 s{tM0W}, s{sWAVE}, {RING*4096}")
    for c in range(4): g(f"v_add_u32 v{V_TR+c}, s{tM0W}, v{V_TR+c}")
    g(f"s_mul_i32 s{tAO}, s{tRB}, {4*a_nks*1024}", f"s_mul_i32 s{tX}, s{sWAVE}, {nks*1024}", f"s_add_u32 s{tAO}, s{tAO}, s{tX}", f"s_add_u32 s{tAO}, s{tAO}, {hex(a_off)}")
    g(f"s_mul_i32 s{tWO}, s{sWAVE}, {nks*32*1024}", f"s_lshl_b32 s{tX}, s{tCB}, 7", f"s_add_u32 s{tWO}, s{tWO}, s{tX}")
    g("s_waitcnt lgkmcnt(0)"); finish_srd(g, S_A, wname)
def ws_wdma(j):
    out = [f"s_add_u32 m0, s{tM0W}, {(j % RING)*4096}", f"s_add_u32 s{tX}, s{tWO}, {j*32*1024}"]
    for p in range(4): out.append((f"buffer_load_dwordx4 v{V_WV+p}, s[{S_A}:{S_A+3}], s{tX} offen offset:{p*1024} lds", ('tW', j)))
    return out
def ws_aload(j, a_nks):
    out = []
    for r in range(4):
        b = A_AF + (j % DEPTH)*16 + r*4
        out += [f"s_add_u32 s{tY}, s{tAO}, {(r*a_nks + j)*1024}", (f"buffer_load_dwordx4 a[{b}:{b+3}], v{V_L16}, s[{S_WS}:{S_WS+3}], s{tY} offen sc1", ('tA', j))]
    return out
def ws_reads(j):
    fb = V_WF + (j & 1)*16
    out = []
    for c in range(4):
        out.append(f"ds_read_b64_tr_b16 v[{fb+4*c}:{fb+4*c+1}], v{V_TR+c} offset:{(j % RING)*4096}")
        out.append(f"ds_read_b64_tr_b16 v[{fb+4*c+2}:{fb+4*c+3}], v{V_TR+c} offset:{(j % RING)*4096+2048}")
    return out
def wsplit_main(g, nks, a_nks, tag, a_off=None):
    for j in range(min(DEPTH, nks)): emit(g, ws_aload(j, a_nks))
    if OPT.get('tact'):
        per = 2 if nks == 16 else 1
        if per == 2:
            g("v_lshrrev_b32 v1, 4, v0", f"v_mul_u32_u24 v1, {a_nks*1024}, v1", "v_bfe_u32 v10, v0, 3, 1", "v_lshl_add_u32 v1, v10, 10, v1", "v_and_b32 v10, 7, v0", "v_lshl_add_u32 v1, v10, 7, v1")
            g(f"s_lshl_b32 s{tX}, s{tCB}, 11", f"s_add_u32 s{tX}, s{tX}, s{tAO}")
        else:
            g("v_lshrrev_b32 v1, 3, v0", f"v_mul_u32_u24 v1, {a_nks*1024}, v1", "v_and_b32 v10, 7, v0", "v_lshl_add_u32 v1, v10, 7, v1",
              f"v_mov_b32 v10, {hex(OOB)}", "v_cmp_gt_u32 vcc, 32, v0", "s_nop 1", "v_cndmask_b32 v1, v10, v1, vcc")
            g(f"s_lshl_b32 s{tX}, s{tCB}, 10", f"s_add_u32 s{tX}, s{tX}, s{tAO}", f"s_cmp_lt_u32 s{tCB}, 7", f"s_cselect_b32 s{tX}, s{tX}, s{sOOB}")
        g.vmem(f"buffer_load_dword v2, v1, s[{S_WS}:{S_WS+3}], s{tX} offen sc1", 'tch')
    g.wait_vm(('tW', 0)); g(ws_reads(0))
    g.stamp(tag + "_first")
    for j in range(nks):
        rd = []
        if j + 1 < nks:
            g.wait_vm(('tW', j + 1)); rd = ws_reads(j + 1)
        g("s_waitcnt lgkmcnt(0)")
        g.wait_vm(('tA', j))
        fb = V_WF + (j & 1)*16
        for m in range(16):
            c, r = m >> 2, m & 3
            d = A_ACC + (c*4 + r)*4; b = A_AF + (j % DEPTH)*16 + r*4
            cin = "0" if j == 0 else f"a[{d}:{d+3}]"
            g(f"v_mfma_f32_16x16x32_bf16 a[{d}:{d+3}], v[{fb+4*c}:{fb+4*c+3}], a[{b}:{b+3}], {cin}")
            if rd and m < 8: g(rd[m])
            if m == 8 and j + DEPTH < nks: emit(g, ws_wdma(j + DEPTH))
        if j + DEPTH < nks: emit(g, ws_aload(j + DEPTH, a_nks))
    g.stamp(tag + "_loop")
    g("s_nop 7", "s_barrier")
    g(f"s_lshl_b32 s{tX}, s{sWAVE}, 14", f"v_add_u32 v10, s{tX}, v{V_L16}")
    for q in range(16): g(f"ds_write_b128 v10, a[{A_ACC+4*q}:{A_ACC+4*q+3}] offset:{q*1024}")
    g(f"s_lshl_b32 s{tX}, s{tU}, 3", f"s_add_u32 s{tX}, s{tX}, s{tR}", f"s_lshl_b32 s{tX}, s{tX}, 10", f"v_add_u32 v10, s{tX}, v{V_L16}", "v_add_u32 v11, 0x10000, v10",
      "s_waitcnt lgkmcnt(0)", "s_barrier")
    for p in range(8):
        a = 10 if p < 4 else 11
        for c in range(2):
            if p == 7 and c == 1: g("s_waitcnt lgkmcnt(8)")
            g(f"ds_read_b128 v[{64+(p*2+c)*4}:{64+(p*2+c)*4+3}], v{a} offset:{(p%4)*16384 + c*4096}")
    g("s_waitcnt lgkmcnt(0)")
    for st in (32, 16, 8):
        for k in range(st): g(f"v_add_f32 v{64+k}, v{64+k}, v{64+k+st}")
    g.stamp(tag + "_red")

def tail(g):
    g("v_mbcnt_lo_u32_b32 v0, -1, 0", "v_mbcnt_hi_u32_b32 v0, -1, v0", f"v_lshlrev_b32 v{V_L16}, 4, v0")
    g(f"s_and_b32 s{tRB}, s2, 7", f"s_lshl_b32 s{tRB}, s{tRB}, 2", f"s_bfe_u32 s{tX}, s2, 0x20003", f"s_add_u32 s{tRB}, s{tRB}, s{tX}", f"s_lshr_b32 s{tCB}, s2, 5")
    g(f"s_and_b32 s{tR}, s{sWAVE}, 3", f"s_lshr_b32 s{tU}, s{sWAVE}, 2")
    if OPT.get('tprio'):
        lp = g.newlabel("tp")
        g(f"s_cmp_lt_u32 s{sWAVE}, 4", f"s_cbranch_scc1 {lp}", "s_setprio 1"); g.label(lp)
    kKQ, kRB, kCB, kWR, kWC, kAO, kWO, kM0, kO = 36, 37, 38, 39, 40, 41, 42, 43, 44
    NS3 = 5
    g(f"s_bfe_u32 s{kKQ}, s2, 0x20001", f"s_and_b32 s{kRB}, s2, 1", f"s_lshl_b32 s{kRB}, s{kRB}, 3", f"s_bfe_u32 s{tX}, s2, 0x30003", f"s_add_u32 s{kRB}, s{kRB}, s{tX}", f"s_lshr_b32 s{kCB}, s2, 6")
    g(f"s_and_b32 s{kWR}, s{sWAVE}, 3", f"s_lshr_b32 s{kWC}, s{sWAVE}, 2")
    g(f"s_load_dwordx2 s[{S_A}:{S_A+1}], s[0:1], {KA['wo']}", f"s_load_dwordx2 s[{S_B}:{S_B+1}], s[0:1], {KA['x']}")
    g("v_lshrrev_b32 v14, 4, v0", "v_lshlrev_b32 v3, 10, v14", "v_bfe_u32 v15, v0, 1, 3", "v_xor_b32 v15, v15, v14", "v_and_b32 v10, 1, v0", "v_lshlrev_b32 v10, 4, v10",
      "v_add_u32 v3, v3, v10", "v_xor_b32 v11, 4, v15", "v_lshl_add_u32 v4, v11, 5, v3", "v_lshl_add_u32 v3, v15, 5, v3", f"v_add_u32 v4, {4*1024 - 1024}, v4")
    g("v_lshrrev_b32 v14, 4, v0", "v_bfe_u32 v15, v0, 2, 2", "v_lshl_add_u32 v14, v14, 2, v15", "v_lshlrev_b32 v6, 8, v14", "v_and_b32 v14, 7, v14", "v_lshl_add_u32 v6, v14, 5, v6",
      "v_and_b32 v15, 3, v0", "v_lshl_add_u32 v6, v15, 3, v6", f"s_lshl_b32 s{tX}, s{kWC}, 7", f"v_xor_b32 v6, s{tX}, v6", "v_add_u32 v6, 16384, v6")
    for c in range(1, 4): g(f"v_xor_b32 v{6+c}, {c << 5}, v6")
    g(f"s_lshl_b32 s{tX}, s{kWR}, 12", f"v_add_u32 v10, s{tX}, v{V_L16}")
    g(f"s_lshl_b32 s{kAO}, s{kRB}, 3", f"s_add_u32 s{kAO}, s{kAO}, s{sWAVE}", f"s_lshl_b32 s{kAO}, s{kAO}, 17", f"s_lshl_b32 s{tX}, s{kKQ}, 15", f"s_add_u32 s{kAO}, s{kAO}, s{tX}", f"s_add_u32 s{kAO}, s{kAO}, {hex(WS_CTX)}")
    g(f"s_lshl_b32 s{kWO}, s{kKQ}, 20", f"s_lshl_b32 s{tX}, s{sWAVE}, 13", f"s_add_u32 s{kWO}, s{kWO}, s{tX}", f"s_lshl_b32 s{tX}, s{kCB}, 8", f"s_add_u32 s{kWO}, s{kWO}, s{tX}")
    g(f"s_lshl_b32 s{kM0}, s{sWAVE}, 11")
    g("s_waitcnt lgkmcnt(0)"); finish_srd(g, S_A, 'wo'); finish_srd(g, S_B, 'x')
    def w3(st):
        return [f"s_add_u32 m0, s{kM0}, {(st % NS3)*32768 + 16384}", f"s_add_u32 s{tX}, s{kWO}, {st*64*1024}",
                (f"buffer_load_dwordx4 v3, s[{S_A}:{S_A+3}], s{tX} offen lds", ('3W', st)), (f"buffer_load_dwordx4 v4, s[{S_A}:{S_A+3}], s{tX} offen offset:1024 lds", ('3W', st))]
    def a3(st):
        return [f"s_add_u32 m0, s{kM0}, {(st % NS3)*32768}", f"s_add_u32 s{tX}, s{kAO}, {st*2048}",
                (f"buffer_load_dwordx4 v{V_L16}, s[{S_WS}:{S_WS+3}], s{tX} offen sc1 lds", ('3A', st)), (f"buffer_load_dwordx4 v{V_L16}, s[{S_WS}:{S_WS+3}], s{tX} offen offset:1024 sc1 lds", ('3A', st))]
    g.wait_vm('ctxst'); g("s_barrier")
    g(f"s_lshl_b32 s{tZ}, s{sI}, 2", f"s_lshr_b32 s{tY}, s{sHEAD}, 3", f"s_add_u32 s{tZ}, s{tZ}, s{tY}")
    cnt_off(g, tX, C_CTX2, tZ); signal(g, S_WS, ('s', tX), 1, tY)
    g(f"s_sub_u32 s{tY}, 15, s{kRB}", f"s_min_u32 s{tX}, s{kRB}, s{tY}", f"s_lshl_b32 s{tX}, s{tX}, 2", f"s_add_u32 s{tX}, s{tX}, s{kKQ}"); cnt_off(g, tZ, C_CTX2, tX)
    g(f"s_mov_b32 s45, {C_ALL*4}")
    if not OPT.get('syncpoll', 1):
        poll_issue(g, 2, S_DBG, 45, 'pall', tX); poll_issue(g, 1, S_WS, tZ, 'pctx', tX)
    for st in range(NS3 - 1): emit(g, w3(st))
    if not OPT.get('syncpoll', 1):
        poll_check(g, 2, S_DBG, 'pall', 45, 256, tX, tY); poll_check(g, 1, S_WS, 'pctx', tZ, 8, tX, tY)
    else:
        spin(g, 1, S_DBG, 45, 256, tX, tY); spin(g, 1, S_WS, tZ, 8, tX, tY)
    g("s_barrier")
    g.stamp("ctx_ok")
    for st in range(NS3 - 1): emit(g, a3(st))
    g(f"s_lshl_b32 s{kO}, s{kCB}, 2", f"s_add_u32 s{kO}, s{kO}, s{kKQ}")
    g("v_and_b32 v12, 7, v0", "v_bfe_u32 v13, v0, 3, 2", "v_lshrrev_b32 v14, 5, v0")
    g(f"s_lshr_b32 s{tX}, s{kO}, 1", f"s_lshl_b32 s{tY}, s{kRB}, 3", f"s_add_u32 s{tT16}, s{tX}, s{tY}", f"s_and_b32 s{tZ}, s{kO}, 1")
    g(f"s_lshl_b32 s{tX}, s{tT16}, 4", f"s_lshl_b32 s{tY}, s{tZ}, 3", f"s_add_u32 s{tX}, s{tX}, s{tY}", f"v_add_u32 v15, s{tX}, v12")
    g(f"s_lshl_b32 s{tX}, s{sWAVE}, 1", f"v_add_u32 v11, s{tX}, v14", "v_lshlrev_b32 v11, 5, v11", "v_lshl_add_u32 v11, v13, 2, v11")
    g("v_lshlrev_b32 v15, 10, v15", "v_lshl_add_u32 v15, v11, 1, v15", "v_lshlrev_b32 v11, 2, v11")
    g(f"s_lshl_b32 s{tY}, s{tZ}, 7", "v_lshlrev_b32 v12, 4, v12", "v_lshl_add_u32 v12, v13, 8, v12", f"v_add_u32 v12, s{tY}, v12")
    g("v_lshl_add_u32 v13, v14, 11, v12", "v_lshl_add_u32 v12, v14, 10, v12")
    g.vmem(f"buffer_load_dwordx2 v[120:121], v15, s[{S_B}:{S_B+3}], 0 offen", 'xr'); g.vmem(f"buffer_load_dwordx2 v[122:123], v15, s[{S_B}:{S_B+3}], 0 offen offset:32", 'xr')
    g(f"s_mov_b32 s{tX}, {hex(WS_MOD + 1024*4)}")
    for k, off in enumerate((0, 64, 2048, 2048+64, 4096, 4096+64)):
        if off >= 4096: g(f"s_mov_b32 s{tX}, {hex(WS_MOD + 2048*4)}"); off -= 4096
        g.vmem(f"buffer_load_dwordx4 v[{96+4*k}:{99+4*k}], v11, s[{S_WS}:{S_WS+3}], s{tX} offen offset:{off} sc1", 'mods')
    def r3(ks):
        kk = ks & 1; fb = 16 + (ks & 1)*24
        out = [f"ds_read_b128 v[{fb+16+4*r}:{fb+16+4*r+3}], v10 offset:{r*2048+kk*1024}" for r in range(2)]
        for c in range(4):
            out.append(f"ds_read_b64_tr_b16 v[{fb+4*c}:{fb+4*c+1}], v{6+c} offset:{kk*8192}")
            out.append(f"ds_read_b64_tr_b16 v[{fb+4*c+2}:{fb+4*c+3}], v{6+c} offset:{kk*8192+4096}")
        return out
    g.wait_vm(('3A', 0)); g("s_barrier")
    g.stamp("k3_first")
    g(r3(0))
    NST = 16
    dq3 = []
    for ks in range(2*NST):
        st, kk = ks >> 1, ks & 1
        if kk == 1 and st + 1 < NST:
            if not OPT.get('k3nodma') or st + 1 < NS3 - 1: g.wait_vm(('3A', st + 1)); g.wait_vm(('3W', st + 1))
            if not OPT.get('k3nobar'): g("s_barrier")
            if st + NS3 - 1 < NST and not OPT.get('k3nodma'): dq3 = [w3(st + NS3 - 1), a3(st + NS3 - 1)]
            d = (((st + 1) % NS3) - (st % NS3)) * 32768
            for v in (6, 7, 8, 9, 10): g(f"v_add_u32 v{v}, {hex(d & 0xffffffff)}, v{v}")
        rd = r3(ks + 1) if ks + 1 < 2*NST else []
        last = not rd
        fb = 16 + (ks & 1)*24
        for m in range(8):
            c, r = m >> 1, m & 1
            if r == 0: g(f"s_waitcnt lgkmcnt({6 if not last else 6 - 2*c - 0 if False else (6 if not last else max(0, 6 - 2*c))})")
            d = 64 + (c*2 + r)*4
            cin = "0" if ks == 0 else f"v[{d}:{d+3}]"
            g(f"v_mfma_f32_16x16x32_bf16 v[{d}:{d+3}], v[{fb+4*c}:{fb+4*c+3}], v[{fb+16+4*r}:{fb+16+4*r+3}], {cin}")
            if rd:
                g(rd.pop(0))
                if m >= 6 and rd: g(rd.pop(0))
            if m in (3, 5) and dq3: emit(g, dq3.pop(0))
    g.stamp("k3_loop")
    g("s_nop 7")
    g(f"s_lshl_b32 s{tX}, s{kKQ}, 7", f"s_lshl_b32 s{tY}, s{kRB}, 3", f"s_add_u32 s{tX}, s{tX}, s{tY}", f"s_lshl_b32 s{tY}, s{kWR}, 1", f"s_add_u32 s{tX}, s{tX}, s{tY}",
      f"s_lshl_b32 s{tX}, s{tX}, 4", f"s_lshl_b32 s{tY}, s{kCB}, 2", f"s_add_u32 s{tX}, s{tX}, s{tY}", f"s_lshl_b32 s{tY}, s{kWC}, 1", f"s_add_u32 s{tX}, s{tX}, s{tY}",
      f"s_lshl_b32 s{tX}, s{tX}, 10", f"s_add_u32 s{tX}, s{tX}, {hex(WS_PART)}")
    for r in range(2):
        for cp in range(2):
            qa, qb = 64 + ((2*cp)*2 + r)*4, 64 + ((2*cp+1)*2 + r)*4
            t = 16 + (r*2 + cp)*4
            g(f"v_cvt_pk_bf16_f32 v{t}, v{qa}, v{qa+1}", f"v_cvt_pk_bf16_f32 v{t+1}, v{qa+2}, v{qa+3}", f"v_cvt_pk_bf16_f32 v{t+2}, v{qb}, v{qb+1}", f"v_cvt_pk_bf16_f32 v{t+3}, v{qb+2}, v{qb+3}")
            g.vmem(f"buffer_store_dwordx4 v[{t}:{t+3}], v{V_L16}, s[{S_WS}:{S_WS+3}], s{tX} offen offset:{cp*1024} sc1", 'pst')
        if r == 0: g(f"s_add_u32 s{tX}, s{tX}, 16384")
    g.wait_vm('pst'); g("s_barrier")
    cnt_off(g, tX, C_PART, kRB); signal(g, S_WS, ('s', tX), 1, tY)
    cnt_off(g, tY, C_PART, kRB); g(f"s_mov_b32 s{kAO}, s{tY}"); spin(g, 1, S_WS, kAO, 16, tX, tY, sleep=2)
    g("s_barrier")
    g.stamp("part_ok")
    g(f"s_lshl_b32 s{tX}, s{tT16}, 14", f"s_lshl_b32 s{tY}, s{sWAVE}, 11", f"s_add_u32 s{tX}, s{tX}, s{tY}", f"s_add_u32 s{tX}, s{tX}, {hex(WS_PART)}")
    for q in range(4):
        g.vmem(f"buffer_load_dwordx4 v[{16+4*q}:{19+4*q}], v12, s[{S_WS}:{S_WS+3}], s{tX} offen sc1", ('pl', q))
        if q < 3: g(f"s_add_u32 s{tX}, s{tX}, {128*16384}")
    for q in range(4):
        g.wait_vm(('pl', q))
        for d in range(4):
            if q == 0: g(f"v_lshlrev_b32 v{64+2*d}, 16, v{16+d}", f"v_and_b32 v{65+2*d}, 0xffff0000, v{16+d}")
            else: g(f"v_lshlrev_b32 v72, 16, v{16+4*q+d}", f"v_and_b32 v73, 0xffff0000, v{16+4*q+d}", f"v_add_f32 v{64+2*d}, v{64+2*d}, v72", f"v_add_f32 v{65+2*d}, v{65+2*d}, v73")
    for c in range(2):
        g(f"v_lshlrev_b32 v72, 16, v{120+2*c}", f"v_and_b32 v73, 0xffff0000, v{120+2*c}", f"v_lshlrev_b32 v74, 16, v{121+2*c}", f"v_and_b32 v75, 0xffff0000, v{121+2*c}")
        for k in range(4): g(f"v_fma_f32 v{64+4*c+k}, v{64+4*c+k}, v{96+4*c+k}, v{72+k}")
    g(f"s_lshl_b32 s{tX}, s{tT16}, 15", f"s_lshl_b32 s{tY}, s{sWAVE}, 12", f"s_add_u32 s{tX}, s{tX}, s{tY}", f"s_add_u32 s{tX}, s{tX}, {hex(WS_X1)}")
    g.vmem(f"buffer_store_dwordx4 v[64:67], v13, s[{S_WS}:{S_WS+3}], s{tX} offen sc1", 'x1st'); g.vmem(f"buffer_store_dwordx4 v[68:71], v13, s[{S_WS}:{S_WS+3}], s{tX} offen offset:1024 sc1", 'x1st')
    def red8(v, t):
        g("s_nop 1", f"v_add_f32_dpp v{v}, v{v}, v{v} row_ror:8 row_mask:0xf bank_mask:0xf")
        cross_g(g, v, t, "v_add_f32")
    g("v_add_f32 v72, v64, v65", "v_add_f32 v73, v66, v67", "v_add_f32 v74, v68, v69", "v_add_f32 v75, v70, v71", "v_add_f32 v72, v72, v73", "v_add_f32 v74, v74, v75", "v_add_f32 v72, v72, v74")
    red8(72, 73)
    g("v_mul_f32 v72, 0x3c800000, v72")
    g("v_sub_f32 v74, v64, v72", "v_mul_f32 v73, v74, v74")
    for k in range(1, 8): g(f"v_sub_f32 v74, v{64+k}, v72", "v_fmac_f32 v73, v74, v74")
    red8(73, 74)
    g("v_and_b32 v74, 7, v0", "v_lshlrev_b32 v74, 6, v74", f"s_lshl_b32 s{tX}, s{sWAVE}, 3", f"v_add_u32 v75, s{tX}, v74", "ds_write_b64 v75, v[72:73]", "s_waitcnt lgkmcnt(0)", "s_barrier")
    for q in range(4): g(f"ds_read_b128 v[{76+4*q}:{79+4*q}], v74 offset:{q*16}")
    g("s_waitcnt lgkmcnt(0)")
    g("v_add_f32 v72, v76, v78", "v_add_f32 v73, v80, v82", "v_add_f32 v72, v72, v73", "v_add_f32 v73, v84, v86", "v_add_f32 v72, v72, v73", "v_add_f32 v73, v88, v90", "v_add_f32 v72, v72, v73")
    g("v_mul_f32 v72, 0.125, v72" if False else "v_mul_f32 v72, 0x3e000000, v72")
    g("v_add_f32 v73, v77, v79")
    for q in range(2, 8): g(f"v_add_f32 v73, v73, v{77+2*q}")
    for q in range(8): g(f"v_sub_f32 v74, v{76+2*q}, v72", "v_mul_f32 v75, v74, v74", "v_fmac_f32 v73, 0x42800000, v75")
    g("v_mov_b32 v74, 0x3727c5ac", "v_fmac_f32 v74, 0x3b000000, v73", "v_rsq_f32 v74, v74", "s_nop 0")
    for k in range(8): g(f"v_sub_f32 v{64+k}, v{64+k}, v72")
    for k in range(8): g(f"v_mul_f32 v{64+k}, v{64+k}, v74")
    for k in range(8): g(f"v_add_f32 v{112+k}, 1.0, v{112+k}")
    for k in range(8): g(f"v_fma_f32 v{64+k}, v{64+k}, v{112+k}, v{104+k}")
    for k in range(4): g(f"v_cvt_pk_bf16_f32 v{72+k}, v{64+2*k}, v{65+2*k}")
    g(f"s_lshl_b32 s{tX}, s{tT16}, 14", f"s_lshl_b32 s{tY}, s{sWAVE}, 11", f"s_add_u32 s{tX}, s{tX}, s{tY}", f"s_add_u32 s{tX}, s{tX}, {hex(WS_H2)}")
    g.vmem(f"buffer_store_dwordx4 v[72:75], v12, s[{S_WS}:{S_WS+3}], s{tX} offen sc1", 'h2st')
    g(f"s_lshr_b32 s{kO}, s{kRB}, 1")
    g.stamp("stats_ok")
    LK5 = g.newlabel("k5")
    g(f"s_load_dwordx2 s[{S_A}:{S_A+1}], s[0:1], {KA['wg']}", f"s_load_dwordx2 s[{S_B}:{S_B+1}], s[0:1], {KA['wu']}")
    g(f"s_and_b32 s{tRB4}, s2, 1", f"s_lshl_b32 s{tRB4}, s{tRB4}, 2", f"s_bfe_u32 s{tX}, s2, 0x20003", f"s_add_u32 s{tRB4}, s{tRB4}, s{tX}",
      f"s_bfe_u32 s{tCB4}, s2, 0x20001", f"s_mul_i32 s{tCB4}, s{tCB4}, 7", f"s_lshr_b32 s{tX}, s2, 5", f"s_add_u32 s{tCB4}, s{tCB4}, s{tX}")
    g(f"s_lshl_b32 s{tT16}, s{tRB4}, 4", f"s_lshl_b32 s{tX}, s{sWAVE}, 1", f"s_add_u32 s{tT16}, s{tT16}, s{tX}")
    setup_dma128(g, 3584, nat=False); setup_tr128(g, nat=False)
    g(f"s_mul_i32 s{sWB}, s{sWAVE}, {16*3584}", f"s_lshl_b32 s{tX}, s{tCB4}, 7", f"s_add_u32 s{sWB}, s{sWB}, s{tX}", f"s_lshl_b32 s{sM0B}, s{sWAVE}, 11")
    g("s_waitcnt lgkmcnt(0)"); finish_srd(g, S_A, 'wg'); finish_srd(g, S_B, 'wu')
    def dma4(c):
        j, q = c >> 2, c & 3
        srd = S_A if j == 0 else S_B
        return [f"s_add_u32 m0, s{sM0B}, {hex(c*16384)}", f"s_add_u32 s{tX}, s{sWB}, {hex(q*128*3584)}",
                (f"buffer_load_dwordx4 v{V_W0}, s[{srd}:{srd+3}], s{tX} offen lds", ('W', c)),
                (f"buffer_load_dwordx4 v{V_W1}, s[{srd}:{srd+3}], s{tX} offen offset:1024 lds", ('W', c))]
    g.wait_vm('h2st'); g("s_barrier")
    cnt_off(g, tX, C_H2, 44); signal(g, S_WS, ('s', tX), 1, tY)
    g("s_cmp_ge_u32 s2, 224", f"s_cbranch_scc1 {LK5}")
    cnt_off(g, tZ, C_H2, tRB4)
    if not OPT.get('syncpoll', 1): poll_issue(g, 1, S_WS, tZ, 'ph2', tX)
    for c in (0, 4, 1, 5): emit(g, dma4(c))
    for cb in range(4): g(f"v_add_u32 v{10+cb}, 0x10000, v{V_TR+cb}")
    if not OPT.get('syncpoll', 1): poll_check(g, 1, S_WS, 'ph2', tZ, 32, tX, tY)
    else: spin(g, 1, S_WS, tZ, 32, tX, tY)
    g("s_barrier")
    g.stamp("h2_ok")
    g.vm = [('W', c) for c in (0, 4, 1, 5) for _ in range(2)]
    def hload4(s4):
        out = []
        for t in range(2):
            out.append(f"s_lshl_b32 s{tX}, s{tT16}, 14"); out.append(f"s_add_u32 s{tX}, s{tX}, {hex(WS_H2 + t*16384 + s4*4096)}")
            for k in range(4):
                s = s4*4 + k
                out.append((f"buffer_load_dwordx4 a[{(s*2+t)*4}:{(s*2+t)*4+3}], v{V_L16}, s[{S_WS}:{S_WS+3}], s{tX} offen offset:{k*1024} sc1", ('H', s4)))
        return out
    def rd4(ks):
        j, s_ = ks >> 4, ks & 15
        q, kk = s_ >> 2, s_ & 3
        fb = V_FR + (ks % 3)*16
        out = []
        for c in range(4):
            a_ = (V_TR if c < 2 else 10) + 2*j + (c & 1)
            off = q*16384 + kk*4096
            out.append(f"ds_read_b64_tr_b16 v[{fb+4*c}:{fb+4*c+1}], v{a_} offset:{off}")
            out.append(f"ds_read_b64_tr_b16 v[{fb+4*c+2}:{fb+4*c+3}], v{a_} offset:{off+2048}")
        return out
    def silu_items(j):
        it = []
        buf = 64 + 32*j
        T = (1, 2, 14, 15)
        for t in range(2):
            for c in range(2):
                G, U = buf + (t*4 + c)*4, buf + (t*4 + 2 + c)*4
                it += [f"v_mul_f32 v{T[k]}, s{tZ}, v{G+k}" for k in range(4)]
                it += [f"v_exp_f32 v{T[k]}, -v{T[k]}" for k in range(4)]
                it += [f"v_mul_f32 v{G+k}, v{G+k}, v{U+k}" for k in range(4)]
                it += [f"v_add_f32 v{T[k]}, 1.0, v{T[k]}" for k in range(4)]
                it += [f"v_rcp_f32 v{T[k]}, v{T[k]}" for k in range(4)] + ["s_nop 0"]
                it += [f"v_mul_f32 v{G+k}, v{G+k}, v{T[k]}" for k in range(4)]
            G0, G1 = buf + (t*4)*4, buf + (t*4 + 1)*4
            it += [f"v_cvt_pk_bf16_f32 v{G0}, v{G0}, v{G0+1}", f"v_cvt_pk_bf16_f32 v{G0+1}, v{G0+2}, v{G0+3}", f"v_cvt_pk_bf16_f32 v{G0+2}, v{G1}, v{G1+1}", f"v_cvt_pk_bf16_f32 v{G0+3}, v{G1+2}, v{G1+3}"]
            it += [('ST', t, j)]
        return it
    def act_store(t, j):
        a_ = 64 + 32*j + (t*4)*4
        g(f"s_add_u32 s{tX}, s{kAO}, {t*56*1024 + j*1024}")
        g.vmem(f"buffer_store_dwordx4 v[{a_}:{a_+3}], v{V_L16}, s[{S_WS}:{S_WS+3}], s{tX} offen sc1", 'actst')
    g(f"s_mul_i32 s{kAO}, s{tT16}, {56*1024}", f"s_lshl_b32 s{tY}, s{tCB4}, 11", f"s_add_u32 s{kAO}, s{kAO}, s{tY}", f"s_add_u32 s{kAO}, s{kAO}, {hex(WS_ACT)}")
    emit(g, hload4(0)); emit(g, hload4(1))
    g.wait_vm(('W', 4)); g("s_barrier")
    g(rd4(0)); r1 = rd4(1); g(r1[:7]); g("s_waitcnt lgkmcnt(7)"); g(r1[7])
    fq4, dq4 = [], []
    for ks in range(32):
        j, s_ = ks >> 4, ks & 15
        if ks in (2, 6, 10):
            q = ks // 4 + 1
            g.wait_vm(('W', 4 + q)); g("s_barrier")
            if q + 1 < 4: dq4 = [dma4(q + 1), dma4(4 + q + 1)]
        if ks == 0: emit(g, hload4(2))
        if ks == 2: emit(g, hload4(3))
        if ks < 16 and ks % 4 == 0: g.wait_vm(('H', ks // 4))
        if ks == 17:
            g(f"s_mov_b32 s{tZ}, {hex(LOG2E)}"); fq4 = silu_items(0)
        reads = rd4(ks + 2) if ks + 2 < 32 else []
        fb = V_FR + (ks % 3)*16
        for m in range(8):
            c, t = m >> 1, m & 1
            d = 64 + 32*j + (t*4 + c)*4
            cin = "0" if s_ == 0 else f"v[{d}:{d+3}]"
            g(f"v_mfma_f32_16x16x32_bf16 v[{d}:{d+3}], v[{fb+4*c}:{fb+4*c+3}], a[{(s_*2+t)*4}:{(s_*2+t)*4+3}], {cin}")
            if m == 7 and reads: g("s_waitcnt lgkmcnt(7)")
            if reads: g(reads[m])
            elif m == 7 and ks + 1 < 32: g("s_waitcnt lgkmcnt(0)")
            if m == 2 and dq4: emit(g, dq4.pop(0))
            for _ in range(2):
                if fq4:
                    x = fq4.pop(0)
                    if isinstance(x, tuple): act_store(x[1], x[2])
                    else: g(x)
    assert not fq4
    g.stamp("k4_loop")
    g("s_nop 7")
    for x in silu_items(1):
        if isinstance(x, tuple): act_store(x[1], x[2])
        else: g(x)
    g("s_waitcnt vmcnt(0)", "s_barrier")
    cnt_off(g, tX, C_ACT, tRB4); signal(g, S_WS, ('s', tX), 1, tY)
    g.label(LK5)
    g.vm = []
    g.stamp("k5_entry")
    wsplit_setup(g, 7, WS_ACT, 56, 'wd')
    g(f"s_lshr_b32 s{tX}, s{tRB}, 2"); cnt_off(g, tZ, C_ACT, tX)
    if not OPT.get('syncpoll', 1): poll_issue(g, 1, S_WS, tZ, 'pact', tX)
    for j in range(DEPTH): emit(g, ws_wdma(j))
    if OPT.get('twd'):
        g(f"s_and_b32 s{tX}, s{tRB}, 3", f"s_mul_i32 s{tX}, s{tX}, 7", f"s_add_u32 s{tX}, s{tX}, s{sWAVE}", f"s_lshl_b32 s{tX}, s{tX}, 16", f"s_lshl_b32 s{tY}, s{tCB}, 7",
          f"s_add_u32 s{tX}, s{tX}, s{tY}", f"s_cmp_lt_u32 s{sWAVE}, 7", f"s_cselect_b32 s{tX}, s{tX}, s{sOOB}", "v_lshlrev_b32 v1, 10, v0")
        g.vmem(f"buffer_load_dword v2, v1, s[{S_A}:{S_A+3}], s{tX} offen", 'tch')
    X1LOAD = True
    g(f"s_lshl_b32 s{tX}, s{tCB}, 6", f"s_lshl_b32 s{tY}, s{tU}, 5", f"s_add_u32 s{tX}, s{tX}, s{tY}", "v_lshrrev_b32 v15, 4, v0", "v_lshlrev_b32 v15, 2, v15", f"v_add_u32 v15, s{tX}, v15")
    g("v_lshlrev_b32 v13, 2, v15", f"s_mov_b32 s{tX}, {hex(WS_MOD + 2560*4)}")
    g.vmem(f"buffer_load_dwordx4 v[60:63], v13, s[{S_WS}:{S_WS+3}], s{tX} offen sc1", 'gb'); g.vmem(f"buffer_load_dwordx4 v[12:15], v13, s[{S_WS}:{S_WS+3}], s{tX} offen offset:64 sc1", 'gb')
    g(f"s_load_dwordx2 s[{S_B}:{S_B+1}], s[0:1], {KA['out']}")
    if not OPT.get('syncpoll', 1): poll_check(g, 1, S_WS, 'pact', tZ, 28, tX, tY)
    else: spin(g, 1, S_WS, tZ, 28, tX, tY)
    g("s_waitcnt lgkmcnt(0)"); finish_srd(g, S_B, 'out')
    g("s_barrier")
    g.stamp("act_ok")
    g(f"s_lshl_b32 s{tX}, s{tRB}, 2", f"s_add_u32 s{tX}, s{tX}, s{tR}", f"s_lshl_b32 s{tX}, s{tX}, 4", f"s_lshl_b32 s{tY}, s{tCB}, 1", f"s_add_u32 s{tX}, s{tX}, s{tY}",
      f"s_add_u32 s{tX}, s{tX}, s{tU}", f"s_lshl_b32 s{tX}, s{tX}, 11", f"s_add_u32 s{tX}, s{tX}, {hex(WS_X1)}")
    g.vmem(f"buffer_load_dwordx4 v[52:55], v{V_L16}, s[{S_WS}:{S_WS+3}], s{tX} offen sc1", 'x1l'); g.vmem(f"buffer_load_dwordx4 v[56:59], v{V_L16}, s[{S_WS}:{S_WS+3}], s{tX} offen offset:1024 sc1", 'x1l')
    wsplit_main(g, 7, 56, "k5")
    for k in range(4): g(f"v_fma_f32 v{64+k}, v{64+k}, v{60+k}, v{52+k}")
    for k in range(4): g(f"v_fma_f32 v{68+k}, v{68+k}, v{12+k}, v{56+k}")
    for k in range(4): g(f"v_cvt_pk_bf16_f32 v{16+k}, v{64+2*k}, v{65+2*k}")
    om = OPT.get('outmode', 2)
    if om < 2:
        g(f"s_lshl_b32 s{tX}, s{tRB}, 6", f"s_lshl_b32 s{tY}, s{tR}, 4", f"s_add_u32 s{tX}, s{tX}, s{tY}", "v_and_b32 v20, 15, v0", f"v_add_u32 v20, s{tX}, v20")
        g(f"s_lshl_b32 s{tX}, s{tCB}, 6", f"s_lshl_b32 s{tY}, s{tU}, 5", f"s_add_u32 s{tX}, s{tX}, s{tY}", "v_lshrrev_b32 v21, 4, v0", "v_lshlrev_b32 v21, 2, v21", f"v_add_u32 v21, s{tX}, v21")
        g("v_lshlrev_b32 v20, 10, v20", "v_lshl_add_u32 v20, v21, 1, v20")
        g(f"buffer_store_dwordx2 v[16:17], v20, s[{S_B}:{S_B+3}], 0 offen{' sc1' if om == 1 else ''}", f"buffer_store_dwordx2 v[18:19], v20, s[{S_B}:{S_B+3}], 0 offen offset:32{' sc1' if om == 1 else ''}")
    else:
        g("s_barrier")
        g("v_and_b32 v20, 15, v0", f"s_lshl_b32 s{tX}, s{tR}, 4", f"v_add_u32 v20, s{tX}, v20", "v_mul_u32_u24 v20, 144, v20", "v_lshrrev_b32 v21, 4, v0",
          "v_lshl_add_u32 v20, v21, 3, v20", f"s_lshl_b32 s{tX}, s{tU}, 6", f"v_add_u32 v20, s{tX}, v20")
        g("ds_write_b64 v20, v[16:17]", "ds_write_b64 v20, v[18:19] offset:32", "s_waitcnt lgkmcnt(0)", "s_barrier")
        g("v_lshrrev_b32 v20, 3, v0", f"s_lshl_b32 s{tX}, s{sWAVE}, 3", f"v_add_u32 v20, s{tX}, v20", "v_and_b32 v21, 7, v0", "v_mul_u32_u24 v22, 144, v20", "v_lshl_add_u32 v22, v21, 4, v22",
          "ds_read_b128 v[24:27], v22")
        g(f"s_lshl_b32 s{tX}, s{tRB}, 6", f"v_add_u32 v20, s{tX}, v20", "v_lshlrev_b32 v20, 10, v20", "v_lshl_add_u32 v20, v21, 4, v20", f"s_lshl_b32 s{tX}, s{tCB}, 7", "s_waitcnt lgkmcnt(0)")
        g(f"buffer_store_dwordx4 v[24:27], v20, s[{S_B}:{S_B+3}], s{tX} offen{' sc1' if om == 3 else ''}")
    if Gen.STAMP:
        g("s_waitcnt vmcnt(0)"); g.stamp("end"); g.dump_stamps(sWAVE, 2)

def tail_code_touch(g):
    lsk = g.newlabel("noct2")
    g(f"s_cmp_lg_u32 s{sWAVE}, 0", f"s_cbranch_scc1 {lsk}", f"s_lshr_b32 s{sT1}, s2, 3", "v_mbcnt_lo_u32_b32 v0, -1, 0", "v_mbcnt_hi_u32_b32 v0, -1, v0")
    code_touch(g, KNAME, sT1, 2, 3, 16, 18, 56)
    g.label(lsk)

def all_signal(g):
    signal(g, S_DBG, C_ALL*4, 6, sT1)

def mega(g):
    if not OPT.get('all_early'): OPT['hook_bstart'] = all_signal
    if OPT.get('ctouch2'): OPT['hook_fin'] = tail_code_touch
    front(g, fused=True)
    tail(g)
```
